```python
import torch

def _softmax(x, axis=-1):
    return torch.softmax(x, dim=axis)
def _gelu(x):
    return torch.nn.functional.gelu(x, approximate="tanh")
def _silu(x):
    return torch.nn.functional.silu(x)
def _sigmoid(x):
    return torch.sigmoid(x)
def _layernorm(x, axis=-1, eps=1e-5):
    m = x.mean(dim=axis, keepdim=True)
    v = x.var(dim=axis, keepdim=True, unbiased=False)
    return (x - m) / torch.sqrt(v + eps)
def _scatter_add(tgt, idx, src, axis=0):
    return tgt.clone().index_add_(axis, idx, src)
def _segment_sum(src, seg, n):
    out = torch.zeros((n,) + src.shape[1:], dtype=src.dtype)
    return out.index_add_(0, seg, src)
def _pad(x, pw):
    flat = tuple(v for pair in reversed(pw) for v in pair)
    return torch.nn.functional.pad(x, flat)

kernel_name = 'concat_heads__ssm_conv_h3__sliding_local_dilated__prompt'

def setup_inputs():

    _w = (lambda a: (lambda t: t.to(torch.bfloat16) if t.is_floating_point() else t)(torch.as_tensor(a)))
    def _A_setup():
        B, S, D = 1, 2048, 640
        ks = 4
        return {
            "q": _w((lambda *s: torch.randn(*s, dtype=torch.bfloat16) * 0.05)(B, S, D)),
            "k": _w((lambda *s: torch.randn(*s, dtype=torch.bfloat16) * 0.8)(B, S, D)),
            "v": _w((lambda *s: torch.randn(*s, dtype=torch.bfloat16) * 0.8)(B, S, D)),
            "shift_k": _w((lambda *s: torch.randn(*s, dtype=torch.bfloat16) * 0.8)(D, ks) * 0.5),
            "ssm_k": _w((lambda *s: torch.randn(*s, dtype=torch.bfloat16) * 3.2)(D, S) * (1.0 / S ** 0.5)),
            "ssm_D": _w((lambda *s: torch.randn(*s, dtype=torch.bfloat16) * 0.8)(D)),
        }
    _A_in = _A_setup()

    def _B_setup():
        B, S, D = 1, 2048, 640
        return {
            "x": _w((lambda *s: torch.randn(*s, dtype=torch.bfloat16) * 0.2)(B, S, D)),
            "wqkv": _w((lambda *s: torch.randn(*s, dtype=torch.bfloat16) * 0.2)(D, 3 * D)),
            "wo": _w((lambda *s: torch.randn(*s, dtype=torch.bfloat16) * 0.05)(D, D)),
        }
    _B_in = _B_setup()

    return {
        "A_q": _A_in["q"],
        "A_k": _A_in["k"],
        "A_v": _A_in["v"],
        "A_shift_k": _A_in["shift_k"],
        "A_ssm_k": _A_in["ssm_k"],
        "A_ssm_D": _A_in["ssm_D"],
        "B_x": _B_in["x"],
        "B_wqkv": _B_in["wqkv"],
        "B_wo": _B_in["wo"],
    }

def reference(A_q, A_k, A_v, A_shift_k, A_ssm_k, A_ssm_D, B_x, B_wqkv, B_wo):
    def _A_ref(q, k, v, shift_k, ssm_k, ssm_D):
        B, S, D = q.shape
        ks = shift_k.shape[-1]
        k_pad = _pad(k, ((0, 0), (ks - 1, 0), (0, 0)))
        k_shift = torch.zeros_like(k)
        for t in range(ks):
            k_shift = k_shift + k_pad[:, t:t + S, :] * shift_k[:, ks - 1 - t][None, None, :]
        kv = k_shift * v
        L = 2 * S
        kv_pad = _pad(kv, ((0, 0), (0, S), (0, 0)))
        kf_pad = _pad(ssm_k, ((0, 0), (0, S)))
        kv_f = (lambda x, axes=(-2,-1): torch.fft.rfft2(x.float(), dim=axes))(kv_pad[:, None, :, :], axes=(1, 2))
        kf_f = (lambda x, axes=(-2,-1): torch.fft.rfft2(x.float(), dim=axes))(kf_pad[:, None, :], axes=(1, 2))
        kf_f = (lambda x, *d: x.permute(*d))(kf_f, 1, 2, 0)
        y_f = kv_f * kf_f[None, :, :, :]
        y = (lambda x, s, axes=(-2,-1): torch.fft.irfft2(x, s=s, dim=axes).to(torch.bfloat16))(y_f, (1, L), axes=(1, 2))[:, 0, :S, :]
        y = y + kv * ssm_D[None, None, :]
        return q * y

    def _B_ref(x, wqkv, wo):
        B, S, D = x.shape
        H = 32; Dh = D // H
        W, dil = 8, 2
        qkv = (lambda x, *d: x.permute(*d))((x @ wqkv).reshape(B, S, 3, H, Dh), 2, 0, 3, 1, 4)
        q, k, v = qkv[0], qkv[1], qkv[2]
        scale = Dh ** -0.5
        pos = torch.arange(S)
        off = torch.arange(W) * dil
        idx = pos[:, None] - off[None, :]
        mask = idx >= 0
        idx_c = torch.where(mask, idx, 0).reshape(-1)
        kg = k[:, :, idx_c, :].reshape(B, H, S, W, Dh)
        vg = v[:, :, idx_c, :].reshape(B, H, S, W, Dh)
        logits = torch.einsum("bhsd,bhswd->bhsw", q, kg) * scale
        logits = torch.where(mask[None, None, :, :], logits, -1e9)
        attn = _softmax(logits, axis=-1)
        o = torch.einsum("bhsw,bhswd->bhsd", attn, vg)
        return (lambda x, *d: x.permute(*d))(o, 0, 2, 1, 3).reshape(B, S, D) @ wo

    a = _A_ref(A_q, A_k, A_v, A_shift_k, A_ssm_k, A_ssm_D)
    b = _B_ref(B_x, B_wqkv, B_wo)
    return torch.concatenate([a, b], axis=-1)
```

```python
import sys

KNAME = "concat_heads__ssm_conv_h3__sliding_local_dilated__prompt_kernel"

S = 2048
D = 640
WS_XT = 0
WS_OW = 0x280000
WS_YT = 0x500000
WS_FL = 0x780000
WS_TS = 0x800000
TSZ = 640 * 4096

OOB = 0x80000000


class Asm:
    def __init__(self):
        self.l = []
        self.uid = 0

    def __call__(self, s=""):
        for line in s.split("\n"):
            line = line.strip()
            if line:
                self.l.append("    " + line if not line.endswith(":") else line)

    def label(self, name):
        self.l.append(name + ":")

    def newlabel(self, p="L"):
        self.uid += 1
        return f"{p}_{self.uid}"

    def text(self):
        return "\n".join(self.l) + "\n"


def vr(b, n=1):
    return f"v{b}" if n == 1 else f"v[{b}:{b+n-1}]"


def sr(b, n=1):
    return f"s{b}" if n == 1 else f"s[{b}:{b+n-1}]"


P_Q, P_K, P_V, P_SK, P_H, P_SD, P_X, P_W, P_WO, P_OUT, P_DBG, P_WS = [8 + 2 * i for i in range(12)]


def srd(a, dst, ptr, nbytes, off=0):
    if off:
        a(f"s_add_u32 s{dst}, s{ptr}, 0x{off:x}")
        a(f"s_addc_u32 s{dst+1}, s{ptr+1}, 0")
    else:
        a(f"s_mov_b32 s{dst}, s{ptr}")
        a(f"s_mov_b32 s{dst+1}, s{ptr+1}")
    a(f"s_mov_b32 s{dst+2}, 0x{nbytes:x}")
    a(f"s_mov_b32 s{dst+3}, 0x00020000")


def prologue(a, nwg, endlabel):
    a(f"s_cmp_ge_u32 s2, {nwg}")
    a(f"s_cbranch_scc1 {endlabel}")
    a("s_load_dwordx16 s[8:23], s[0:1], 0")
    a("s_load_dwordx8 s[24:31], s[0:1], 64")
    a("v_lshrrev_b32 v2, 6, v0")
    a("v_and_b32 v1, 63, v0")
    a("s_and_b32 s4, s2, 7")
    a("v_readfirstlane_b32 s3, v2")
    a("s_lshr_b32 s5, s2, 3")
    a("s_waitcnt lgkmcnt(0)")


class TS:
    def __init__(self, on):
        self.on = on
        self.n = 0

    def stamp(self, a):
        if not self.on:
            return
        i = self.n
        self.n += 1
        a(f"s_memrealtime s[96:97]")
        a("s_waitcnt lgkmcnt(0)")
        a(f"s_mov_b32 s{80+i}, s96")

    def flush(self, a):
        if not self.on:
            return
        srd(a, 96, P_WS, 0x10000, WS_TS)
        lab = a.newlabel("TSX")
        a("v_cmp_eq_u32 vcc, 0, v0")
        a("s_and_saveexec_b64 s[100:101], vcc")
        a(f"s_cbranch_execz {lab}")
        a("s_lshl_b32 s7, s2, 6")
        a("v_mov_b32 v3, s7")
        for i in range(self.n):
            a(f"v_mov_b32 v2, s{80+i}")
            a(f"buffer_store_dword v2, v3, s[96:99], 0 offen offset:{4*i}")
        a("s_waitcnt vmcnt(0)")
        a.label(lab)
        a("s_mov_b64 exec, s[100:101]")


A1_LDS = 139264


def a1_issue(a):
    srd(a, 48, P_K, TSZ)
    srd(a, 52, P_V, TSZ)
    srd(a, 56, P_SK, 640 * 8)
    a("v_mul_u32_u24 v172, 205, v1")
    a("v_lshrrev_b32 v172, 11, v172")
    a("v_mul_u32_u24 v173, 10, v172")
    a("v_sub_u32 v173, v1, v173")
    a("s_lshl_b32 s6, s3, 2")
    a("v_add_u32 v174, s6, v172")
    a("s_lshl_b32 s6, s5, 6")
    a("s_sub_u32 s6, s6, 3")
    a("v_lshlrev_b32 v175, 1, v174")
    a("v_add_u32 v175, s6, v175")
    a("s_movk_i32 s7, 1280")
    a("v_mul_lo_u32 v175, v175, s7")
    a("s_mul_i32 s6, s4, 160")
    a("v_lshlrev_b32 v176, 4, v173")
    a("v_add_u32 v176, s6, v176")
    a("v_add_u32 v175, v175, v176")
    a("v_cmp_gt_u32 vcc, 40, v1")
    a(f"v_mov_b32 v177, 0x{OOB:x}")
    a("s_nop 0")
    a("v_cndmask_b32 v175, v177, v175, vcc")
    a("v_add_u32 v176, 1280, v175")
    a("v_add_u32 v178, 2560, v175")
    a("v_add_u32 v179, 3840, v175")
    a("v_add_u32 v180, 5120, v175")
    a("buffer_load_dwordx4 v[128:131], v175, s[48:51], 0 offen")
    a("buffer_load_dwordx4 v[132:135], v176, s[48:51], 0 offen")
    a("buffer_load_dwordx4 v[136:139], v178, s[48:51], 0 offen")
    a("buffer_load_dwordx4 v[140:143], v179, s[48:51], 0 offen")
    a("buffer_load_dwordx4 v[144:147], v180, s[48:51], 0 offen")
    a("buffer_load_dwordx4 v[148:151], v179, s[52:55], 0 offen")
    a("buffer_load_dwordx4 v[152:155], v180, s[52:55], 0 offen")
    a("s_mul_i32 s6, s4, 640")
    a("v_lshlrev_b32 v181, 6, v173")
    a("v_add_u32 v181, s6, v181")
    a("v_cndmask_b32 v181, v177, v181, vcc")
    for i in range(4):
        a(f"buffer_load_dwordx4 v[{156+4*i}:{159+4*i}], v181, s[56:59], 0 offen offset:{16*i}")
    return 11


def a1_compute(a, younger):
    a(f"s_waitcnt vmcnt({younger})")
    a("s_mov_b32 s6, 0xffff0000")
    for c in range(4):
        for m in range(4):
            for e in range(2):
                src = 156 + 2 * (2 * c + e) + (m >> 1)
                dst = 192 + (c * 4 + m) * 2 + e
                if m & 1:
                    a(f"v_and_b32 v{dst}, s6, v{src}")
                else:
                    a(f"v_lshlrev_b32 v{dst}, 16, v{src}")
    a("v_sub_u32 v182, 31, v174")
    a("v_lshrrev_b32 v183, 2, v182")
    a("v_add_u32 v183, v183, v173")
    a("v_and_b32 v183, 7, v183")
    a("v_lshlrev_b32 v183, 4, v183")
    a("v_and_b32 v182, 3, v182")
    a("v_lshlrev_b32 v182, 2, v182")
    a("v_add_u32 v182, v182, v183")
    a("v_lshlrev_b32 v183, 10, v173")
    a("v_add_u32 v182, v182, v183")
    a(f"v_add_u32 v182, {A1_LDS}, v182")
    a("s_mov_b32 exec_lo, -1")
    a("s_mov_b32 exec_hi, 0xff")
    for c in range(4):
        for i in range(5):
            a(f"v_lshlrev_b32 v{224+2*i}, 16, v{128+4*i+c}")
            a(f"v_and_b32 v{225+2*i}, s6, v{128+4*i+c}")
        for i in range(2):
            a(f"v_lshlrev_b32 v{234+2*i}, 16, v{148+4*i+c}")
            a(f"v_and_b32 v{235+2*i}, s6, v{148+4*i+c}")
        W = lambda m: f"v[{192+(c*4+m)*2}:{193+(c*4+m)*2}]"
        K = lambda i: f"v[{224+2*i}:{225+2*i}]"
        a(f"v_pk_mul_f32 v[238:239], {W(3)}, {K(0)}")
        a(f"v_pk_mul_f32 v[240:241], {W(3)}, {K(1)}")
        for m in (2, 1, 0):
            a(f"v_pk_fma_f32 v[238:239], {W(m)}, {K(3-m)}, v[238:239]")
            a(f"v_pk_fma_f32 v[240:241], {W(m)}, {K(4-m)}, v[240:241]")
        a("v_pk_mul_f32 v[238:239], v[238:239], v[234:235]")
        a("v_pk_mul_f32 v[240:241], v[240:241], v[236:237]")
        a("v_cvt_pk_bf16_f32 v242, v240, v238")
        a("v_cvt_pk_bf16_f32 v243, v241, v239")
        a(f"ds_write_b32 v182, v242 offset:{(2*c)*128}")
        a(f"ds_write_b32 v182, v243 offset:{(2*c+1)*128}")
    a("s_mov_b64 exec, -1")
    a("s_waitcnt lgkmcnt(0)")
    a("s_barrier")


def a1_store(a, sc):
    srd(a, 48, P_WS, TSZ, WS_XT)
    for it in range(2):
        base = 182 + 6 * it
        if it == 0:
            a(f"v_mov_b32 v{base}, v0")
        else:
            a(f"v_add_u32 v{base}, 512, v0")
        a(f"v_lshrrev_b32 v{base+1}, 3, v{base}")
        a(f"v_and_b32 v{base+2}, 7, v{base}")
        a(f"v_lshrrev_b32 v{base+3}, 3, v{base+1}")
        a(f"v_add_u32 v{base+3}, v{base+3}, v{base+2}")
        a(f"v_and_b32 v{base+3}, 7, v{base+3}")
        a(f"v_lshlrev_b32 v{base+3}, 4, v{base+3}")
        a(f"v_lshlrev_b32 v{base+4}, 7, v{base+1}")
        a(f"v_add_u32 v{base+3}, v{base+3}, v{base+4}")
        a(f"v_add_u32 v{base+3}, {A1_LDS}, v{base+3}")
        a(f"ds_read_b128 v[{200+4*it}:{203+4*it}], v{base+3}")
        a("s_mul_i32 s6, s4, 80")
        a(f"v_add_u32 v{base+4}, s6, v{base+1}")
        a(f"v_lshlrev_b32 v{base+4}, 12, v{base+4}")
        a(f"v_lshlrev_b32 v{base+2}, 4, v{base+2}")
        a(f"v_add_u32 v{base+4}, v{base+4}, v{base+2}")
        a("s_lshl_b32 s6, s5, 7")
        a("s_sub_u32 s6, 3968, s6")
        a(f"v_add_u32 v{base+4}, s6, v{base+4}")
        if it == 1:
            a(f"v_cmp_gt_u32 vcc, 640, v{base}")
            a(f"v_mov_b32 v{base+5}, 0x{OOB:x}")
            a("s_nop 0")
            a(f"v_cndmask_b32 v{base+4}, v{base+5}, v{base+4}, vcc")
    a("s_waitcnt lgkmcnt(0)")
    a(f"buffer_store_dwordx4 v[200:203], v186, s[48:51], 0 offen {sc}")
    a(f"buffer_store_dwordx4 v[204:207], v192, s[48:51], 0 offen {sc}")
    return 2


B1_STAGE = 34816
B1_XSZ = 18432
B1_NB = 4
B1_DUMMY = 149504
QKV_RS = 416
QKV_LDS = 0
O_LDS = 61440


def b1_setup(a):
    a("s_lshr_b32 s60, s4, 1")
    a("s_lshl_b32 s60, s60, 2")
    a("s_lshr_b32 s6, s5, 3")
    a("s_add_u32 s60, s60, s6")
    a("s_and_b32 s61, s4, 1")
    a("s_lshl_b32 s61, s61, 3")
    a("s_and_b32 s6, s5, 7")
    a("s_add_u32 s61, s61, s6")
    srd(a, 32, P_X, TSZ)
    srd(a, 36, P_W, 640 * 3840)
    a("v_lshrrev_b32 v10, 3, v1")
    a("s_lshl_b32 s6, s3, 3")
    a("v_add_u32 v10, s6, v10")
    a("v_lshrrev_b32 v11, 1, v10")
    a("v_and_b32 v11, 7, v11")
    a("v_and_b32 v12, 7, v1")
    a("v_xor_b32 v11, v11, v12")
    a("v_lshlrev_b32 v11, 4, v11")
    a("s_lshl_b32 s6, s60, 7")
    a("s_sub_u32 s6, s6, 16")
    a("v_add_u32 v10, s6, v10")
    a("s_movk_i32 s7, 1280")
    a("v_mul_lo_u32 v10, v10, s7")
    a("v_add_u32 v2, v10, v11")
    a("v_add_u32 v3, 81920, v2")
    a("v_add_u32 v4, 163840, v2")
    a("s_cmp_lt_u32 s3, 2")
    a("s_cselect_b32 s62, 1, 0")
    lab = a.newlabel("B1S")
    a(f"s_cbranch_scc1 {lab}")
    a(f"v_mov_b32 v4, 0x{OOB:x}")
    a.label(lab)
    a("v_lshrrev_b32 v10, 4, v1")
    a("s_and_b32 s6, s3, 1")
    a("s_lshl_b32 s6, s6, 3")
    a("v_lshlrev_b32 v11, 1, v10")
    a("v_add_u32 v11, s6, v11")
    a("v_and_b32 v12, 15, v1")
    a("v_xor_b32 v11, v11, v12")
    a("v_mul_u32_u24 v12, 52, v11")
    a("v_lshrrev_b32 v12, 8, v12")
    a("v_mul_u32_u24 v13, 5, v12")
    a("v_sub_u32 v13, v11, v13")
    a("v_mul_u32_u24 v12, 1280, v12")
    a("v_lshlrev_b32 v13, 4, v13")
    a("v_add_u32 v12, v12, v13")
    a("s_mul_i32 s6, s61, 80")
    a("v_add_u32 v12, s6, v12")
    a("s_lshl_b32 s6, s3, 3")
    a("v_add_u32 v10, s6, v10")
    a("s_movk_i32 s7, 3840")
    a("v_mul_lo_u32 v10, v10, s7")
    a("v_add_u32 v5, v10, v12")
    a("v_cmp_eq_u32 vcc, 15, v11")
    a(f"v_mov_b32 v13, 0x{OOB:x}")
    a("s_nop 0")
    a("v_cndmask_b32 v5, v5, v13, vcc")
    a("v_and_b32 v10, 15, v1")
    a("v_lshrrev_b32 v11, 4, v1")
    a("v_lshrrev_b32 v12, 1, v10")
    a("v_xor_b32 v12, v12, v11")
    a("v_lshlrev_b32 v12, 4, v12")
    a("s_lshr_b32 s6, s3, 2")
    a("s_lshl_b32 s6, s6, 6")
    a("v_add_u32 v10, s6, v10")
    a("v_lshlrev_b32 v10, 7, v10")
    a("v_add_u32 v6, v10, v12")
    a("v_xor_b32 v7, 64, v6")
    a("v_lshrrev_b32 v10, 2, v1")
    a("v_and_b32 v10, 3, v10")
    a("v_and_b32 v12, 3, v1")
    a("v_lshlrev_b32 v13, 3, v11")
    a("v_add_u32 v13, v13, v10")
    a("v_lshlrev_b32 v13, 8, v13")
    a("v_and_b32 v14, 1, v11")
    a("v_lshlrev_b32 v14, 3, v14")
    a("v_lshlrev_b32 v10, 1, v10")
    a("v_add_u32 v14, v14, v10")
    a("v_lshrrev_b32 v15, 1, v12")
    a("s_and_b32 s6, s3, 3")
    a("s_lshl_b32 s6, s6, 2")
    a("v_add_u32 v15, s6, v15")
    a("v_xor_b32 v15, v15, v14")
    a("v_lshlrev_b32 v15, 4, v15")
    a("v_and_b32 v12, 1, v12")
    a("v_lshlrev_b32 v12, 3, v12")
    a("v_add_u32 v13, v13, v15")
    a("v_add_u32 v13, v13, v12")
    a(f"v_add_u32 v8, {B1_XSZ}, v13")
    a("v_xor_b32 v9, 32, v8")


def b1_issue_stage(a):
    a("s_lshl_b32 s6, s3, 10")
    a("s_add_u32 s6, s6, s43")
    a("s_mov_b32 m0, s6")
    a("s_add_u32 s7, s6, 8192")
    a("buffer_load_dwordx4 v2, s[32:35], s41 offen lds")
    a("s_mov_b32 m0, s7")
    a("s_add_u32 s7, s6, 16384")
    a("buffer_load_dwordx4 v3, s[32:35], s41 offen lds")
    a("s_cmp_eq_u32 s62, 1")
    a(f"s_cselect_b32 s7, s7, {B1_DUMMY}")
    a("s_mov_b32 m0, s7")
    a("s_lshl_b32 s7, s3, 11")
    a("buffer_load_dwordx4 v4, s[32:35], s41 offen lds")
    a("s_add_u32 s7, s7, s43")
    a(f"s_add_u32 s7, s7, {B1_XSZ}")
    a("s_mov_b32 m0, s7")
    a("s_add_u32 s7, s7, 1024")
    a("buffer_load_dwordx4 v5, s[36:39], s42 offen lds")
    a("s_mov_b32 m0, s7")
    a("s_add_u32 s6, s42, 15360")
    a("buffer_load_dwordx4 v5, s[36:39], s6 offen lds")
    a("s_add_u32 s41, s41, 128")
    a("s_add_u32 s42, s42, 245760")
    a(f"s_add_u32 s43, s43, {B1_STAGE}")
    a(f"s_cmp_ge_u32 s43, {B1_STAGE*B1_NB}")
    a("s_cselect_b32 s43, 0, s43")
    return 5


def b1_prologue(a):
    a("s_mov_b32 s41, 0")
    a("s_mov_b32 s42, 0")
    a("s_mov_b32 s43, 0")
    for st in range(3):
        b1_issue_stage(a)
    return 15


ACC = 64


def b1_loop(a, hook=None):
    for i in range(40):
        a(f"v_mov_b32 v{ACC+i}, 0")
    a("s_mov_b32 s40, 0")
    a("s_mov_b32 s44, 0")
    loop = a.newlabel("B1L")
    a.label(loop)
    l8, l9, lw = a.newlabel("B1W8"), a.newlabel("B1W9"), a.newlabel("B1WD")
    a("s_cmp_ge_u32 s40, 8")
    a(f"s_cbranch_scc1 {l8}")
    a("s_waitcnt vmcnt(10)")
    a(f"s_branch {lw}")
    a.label(l8)
    a("s_cmp_eq_u32 s40, 9")
    a(f"s_cbranch_scc1 {l9}")
    a("s_waitcnt vmcnt(5)")
    a(f"s_branch {lw}")
    a.label(l9)
    a("s_waitcnt vmcnt(0)")
    a.label(lw)
    a("s_barrier")
    if hook:
        hook(a)
    skip = a.newlabel("B1NI")
    a("s_cmp_ge_u32 s40, 7")
    a(f"s_cbranch_scc1 {skip}")
    b1_issue_stage(a)
    a.label(skip)
    a("v_add_u32 v10, s44, v6")
    a("v_add_u32 v11, s44, v7")
    a("v_add_u32 v12, s44, v8")
    a("v_add_u32 v13, s44, v9")
    a("ds_read_b64_tr_b16 v[16:17], v12")
    a("ds_read_b64_tr_b16 v[18:19], v12 offset:1024")
    a("ds_read_b64_tr_b16 v[20:21], v13")
    a("ds_read_b64_tr_b16 v[22:23], v13 offset:1024")
    for t in range(5):
        a(f"ds_read_b128 v[{24+4*t}:{27+4*t}], v10 offset:{2048*t}")
    a("ds_read_b64_tr_b16 v[44:45], v12 offset:8192")
    a("ds_read_b64_tr_b16 v[46:47], v12 offset:9216")
    a("ds_read_b64_tr_b16 v[48:49], v13 offset:8192")
    a("ds_read_b64_tr_b16 v[50:51], v13 offset:9216")
    a("ds_read_b128 v[104:107], v11")
    a("ds_read_b128 v[108:111], v11 offset:2048")
    a("s_waitcnt lgkmcnt(6)")
    for t in range(2, 5):
        a(f"ds_read_b128 v[{104+4*t}:{107+4*t}], v11 offset:{2048*t}")
    for t in range(5):
        for ct in range(2):
            ac = ACC + (ct * 5 + t) * 4
            a(f"v_mfma_f32_16x16x32_bf16 v[{ac}:{ac+3}], v[{16+4*ct}:{19+4*ct}], v[{24+4*t}:{27+4*t}], v[{ac}:{ac+3}]")
    a("s_waitcnt lgkmcnt(0)")
    for t in range(5):
        for ct in range(2):
            ac = ACC + (ct * 5 + t) * 4
            a(f"v_mfma_f32_16x16x32_bf16 v[{ac}:{ac+3}], v[{44+4*ct}:{47+4*ct}], v[{104+4*t}:{107+4*t}], v[{ac}:{ac+3}]")
    a(f"s_add_u32 s44, s44, {B1_STAGE}")
    a(f"s_cmp_ge_u32 s44, {B1_STAGE*B1_NB}")
    a("s_cselect_b32 s44, 0, s44")
    a("s_add_u32 s40, s40, 1")
    a("s_cmp_lt_u32 s40, 10")
    a(f"s_cbranch_scc1 {loop}")


def b1_epilogue(a):
    a("s_barrier")
    a("v_and_b32 v10, 15, v1")
    a("s_lshr_b32 s6, s3, 2")
    a("s_lshl_b32 s6, s6, 6")
    a("v_add_u32 v10, s6, v10")
    a(f"v_mul_u32_u24 v10, {QKV_RS}, v10")
    a("v_lshrrev_b32 v11, 4, v1")
    a("s_and_b32 s6, s3, 3")
    a("s_lshl_b32 s6, s6, 3")
    a("v_add_u32 v11, s6, v11")
    for ct in range(2):
        if ct:
            a("v_add_u32 v11, 4, v11")
        a("v_mul_u32_u24 v12, 52, v11")
        a("v_lshrrev_b32 v12, 8, v12")
        a("v_mul_u32_u24 v13, 5, v12")
        a("v_sub_u32 v13, v11, v13")
        a("v_lshlrev_b32 v12, 6, v12")
        a("v_lshlrev_b32 v13, 3, v13")
        a("v_add_u32 v12, v12, v13")
        a(f"v_add_u32 v{14+ct}, v10, v12")
    for ct in range(2):
        for t in range(5):
            ac = ACC + (ct * 5 + t) * 4
            a(f"v_cvt_pk_bf16_f32 v16, v{ac}, v{ac+1}")
            a(f"v_cvt_pk_bf16_f32 v17, v{ac+2}, v{ac+3}")
            a(f"ds_write_b64 v{14+ct}, v[16:17] offset:{QKV_LDS + 16*QKV_RS*t}")
            a("s_nop 0")
    a("v_mov_b32 v16, 0")
    a("v_mov_b32 v17, 0")
    for it in range(4):
        a(f"v_add_u32 v10, {512*it}, v0")
        a("v_mul_u32_u24 v11, 43691, v10")
        a("v_lshrrev_b32 v11, 19, v11")
        a("v_mul_u32_u24 v12, 12, v11")
        a("v_sub_u32 v12, v10, v12")
        a("v_mul_u32_u24 v13, 86, v12")
        a("v_lshrrev_b32 v13, 8, v13")
        a("v_mul_u32_u24 v18, 3, v13")
        a("v_sub_u32 v18, v12, v18")
        a(f"v_mul_u32_u24 v11, {QKV_RS}, v11")
        a("v_lshlrev_b32 v13, 6, v13")
        a("v_lshlrev_b32 v18, 3, v18")
        a("v_add3_u32 v11, v11, v13, v18")
        a(f"v_add_u32 v11, {QKV_LDS+40}, v11")
        if it == 3:
            a("v_cmp_gt_u32 vcc, 1728, v10")
            a("s_and_saveexec_b64 s[6:7], vcc")
            a("ds_write_b64 v11, v[16:17]")
            a("s_mov_b64 exec, s[6:7]")
        else:
            a("ds_write_b64 v11, v[16:17]")
    a("s_waitcnt lgkmcnt(0)")
    a("s_barrier")


def attention(a):
    a("v_and_b32 v10, 15, v1")
    a("v_lshrrev_b32 v11, 4, v1")
    a("v_mov_b32 v14, 0")
    a("v_mov_b32 v15, 0xf149f2ca")
    for i in range(4):
        a("v_lshlrev_b32 v12, 2, v11")
        a(f"v_add_u32 v12, {i}, v12")
        a("v_sub_u32 v13, v10, v12")
        a("v_and_b32 v24, 0x80000001, v13")
        a("v_cmp_eq_u32 vcc, 0, v24")
        a("s_nop 1")
        a(f"v_cndmask_b32 v{20+i}, v15, v14, vcc")
        a("v_add_u32 v13, 16, v13")
        a("v_and_b32 v24, 1, v13")
        a("v_lshlrev_b32 v24, 8, v24")
        a("v_add_u32 v24, v24, v13")
        a("v_cmp_ge_u32 vcc, 14, v24")
        a("s_nop 1")
        a(f"v_cndmask_b32 v{16+i}, v15, v14, vcc")
    lab = a.newlabel("ATM")
    a("s_or_b32 s6, s60, s3")
    a("s_cmp_lg_u32 s6, 0")
    a(f"s_cbranch_scc1 {lab}")
    for i in range(4):
        a(f"v_mov_b32 v{16+i}, v15")
    a.label(lab)
    a("s_lshl_b32 s6, s3, 4")
    a("v_add_u32 v12, s6, v10")
    a(f"v_mul_u32_u24 v12, {QKV_RS}, v12")
    a("v_lshlrev_b32 v13, 4, v11")
    a("v_add_u32 v24, v12, v13")
    if QKV_LDS:
        a(f"v_add_u32 v24, {QKV_LDS}, v24")
    a("v_lshrrev_b32 v12, 2, v1")
    a("v_and_b32 v12, 3, v12")
    a("v_lshlrev_b32 v13, 2, v11")
    a("v_add_u32 v12, v12, v13")
    a("v_add_u32 v12, s6, v12")
    a(f"v_mul_u32_u24 v12, {QKV_RS}, v12")
    a("v_and_b32 v13, 3, v1")
    a("v_lshlrev_b32 v13, 3, v13")
    a("v_add_u32 v25, v12, v13")
    if QKV_LDS:
        a(f"v_add_u32 v25, {QKV_LDS}, v25")
    a("v_add_u32 v12, s6, v10")
    a("v_mul_u32_u24 v12, 80, v12")
    a("v_lshlrev_b32 v13, 3, v11")
    a("v_add_u32 v26, v12, v13")
    a(f"v_add_u32 v26, {O_LDS}, v26")
    a("s_mov_b32 s6, 0x3ea52b5c")
    R16 = 16 * QKV_RS
    for hh in range(2):
        a(f"ds_read_b128 v[28:31], v24 offset:{R16 + 64*hh}")
        a(f"ds_read_b128 v[32:35], v24 offset:{64*(2+hh)}")
        a(f"ds_read_b128 v[36:39], v24 offset:{R16 + 64*(2+hh)}")
        a(f"ds_read_b64_tr_b16 v[40:41], v25 offset:{64*(4+hh)}")
        a(f"ds_read_b64_tr_b16 v[42:43], v25 offset:{R16 + 64*(4+hh)}")
        a(f"ds_read_b64_tr_b16 v[44:45], v25 offset:{64*(4+hh)+32}")
        a(f"ds_read_b64_tr_b16 v[46:47], v25 offset:{R16 + 64*(4+hh)+32}")
        a("s_waitcnt lgkmcnt(4)")
        a("v_mfma_f32_16x16x32_bf16 v[48:51], v[32:35], v[28:31], 0")
        a("v_mfma_f32_16x16x32_bf16 v[52:55], v[36:39], v[28:31], 0")
        a("s_nop 7")
        a("s_nop 0")
        for i in range(4):
            a(f"v_fma_f32 v{48+i}, v{48+i}, s6, v{16+i}")
        for i in range(4):
            a(f"v_fma_f32 v{52+i}, v{52+i}, s6, v{20+i}")
        a("v_max3_f32 v56, v48, v49, v50")
        a("v_max3_f32 v57, v51, v52, v53")
        a("v_max3_f32 v56, v56, v54, v55")
        a("v_max_f32 v56, v56, v57")
        a("v_mov_b32 v57, v56")
        a("s_nop 1")
        a("v_permlane32_swap_b32 v56, v57")
        a("v_max_f32 v56, v56, v57")
        a("v_mov_b32 v57, v56")
        a("s_nop 1")
        a("v_permlane16_swap_b32 v56, v57")
        a("v_max_f32 v56, v56, v57")
        for i in range(8):
            a(f"v_sub_f32 v{48+i}, v{48+i}, v56")
        for i in range(8):
            a(f"v_exp_f32 v{48+i}, v{48+i}")
        a("s_nop 0")
        a("v_add_f32 v56, v48, v49")
        a("v_add_f32 v57, v50, v51")
        a("v_add_f32 v58, v52, v53")
        a("v_add_f32 v59, v54, v55")
        a("v_add_f32 v56, v56, v57")
        a("v_add_f32 v58, v58, v59")
        a("v_add_f32 v56, v56, v58")
        a("v_mov_b32 v57, v56")
        a("s_nop 1")
        a("v_permlane32_swap_b32 v56, v57")
        a("v_add_f32 v56, v56, v57")
        a("v_mov_b32 v57, v56")
        a("s_nop 1")
        a("v_permlane16_swap_b32 v56, v57")
        a("v_add_f32 v56, v56, v57")
        a("v_rcp_f32 v56, v56")
        a("s_nop 0")
        for i in range(8):
            a(f"v_mul_f32 v{48+i}, v{48+i}, v56")
        for i in range(4):
            a(f"v_cvt_pk_bf16_f32 v{60+i}, v{48+2*i}, v{49+2*i}")
        a("s_waitcnt lgkmcnt(0)")
        a("s_nop 1")
        a("v_mfma_f32_16x16x32_bf16 v[48:51], v[40:41] , v[60:63], 0".replace("v[40:41] ", "v[40:43]"))
        a("v_mfma_f32_16x16x32_bf16 v[52:55], v[44:47], v[60:63], 0")
        a("s_nop 7")
        a("s_nop 0")
        a("v_cvt_pk_bf16_f32 v56, v48, v49")
        a("v_cvt_pk_bf16_f32 v57, v50, v51")
        a("v_cvt_pk_bf16_f32 v58, v52, v53")
        a("v_cvt_pk_bf16_f32 v59, v54, v55")
        a(f"ds_write_b64 v26, v[56:57] offset:{40*hh}")
        a("s_mov_b64 exec, 0xffff")
        a(f"ds_write_b64 v26, v[58:59] offset:{40*hh+32}")
        a("s_mov_b64 exec, -1")
    a("s_waitcnt lgkmcnt(0)")
    a("s_barrier")


def o_store(a, sc):
    srd(a, 48, P_WS, TSZ, WS_OW)
    a("v_lshlrev_b32 v10, 4, v0")
    a(f"v_add_u32 v11, {O_LDS}, v10")
    a("ds_read_b128 v[16:19], v11")
    a("ds_read_b128 v[20:23], v11 offset:8192")
    a("s_mul_i32 s6, s61, 163840")
    a("s_mul_i32 s7, s60, 10240")
    a("s_add_u32 s6, s6, s7")
    a("v_add_u32 v12, s6, v10")
    a("v_add_u32 v13, 8192, v12")
    a("v_cmp_gt_u32 vcc, 128, v0")
    a(f"v_mov_b32 v14, 0x{OOB:x}")
    a("s_nop 0")
    a("v_cndmask_b32 v13, v14, v13, vcc")
    a("s_waitcnt lgkmcnt(0)")
    a(f"buffer_store_dwordx4 v[16:19], v12, s[48:51], 0 offen {sc}")
    a(f"buffer_store_dwordx4 v[20:23], v13, s[48:51], 0 offen {sc}")
    return 2


A2_H = 4224
A2_X = 4608
A2_H0 = 0
A2_H1 = 4224
A2_X0 = 8448
A2_X2 = A2_X0 + 4608 + 128 - 0
A2_CH = A2_X2 + 4608
A2_CH = (A2_CH + 255) // 256 * 256


def a2_chan(a):
    l1, l2 = a.newlabel("A2C"), a.newlabel("A2C")
    a("s_mul_i32 s63, s4, 80")
    a("s_cmp_lt_u32 s5, 16")
    a(f"s_cbranch_scc0 {l1}")
    a("s_mul_i32 s6, s5, 3")
    a("s_mov_b32 s7, 3")
    a(f"s_branch {l2}")
    a.label(l1)
    a("s_lshl_b32 s6, s5, 1")
    a("s_add_u32 s6, s6, 16")
    a("s_mov_b32 s7, 2")
    a.label(l2)
    a("s_add_u32 s63, s63, s6")
    a("s_add_u32 s63, s63, s3")
    a("s_cmp_lt_u32 s3, s7")
    a("s_cselect_b32 s64, 1, 0")


def a2_issue(a, lds_base, sc):
    srd(a, 48, P_H, 640 * 4096)
    srd(a, 52, P_WS, TSZ, WS_XT)
    srd(a, 56, P_SD, 640 * 2)
    a(f"s_mul_i32 s65, s3, {A2_CH}")
    a(f"s_add_u32 s65, s65, {lds_base}")
    a("s_lshl_b32 s66, s63, 12")
    a("v_lshlrev_b32 v10, 4, v1")
    a("v_add_u32 v11, -2, v10")
    a("v_add_u32 v12, 4, v10")
    for i in range(4):
        a(f"s_add_u32 m0, s65, {A2_H0 + 128 + 1024*i}")
        a(f"s_add_u32 s6, s66, {1024*i}")
        a("buffer_load_dwordx4 v10, s[48:51], s6 offen lds")
    for i in range(4):
        a(f"s_add_u32 m0, s65, {A2_H1 + 128 + 1024*i}")
        if i == 0:
            a("s_mov_b32 s6, s66")
            a("buffer_load_dwordx4 v11, s[48:51], s6 offen lds")
        else:
            a(f"s_add_u32 s6, s66, {1024*i - 2}")
            a("buffer_load_dwordx4 v10, s[48:51], s6 offen lds")
    for i in range(4):
        a(f"s_add_u32 m0, s65, {A2_X0 + 1024*i}")
        a(f"s_add_u32 s6, s66, {1024*i}")
        a(f"buffer_load_dwordx4 v10, s[52:55], s6 offen lds {sc}")
    for i in range(4):
        a(f"s_add_u32 m0, s65, {A2_X2 + 1024*i}")
        a(f"s_add_u32 s6, s66, {1024*i}")
        a(f"buffer_load_dwordx4 v12, s[52:55], s6 offen lds {sc}")
    a("v_mov_b32 v13, 0")
    a("buffer_load_dwordx4 v[16:19], v13, s[48:51], s66 offen")
    a("s_lshl_b32 s6, s63, 1")
    a("buffer_load_ushort v20, v13, s[56:59], s6 offen")
    return 18


def a2_fixup(a):
    a("v_lshlrev_b32 v21, 16, v16")
    a("v_lshlrev_b32 v20, 16, v20")
    a("v_add_f32 v21, v21, v20")
    a("v_cvt_pk_bf16_f32 v21, v21, v21")
    a("s_mov_b32 s6, 0xffff")
    a("v_bfi_b32 v16, s6, v21, v16")
    a("v_lshlrev_b32 v24, 16, v16")
    a("v_alignbit_b32 v25, v17, v16, 16")
    a("v_alignbit_b32 v26, v18, v17, 16")
    a("v_alignbit_b32 v27, v19, v18, 16")
    a("v_mov_b32 v28, 0")
    a("v_mov_b32 v29, 0")
    a("v_mov_b32 v30, 0")
    a("v_mov_b32 v31, 0")
    a("v_mov_b32 v22, s65")
    a("s_mov_b64 exec, 1")
    a(f"ds_write_b128 v22, v[16:19] offset:{A2_H0+128}")
    a(f"ds_write_b128 v22, v[24:27] offset:{A2_H1+128}")
    a(f"ds_write_b32 v22, v28 offset:{A2_X2+4092}")
    a("s_mov_b64 exec, -1")
    a("v_lshlrev_b32 v23, 4, v1")
    a("v_add_u32 v23, s65, v23")
    a("s_mov_b64 exec, 0xff")
    a(f"ds_write_b128 v23, v[28:31] offset:{A2_H0}")
    a(f"ds_write_b128 v23, v[28:31] offset:{A2_H1}")
    a("s_mov_b32 exec_lo, -1")
    a(f"ds_write_b128 v23, v[28:31] offset:{A2_X0+4096}")
    a(f"ds_write_b128 v23, v[28:31] offset:{A2_X2+4096}")
    a("s_mov_b64 exec, -1")
    a("s_waitcnt lgkmcnt(0)")


def a2_conv(a):
    a("v_and_b32 v10, 15, v1")
    a("v_lshrrev_b32 v11, 4, v1")
    a("v_lshrrev_b32 v12, 1, v10")
    a("v_add_u32 v12, v12, v11")
    a("v_add_u32 v12, 1, v12")
    a("v_lshlrev_b32 v12, 4, v12")
    a("v_and_b32 v13, 1, v10")
    a(f"v_mov_b32 v14, {A2_H1}")
    a(f"v_mov_b32 v15, {A2_H0}")
    a("v_cmp_eq_u32 vcc, 1, v13")
    a("s_nop 1")
    a("v_cndmask_b32 v14, v14, v15, vcc")
    a("v_add_u32 v12, v12, v14")
    a("v_add_u32 v2, s65, v12")
    a("v_lshrrev_b32 v12, 1, v10")
    a("v_and_b32 v12, 1, v12")
    a("v_lshlrev_b32 v12, 3, v12")
    a("v_lshrrev_b32 v14, 2, v10")
    a("v_lshlrev_b32 v14, 7, v14")
    a("v_add_u32 v12, v12, v14")
    a("v_lshlrev_b32 v14, 4, v11")
    a("v_sub_u32 v12, v14, v12")
    a(f"v_add_u32 v12, {2*1988 - 512*7}, v12")
    a(f"v_mov_b32 v14, {A2_X2}")
    a(f"v_mov_b32 v15, {A2_X0}")
    a("v_cndmask_b32 v14, v14, v15, vcc")
    a("v_add_u32 v12, v12, v14")
    a("v_add_u32 v3, s65, v12")
    for i in range(32):
        a(f"v_mov_b32 v{32+i}, 0")

    def reads(A, B):
        r = []
        for aa in range(8):
            r.append(f"ds_read_b128 v[{A+4*aa}:{A+4*aa+3}], v2 offset:{512*aa}")
            u = aa
            r.append(f"ds_read_b64 v[{B+4*u}:{B+4*u+1}], v3 offset:{512*(7-u)}")
            r.append(f"ds_read_b64 v[{B+4*u+2}:{B+4*u+3}], v3 offset:{512*(7-u)+8}")
        r.append("v_add_u32 v2, 64, v2")
        r.append("v_add_u32 v3, 64, v3")
        return r

    def mfmas(A, B):
        r = []
        for t in range(8):
            for aa in range(t + 1):
                u = t - aa
                ac = 32 + 4 * t
                r.append(f"v_mfma_f32_16x16x32_bf16 v[{ac}:{ac+3}], v[{A+4*aa}:{A+4*aa+3}], v[{B+4*u}:{B+4*u+3}], v[{ac}:{ac+3}]")
        return r

    def interleave(m, r):
        for i, x in enumerate(m):
            a(x)
            if i < len(r):
                a(r[i])

    for x in reads(64, 96):
        a(x)
    a("s_mov_b32 s40, 0")
    loop = a.newlabel("A2L")
    a.label(loop)
    a("s_waitcnt lgkmcnt(0)")
    interleave(mfmas(64, 96), reads(128, 160))
    a("s_waitcnt lgkmcnt(0)")
    last, done = a.newlabel("A2E"), a.newlabel("A2D")
    a("s_cmp_eq_u32 s40, 3")
    a(f"s_cbranch_scc1 {last}")
    interleave(mfmas(128, 160), reads(64, 96))
    a("s_add_u32 s40, s40, 1")
    a(f"s_branch {loop}")
    a.label(last)
    for x in mfmas(128, 160):
        a(x)


def a2_store(a, sc):
    srd(a, 48, P_WS, TSZ, WS_YT)
    a("v_and_b32 v10, 15, v1")
    a("v_lshrrev_b32 v11, 4, v1")
    a("v_and_b32 v12, 3, v10")
    a("v_lshrrev_b32 v13, 2, v10")
    a("v_lshlrev_b32 v13, 5, v13")
    a("v_lshlrev_b32 v11, 3, v11")
    a("v_add3_u32 v12, v12, v13, v11")
    a("v_lshlrev_b32 v12, 2, v12")
    a("v_add_u32 v12, s65, v12")
    a("s_nop 7")
    for t in range(8):
        ac = 32 + 4 * t
        a(f"v_cvt_pk_bf16_f32 v14, v{ac}, v{ac+1}")
        a(f"v_cvt_pk_bf16_f32 v15, v{ac+2}, v{ac+3}")
        a(f"ds_write_b32 v12, v14 offset:{512*t}")
        a(f"ds_write_b32 v12, v15 offset:{512*t+16}")
        a("s_nop 0")
    a("v_lshlrev_b32 v10, 4, v1")
    a("v_add_u32 v11, s65, v10")
    a("s_waitcnt lgkmcnt(0)")
    for i in range(4):
        a(f"ds_read_b128 v[{16+4*i}:{19+4*i}], v11 offset:{1024*i}")
    a("s_lshl_b32 s66, s63, 12")
    a("s_waitcnt lgkmcnt(0)")
    for i in range(4):
        a(f"s_add_u32 s6, s66, {1024*i}")
        a(f"buffer_store_dwordx4 v[{16+4*i}:{19+4*i}], v10, s[48:51], s6 offen {sc}")
    return 4


B2_WO = 0
B2_O = 102400
B2_OST = 20480


def b2_setup(a):
    a("s_lshl_b32 s67, s4, 2")
    a("s_lshr_b32 s6, s5, 3")
    a("s_add_u32 s67, s67, s6")
    a("s_and_b32 s68, s5, 7")


def b2_issue_wo(a, lds_base):
    srd(a, 36, P_WO, 640 * 1280)
    for j in range(5):
        a(f"v_add_u32 v10, {64*j}, v1")
        a("v_mul_u32_u24 v11, 6554, v10")
        a("v_lshrrev_b32 v11, 16, v11")
        a("v_mul_u32_u24 v12, 10, v11")
        a("v_sub_u32 v12, v10, v12")
        a("v_lshrrev_b32 v13, 4, v11")
        a("v_lshlrev_b32 v13, 2, v13")
        a("v_and_b32 v14, 3, v11")
        a("v_add_u32 v13, v13, v14")
        a("v_lshrrev_b32 v14, 2, v11")
        a("v_and_b32 v14, 3, v14")
        a("v_lshlrev_b32 v14, 3, v14")
        a("v_add_u32 v13, v13, v14")
        a("v_mul_u32_u24 v13, 1280, v13")
        a("v_lshlrev_b32 v12, 4, v12")
        a("v_add_u32 v13, v13, v12")
        a("s_mul_i32 s6, s68, 160")
        a(f"v_add_u32 v{240+j}, s6, v13")
    for m in range(3):
        lab = a.newlabel("B2W")
        if m == 2:
            a("s_cmp_ge_u32 s3, 4")
            a(f"s_cbranch_scc1 {lab}")
        a(f"s_add_u32 s6, s3, {8*m}")
        a("s_mul_i32 s7, s6, 40960")
        a("s_mul_i32 s6, s6, 5120")
        a(f"s_add_u32 s6, s6, {lds_base}")
        for j in range(5):
            a(f"s_add_u32 m0, s6, {1024*j}")
            a("s_nop 0")
            a(f"buffer_load_dwordx4 v{240+j}, s[36:39], s7 offen lds")
        a.label(lab)


def b2_issue_o(a, stage, sc):
    buf = B2_O + (stage & 1) * B2_OST
    for m in range(3):
        lab = a.newlabel("B2O")
        if m == 2:
            a("s_cmp_ge_u32 s3, 4")
            a(f"s_cbranch_scc1 {lab}")
        a(f"s_add_u32 s6, s3, {8*m}")
        a("s_mul_i32 s7, s6, 52")
        a("s_lshr_b32 s7, s7, 8")
        a("s_mul_i32 s70, s7, 5")
        a("s_sub_u32 s70, s6, s70")
        a(f"s_add_u32 s7, s7, {4*stage}")
        a("s_mul_i32 s7, s7, 163840")
        a("s_lshl_b32 s70, s70, 10")
        a("s_add_u32 s7, s7, s70")
        a("s_mul_i32 s70, s67, 5120")
        a("s_add_u32 s7, s7, s70")
        a("s_lshl_b32 s6, s6, 10")
        a(f"s_add_u32 m0, s6, {buf}")
        a("s_nop 0")
        a(f"buffer_load_dwordx4 v239, s[52:55], s7 offen lds {sc}")
        a.label(lab)


def b2_compute_stage(a, stage):
    raise NotImplementedError


def b2_main(a, sc):
    srd(a, 52, P_WS, TSZ, WS_OW)
    a("v_lshlrev_b32 v239, 4, v1")
    b2_issue_o(a, 0, sc)
    b2_issue_o(a, 1, sc)
    a("v_and_b32 v10, 15, v1")
    a("v_lshrrev_b32 v11, 4, v1")
    a("s_and_b32 s6, s3, 3")
    a("s_lshl_b32 s6, s6, 4")
    a("v_add_u32 v10, s6, v10")
    a("v_mul_u32_u24 v10, 80, v10")
    for ks in range(5):
        a(f"v_add_u32 v12, {4*ks}, v11")
        a("v_mul_u32_u24 v13, 52, v12")
        a("v_lshrrev_b32 v13, 8, v13")
        a("v_mul_u32_u24 v14, 5, v13")
        a("v_sub_u32 v14, v12, v14")
        a("v_mul_u32_u24 v13, 5120, v13")
        a("v_lshlrev_b32 v14, 4, v14")
        a(f"v_add3_u32 v{224+ks}, v10, v13, v14")
    a("v_lshrrev_b32 v12, 2, v1")
    a("v_and_b32 v12, 3, v12")
    a("v_lshlrev_b32 v13, 2, v11")
    a("v_add_u32 v12, v12, v13")
    a("v_mul_u32_u24 v12, 160, v12")
    a("v_and_b32 v13, 3, v1")
    a("v_lshlrev_b32 v13, 3, v13")
    a("v_add_u32 v229, v12, v13")
    if B2_WO:
        a(f"v_add_u32 v229, {B2_WO}, v229")
    for i in range(20):
        a(f"v_mov_b32 v{64+i}, 0")
    a("s_lshr_b32 s69, s3, 2")
    for st in range(4):
        if st < 3:
            a("s_waitcnt vmcnt(2)" if False else "s_waitcnt vmcnt(0)")
        else:
            a("s_waitcnt vmcnt(0)")
        a("s_barrier")
        buf = B2_O + (st & 1) * B2_OST
        le, ld = a.newlabel("B2E"), a.newlabel("B2D")
        a("s_cmp_eq_u32 s69, %d" % (st & 1))
        a(f"s_cbranch_scc0 {le}")
        kss_list = [(0, 2, 4), (1, 3)]
        for var, kss in enumerate(kss_list):
            if var == 1:
                a(f"s_branch {ld}")
                a.label(le)
            for ks in kss:
                blk = 5 * st + ks
                a(f"v_add_u32 v10, {buf}, v{224+ks}")
                a(f"v_add_u32 v11, {blk*5120}, v229")
                a("ds_read_b128 v[16:19], v10")
                for ct in range(5):
                    a(f"ds_read_b64_tr_b16 v[{20+4*ct}:{21+4*ct}], v11 offset:{32*ct}")
                    a(f"ds_read_b64_tr_b16 v[{22+4*ct}:{23+4*ct}], v11 offset:{32*ct+2560}")
                a("s_waitcnt lgkmcnt(0)")
                for ct in range(5):
                    a(f"v_mfma_f32_16x16x32_bf16 v[{64+4*ct}:{67+4*ct}], v[{20+4*ct}:{23+4*ct}], v[16:19], v[{64+4*ct}:{67+4*ct}]")
        a.label(ld)
        if st < 2:
            a("s_barrier")
            b2_issue_o(a, st + 2, sc)
    a("s_barrier")
    a("v_lshlrev_b32 v10, 4, v1")
    a("s_and_b32 s6, s3, 3")
    a("s_mul_i32 s6, s6, 5120")
    a(f"s_add_u32 s6, s6, {B2_O}")
    a("v_add_u32 v10, s6, v10")
    l1 = a.newlabel("B2R")
    a("s_nop 7")
    a("s_cmp_lt_u32 s3, 4")
    a(f"s_cbranch_scc1 {l1}")
    for ct in range(5):
        a(f"ds_write_b128 v10, v[{64+4*ct}:{67+4*ct}] offset:{1024*ct}")
    a("s_waitcnt lgkmcnt(0)")
    a.label(l1)
    a("s_barrier")
    l2 = a.newlabel("B2S")
    a("s_cmp_ge_u32 s3, 4")
    a(f"s_cbranch_scc1 {l2}")
    for ct in range(5):
        a(f"ds_read_b128 v[{20+4*ct}:{23+4*ct}], v10 offset:{1024*ct}")
    a("s_waitcnt lgkmcnt(0)")
    for i in range(20):
        a(f"v_add_f32 v{64+i}, v{64+i}, v{20+i}")
    a("v_and_b32 v10, 15, v1")
    a("s_lshl_b32 s6, s3, 4")
    a("v_add_u32 v10, s6, v10")
    a("v_mul_u32_u24 v10, 160, v10")
    a("v_lshrrev_b32 v11, 4, v1")
    a("v_lshlrev_b32 v11, 3, v11")
    a("v_add_u32 v10, v10, v11")
    for ct in range(5):
        a(f"v_cvt_pk_bf16_f32 v16, v{64+4*ct}, v{65+4*ct}")
        a(f"v_cvt_pk_bf16_f32 v17, v{66+4*ct}, v{67+4*ct}")
        a(f"ds_write_b64 v10, v[16:17] offset:{B2_WO + 32*ct}")
        a("s_nop 0")
    a("s_waitcnt lgkmcnt(0)")
    a.label(l2)
    a("s_barrier")
    srd(a, 48, P_OUT, 2048 * 2560)
    for it in range(2):
        a(f"v_add_u32 v10, {512*it}, v0")
        a("v_lshlrev_b32 v11, 4, v10")
        a(f"ds_read_b128 v[{16+4*it}:{19+4*it}], v11 offset:{B2_WO}")
        a("v_mul_u32_u24 v12, 6554, v10")
        a("v_lshrrev_b32 v12, 16, v12")
        a("v_mul_u32_u24 v13, 10, v12")
        a("v_sub_u32 v13, v10, v13")
        a("s_lshl_b32 s6, s67, 6")
        a("v_add_u32 v12, s6, v12")
        a("v_mul_u32_u24 v12, 2560, v12")
        a("v_lshlrev_b32 v13, 4, v13")
        a("s_mul_i32 s6, s68, 160")
        a("s_add_u32 s6, s6, 1280")
        a(f"v_add3_u32 v{24+it}, v12, v13, s6")
    a("v_cmp_gt_u32 vcc, 128, v0")
    a(f"v_mov_b32 v14, 0x{OOB:x}")
    a("s_nop 0")
    a("v_cndmask_b32 v25, v14, v25, vcc")
    a("s_waitcnt lgkmcnt(0)")
    a("buffer_store_dwordx4 v[16:19], v24, s[48:51], 0 offen")
    a("buffer_store_dwordx4 v[20:23], v25, s[48:51], 0 offen")


A3_LDS = 0
A3_RS = 144


def a3(a, sc, lds_base):
    srd(a, 48, P_WS, TSZ, WS_YT)
    srd(a, 52, P_Q, TSZ)
    srd(a, 56, P_OUT, 2048 * 2560)
    for it in range(2):
        b = 10 + 4 * it
        a(f"v_add_u32 v{b}, {512*it}, v0")
        a(f"v_lshrrev_b32 v{b+1}, 3, v{b}")
        a(f"v_and_b32 v{b+2}, 7, v{b}")
        a("s_mul_i32 s6, s4, 80")
        a(f"v_add_u32 v{b+3}, s6, v{b+1}")
        a(f"v_lshlrev_b32 v{b+3}, 12, v{b+3}")
        a(f"v_lshlrev_b32 v{b+2}, 4, v{b+2}")
        a("s_lshl_b32 s6, s5, 7")
        a(f"v_add3_u32 v{b+3}, v{b+3}, v{b+2}, s6")
        a(f"v_mul_u32_u24 v{b+1}, {A3_RS}, v{b+1}")
        a(f"v_add_u32 v{b+1}, v{b+1}, v{b+2}")
        a(f"v_add_u32 v{b+1}, {lds_base}, v{b+1}")
    a("v_cmp_gt_u32 vcc, 128, v0")
    a(f"v_mov_b32 v18, 0x{OOB:x}")
    a("s_nop 0")
    a("v_cndmask_b32 v17, v18, v17, vcc")
    a(f"buffer_load_dwordx4 v[20:23], v13, s[48:51], 0 offen {sc}")
    a(f"buffer_load_dwordx4 v[24:27], v17, s[48:51], 0 offen {sc}")
    for it in range(2):
        b = 28 + 6 * it
        a(f"s_add_u32 s6, s3, {8*it}")
        a("s_lshl_b32 s6, s6, 2")
        a("v_lshrrev_b32 v%d, 4, v1" % b)
        a(f"v_add_u32 v{b}, s6, v{b}")
        a(f"v_mul_u32_u24 v{b+1}, 205, v{b}")
        a(f"v_lshrrev_b32 v{b+1}, 11, v{b+1}")
        a(f"v_mul_u32_u24 v{b+2}, 10, v{b+1}")
        a(f"v_sub_u32 v{b+2}, v{b}, v{b+2}")
        a(f"v_and_b32 v{b+3}, 15, v1")
        a(f"v_lshlrev_b32 v{b+4}, 4, v{b+1}")
        a(f"v_add_u32 v{b+3}, v{b+3}, v{b+4}")
        a(f"v_lshrrev_b32 v{b+4}, 2, v1")
        a(f"v_and_b32 v{b+4}, 3, v{b+4}")
        a(f"v_lshlrev_b32 v{b+5}, 3, v{b+2}")
        a(f"v_add_u32 v{b+4}, v{b+4}, v{b+5}")
        a(f"v_mul_u32_u24 v{b+4}, {A3_RS}, v{b+4}")
        a(f"v_lshlrev_b32 v{b+5}, 5, v{b+1}")
        a(f"v_add_u32 v{b+4}, v{b+4}, v{b+5}")
        a(f"v_and_b32 v{b+5}, 3, v1")
        a(f"v_lshlrev_b32 v{b+5}, 3, v{b+5}")
        a(f"v_add_u32 v{b+4}, v{b+4}, v{b+5}")
        a(f"v_add_u32 v{b+4}, {lds_base}, v{b+4}")
        a("s_lshl_b32 s6, s5, 6")
        a(f"v_add_u32 v{b+3}, s6, v{b+3}")
        a(f"v_lshlrev_b32 v{b+2}, 4, v{b+2}")
        a("s_mul_i32 s6, s4, 160")
        a(f"v_add_u32 v{b+2}, s6, v{b+2}")
        a(f"v_mul_u32_u24 v{b+1}, 1280, v{b+3}")
        a(f"v_add_u32 v{b+1}, v{b+1}, v{b+2}")
        a(f"v_mul_u32_u24 v{b+5}, 2560, v{b+3}")
        a(f"v_add_u32 v{b+5}, v{b+5}, v{b+2}")
        if it == 1:
            a(f"v_cmp_gt_u32 vcc, 40, v{b}")
            a("s_nop 1")
            a(f"v_cndmask_b32 v{b+1}, v18, v{b+1}, vcc")
            a(f"v_cndmask_b32 v{b+5}, v18, v{b+5}, vcc")
            a(f"v_cndmask_b32 v{b+4}, v32, v{b+4}, vcc")
        a(f"buffer_load_dwordx4 v[{44+4*it}:{47+4*it}], v{b+1}, s[52:55], 0 offen")
    a("s_waitcnt vmcnt(2)")
    a("ds_write_b128 v11, v[20:23]")
    a("s_mov_b64 s[6:7], exec")
    a("v_cmp_gt_u32 vcc, 128, v0")
    a("s_and_saveexec_b64 s[6:7], vcc")
    a("ds_write_b128 v15, v[24:27]")
    a("s_mov_b64 exec, s[6:7]")
    a("s_waitcnt lgkmcnt(0)")
    a("s_barrier")
    for it in range(2):
        b = 28 + 6 * it
        a(f"ds_read_b64_tr_b16 v[{52+4*it}:{53+4*it}], v{b+4}")
        a(f"ds_read_b64_tr_b16 v[{54+4*it}:{55+4*it}], v{b+4} offset:{4*A3_RS}")
    a("s_waitcnt vmcnt(0) lgkmcnt(0)")
    a("s_mov_b32 s6, 0xffff0000")
    for it in range(2):
        b = 28 + 6 * it
        for i in range(4):
            y = 52 + 4 * it + i
            q = 44 + 4 * it + i
            a(f"v_lshlrev_b32 v60, 16, v{y}")
            a(f"v_and_b32 v61, s6, v{y}")
            a(f"v_lshlrev_b32 v62, 16, v{q}")
            a(f"v_and_b32 v63, s6, v{q}")
            a("v_pk_mul_f32 v[60:61], v[60:61], v[62:63]")
            a(f"v_cvt_pk_bf16_f32 v{y}, v60, v61")
        a(f"buffer_store_dwordx4 v[{52+4*it}:{55+4*it}], v{b+5}, s[56:59], 0 offen")


def kdesc(name, vgpr=256, sgpr=102):
    return f""".amdhsa_kernel {name}
  .amdhsa_next_free_vgpr {vgpr}
  .amdhsa_next_free_sgpr {sgpr}
  .amdhsa_accum_offset {vgpr}
  .amdhsa_group_segment_fixed_size 0
  .amdhsa_kernarg_size 96
  .amdhsa_user_sgpr_count 2
  .amdhsa_user_sgpr_kernarg_segment_ptr 1
  .amdhsa_system_sgpr_workgroup_id_x 1
  .amdhsa_float_denorm_mode_32 3
  .amdhsa_float_denorm_mode_16_64 3
.end_amdhsa_kernel
"""


def kstart(name):
    return f".globl {name}\n.p2align 8\n.type {name},@function\n{name}:\n"


HEADER_COMMENT = """; concat_heads( H3-style ssm conv , sliding local dilated attention )  -- generated by dev/gen.py (hand-written streams)
"""


def gen_split(ts=False):
    out = HEADER_COMMENT
    out += "; @launch kernel=k1_kernel grid=(256,1,1) block=(512,1,1) lds=163840\n"
    out += "; @launch kernel=k2_kernel grid=(256,1,1) block=(512,1,1) lds=163840\n"
    out += "; @launch kernel=k3_kernel grid=(256,1,1) block=(512,1,1) lds=16384\n"
    out += '.amdgcn_target "amdgcn-amd-amdhsa--gfx950"\n.text\n'
    a = Asm()
    prologue(a, 256, "K1_END")
    n = a1_issue(a)
    b1_setup(a)
    n2 = b1_prologue(a)
    a1_compute(a, n2)
    a1_store(a, "")
    b1_loop(a)
    b1_epilogue(a)
    attention(a)
    o_store(a, "")
    a.label("K1_END")
    a("s_endpgm")
    out += kstart("k1_kernel") + a.text()
    a = Asm()
    a.uid = 1000
    prologue(a, 256, "K2_END")
    b2_setup(a)
    b2_issue_wo(a, B2_WO)
    a2_chan(a)
    skip = "K2_NOA2"
    a("s_cmp_eq_u32 s64, 0")
    a(f"s_cbranch_scc1 {skip}")
    a2_issue(a, 102400, "")
    a("s_waitcnt vmcnt(0)")
    a2_fixup(a)
    a2_conv(a)
    a2_store(a, "")
    a.label(skip)
    a("s_waitcnt vmcnt(0) lgkmcnt(0)")
    a("s_barrier")
    b2_main(a, "")
    a.label("K2_END")
    a("s_endpgm")
    out += kstart("k2_kernel") + a.text()
    a = Asm()
    a.uid = 2000
    prologue(a, 256, "K3_END")
    a3(a, "", 0)
    a.label("K3_END")
    a("s_endpgm")
    out += kstart("k3_kernel") + a.text()
    out += '.section .rodata,"a"\n.p2align 6\n'
    out += kdesc("k1_kernel") + ".p2align 6\n" + kdesc("k2_kernel") + ".p2align 6\n" + kdesc("k3_kernel", vgpr=64)
    return out


if __name__ == "__main__":
    mode = sys.argv[1] if len(sys.argv) > 1 else "split"
    dst = sys.argv[2] if len(sys.argv) > 2 else "k_split.s"
    if mode == "split":
        open(dst, "w").write(gen_split())
    print("wrote", dst)
```

```python
import sys

KNAME = "concat_heads__ssm_conv_h3__sliding_local_dilated__prompt_kernel"
TSZ = 640 * 4096
WS_OW = 0x0
WS_FL = 0x300000
WS_EP = WS_FL + 0x10000
WS_TS = 0x800000
OOB = 0x80000000

OPT = dict(nt_pf="nt", nt_a="", nt_h="nt", nt_x="", nt_w="", nt_out="", sc="sc1", spin=1 << 20)


class Asm:
    def __init__(self):
        self.l = []
        self.uid = 0

    def __call__(self, s=""):
        for line in s.split("\n"):
            line = line.strip()
            if line:
                self.l.append("    " + line)

    def label(self, name):
        self.l.append(name + ":")

    def newlabel(self, p="L"):
        self.uid += 1
        return f"{p}_{self.uid}"

    def text(self):
        return "\n".join(self.l) + "\n"


P_Q, P_K, P_V, P_SK, P_H, P_SD, P_X, P_W, P_WO, P_OUT, P_DBG, P_WS = [8 + 2 * i for i in range(12)]


def srd(a, dst, ptr, nbytes, off=0):
    if off:
        a(f"s_add_u32 s{dst}, s{ptr}, 0x{off:x}")
        a(f"s_addc_u32 s{dst+1}, s{ptr+1}, 0")
    else:
        a(f"s_mov_b32 s{dst}, s{ptr}")
        a(f"s_mov_b32 s{dst+1}, s{ptr+1}")
    a(f"s_mov_b32 s{dst+2}, 0x{nbytes:x}")
    a(f"s_mov_b32 s{dst+3}, 0x00020000")


class TS:
    INSTR = "s_memrealtime"

    def __init__(self, on):
        self.on = on
        self.n = 0

    def stamp(self, a, idx):
        if not self.on:
            return
        a(f"{TS.INSTR} s[96:97]")
        a("s_waitcnt lgkmcnt(0)")
        a(f"s_mov_b32 s{80+idx}, s96")

    def init(self, a):
        if not self.on:
            return
        for i in range(16):
            a(f"s_mov_b32 s{80+i}, 0")

    def flush(self, a):
        if not self.on:
            return
        srd(a, 96, P_WS, 0x40000, WS_TS)
        a("s_mov_b64 exec, 1")
        a("s_lshl_b32 s7, s2, 3")
        a("s_add_u32 s7, s7, s3")
        a("s_lshl_b32 s7, s7, 6")
        a("v_mov_b32 v3, s7")
        for i in range(16):
            a(f"v_mov_b32 v2, s{80+i}")
            a(f"buffer_store_dword v2, v3, s[96:99], 0 offen offset:{4*i}")
        a("s_waitcnt vmcnt(0)")
        a("s_mov_b64 exec, -1")


NRT = 13
B1_XSZ = NRT * 16 * 128
B1_STAGE = B1_XSZ + 16384
B1_NB = 3
B1_DUMMY = B1_STAGE * B1_NB
QKV_RS = 416
O_LDS = 87040
B2_WO = 0
B2_O = 102400
B2_OST = 30720
ACC = 16
XA, XB, WA, WB = 120, 172, 224, 232


def role_decode(a):
    a("s_cmp_lt_u32 s4, 2")
    a("s_cselect_b32 s70, 16, 24")
    a("s_cmp_ge_u32 s5, s70")
    a("s_cbranch_scc1 A_ROLE")


def b_decode(a):
    a("s_cmp_eq_u32 s4, 1")
    a("s_cselect_b32 s71, 1, 0")
    a("s_cmp_ge_u32 s4, 5")
    a("s_cselect_b32 s71, 1, s71")
    a("s_sub_u32 s6, s4, 2")
    a("s_cmp_ge_u32 s4, 5")
    a("s_cselect_b32 s7, 3, 0")
    a("s_sub_u32 s6, s6, s7")
    a("s_mul_i32 s6, s6, 3")
    a("s_add_u32 s6, s6, 2")
    a("s_cmp_lt_u32 s4, 2")
    a("s_cselect_b32 s6, 0, s6")
    a("s_lshr_b32 s7, s5, 3")
    a("s_add_u32 s60, s6, s7")
    a("s_and_b32 s68, s5, 7")
    a("s_lshl_b32 s61, s71, 3")
    a("s_add_u32 s61, s61, s68")
    a("s_lshl_b32 s67, s60, 1")
    a("s_add_u32 s67, s67, s71")
    a("s_mov_b32 s69, s2")


def pf_x_addr(a, dst, two):
    a("v_and_b32 v10, 31, v1")
    a("s_mul_i32 s6, s68, 26")
    a("s_mul_i32 s7, s60, 192")
    a("s_add_u32 s6, s6, s7")
    a("s_sub_u32 s6, s6, 16")
    a("v_add_u32 v11, s6, v10")
    a("s_movk_i32 s7, 1280")
    a("v_mul_lo_u32 v11, v11, s7")
    a("v_lshrrev_b32 v12, 5, v1")
    a("v_lshlrev_b32 v12, 7, v12")
    a("v_add_u32 v11, v11, v12")
    a("v_cmp_gt_u32 vcc, 26, v10")
    a(f"v_mov_b32 v12, 0x{OOB:x}")
    if not two:
        a("v_cmp_gt_u32 vcc, 26, v1")
    a("s_nop 1")
    a(f"v_cndmask_b32 v{dst}, v12, v11, vcc")


def pf_w_addr(a, dst):
    a("s_cmp_eq_u32 s70, 16")
    a("s_cselect_b32 s6, 60, 40")
    a("s_mul_i32 s7, s5, s6")
    a("v_add_u32 v10, s7, v1")
    a("v_mul_u32_u24 v11, 4370, v10")
    a("v_lshrrev_b32 v11, 16, v11")
    a("v_mul_u32_u24 v12, 15, v11")
    a("v_sub_u32 v12, v10, v12")
    a("v_mul_u32_u24 v13, 52, v12")
    a("v_lshrrev_b32 v13, 8, v13")
    a("v_mul_u32_u24 v14, 5, v13")
    a("v_sub_u32 v14, v12, v14")
    a("v_mul_u32_u24 v11, 3840, v11")
    a("v_mul_u32_u24 v13, 1280, v13")
    a("v_lshlrev_b32 v14, 7, v14")
    a("v_add3_u32 v11, v11, v13, v14")
    a("s_mul_i32 s7, s71, 640")
    a("v_add_u32 v11, s7, v11")
    a("v_cmp_gt_u32 vcc, s6, v1")
    a(f"v_mov_b32 v12, 0x{OOB:x}")
    a("s_nop 0")
    a(f"v_cndmask_b32 v{dst}, v12, v11, vcc")


def b_initial_prefetch(a):
    npf = OPT["nt_pf"]
    srd(a, 32, P_X, TSZ)
    srd(a, 36, P_W, 640 * 3840)
    pf_w_addr(a, 2)
    a("s_mul_i32 s6, s3, 245760")
    a(f"buffer_load_dword v20, v2, s[36:39], s6 offen {npf}")
    pf_x_addr(a, 3, True)
    lab = a.newlabel("PFX")
    a("s_cmp_ge_u32 s3, 3")
    a(f"s_cbranch_scc1 {lab}")
    a("s_lshl_b32 s6, s3, 8")
    a(f"buffer_load_dword v21, v3, s[32:35], s6 offen {npf}")
    a.label(lab)
    lab = a.newlabel("PFW")
    a("s_cmp_ge_u32 s3, 2")
    a(f"s_cbranch_scc1 {lab}")
    a("s_add_u32 s6, s3, 4")
    a("s_mul_i32 s6, s6, 245760")
    a(f"buffer_load_dword v22, v2, s[36:39], s6 offen {npf}")
    a.label(lab)


def b1_loader_setup(a):
    srd(a, 32, P_X, TSZ)
    srd(a, 36, P_W, 640 * 3840)
    a("s_sub_u32 s62, s3, 4")
    a("v_lshrrev_b32 v10, 3, v1")
    a("s_lshl_b32 s6, s62, 3")
    a("v_add_u32 v10, s6, v10")
    a("v_lshrrev_b32 v11, 1, v10")
    a("v_and_b32 v11, 7, v11")
    a("v_and_b32 v12, 7, v1")
    a("v_xor_b32 v11, v11, v12")
    a("v_lshlrev_b32 v11, 4, v11")
    a("s_mul_i32 s6, s60, 192")
    a("s_sub_u32 s6, s6, 16")
    a("v_add_u32 v10, s6, v10")
    a("s_movk_i32 s7, 1280")
    a("v_mul_lo_u32 v10, v10, s7")
    a("v_add_u32 v2, v10, v11")
    a("v_add_u32 v3, 40960, v2")
    a("v_mov_b32 v4, v3")
    lab = a.newlabel("LS")
    a("s_cmp_lt_u32 s62, 2")
    a(f"s_cbranch_scc1 {lab}")
    a(f"v_mov_b32 v4, 0x{OOB:x}")
    a.label(lab)
    a("v_lshrrev_b32 v10, 4, v1")
    a("v_and_b32 v12, 15, v1")
    a("s_mul_i32 s63, s61, 80")
    for which, dst in ((0, 5), (1, 6)):
        a("v_lshlrev_b32 v11, 1, v10")
        if which:
            a("v_add_u32 v11, 8, v11")
        a("v_xor_b32 v11, v11, v12")
        a("v_mul_u32_u24 v13, 52, v11")
        a("v_lshrrev_b32 v13, 8, v13")
        a("v_mul_u32_u24 v14, 5, v13")
        a("v_sub_u32 v14, v11, v14")
        a("v_mul_u32_u24 v13, 1280, v13")
        a("v_lshlrev_b32 v14, 4, v14")
        a("v_add3_u32 v13, v13, v14, s63")
        a("s_lshl_b32 s6, s62, 4")
        if which:
            a("s_add_u32 s6, s6, 8")
        a("v_add_u32 v14, s6, v10")
        a("v_mul_u32_u24 v14, 3840, v14")
        a(f"v_add_u32 v{dst}, v14, v13")
        a("v_cmp_eq_u32 vcc, 15, v11")
        a(f"v_mov_b32 v13, 0x{OOB:x}")
        a("s_nop 0")
        a(f"v_cndmask_b32 v{dst}, v{dst}, v13, vcc")
    a("s_mov_b32 s41, 0")
    a("s_mov_b32 s42, 0")
    a("s_mov_b32 s43, 0")


def b1_issue_stage(a):
    nx, nw = OPT["nt_x"], OPT["nt_w"]
    a("s_lshl_b32 s6, s62, 10")
    a("s_add_u32 s6, s6, s43")
    a("s_mov_b32 m0, s6")
    a("s_mov_b32 s7, s41")
    a(f"buffer_load_dwordx4 v2, s[32:35], s41 offen {nx} lds")
    for m in range(1, 6):
        a(f"s_add_u32 m0, s6, {4096*m}")
        if m > 1:
            a("s_add_u32 s7, s7, 40960")
        else:
            a("s_nop 0")
        a(f"buffer_load_dwordx4 v3, s[32:35], s7 offen {nx} lds")
    a("s_add_u32 s44, s7, 40960")
    a("s_lshl_b32 s7, s62, 12")
    a("s_add_u32 s7, s7, s43")
    a(f"s_add_u32 s7, s7, {B1_XSZ}")
    a("s_mov_b32 m0, s7")
    a("s_add_u32 s46, s42, 15360")
    a(f"buffer_load_dwordx4 v5, s[36:39], s42 offen {nw} lds")
    a("s_add_u32 m0, s7, 1024")
    a("s_nop 0")
    a(f"buffer_load_dwordx4 v5, s[36:39], s46 offen {nw} lds")
    a("s_add_u32 m0, s7, 2048")
    a("s_nop 0")
    a(f"buffer_load_dwordx4 v6, s[36:39], s42 offen {nw} lds")
    a("s_add_u32 m0, s7, 3072")
    a("s_nop 0")
    a(f"buffer_load_dwordx4 v6, s[36:39], s46 offen {nw} lds")
    l1, l2 = a.newlabel("IS"), a.newlabel("IS")
    a("s_cmp_lt_u32 s62, 2")
    a(f"s_cbranch_scc0 {l1}")
    a(f"s_add_u32 m0, s6, {4096*6}")
    a("s_nop 0")
    a(f"buffer_load_dwordx4 v3, s[32:35], s44 offen {nx} lds")
    a(f"s_branch {l2}")
    a.label(l1)
    a(f"buffer_load_dword v8, v7, s[56:59], s45 offen {OPT['nt_pf']}")
    a.label(l2)
    a("s_add_u32 s41, s41, 128")
    a("s_add_u32 s42, s42, 245760")
    a(f"s_add_u32 s43, s43, {B1_STAGE}")
    a(f"s_cmp_ge_u32 s43, {B1_STAGE*B1_NB}")
    a("s_cselect_b32 s43, 0, s43")


def loader_wait(a, n):
    l1, l2 = a.newlabel("LW"), a.newlabel("LW")
    a("s_cmp_lt_u32 s62, 2")
    a(f"s_cbranch_scc0 {l1}")
    a(f"s_waitcnt vmcnt({n})")
    a(f"s_branch {l2}")
    a.label(l1)
    a(f"s_waitcnt vmcnt({n+1})")
    a.label(l2)


def pf_slot_setup(a):
    l_wo, l_done, l3 = a.newlabel("PS"), a.newlabel("PS"), a.newlabel("PS")
    a("s_cmp_ge_u32 s40, 4")
    a(f"s_cbranch_scc1 {l_wo}")
    a("s_add_u32 s45, s40, 6")
    a("s_cmp_eq_u32 s62, 2")
    a(f"s_cbranch_scc0 {l3}")
    srd(a, 56, P_X, TSZ)
    a("s_lshl_b32 s45, s45, 7")
    a("v_mov_b32 v7, v9")
    a(f"s_branch {l_done}")
    a.label(l3)
    srd(a, 56, P_W, 640 * 3840)
    a("s_mul_i32 s45, s45, 245760")
    a("v_mov_b32 v7, v9")
    a(f"s_branch {l_done}")
    a.label(l_wo)
    srd(a, 56, P_WO, 640 * 1280)
    a("s_sub_u32 s45, s40, 4")
    a("s_lshl_b32 s45, s45, 1")
    a("s_add_u32 s45, s45, s62")
    a("s_sub_u32 s45, s45, 2")
    a("s_lshl_b32 s45, s45, 6")
    a("s_movk_i32 s46, 268")
    a("s_cmp_eq_u32 s70, 16")
    a("s_cselect_b32 s46, 400, s46")
    a("v_add_u32 v10, s45, v1")
    a("v_cmp_gt_u32 vcc, s46, v10")
    a("s_mul_i32 s45, s5, s46")
    a("v_add_u32 v10, s45, v10")
    a("v_mul_u32_u24 v11, 6554, v10")
    a("v_lshrrev_b32 v11, 16, v11")
    a("v_mul_u32_u24 v12, 10, v11")
    a("v_sub_u32 v12, v10, v12")
    a("v_mul_u32_u24 v11, 1280, v11")
    a("v_lshlrev_b32 v12, 7, v12")
    a("v_add_u32 v11, v11, v12")
    a(f"v_mov_b32 v12, 0x{OOB:x}")
    a("s_mov_b32 s45, 0")
    a("v_cndmask_b32 v7, v12, v11, vcc")
    a.label(l_done)


def b1_loader(a, T):
    b1_loader_setup(a)
    l2, l3 = a.newlabel("PL"), a.newlabel("PL")
    a("s_cmp_eq_u32 s62, 2")
    a(f"s_cbranch_scc0 {l2}")
    pf_x_addr(a, 9, False)
    a(f"s_branch {l3}")
    a.label(l2)
    pf_w_addr(a, 9)
    a.label(l3)
    srd(a, 56, P_X, TSZ)
    a(f"v_mov_b32 v7, 0x{OOB:x}")
    a("s_mov_b32 s45, 0")
    a("s_barrier")
    a("s_mov_b32 s40, 0")
    l0 = a.newlabel("LP")
    a.label(l0)
    b1_issue_stage(a)
    a("s_add_u32 s40, s40, 1")
    a("s_cmp_lt_u32 s40, 3")
    a(f"s_cbranch_scc1 {l0}")
    T.stamp(a, 1)
    a("s_waitcnt vmcnt(22)")
    a("s_barrier")
    a("s_mov_b32 s40, 0")
    loop, l8, lw_, skip = a.newlabel("LL"), a.newlabel("LL8"), a.newlabel("LLW"), a.newlabel("LLS")
    a.label(loop)
    a("s_cmp_ge_u32 s40, 8")
    a(f"s_cbranch_scc1 {l8}")
    loader_wait(a, 11)
    a(f"s_branch {lw_}")
    a.label(l8)
    loader_wait(a, 0)
    a.label(lw_)
    a("s_barrier")
    s2 = a.newlabel("LLT")
    a("s_cmp_lt_u32 s62, 2")
    a(f"s_cbranch_scc1 {s2}")
    pf_slot_setup(a)
    a.label(s2)
    a("s_cmp_ge_u32 s40, 7")
    a(f"s_cbranch_scc1 {skip}")
    b1_issue_stage(a)
    a.label(skip)
    s3 = a.newlabel("LLU")
    a("s_cmp_lt_u32 s40, 7")
    a(f"s_cbranch_scc1 {s3}")
    a("s_cmp_lt_u32 s62, 2")
    a(f"s_cbranch_scc1 {s3}")
    a(f"buffer_load_dword v8, v7, s[56:59], s45 offen {OPT['nt_pf']}")
    a.label(s3)
    a("s_add_u32 s40, s40, 1")
    a("s_cmp_lt_u32 s40, 10")
    a(f"s_cbranch_scc1 {loop}")


def b1_compute(a, T):
    a("v_and_b32 v10, 15, v1")
    a("v_lshrrev_b32 v11, 4, v1")
    a("v_lshrrev_b32 v12, 1, v10")
    a("v_xor_b32 v12, v12, v11")
    a("v_lshlrev_b32 v12, 4, v12")
    a("v_lshlrev_b32 v10, 7, v10")
    a("v_add_u32 v2, v10, v12")
    a("v_xor_b32 v3, 64, v2")
    a("v_lshrrev_b32 v10, 2, v1")
    a("v_and_b32 v10, 3, v10")
    a("v_and_b32 v12, 3, v1")
    a("v_lshlrev_b32 v13, 3, v11")
    a("v_add_u32 v13, v13, v10")
    a("v_lshlrev_b32 v13, 8, v13")
    a("v_and_b32 v14, 1, v11")
    a("v_lshlrev_b32 v14, 3, v14")
    a("v_lshlrev_b32 v10, 1, v10")
    a("v_add_u32 v14, v14, v10")
    a("v_lshrrev_b32 v15, 1, v12")
    a("s_lshl_b32 s6, s3, 2")
    a("v_add_u32 v15, s6, v15")
    a("v_xor_b32 v15, v15, v14")
    a("v_lshlrev_b32 v15, 4, v15")
    a("v_and_b32 v12, 1, v12")
    a("v_lshlrev_b32 v12, 3, v12")
    a("v_add3_u32 v13, v13, v15, v12")
    a(f"v_add_u32 v4, {B1_XSZ}, v13")
    a("v_xor_b32 v5, 32, v4")
    for i in range(NRT * 8):
        a(f"v_mov_b32 v{ACC+i}, 0")

    def reads(xaddr, waddr0, waddr1, ks, X, W):
        r = []
        r.append(f"ds_read_b64_tr_b16 v[{W}:{W+1}], v{waddr0} offset:{8192*ks}")
        r.append(f"ds_read_b64_tr_b16 v[{W+2}:{W+3}], v{waddr0} offset:{8192*ks+1024}")
        r.append(f"ds_read_b64_tr_b16 v[{W+4}:{W+5}], v{waddr1} offset:{8192*ks}")
        r.append(f"ds_read_b64_tr_b16 v[{W+6}:{W+7}], v{waddr1} offset:{8192*ks+1024}")
        for t in range(NRT):
            r.append(f"ds_read_b128 v[{X+4*t}:{X+4*t+3}], v{xaddr} offset:{2048*t}")
        return r

    def mfmas(X, W):
        r = []
        for t in range(NRT):
            for ct in range(2):
                ac = ACC + (ct * NRT + t) * 4
                r.append(f"v_mfma_f32_16x16x32_bf16 v[{ac}:{ac+3}], v[{W+4*ct}:{W+4*ct+3}], v[{X+4*t}:{X+4*t+3}], v[{ac}:{ac+3}]")
        return r

    def inter(m, r):
        for i, x in enumerate(m):
            a(x)
            if i < len(r):
                a(r[i])

    a("s_barrier")
    T.stamp(a, 2)
    a("v_mov_b32 v6, v2")
    a("v_mov_b32 v7, v3")
    a("v_mov_b32 v8, v4")
    a("v_mov_b32 v9, v5")
    for x in reads(6, 8, 9, 0, XA, WA):
        a(x)
    a("s_mov_b32 s40, 0")
    a("s_mov_b32 s44, 0")
    loop, last, done = a.newlabel("CL"), a.newlabel("CE"), a.newlabel("CD")
    a.label(loop)
    a("s_waitcnt lgkmcnt(0)")
    inter(mfmas(XA, WA), reads(7, 8, 9, 1, XB, WB))
    a(f"s_add_u32 s44, s44, {B1_STAGE}")
    a(f"s_cmp_ge_u32 s44, {B1_STAGE*B1_NB}")
    a("s_cselect_b32 s44, 0, s44")
    a("v_add_u32 v6, s44, v2")
    a("v_add_u32 v7, s44, v3")
    a("v_add_u32 v8, s44, v4")
    a("v_add_u32 v9, s44, v5")
    a("s_waitcnt lgkmcnt(0)")
    a("s_barrier")
    a("s_cmp_eq_u32 s40, 9")
    a(f"s_cbranch_scc1 {last}")
    inter(mfmas(XB, WB), reads(6, 8, 9, 0, XA, WA))
    a("s_add_u32 s40, s40, 1")
    a(f"s_branch {loop}")
    a.label(last)
    for x in mfmas(XB, WB):
        a(x)


def b1_epi_compute(a):
    a("v_and_b32 v10, 15, v1")
    a(f"v_mul_u32_u24 v10, {QKV_RS}, v10")
    a("v_lshrrev_b32 v11, 4, v1")
    a("s_lshl_b32 s6, s3, 3")
    a("v_add_u32 v11, s6, v11")
    for ct in range(2):
        if ct:
            a("v_add_u32 v11, 4, v11")
        a("v_mul_u32_u24 v12, 52, v11")
        a("v_lshrrev_b32 v12, 8, v12")
        a("v_mul_u32_u24 v13, 5, v12")
        a("v_sub_u32 v13, v11, v13")
        a("v_lshlrev_b32 v12, 6, v12")
        a("v_lshlrev_b32 v13, 3, v13")
        a(f"v_add3_u32 v{14+ct}, v10, v12, v13")
    a("v_add_u32 v8, 0xd000, v14")
    a("v_add_u32 v9, 0xd000, v15")
    k = 0
    for ct in range(2):
        for t in range(NRT):
            ac = ACC + (ct * NRT + t) * 4
            d = 120 + 2 * (k % 8)
            k += 1
            a(f"v_cvt_pk_bf16_f32 v{d}, v{ac}, v{ac+1}")
            a(f"v_cvt_pk_bf16_f32 v{d+1}, v{ac+2}, v{ac+3}")
            if t < 8:
                a(f"ds_write_b64 v{14+ct}, v[{d}:{d+1}] offset:{16*QKV_RS*t}")
            else:
                a(f"ds_write_b64 v{8+ct}, v[{d}:{d+1}] offset:{16*QKV_RS*(t-8)}")


def b1_epi_loader(a):
    a("v_and_b32 v10, 255, v0")
    a("v_mov_b32 v16, 0")
    a("v_mov_b32 v17, 0")
    a("v_mov_b32 v18, 0")
    a("v_mov_b32 v19, 0")
    a("v_lshrrev_b32 v11, 2, v10")
    a("v_and_b32 v12, 3, v10")
    a(f"v_mul_u32_u24 v11, {QKV_RS}, v11")
    a("v_lshlrev_b32 v12, 6, v12")
    a("v_add_u32 v11, v11, v12")
    for it in range(4):
        off = it * 64 * QKV_RS
        if it == 3:
            a("v_cmp_gt_u32 vcc, 64, v10")
            a("s_and_saveexec_b64 s[6:7], vcc")
        if it == 2:
            a(f"v_add_u32 v11, {2*64*QKV_RS}, v11")
        o2 = off if it < 2 else off - 2 * 64 * QKV_RS
        a(f"ds_write_b64 v11, v[16:17] offset:{o2+40}")
        a(f"ds_write_b128 v11, v[16:19] offset:{o2+48}")
        if it == 3:
            a("s_mov_b64 exec, s[6:7]")


def attention(a):
    a("v_and_b32 v10, 15, v1")
    a("v_lshrrev_b32 v11, 4, v1")
    a("v_mov_b32 v14, 0")
    a("v_mov_b32 v15, 0xf149f2ca")
    for i in range(4):
        a("v_lshlrev_b32 v12, 2, v11")
        a(f"v_add_u32 v12, {i}, v12")
        a("v_sub_u32 v13, v10, v12")
        a("v_and_b32 v24, 0x80000001, v13")
        a("v_cmp_eq_u32 vcc, 0, v24")
        a("v_add_u32 v13, 16, v13")
        a("v_and_b32 v24, 1, v13")
        a(f"v_cndmask_b32 v{20+i}, v15, v14, vcc")
        a("v_lshlrev_b32 v24, 8, v24")
        a("v_add_u32 v24, v24, v13")
        a("v_cmp_ge_u32 vcc, 14, v24")
        a("s_nop 1")
        a(f"v_cndmask_b32 v{64+i}, v15, v14, vcc")
    a(f"v_mul_u32_u24 v12, {QKV_RS}, v10")
    a("v_lshlrev_b32 v13, 4, v11")
    a("v_add_u32 v68, v12, v13")
    a("v_lshrrev_b32 v12, 2, v1")
    a("v_and_b32 v12, 3, v12")
    a("v_lshlrev_b32 v13, 2, v11")
    a("v_add_u32 v12, v12, v13")
    a(f"v_mul_u32_u24 v12, {QKV_RS}, v12")
    a("v_and_b32 v13, 3, v1")
    a("v_lshlrev_b32 v13, 3, v13")
    a("v_add_u32 v69, v12, v13")
    a("v_mul_u32_u24 v12, 80, v10")
    a("v_lshlrev_b32 v13, 3, v11")
    a("v_add_u32 v70, v12, v13")
    a(f"v_add_u32 v70, {O_LDS}, v70")
    a("s_mov_b32 s45, 0x3ea52b5c")
    a("s_mul_i32 s46, s3, 3")
    a("s_add_u32 s47, s46, 3")
    R16 = 16 * QKV_RS
    loop = a.newlabel("AT")
    a.label(loop)
    a("s_lshr_b32 s6, s46, 1")
    a("s_and_b32 s7, s46, 1")
    a(f"s_mul_i32 s48, s6, {R16}")
    a("s_lshl_b32 s49, s7, 6")
    a("s_add_u32 s48, s48, s49")
    a("s_mul_i32 s49, s6, 1280")
    a("s_mul_i32 s7, s7, 40")
    a("s_add_u32 s49, s49, s7")
    a("v_add_u32 v24, s48, v68")
    a("v_add_u32 v25, s48, v69")
    a("v_add_u32 v26, s49, v70")
    a(f"ds_read_b128 v[28:31], v24 offset:{R16}")
    a(f"ds_read_b128 v[32:35], v24 offset:{128}")
    a(f"ds_read_b128 v[36:39], v24 offset:{R16 + 128}")
    a(f"ds_read_b64_tr_b16 v[40:41], v25 offset:{256}")
    a(f"ds_read_b64_tr_b16 v[42:43], v25 offset:{R16 + 256}")
    a(f"ds_read_b64_tr_b16 v[44:45], v25 offset:{256+32}")
    a(f"ds_read_b64_tr_b16 v[46:47], v25 offset:{R16 + 256+32}")
    sp, sp2 = a.newlabel("ATS"), a.newlabel("ATS")
    a("s_or_b32 s6, s6, s60")
    a("s_cmp_eq_u32 s6, 0")
    a(f"s_cbranch_scc1 {sp}")
    for i in range(4):
        a(f"v_mov_b32 v{16+i}, v{64+i}")
    a(f"s_branch {sp2}")
    a.label(sp)
    for i in range(4):
        a(f"v_mov_b32 v{16+i}, v15")
    a.label(sp2)
    a("s_waitcnt lgkmcnt(4)")
    a("v_mfma_f32_16x16x32_bf16 v[48:51], v[32:35], v[28:31], 0")
    a("v_mfma_f32_16x16x32_bf16 v[52:55], v[36:39], v[28:31], 0")
    a("s_nop 7")
    a("s_nop 0")
    for i in range(4):
        a(f"v_fma_f32 v{48+i}, v{48+i}, s45, v{16+i}")
    for i in range(4):
        a(f"v_fma_f32 v{52+i}, v{52+i}, s45, v{20+i}")
    a("v_max3_f32 v56, v48, v49, v50")
    a("v_max3_f32 v57, v51, v52, v53")
    a("v_max3_f32 v56, v56, v54, v55")
    a("v_max_f32 v56, v56, v57")
    a("v_mov_b32 v57, v56")
    a("s_nop 1")
    a("v_permlane32_swap_b32 v56, v57")
    a("v_max_f32 v56, v56, v57")
    a("v_mov_b32 v57, v56")
    a("s_nop 1")
    a("v_permlane16_swap_b32 v56, v57")
    a("v_max_f32 v56, v56, v57")
    for i in range(8):
        a(f"v_sub_f32 v{48+i}, v{48+i}, v56")
    for i in range(8):
        a(f"v_exp_f32 v{48+i}, v{48+i}")
    a("s_nop 0")
    a("v_add_f32 v56, v48, v49")
    a("v_add_f32 v57, v50, v51")
    a("v_add_f32 v58, v52, v53")
    a("v_add_f32 v59, v54, v55")
    a("v_add_f32 v56, v56, v57")
    a("v_add_f32 v58, v58, v59")
    a("v_add_f32 v56, v56, v58")
    a("v_mov_b32 v57, v56")
    a("s_nop 1")
    a("v_permlane32_swap_b32 v56, v57")
    a("v_add_f32 v56, v56, v57")
    a("v_mov_b32 v57, v56")
    a("s_nop 1")
    a("v_permlane16_swap_b32 v56, v57")
    a("v_add_f32 v56, v56, v57")
    a("v_rcp_f32 v56, v56")
    a("s_nop 0")
    for i in range(8):
        a(f"v_mul_f32 v{48+i}, v{48+i}, v56")
    for i in range(4):
        a(f"v_cvt_pk_bf16_f32 v{60+i}, v{48+2*i}, v{49+2*i}")
    a("s_waitcnt lgkmcnt(0)")
    a("s_nop 1")
    a("v_mfma_f32_16x16x32_bf16 v[48:51], v[40:43], v[60:63], 0")
    a("v_mfma_f32_16x16x32_bf16 v[52:55], v[44:47], v[60:63], 0")
    a("s_nop 7")
    a("s_nop 0")
    a("v_cvt_pk_bf16_f32 v56, v48, v49")
    a("v_cvt_pk_bf16_f32 v57, v50, v51")
    a("v_cvt_pk_bf16_f32 v58, v52, v53")
    a("v_cvt_pk_bf16_f32 v59, v54, v55")
    a("ds_write_b64 v26, v[56:57]")
    a("s_mov_b64 exec, 0xffff")
    a("ds_write_b64 v26, v[58:59] offset:32")
    a("s_mov_b64 exec, -1")
    a("s_add_u32 s46, s46, 1")
    a("s_cmp_lt_u32 s46, s47")
    a(f"s_cbranch_scc1 {loop}")


def get_tag_issue(a):
    srd(a, 52, P_DBG, 256)
    a("v_mov_b32 v251, 0")
    a("buffer_load_dword v250, v251, s[52:55], 0 offen sc1")


def make_tag(a):
    lab = a.newlabel("MT")
    a("s_cmp_lg_u32 s69, 0")
    a(f"s_cbranch_scc1 {lab}")
    a("s_cmp_lg_u32 s3, 3")
    a(f"s_cbranch_scc1 {lab}")
    srd(a, 48, P_WS, 64, WS_EP)
    srd(a, 52, P_DBG, 256)
    a("v_mov_b32 v30, 0")
    a("buffer_load_dword v31, v30, s[48:51], 0 offen sc1")
    a("s_waitcnt vmcnt(0)")
    a("v_add_u32 v31, 1, v31")
    a("v_max_u32 v31, 1, v31")
    a("s_mov_b64 exec, 1")
    a("buffer_store_dword v31, v30, s[48:51], 0 offen sc1")
    a("buffer_store_dword v31, v30, s[52:55], 0 offen sc1")
    a("s_mov_b64 exec, -1")
    a("s_waitcnt vmcnt(0)")
    a.label(lab)


def o_store_flag(a):
    sc = OPT["sc"]
    srd(a, 48, P_WS, TSZ, WS_OW)
    a("v_lshlrev_b32 v10, 4, v0")
    a(f"v_add_u32 v11, {O_LDS}, v10")
    for i in range(4):
        a(f"ds_read_b128 v[{16+4*i}:{19+4*i}], v11 offset:{4096*i}")
    a("s_mul_i32 s6, s61, 163840")
    a("s_mul_i32 s7, s60, 15360")
    a("s_add_u32 s6, s6, s7")
    a("v_add_u32 v12, s6, v10")
    a("s_movk_i32 s7, 15360")
    a("s_cmp_eq_u32 s60, 10")
    a("s_cselect_b32 s7, 10240, s7")
    a(f"v_mov_b32 v14, 0x{OOB:x}")
    for i in range(4):
        a(f"v_add_u32 v{32+i}, {4096*i}, v12")
        a(f"v_add_u32 v13, {4096*i}, v10")
        a("v_cmp_gt_u32 vcc, s7, v13")
        a("s_nop 1")
        a(f"v_cndmask_b32 v{32+i}, v14, v{32+i}, vcc")
    a("s_waitcnt lgkmcnt(0)")
    for i in range(4):
        a(f"buffer_store_dwordx4 v[{16+4*i}:{19+4*i}], v{32+i}, s[48:51], 0 offen {sc}")


def publish_flag(a):
    srd(a, 48, P_WS, 0x10000, WS_FL)
    l0, l1 = a.newlabel("TG"), a.newlabel("TG")
    a("s_mov_b32 s45, 0")
    a.label(l0)
    a("s_waitcnt vmcnt(0)")
    a("v_readfirstlane_b32 s44, v250")
    a("s_cmp_lg_u32 s44, 0")
    a(f"s_cbranch_scc1 {l1}")
    a("s_add_u32 s45, s45, 1")
    a(f"s_cmp_gt_u32 s45, {OPT['spin']}")
    a(f"s_cbranch_scc1 {l1}")
    a("s_sleep 4")
    a("buffer_load_dword v250, v251, s[52:55], 0 offen sc1")
    a(f"s_branch {l0}")
    a.label(l1)
    a("s_lshl_b32 s6, s60, 4")
    a("s_add_u32 s6, s6, s61")
    a("s_lshl_b32 s6, s6, 2")
    a("s_add_u32 s6, s6, s3")
    a("s_lshl_b32 s6, s6, 2")
    a("v_mov_b32 v10, s6")
    a("v_mov_b32 v11, s44")
    a("s_mov_b64 exec, 1")
    a("buffer_store_dword v11, v10, s[48:51], 0 offen sc1")
    a("s_mov_b64 exec, -1")


def poll_flags(a):
    a("s_lshl_b32 s6, s60, 8")
    a("v_lshlrev_b32 v10, 2, v1")
    a("v_add_u32 v10, s6, v10")
    l0, l1 = a.newlabel("PF"), a.newlabel("PF")
    a("s_mov_b32 s45, 0")
    a.label(l0)
    a("buffer_load_dword v11, v10, s[48:51], 0 offen sc1")
    a("s_waitcnt vmcnt(0)")
    a("v_cmp_ne_u32 vcc, s44, v11")
    a("s_add_u32 s45, s45, 1")
    a("s_nop 3")
    a(f"s_cbranch_vccz {l1}")
    a(f"s_cmp_gt_u32 s45, {OPT['spin']}")
    a(f"s_cbranch_scc1 {l1}")
    a("s_sleep 2")
    a(f"s_branch {l0}")
    a.label(l1)


def b2_issue_wo(a):
    srd(a, 36, P_WO, 640 * 1280)
    for j in range(5):
        a(f"v_add_u32 v10, {64*j}, v1")
        a("v_mul_u32_u24 v11, 6554, v10")
        a("v_lshrrev_b32 v11, 16, v11")
        a("v_mul_u32_u24 v12, 10, v11")
        a("v_sub_u32 v12, v10, v12")
        a("v_lshrrev_b32 v13, 4, v11")
        a("v_lshlrev_b32 v13, 2, v13")
        a("v_and_b32 v14, 3, v11")
        a("v_add_u32 v13, v13, v14")
        a("v_lshrrev_b32 v14, 2, v11")
        a("v_and_b32 v14, 3, v14")
        a("v_lshlrev_b32 v14, 3, v14")
        a("v_add_u32 v13, v13, v14")
        a("v_mul_u32_u24 v13, 1280, v13")
        a("v_lshlrev_b32 v12, 4, v12")
        a("s_mul_i32 s6, s68, 160")
        a(f"v_add3_u32 v{240+j}, v13, v12, s6")


def b2_issue_wo_go(a):
    a("s_mov_b32 s40, s62")
    loop = a.newlabel("WO")
    a.label(loop)
    a("s_mul_i32 s7, s40, 40960")
    a("s_mul_i32 s6, s40, 5120")
    for j in range(5):
        a(f"s_add_u32 m0, s6, {B2_WO + 1024*j}")
        a("s_nop 0")
        a(f"buffer_load_dwordx4 v{240+j}, s[36:39], s7 offen lds")
    a("s_add_u32 s40, s40, 4")
    a("s_cmp_lt_u32 s40, 20")
    a(f"s_cbranch_scc1 {loop}")


def b2_issue_o(a):
    sc = OPT["sc"]
    loop = a.newlabel("OI")
    a("s_mov_b32 s47, s62")
    a("s_and_b32 s48, s46, 1")
    a(f"s_mul_i32 s48, s48, {B2_OST}")
    a(f"s_add_u32 s48, s48, {B2_O}")
    a("s_lshl_b32 s49, s46, 2")
    a("s_mul_i32 s49, s49, 163840")
    a("s_mul_i32 s50, s67, 7680")
    a("s_add_u32 s49, s49, s50")
    a.label(loop)
    a("s_lshl_b32 s6, s47, 10")
    a("v_add_u32 v10, s6, v239")
    a("v_lshrrev_b32 v11, 9, v10")
    a("v_mul_u32_u24 v11, 4370, v11")
    a("v_lshrrev_b32 v11, 16, v11")
    a("v_mul_u32_u24 v11, 156160, v11")
    a("v_add_u32 v10, v10, v11")
    a("s_add_u32 m0, s6, s48")
    a("s_add_u32 s47, s47, 4")
    a(f"buffer_load_dwordx4 v10, s[52:55], s49 offen {sc} lds")
    a("s_cmp_lt_u32 s47, 30")
    a(f"s_cbranch_scc1 {loop}")


def b2_loader(a, T):
    srd(a, 52, P_WS, TSZ, WS_OW)
    a("v_lshlrev_b32 v239, 4, v1")
    a("s_mov_b32 s46, 0")
    b2_issue_o_call = a.newlabel("OC")
    l = a.newlabel("O01")
    a.label(l)
    b2_issue_o(a)
    a("s_add_u32 s46, s46, 1")
    a("s_cmp_lt_u32 s46, 2")
    a(f"s_cbranch_scc1 {l}")
    a("s_waitcnt vmcnt(7)")
    a("s_barrier")
    a("s_waitcnt vmcnt(0)")
    a("s_barrier")
    l = a.newlabel("O23")
    a.label(l)
    b2_issue_o(a)
    a("s_waitcnt vmcnt(0)")
    a("s_barrier")
    a("s_add_u32 s46, s46, 1")
    a("s_cmp_lt_u32 s46, 4")
    a(f"s_cbranch_scc1 {l}")


def b2_compute(a, T):
    a("v_and_b32 v10, 15, v1")
    a("v_lshrrev_b32 v11, 4, v1")
    a("s_and_b32 s6, s3, 1")
    a("s_mul_i32 s6, s6, 48")
    a("v_add_u32 v10, s6, v10")
    a("v_mul_u32_u24 v10, 80, v10")
    for ks in range(5):
        a(f"v_add_u32 v12, {4*ks}, v11")
        a("v_mul_u32_u24 v13, 52, v12")
        a("v_lshrrev_b32 v13, 8, v13")
        a("v_mul_u32_u24 v14, 5, v13")
        a("v_sub_u32 v14, v12, v14")
        a("v_mul_u32_u24 v13, 7680, v13")
        a("v_lshlrev_b32 v14, 4, v14")
        a(f"v_add3_u32 v{224+ks}, v10, v13, v14")
    a("v_lshrrev_b32 v12, 2, v1")
    a("v_and_b32 v12, 3, v12")
    a("v_lshlrev_b32 v13, 2, v11")
    a("v_add_u32 v12, v12, v13")
    a("v_mul_u32_u24 v12, 160, v12")
    a("v_and_b32 v13, 3, v1")
    a("v_lshlrev_b32 v13, 3, v13")
    a("v_add_u32 v229, v12, v13")
    for i in range(60):
        a(f"v_mov_b32 v{16+i}, 0")
    a("s_lshr_b32 s47, s3, 1")
    a("s_mov_b32 s46, 0")
    loop = a.newlabel("C2")
    a.label(loop)
    a("s_barrier")
    a("s_and_b32 s48, s46, 1")
    a(f"s_mul_i32 s49, s48, {B2_OST}")
    a(f"s_add_u32 s49, s49, {B2_O}")
    a("s_mul_i32 s50, s46, 25600")
    le, ld = a.newlabel("C2E"), a.newlabel("C2D")
    a("s_cmp_eq_u32 s47, s48")
    a(f"s_cbranch_scc0 {le}")

    def rd(ks, F):
        r = [f"v_add_u32 v10, s49, v{224+ks}",
             f"s_add_u32 s6, s50, {ks*5120}",
             f"v_add_u32 v11, s6, v229"]
        for t in range(3):
            r.append(f"ds_read_b128 v[{F+4*t}:{F+4*t+3}], v10 offset:{1280*t}")
        for ct in range(5):
            r.append(f"ds_read_b64_tr_b16 v[{F+12+4*ct}:{F+13+4*ct}], v11 offset:{32*ct}")
            r.append(f"ds_read_b64_tr_b16 v[{F+14+4*ct}:{F+15+4*ct}], v11 offset:{32*ct+2560}")
        return r

    def mm(F):
        r = []
        for t in range(3):
            for ct in range(5):
                ac = 16 + (t * 5 + ct) * 4
                r.append(f"v_mfma_f32_16x16x32_bf16 v[{ac}:{ac+3}], v[{F+12+4*ct}:{F+15+4*ct}], v[{F+4*t}:{F+4*t+3}], v[{ac}:{ac+3}]")
        return r

    for var, kss in enumerate([(0, 2, 4), (1, 3)]):
        if var == 1:
            a(f"s_branch {ld}")
            a.label(le)
        F = [80, 112]
        for x in rd(kss[0], F[0]):
            a(x)
        for i, ks in enumerate(kss):
            a("s_waitcnt lgkmcnt(0)")
            m = mm(F[i & 1])
            r = rd(kss[i + 1], F[(i + 1) & 1]) if i + 1 < len(kss) else []
            for j, x in enumerate(m):
                a(x)
                if j < len(r):
                    a(r[j])
            for x in r[len(m):]:
                a(x)
    a.label(ld)
    a("s_add_u32 s46, s46, 1")
    a("s_cmp_lt_u32 s46, 4")
    a(f"s_cbranch_scc1 {loop}")


def b2_finish(a):
    a("s_barrier")
    a("v_lshlrev_b32 v10, 4, v1")
    a("s_and_b32 s6, s3, 1")
    a("s_mul_i32 s6, s6, 15360")
    a(f"s_add_u32 s6, s6, {B2_O}")
    a("v_add_u32 v10, s6, v10")
    l1, l2 = a.newlabel("R"), a.newlabel("R")
    a("s_lshr_b32 s6, s3, 1")
    a("s_cmp_eq_u32 s6, 1")
    a(f"s_cbranch_scc0 {l1}")
    for i in range(15):
        a(f"ds_write_b128 v10, v[{16+4*i}:{19+4*i}] offset:{1024*i}")
    a("s_waitcnt lgkmcnt(0)")
    a.label(l1)
    a("s_barrier")
    a("s_cmp_lt_u32 s3, 2")
    a(f"s_cbranch_scc0 {l2}")
    for i in range(15):
        a(f"ds_read_b128 v[{80+4*i}:{83+4*i}], v10 offset:{1024*i}")
    a("v_and_b32 v11, 15, v1")
    a("s_mul_i32 s6, s3, 48")
    a("v_add_u32 v11, s6, v11")
    a("v_mul_u32_u24 v11, 160, v11")
    a("v_lshrrev_b32 v12, 4, v1")
    a("v_lshlrev_b32 v12, 3, v12")
    a("v_add_u32 v11, v11, v12")
    a("s_waitcnt lgkmcnt(0)")
    for t in range(3):
        for ct in range(5):
            i = t * 5 + ct
            ac, p = 16 + 4 * i, 80 + 4 * i
            a(f"v_pk_add_f32 v[{ac}:{ac+1}], v[{ac}:{ac+1}], v[{p}:{p+1}]")
            a(f"v_pk_add_f32 v[{ac+2}:{ac+3}], v[{ac+2}:{ac+3}], v[{p+2}:{p+3}]")
            a(f"v_cvt_pk_bf16_f32 v{p}, v{ac}, v{ac+1}")
            a(f"v_cvt_pk_bf16_f32 v{p+1}, v{ac+2}, v{ac+3}")
            a(f"ds_write_b64 v11, v[{p}:{p+1}] offset:{B2_WO + 2560*t + 32*ct}")
    a("s_waitcnt lgkmcnt(0)")
    a.label(l2)
    a("s_barrier")
    srd(a, 48, P_OUT, 2048 * 2560)
    for it in range(2):
        a(f"v_add_u32 v10, {512*it}, v0")
        a("v_lshlrev_b32 v11, 4, v10")
        a(f"ds_read_b128 v[{16+4*it}:{19+4*it}], v11 offset:{B2_WO}")
        a("v_mul_u32_u24 v12, 6554, v10")
        a("v_lshrrev_b32 v12, 16, v12")
        a("v_mul_u32_u24 v13, 10, v12")
        a("v_sub_u32 v13, v10, v13")
        a("s_mul_i32 s6, s67, 96")
        a("v_add_u32 v12, s6, v12")
        a("v_mul_u32_u24 v12, 2560, v12")
        a("v_lshlrev_b32 v13, 4, v13")
        a("s_mul_i32 s6, s68, 160")
        a("s_add_u32 s6, s6, 1280")
        a(f"v_add3_u32 v{24+it}, v12, v13, s6")
    a("v_cmp_gt_u32 vcc, 448, v0")
    a(f"v_mov_b32 v14, 0x{OOB:x}")
    a("s_nop 0")
    a("v_cndmask_b32 v25, v14, v25, vcc")
    a("s_waitcnt lgkmcnt(0)")
    no = OPT["nt_out"]
    a(f"buffer_store_dwordx4 v[16:19], v24, s[48:51], 0 offen {no}")
    a(f"buffer_store_dwordx4 v[20:23], v25, s[48:51], 0 offen {no}")


def b_program(a, T):
    b_decode(a)
    ld, j1 = a.newlabel("BLD"), a.newlabel("BJ1")
    a("s_cmp_ge_u32 s3, 4")
    a(f"s_cbranch_scc1 {ld}")
    b_initial_prefetch(a)
    make_tag(a)
    a("s_waitcnt vmcnt(0)")
    a("s_barrier")
    T.stamp(a, 1)
    b1_compute(a, T)
    T.stamp(a, 3)
    a("s_nop 7")
    b1_epi_compute(a)
    get_tag_issue(a)
    a("s_waitcnt lgkmcnt(0)")
    a(f"s_branch {j1}")
    a.label(ld)
    b1_loader(a, T)
    T.stamp(a, 3)
    b1_epi_loader(a)
    b2_issue_wo(a)
    a("s_waitcnt lgkmcnt(0)")
    a.label(j1)
    a("s_barrier")
    T.stamp(a, 4)
    attention(a)
    a("s_waitcnt lgkmcnt(0)")
    a("s_barrier")
    T.stamp(a, 5)
    ld2, j2 = a.newlabel("BLD"), a.newlabel("BJ2")
    a("s_cmp_ge_u32 s3, 4")
    a(f"s_cbranch_scc1 {ld2}")
    o_store_flag(a)
    a("s_barrier")
    publish_flag(a)
    T.stamp(a, 6)
    lp = a.newlabel("NP")
    a("s_cmp_lg_u32 s3, 0")
    a(f"s_cbranch_scc1 {lp}")
    poll_flags(a)
    a.label(lp)
    T.stamp(a, 7)
    a("s_barrier")
    b2_compute(a, T)
    T.stamp(a, 8)
    a(f"s_branch {j2}")
    a.label(ld2)
    a("s_barrier")
    b2_issue_wo_go(a)
    T.stamp(a, 6)
    a("s_waitcnt vmcnt(0)")
    T.stamp(a, 7)
    a("s_barrier")
    b2_loader(a, T)
    T.stamp(a, 8)
    a.label(j2)
    a("s_nop 7")
    b2_finish(a)
    T.stamp(a, 9)


A2_H0 = 0
A2_H1 = 4224
A2_X0 = 8448
A2_X2 = 13184
A2_CH = 17920


def a_program(a, T):
    na = OPT["nt_a"]
    nh = OPT["nt_h"]
    a("s_sub_u32 s5, s5, s70")
    a("s_lshl_b32 s6, s4, 1")
    a("s_add_u32 s7, s4, 2")
    a("s_cmp_lt_u32 s4, 2")
    a("s_cselect_b32 s6, s6, s7")
    a("s_lshr_b32 s7, s5, 3")
    a("s_add_u32 s56, s6, s7")
    a("s_and_b32 s55, s5, 7")
    a("s_lshl_b32 s62, s56, 6")
    a("s_lshl_b32 s6, s55, 3")
    a("s_add_u32 s62, s62, s6")
    a("s_add_u32 s63, s62, s3")
    a("s_lshl_b32 s6, s62, 3")
    a(f"s_add_u32 s48, s{P_SK}, s6")
    a(f"s_addc_u32 s49, s{P_SK+1}, 0")
    a("s_load_dwordx16 s[64:79], s[48:49], 0")
    a("s_lshl_b32 s6, s62, 1")
    a(f"s_add_u32 s50, s{P_SD}, s6")
    a(f"s_addc_u32 s51, s{P_SD+1}, 0")
    a("s_load_dwordx4 s[44:47], s[50:51], 0")
    srd(a, 32, P_K, TSZ)
    srd(a, 36, P_V, TSZ)
    npf = OPT["nt_pf"]
    a("s_and_b32 s6, s3, 3")
    a("s_lshl_b32 s6, s6, 6")
    a("s_lshl_b32 s7, s55, 8")
    a("s_add_u32 s6, s6, s7")
    a("v_add_u32 v2, s6, v1")
    a("v_mul_u32_u24 v2, 1280, v2")
    a("s_lshl_b32 s7, s56, 7")
    a("v_add_u32 v4, s7, v2")
    lk, lk2 = a.newlabel("PK"), a.newlabel("PK")
    a("s_cmp_ge_u32 s3, 4")
    a(f"s_cbranch_scc1 {lk}")
    a(f"buffer_load_dword v20, v4, s[32:35], 0 offen {npf}")
    a(f"s_branch {lk2}")
    a.label(lk)
    a(f"buffer_load_dword v20, v4, s[36:39], 0 offen {npf}")
    a.label(lk2)
    srd(a, 40, P_H, 640 * 4096)
    a(f"s_mul_i32 s60, s3, {A2_CH}")
    a("s_lshl_b32 s59, s63, 12")
    a("v_lshlrev_b32 v10, 4, v1")
    a("v_add_u32 v11, -2, v10")
    for i in range(4):
        a(f"s_add_u32 m0, s60, {A2_H0 + 128 + 1024*i}")
        a(f"s_add_u32 s6, s59, {1024*i}")
        a(f"buffer_load_dwordx4 v10, s[40:43], s6 offen {nh} lds")
    a("v_mov_b32 v13, 0")
    a(f"buffer_load_dwordx4 v[16:19], v13, s[40:43], s59 offen")
    srd(a, 48, P_Q, TSZ)
    a(f"v_mov_b32 v5, 0x{OOB:x}")
    a("s_cmp_lt_u32 s3, 4")
    a("s_cselect_b64 vcc, -1, 0")
    a("v_cndmask_b32 v5, v5, v4, vcc")
    a(f"buffer_load_dword v21, v5, s[48:51], 0 offen {npf}")
    a("s_lshl_b32 s61, s62, 1")
    a("v_mul_u32_u24 v2, 5120, v0")
    a("v_add_u32 v2, s61, v2")
    a("v_add_u32 v3, -3840, v2")
    a(f"v_mov_b32 v4, 0x{OOB:x}")
    a("v_cmp_eq_u32 vcc, 0, v1")
    a("v_add_u32 v5, -2560, v2")
    a("v_add_u32 v6, -1280, v2")
    a("v_cndmask_b32 v3, v4, v3, vcc")
    a("v_cndmask_b32 v5, v4, v5, vcc")
    a("v_cndmask_b32 v6, v4, v6, vcc")
    a("s_waitcnt vmcnt(6)")
    T.stamp(a, 6)
    for m in range(4):
        a(f"buffer_load_dwordx4 v[{64+4*m}:{67+4*m}], v2, s[32:35], 0 offen offset:{1280*m} {na}".replace("offset:0 ", ""))
    a(f"buffer_load_dwordx4 v[52:55], v3, s[32:35], 0 offen {na}")
    a(f"buffer_load_dwordx4 v[56:59], v5, s[32:35], 0 offen {na}")
    a(f"buffer_load_dwordx4 v[60:63], v6, s[32:35], 0 offen {na}")
    for m in range(4):
        a(f"buffer_load_dwordx4 v[{80+4*m}:{83+4*m}], v2, s[36:39], 0 offen offset:{1280*m} {na}".replace("offset:0 ", ""))
    for i in range(4):
        a(f"s_add_u32 m0, s60, {A2_H1 + 128 + 1024*i}")
        if i == 0:
            a("s_mov_b32 s6, s59")
            a(f"buffer_load_dwordx4 v11, s[40:43], s6 offen lds")
        else:
            a(f"s_add_u32 s6, s59, {1024*i - 2}")
            a(f"buffer_load_dwordx4 v10, s[40:43], s6 offen lds")
    T.stamp(a, 1)
    a("s_waitcnt lgkmcnt(0)")
    for c in range(4):
        for m in range(4):
            for e in range(2):
                src = 64 + 2 * (2 * c + e) + (m >> 1)
                dst = 96 + (c * 4 + m) * 2 + e
                if m & 1:
                    a(f"s_and_b32 s6, s{src}, 0xffff0000")
                else:
                    a(f"s_lshl_b32 s6, s{src}, 16")
                a(f"v_mov_b32 v{dst}, s6")
    a("s_lshr_b32 s6, s3, 1")
    a("s_cmp_eq_u32 s6, 1")
    a("s_cselect_b32 s58, s45, s44")
    a("s_cmp_eq_u32 s6, 2")
    a("s_cselect_b32 s58, s46, s58")
    a("s_cmp_eq_u32 s6, 3")
    a("s_cselect_b32 s58, s47, s58")
    a("s_and_b32 s6, s3, 1")
    a("s_lshl_b32 s6, s6, 4")
    a("s_lshr_b32 s58, s58, s6")
    a("s_lshl_b32 s58, s58, 16")
    a("v_mov_b32 v28, 0")
    a("v_mov_b32 v29, 0")
    a("v_mov_b32 v30, 0")
    a("v_mov_b32 v31, 0")
    a("v_add_u32 v23, s60, v10")
    a("s_mov_b64 exec, 0xff")
    a(f"ds_write_b128 v23, v[28:31] offset:{A2_H0}")
    a(f"ds_write_b128 v23, v[28:31] offset:{A2_H1}")
    a("s_mov_b32 exec_lo, -1")
    a(f"ds_write_b128 v23, v[28:31] offset:{A2_X0+4096}")
    a(f"ds_write_b128 v23, v[28:31] offset:{A2_X2+4096}")
    a("s_mov_b64 exec, 1")
    a(f"ds_write_b32 v23, v28 offset:{A2_X2+4092}")
    a("s_mov_b64 exec, -1")
    a("v_lshlrev_b32 v7, 3, v0")
    a("v_sub_u32 v7, 4088, v7")
    a("s_waitcnt vmcnt(4)")
    T.stamp(a, 2)
    for i in range(3):
        for c in range(4):
            a(f"v_mov_b32_dpp v{52+4*i+c}, v{68+4*i+c} wave_shr:1 row_mask:0xf bank_mask:0xf")
    a("s_mov_b32 s57, 0xffff0000")
    for c in range(4):
        for j in range(7):
            a(f"v_lshlrev_b32 v{128+2*j}, 16, v{52+4*j+c}")
            a(f"v_and_b32 v{129+2*j}, s57, v{52+4*j+c}")
        for m in range(4):
            a(f"v_lshlrev_b32 v{142+2*m}, 16, v{80+4*m+c}")
            a(f"v_and_b32 v{143+2*m}, s57, v{80+4*m+c}")
        W = lambda m: f"v[{96+(c*4+m)*2}:{97+(c*4+m)*2}]"
        K = lambda j: f"v[{128+2*j}:{129+2*j}]"
        for rr in range(4):
            o = 150 + 2 * rr
            a(f"v_pk_mul_f32 v[{o}:{o+1}], {W(3)}, {K(rr)}")
        for m in (2, 1, 0):
            for rr in range(4):
                o = 150 + 2 * rr
                a(f"v_pk_fma_f32 v[{o}:{o+1}], {W(m)}, {K(3+rr-m)}, v[{o}:{o+1}]")
        for rr in range(4):
            o = 150 + 2 * rr
            a(f"v_pk_mul_f32 v[{o}:{o+1}], v[{o}:{o+1}], v[{142+2*rr}:{143+2*rr}]")
        for e in range(2):
            ch = 2 * c + e
            d = 160 + 2 * e
            a(f"v_cvt_pk_bf16_f32 v{d}, v{156+e}, v{154+e}")
            a(f"v_cvt_pk_bf16_f32 v{d+1}, v{152+e}, v{150+e}")
            if ch % 2 == 0:
                a(f"v_add_u32 v8, {ch*A2_CH}, v7")
                off = 0
            else:
                off = A2_CH
            a(f"ds_write_b64 v8, v[{d}:{d+1}] offset:{off + A2_X0}")
            a(f"ds_write_b32 v8, v{d} offset:{off + A2_X2 - 4}")
            a(f"ds_write_b32 v8, v{d+1} offset:{off + A2_X2}")
    a("s_waitcnt vmcnt(0)")
    a("v_lshlrev_b32 v21, 16, v16")
    a("v_add_f32 v21, s58, v21")
    a("v_cvt_pk_bf16_f32 v21, v21, v21")
    a("s_mov_b32 s6, 0xffff")
    a("v_bfi_b32 v16, s6, v21, v16")
    a("v_lshlrev_b32 v24, 16, v16")
    a("v_alignbit_b32 v25, v17, v16, 16")
    a("v_alignbit_b32 v26, v18, v17, 16")
    a("v_alignbit_b32 v27, v19, v18, 16")
    a("v_mov_b32 v22, s60")
    a("s_mov_b64 exec, 1")
    a(f"ds_write_b128 v22, v[16:19] offset:{A2_H0+128}")
    a(f"ds_write_b128 v22, v[24:27] offset:{A2_H1+128}")
    a("s_mov_b64 exec, -1")
    srd(a, 32, P_Q, TSZ)
    a("s_lshl_b32 s6, s3, 8")
    a("v_add_u32 v9, s6, v1")
    a("v_mul_u32_u24 v12, 1280, v9")
    a("v_add_u32 v12, s61, v12")
    a("s_mov_b32 s6, 0")
    for m in range(4):
        a(f"buffer_load_dwordx4 v[{192+4*m}:{195+4*m}], v12, s[32:35], s6 offen {na}")
        if m < 3:
            a("s_add_u32 s6, s6, 81920")
    a("s_waitcnt lgkmcnt(0)")
    a("s_barrier")
    T.stamp(a, 3)
    a("v_and_b32 v10, 15, v1")
    a("v_lshrrev_b32 v11, 4, v1")
    a("v_lshrrev_b32 v12, 1, v10")
    a("v_add_u32 v12, v12, v11")
    a("v_add_u32 v12, 1, v12")
    a("v_lshlrev_b32 v12, 4, v12")
    a("v_and_b32 v13, 1, v10")
    a(f"v_mov_b32 v14, {A2_H1}")
    a(f"v_mov_b32 v15, {A2_H0}")
    a("v_cmp_eq_u32 vcc, 1, v13")
    a("v_lshrrev_b32 v13, 1, v10")
    a("v_and_b32 v13, 1, v13")
    a("v_cndmask_b32 v14, v14, v15, vcc")
    a("v_add3_u32 v2, v12, v14, s60")
    a("v_lshlrev_b32 v12, 3, v13")
    a("v_lshrrev_b32 v14, 2, v10")
    a("v_lshlrev_b32 v14, 7, v14")
    a("v_add_u32 v12, v12, v14")
    a("v_lshlrev_b32 v14, 4, v11")
    a("v_sub_u32 v12, v14, v12")
    a(f"v_add_u32 v12, {2*1988 - 512*7}, v12")
    a(f"v_mov_b32 v14, {A2_X2}")
    a(f"v_mov_b32 v15, {A2_X0}")
    a("v_cndmask_b32 v14, v14, v15, vcc")
    a("v_add3_u32 v3, v12, v14, s60")
    for i in range(32):
        a(f"v_mov_b32 v{32+i}, 0")

    def reads(A, B):
        r = []
        for aa in range(8):
            r.append(f"ds_read_b128 v[{A+4*aa}:{A+4*aa+3}], v2 offset:{512*aa}")
            r.append(f"ds_read_b64 v[{B+4*aa}:{B+4*aa+1}], v3 offset:{512*(7-aa)}")
            r.append(f"ds_read_b64 v[{B+4*aa+2}:{B+4*aa+3}], v3 offset:{512*(7-aa)+8}")
        r.append("v_add_u32 v2, 64, v2")
        r.append("v_add_u32 v3, 64, v3")
        return r

    def mfmas(A, B):
        r = []
        for t in range(8):
            for aa in range(t + 1):
                u = t - aa
                ac = 32 + 4 * t
                r.append(f"v_mfma_f32_16x16x32_bf16 v[{ac}:{ac+3}], v[{A+4*aa}:{A+4*aa+3}], v[{B+4*u}:{B+4*u+3}], v[{ac}:{ac+3}]")
        return r

    def interleave(m, r):
        for i, x in enumerate(m):
            a(x)
            if i < len(r):
                a(r[i])

    for x in reads(64, 96):
        a(x)
    a("s_mov_b32 s40, 0")
    loop, last = a.newlabel("A2L"), a.newlabel("A2E")
    a.label(loop)
    a("s_waitcnt lgkmcnt(0)")
    interleave(mfmas(64, 96), reads(128, 160))
    a("s_waitcnt lgkmcnt(0)")
    a("s_cmp_eq_u32 s40, 3")
    a(f"s_cbranch_scc1 {last}")
    interleave(mfmas(128, 160), reads(64, 96))
    a("s_add_u32 s40, s40, 1")
    a(f"s_branch {loop}")
    a.label(last)
    for x in mfmas(128, 160):
        a(x)
    T.stamp(a, 4)
    a("v_and_b32 v12, 3, v10")
    a("v_lshrrev_b32 v13, 2, v10")
    a("v_lshlrev_b32 v13, 5, v13")
    a("v_lshlrev_b32 v11, 3, v11")
    a("v_add3_u32 v12, v12, v13, v11")
    a("v_lshlrev_b32 v12, 2, v12")
    a("v_add_u32 v12, s60, v12")
    a("s_nop 4")
    for t in range(8):
        ac = 32 + 4 * t
        d = 64 + 2 * t
        a(f"v_cvt_pk_bf16_f32 v{d}, v{ac}, v{ac+1}")
        a(f"v_cvt_pk_bf16_f32 v{d+1}, v{ac+2}, v{ac+3}")
        a(f"ds_write_b32 v12, v{d} offset:{512*t}")
        a(f"ds_write_b32 v12, v{d+1} offset:{512*t+16}")
    a("v_lshrrev_b32 v13, 2, v1")
    a("v_and_b32 v13, 3, v13")
    a(f"v_mul_u32_u24 v13, {A2_CH}, v13")
    a("v_lshrrev_b32 v14, 4, v1")
    a("v_lshlrev_b32 v14, 5, v14")
    a("v_and_b32 v15, 3, v1")
    a("v_lshlrev_b32 v15, 3, v15")
    a("v_add3_u32 v13, v13, v14, v15")
    a("s_lshl_b32 s6, s3, 9")
    a("v_add_u32 v13, s6, v13")
    a(f"v_add_u32 v14, {4*A2_CH}, v13")
    srd(a, 36, P_OUT, 2048 * 2560)
    a("v_mul_u32_u24 v15, 2560, v9")
    a("v_add_u32 v15, s61, v15")
    a("s_waitcnt lgkmcnt(0)")
    a("s_barrier")
    for m in range(4):
        a(f"ds_read_b64_tr_b16 v[{64+4*m}:{65+4*m}], v13 offset:{128*m}")
        a(f"ds_read_b64_tr_b16 v[{66+4*m}:{67+4*m}], v14 offset:{128*m}")
    a("s_waitcnt vmcnt(0) lgkmcnt(0)")
    a("s_mov_b32 s6, 0")
    no = OPT["nt_out"]
    for m in range(4):
        for i in range(4):
            y = 64 + 4 * m + i
            q = 192 + 4 * m + i
            a(f"v_lshlrev_b32 v80, 16, v{y}")
            a(f"v_and_b32 v81, s57, v{y}")
            a(f"v_lshlrev_b32 v82, 16, v{q}")
            a(f"v_and_b32 v83, s57, v{q}")
            a("v_pk_mul_f32 v[80:81], v[80:81], v[82:83]")
            a(f"v_cvt_pk_bf16_f32 v{y}, v80, v81")
        a(f"buffer_store_dwordx4 v[{64+4*m}:{67+4*m}], v15, s[36:39], s6 offen {no}")
        if m < 3:
            a("s_add_u32 s6, s6, 163840")
    T.stamp(a, 5)


def kdesc(name, vgpr=256, sgpr=102):
    return f""".amdhsa_kernel {name}
  .amdhsa_next_free_vgpr {vgpr}
  .amdhsa_next_free_sgpr {sgpr}
  .amdhsa_accum_offset {vgpr}
  .amdhsa_group_segment_fixed_size 0
  .amdhsa_kernarg_size 96
  .amdhsa_user_sgpr_count 2
  .amdhsa_user_sgpr_kernarg_segment_ptr 1
  .amdhsa_system_sgpr_workgroup_id_x 1
  .amdhsa_float_denorm_mode_32 3
  .amdhsa_float_denorm_mode_16_64 3
.end_amdhsa_kernel
"""


def gen(ts=False):
    out = "; concat_heads( H3-style ssm conv , sliding local dilated attention ) -- hand-written streams emitted by a python generator\n"
    out += "; @launch grid=(256,1,1) block=(512,1,1) lds=163840\n"
    out += '.amdgcn_target "amdgcn-amd-amdhsa--gfx950"\n.text\n'
    a = Asm()
    T = TS(ts)
    T.init(a)
    T.stamp(a, 0)
    a("s_cmp_ge_u32 s2, 256")
    a("s_cbranch_scc1 K_END")
    a("s_load_dwordx16 s[8:23], s[0:1], 0")
    a("s_load_dwordx8 s[24:31], s[0:1], 64")
    a("v_lshrrev_b32 v2, 6, v0")
    a("v_and_b32 v1, 63, v0")
    a("s_and_b32 s4, s2, 7")
    a("v_readfirstlane_b32 s3, v2")
    a("s_lshr_b32 s5, s2, 3")
    a("s_waitcnt lgkmcnt(0)")
    role_decode(a)
    if OPT.get("only") == "A":
        a("s_branch K_END")
    b_program(a, T)
    a("s_branch K_FIN")
    a.label("A_ROLE")
    if OPT.get("only") == "B":
        a("s_branch K_END")
    a_program(a, T)
    a.label("K_FIN")
    if ts:
        a("s_waitcnt vmcnt(0)")
        T.stamp(a, 15)
        T.flush(a)
    a.label("K_END")
    a("s_endpgm")
    out += f".globl {KNAME}\n.p2align 8\n.type {KNAME},@function\n{KNAME}:\n" + a.text()
    out += '.section .rodata,"a"\n.p2align 6\n' + kdesc(KNAME)
    return out


if __name__ == "__main__":
    mode = sys.argv[1] if len(sys.argv) > 1 else "plain"
    dst = sys.argv[2] if len(sys.argv) > 2 else "k2.s"
    for kv in sys.argv[3:]:
        k, v = kv.split("=")
        OPT[k] = v if k != "spin" else int(v)
    if mode == "tc":
        TS.INSTR = "s_memtime"
    open(dst, "w").write(gen(mode in ("ts", "tc")))
    print("wrote", dst)
```

```python
import sys

KNAME = "concat_heads__ssm_conv_h3__sliding_local_dilated__prompt_kernel"
TSZ = 640 * 4096
WS_OW = 0x0
WS_XT = 0x280000
WS_YT = 0x500000
WS_FL = 0x780000
FL_B = 0x0
FL_A1 = 0x1000
FL_A2 = 0x2000
FL_EB = 0x3000
FL_EA = 0x4000
WS_TS = 0x800000
OOB = 0x80000000

OPT = dict(nt_pf="", nt_a="", nt_h="", nt_x="", nt_w="", nt_out="", sc="sc1", spin=1 << 20)


class Asm:
    def __init__(self):
        self.l = []
        self.uid = 0

    def __call__(self, s=""):
        for line in s.split("\n"):
            line = line.strip()
            if line:
                self.l.append("    " + line)

    def label(self, name):
        self.l.append(name + ":")

    def newlabel(self, p="L"):
        self.uid += 1
        return f"{p}_{self.uid}"

    def text(self):
        return "\n".join(self.l) + "\n"


P_Q, P_K, P_V, P_SK, P_H, P_SD, P_X, P_W, P_WO, P_OUT, P_DBG, P_WS = [8 + 2 * i for i in range(12)]


def srd(a, dst, ptr, nbytes, off=0):
    if off:
        a(f"s_add_u32 s{dst}, s{ptr}, 0x{off:x}")
        a(f"s_addc_u32 s{dst+1}, s{ptr+1}, 0")
    else:
        a(f"s_mov_b32 s{dst}, s{ptr}")
        a(f"s_mov_b32 s{dst+1}, s{ptr+1}")
    a(f"s_mov_b32 s{dst+2}, 0x{nbytes:x}")
    a(f"s_mov_b32 s{dst+3}, 0x00020000")


class TS:
    INSTR = "s_memrealtime"

    def __init__(self, on):
        self.on = on
        self.n = 0

    def stamp(self, a, idx):
        if not self.on:
            return
        if OPT.get("stagets") and 3 <= idx < 14:
            return
        a(f"{TS.INSTR} s[96:97]")
        a("s_waitcnt lgkmcnt(0)")
        a(f"s_mov_b32 s{80+idx}, s96")

    def init(self, a):
        if not self.on:
            return
        for i in range(16):
            a(f"s_mov_b32 s{80+i}, 0")

    def flush(self, a):
        if not self.on:
            return
        srd(a, 96, P_WS, 0x40000, WS_TS)
        a("s_mov_b64 exec, 1")
        a("s_lshl_b32 s7, s2, 3")
        a("s_add_u32 s7, s7, s3")
        a("s_lshl_b32 s7, s7, 6")
        a("v_mov_b32 v3, s7")
        for i in range(16):
            a(f"v_mov_b32 v2, s{80+i}")
            a(f"buffer_store_dword v2, v3, s[96:99], 0 offen offset:{4*i}")
        a("s_waitcnt vmcnt(0)")
        a("s_mov_b64 exec, -1")


NRT = 13
B1_XSZ = NRT * 16 * 128
B1_STAGE = B1_XSZ + 16384
B1_NB = 3
QKV_RS = 400
O_LDS = 83200
B2_WA = 102400
B2_WB = 0
B2_O = 40960
B2_OST = 30720
ACC = 16
XA, XB, WA, WB = 120, 172, 224, 232


def role_decode(a):
    a("s_cmp_lt_u32 s4, 2")
    a("s_cselect_b32 s70, 16, 24")
    a("s_cmp_ge_u32 s5, s70")
    a("s_cbranch_scc1 A_ROLE")


def b_decode(a):
    a("s_cmp_eq_u32 s4, 1")
    a("s_cselect_b32 s71, 1, 0")
    a("s_cmp_ge_u32 s4, 5")
    a("s_cselect_b32 s71, 1, s71")
    a("s_cselect_b32 s7, 3, 0")
    a("s_sub_u32 s6, s4, 2")
    a("s_sub_u32 s6, s6, s7")
    a("s_mul_i32 s6, s6, 3")
    a("s_add_u32 s6, s6, 2")
    a("s_cmp_lt_u32 s4, 2")
    a("s_cselect_b32 s6, 0, s6")
    a("s_lshr_b32 s7, s5, 3")
    a("s_add_u32 s60, s6, s7")
    a("s_and_b32 s68, s5, 7")
    a("s_lshl_b32 s61, s71, 3")
    a("s_add_u32 s61, s61, s68")
    a("s_lshl_b32 s67, s60, 1")
    a("s_add_u32 s67, s67, s71")


def pf_x_addr(a, dst):
    a("v_and_b32 v10, 31, v1")
    a("s_mul_i32 s6, s68, 26")
    a("s_mul_i32 s7, s60, 192")
    a("s_add_u32 s6, s6, s7")
    a("s_sub_u32 s6, s6, 16")
    a("v_add_u32 v11, s6, v10")
    a("s_movk_i32 s7, 1280")
    a("v_mul_lo_u32 v11, v11, s7")
    a("v_lshrrev_b32 v12, 5, v1")
    a("v_lshlrev_b32 v12, 7, v12")
    a("v_add_u32 v11, v11, v12")
    a("v_cmp_gt_u32 vcc, 26, v10")
    a(f"v_mov_b32 v12, 0x{OOB:x}")
    a("s_nop 0")
    a(f"v_cndmask_b32 v{dst}, v12, v11, vcc")


def pf_w_addr(a, dst):
    a("s_cmp_eq_u32 s70, 16")
    a("s_cselect_b32 s6, 60, 40")
    a("s_mul_i32 s7, s5, s6")
    a("v_add_u32 v10, s7, v1")
    a("v_mul_u32_u24 v11, 4370, v10")
    a("v_lshrrev_b32 v11, 16, v11")
    a("v_mul_u32_u24 v12, 15, v11")
    a("v_sub_u32 v12, v10, v12")
    a("v_mul_u32_u24 v13, 52, v12")
    a("v_lshrrev_b32 v13, 8, v13")
    a("v_mul_u32_u24 v14, 5, v13")
    a("v_sub_u32 v14, v12, v14")
    a("v_mul_u32_u24 v11, 3840, v11")
    a("v_mul_u32_u24 v13, 1280, v13")
    a("v_lshlrev_b32 v14, 7, v14")
    a("v_add3_u32 v11, v11, v13, v14")
    a("s_mul_i32 s7, s71, 640")
    a("v_add_u32 v11, s7, v11")
    a("v_cmp_gt_u32 vcc, s6, v1")
    a(f"v_mov_b32 v12, 0x{OOB:x}")
    a("s_nop 0")
    a(f"v_cndmask_b32 v{dst}, v12, v11, vcc")


def b_initial_prefetch(a):
    npf = OPT["nt_pf"]
    srd(a, 32, P_X, TSZ)
    srd(a, 36, P_W, 640 * 3840)
    l1 = a.newlabel("IP")
    a("s_cmp_eq_u32 s3, 3")
    a(f"s_cbranch_scc1 {l1}")
    pf_w_addr(a, 2)
    a("s_mul_i32 s6, s3, 245760")
    a(f"buffer_load_dword v245, v2, s[36:39], s6 offen {npf}")
    a("s_cmp_eq_u32 s3, 2")
    a(f"s_cbranch_scc1 {l1}")
    pf_x_addr(a, 3)
    a("s_lshl_b32 s6, s3, 8")
    a(f"buffer_load_dword v246, v3, s[32:35], s6 offen {npf}")
    a.label(l1)


def b1_loader_setup(a):
    srd(a, 32, P_X, TSZ)
    srd(a, 36, P_W, 640 * 3840)
    a("s_sub_u32 s62, s3, 4")
    a("v_lshrrev_b32 v10, 3, v1")
    a("s_lshl_b32 s6, s62, 3")
    a("v_add_u32 v10, s6, v10")
    a("v_lshrrev_b32 v11, 1, v10")
    a("v_and_b32 v11, 7, v11")
    a("v_and_b32 v12, 7, v1")
    a("v_xor_b32 v11, v11, v12")
    a("v_lshlrev_b32 v11, 4, v11")
    a("s_mul_i32 s6, s60, 192")
    a("s_sub_u32 s6, s6, 16")
    a("v_add_u32 v10, s6, v10")
    a("s_movk_i32 s7, 1280")
    a("v_mul_lo_u32 v10, v10, s7")
    a("v_add_u32 v2, v10, v11")
    a("v_add_u32 v3, 40960, v2")
    a("v_lshrrev_b32 v10, 4, v1")
    a("v_and_b32 v12, 15, v1")
    a("s_mul_i32 s63, s61, 80")
    for which, dst in ((0, 5), (1, 6)):
        a("v_lshlrev_b32 v11, 1, v10")
        if which:
            a("v_add_u32 v11, 8, v11")
        a("v_xor_b32 v11, v11, v12")
        a("v_mul_u32_u24 v13, 52, v11")
        a("v_lshrrev_b32 v13, 8, v13")
        a("v_mul_u32_u24 v14, 5, v13")
        a("v_sub_u32 v14, v11, v14")
        a("v_mul_u32_u24 v13, 1280, v13")
        a("v_lshlrev_b32 v14, 4, v14")
        a("v_add3_u32 v13, v13, v14, s63")
        a("s_lshl_b32 s6, s62, 4")
        if which:
            a("s_add_u32 s6, s6, 8")
        a("v_add_u32 v14, s6, v10")
        a("v_mul_u32_u24 v14, 3840, v14")
        a(f"v_add_u32 v{dst}, v14, v13")
        a("v_cmp_eq_u32 vcc, 15, v11")
        a(f"v_mov_b32 v13, 0x{OOB:x}")
        a("s_nop 0")
        a(f"v_cndmask_b32 v{dst}, v{dst}, v13, vcc")
    a("s_mov_b32 s41, 0")
    a("s_mov_b32 s42, 0")
    a("s_mov_b32 s43, 0")


def b1_issue_stage(a):
    nx, nw = OPT["nt_x"], OPT["nt_w"]
    a("s_lshl_b32 s6, s62, 10")
    a("s_add_u32 s6, s6, s43")
    a("s_mov_b32 m0, s6")
    a("s_mov_b32 s7, s41")
    a(f"buffer_load_dwordx4 v2, s[32:35], s41 offen {nx} lds")
    for m in range(1, 6):
        a(f"s_add_u32 m0, s6, {4096*m}")
        if m > 1:
            a("s_add_u32 s7, s7, 40960")
        else:
            a("s_nop 0")
        a(f"buffer_load_dwordx4 v3, s[32:35], s7 offen {nx} lds")
    l1 = a.newlabel("IS")
    a("s_cmp_lt_u32 s62, 2")
    a(f"s_cbranch_scc0 {l1}")
    a(f"s_add_u32 m0, s6, {4096*6}")
    a("s_add_u32 s7, s7, 40960")
    a(f"buffer_load_dwordx4 v3, s[32:35], s7 offen {nx} lds")
    a.label(l1)
    a("s_lshl_b32 s7, s62, 12")
    a("s_add_u32 s7, s7, s43")
    a(f"s_add_u32 s7, s7, {B1_XSZ}")
    a("s_mov_b32 m0, s7")
    a("s_add_u32 s46, s42, 15360")
    a(f"buffer_load_dwordx4 v5, s[36:39], s42 offen {nw} lds")
    a("s_add_u32 m0, s7, 1024")
    a("s_nop 0")
    a(f"buffer_load_dwordx4 v5, s[36:39], s46 offen {nw} lds")
    a("s_add_u32 m0, s7, 2048")
    a("s_nop 0")
    a(f"buffer_load_dwordx4 v6, s[36:39], s42 offen {nw} lds")
    a("s_add_u32 m0, s7, 3072")
    a("s_nop 0")
    a(f"buffer_load_dwordx4 v6, s[36:39], s46 offen {nw} lds")
    a("s_add_u32 s41, s41, 128")
    a("s_add_u32 s42, s42, 245760")
    a(f"s_add_u32 s43, s43, {B1_STAGE}")
    a(f"s_cmp_ge_u32 s43, {B1_STAGE*B1_NB}")
    a("s_cselect_b32 s43, 0, s43")


def lwait(a, nb, extra):
    l1, l2 = a.newlabel("LW"), a.newlabel("LW")
    a("s_cmp_lt_u32 s62, 2")
    a(f"s_cbranch_scc0 {l1}")
    a(f"s_waitcnt vmcnt({11*nb+extra})")
    a(f"s_branch {l2}")
    a.label(l1)
    a(f"s_waitcnt vmcnt({10*nb+extra})")
    a.label(l2)


def wo_dma_addr(a):
    for j in range(5):
        a(f"v_add_u32 v10, {64*j}, v1")
        a("v_mul_u32_u24 v11, 6554, v10")
        a("v_lshrrev_b32 v11, 16, v11")
        a("v_mul_u32_u24 v12, 10, v11")
        a("v_sub_u32 v12, v10, v12")
        a("v_lshrrev_b32 v13, 4, v11")
        a("v_lshlrev_b32 v13, 2, v13")
        a("v_and_b32 v14, 3, v11")
        a("v_add_u32 v13, v13, v14")
        a("v_lshrrev_b32 v14, 2, v11")
        a("v_and_b32 v14, 3, v14")
        a("v_lshlrev_b32 v14, 3, v14")
        a("v_add_u32 v13, v13, v14")
        a("v_mul_u32_u24 v13, 1280, v13")
        a("v_lshlrev_b32 v12, 4, v12")
        a("s_mul_i32 s6, s68, 160")
        a(f"v_add3_u32 v{240+j}, v13, v12, s6")


def wo_dma_blocks(a, first, n, lds_of_first):
    a(f"s_add_u32 s47, s62, {first}")
    loop, done = a.newlabel("WO"), a.newlabel("WO")
    a.label(loop)
    a(f"s_cmp_ge_u32 s47, {first+n}")
    a(f"s_cbranch_scc1 {done}")
    a("s_mul_i32 s7, s47, 40960")
    a("s_mul_i32 s6, s47, 5120")
    a(f"s_add_u32 s6, s6, 0x{(lds_of_first - first*5120) & 0xffffffff:x}")
    for j in range(5):
        a(f"s_add_u32 m0, s6, {1024*j}")
        a("s_nop 0")
        a(f"buffer_load_dwordx4 v{240+j}, s[56:59], s7 offen lds")
    a("s_add_u32 s47, s47, 4")
    a(f"s_branch {loop}")
    a.label(done)


NPF_LATER = 5


def b_later_prefetch(a):
    npf = OPT["nt_pf"]
    a(f"v_mov_b32 v4, 0x{OOB:x}")
    a("s_add_u32 s6, s62, 3")
    a("s_mul_i32 s6, s6, 245760")
    a(f"buffer_load_dword v245, v8, s[36:39], s6 offen {npf}")
    a("s_cmp_lt_u32 s62, 3")
    a("s_cselect_b64 vcc, -1, 0")
    a("v_cndmask_b32 v10, v4, v9, vcc")
    a("s_add_u32 s6, s62, 2")
    a("s_lshl_b32 s6, s6, 8")
    a(f"buffer_load_dword v246, v10, s[32:35], s6 offen {npf}")
    a("v_cndmask_b32 v10, v4, v8, vcc")
    a("s_add_u32 s6, s62, 7")
    a("s_mul_i32 s6, s6, 245760")
    a(f"buffer_load_dword v247, v10, s[36:39], s6 offen {npf}")
    a("s_movk_i32 s46, 268")
    a("s_cmp_eq_u32 s70, 16")
    a("s_cselect_b32 s46, 400, s46")
    for hi in range(2):
        a(f"s_add_u32 s6, s62, {4*hi}")
        a("s_lshl_b32 s6, s6, 6")
        a("v_add_u32 v10, s6, v1")
        a("v_cmp_gt_u32 vcc, s46, v10")
        a("s_mul_i32 s6, s5, s46")
        a("v_add_u32 v10, s6, v10")
        a("v_mul_u32_u24 v11, 6554, v10")
        a("v_lshrrev_b32 v11, 16, v11")
        a("v_mul_u32_u24 v12, 10, v11")
        a("v_sub_u32 v12, v10, v12")
        a("v_mul_u32_u24 v11, 1280, v11")
        a("v_lshlrev_b32 v12, 7, v12")
        a("v_add_u32 v11, v11, v12")
        a("v_cndmask_b32 v11, v4, v11, vcc")
        a(f"buffer_load_dword v{248+hi}, v11, s[56:59], 0 offen {npf}")


def b1_loader(a, T):
    b1_loader_setup(a)
    pf_w_addr(a, 8)
    pf_x_addr(a, 9)
    srd(a, 56, P_WO, 640 * 1280)
    wo_dma_addr(a)
    a("s_barrier")
    a("s_mov_b32 s40, 0")
    l0 = a.newlabel("LP")
    a.label(l0)
    b1_issue_stage(a)
    a("s_add_u32 s40, s40, 1")
    a("s_cmp_lt_u32 s40, 3")
    a(f"s_cbranch_scc1 {l0}")
    b_later_prefetch(a)
    T.stamp(a, 1)
    lwait(a, 2, NPF_LATER)
    a("s_barrier")
    a("s_mov_b32 s40, 0")
    loop = a.newlabel("LL")
    lA, lB, lC, lD, lW = [a.newlabel("LLx") for _ in range(5)]
    a.label(loop)
    a("s_cmp_lt_u32 s40, 2")
    a(f"s_cbranch_scc1 {lA}")
    a("s_cmp_lt_u32 s40, 8")
    a(f"s_cbranch_scc1 {lB}")
    a("s_cmp_eq_u32 s40, 8")
    a(f"s_cbranch_scc1 {lC}")
    a(f"s_branch {lW}")
    a.label(lA)
    lwait(a, 1, NPF_LATER)
    a(f"s_branch {lW}")
    a.label(lB)
    lwait(a, 1, 0)
    a(f"s_branch {lW}")
    a.label(lC)
    a("s_waitcnt vmcnt(5)")
    a.label(lW)
    a("s_barrier")
    skip, s7, s8, nxt = a.newlabel("LLS"), a.newlabel("LL7"), a.newlabel("LL8"), a.newlabel("LLN")
    a("s_cmp_ge_u32 s40, 7")
    a(f"s_cbranch_scc1 {skip}")
    b1_issue_stage(a)
    a(f"s_branch {nxt}")
    a.label(skip)
    a("s_cmp_eq_u32 s40, 7")
    a(f"s_cbranch_scc0 {s8}")
    wo_dma_blocks(a, 6, 6, B2_WA + 6 * 5120)
    a(f"s_branch {nxt}")
    a.label(s8)
    a("s_cmp_eq_u32 s40, 8")
    a(f"s_cbranch_scc0 {nxt}")
    wo_dma_blocks(a, 0, 6, B2_WA)
    a.label(nxt)
    a("s_add_u32 s40, s40, 1")
    a("s_cmp_lt_u32 s40, 10")
    a(f"s_cbranch_scc1 {loop}")


def b1_compute(a, T):
    a("v_and_b32 v10, 15, v1")
    a("v_lshrrev_b32 v11, 4, v1")
    a("v_lshrrev_b32 v12, 1, v10")
    a("v_xor_b32 v12, v12, v11")
    a("v_lshlrev_b32 v12, 4, v12")
    a("v_lshlrev_b32 v10, 7, v10")
    a("v_add_u32 v2, v10, v12")
    a("v_xor_b32 v3, 64, v2")
    a("v_lshrrev_b32 v10, 2, v1")
    a("v_and_b32 v10, 3, v10")
    a("v_and_b32 v12, 3, v1")
    a("v_lshlrev_b32 v13, 3, v11")
    a("v_add_u32 v13, v13, v10")
    a("v_lshlrev_b32 v13, 8, v13")
    a("v_and_b32 v14, 1, v11")
    a("v_lshlrev_b32 v14, 3, v14")
    a("v_lshlrev_b32 v10, 1, v10")
    a("v_add_u32 v14, v14, v10")
    a("v_lshrrev_b32 v15, 1, v12")
    a("s_lshl_b32 s6, s3, 2")
    a("v_add_u32 v15, s6, v15")
    a("v_xor_b32 v15, v15, v14")
    a("v_lshlrev_b32 v15, 4, v15")
    a("v_and_b32 v12, 1, v12")
    a("v_lshlrev_b32 v12, 3, v12")
    a("v_add3_u32 v13, v13, v15, v12")
    a(f"v_add_u32 v4, {B1_XSZ}, v13")
    a("v_xor_b32 v5, 32, v4")
    for i in range(NRT * 8):
        a(f"v_mov_b32 v{ACC+i}, 0")
    a("v_and_b32 v10, 15, v1")
    a(f"v_mul_u32_u24 v10, {QKV_RS}, v10")
    a("v_lshrrev_b32 v11, 4, v1")
    a("s_lshl_b32 s6, s3, 3")
    a("v_add_u32 v11, s6, v11")
    for ct in range(2):
        if ct:
            a("v_add_u32 v11, 4, v11")
        a("v_mul_u32_u24 v12, 52, v11")
        a("v_lshrrev_b32 v12, 8, v12")
        a("v_mul_u32_u24 v13, 5, v12")
        a("v_sub_u32 v13, v11, v13")
        a("v_lshlrev_b32 v12, 6, v12")
        a("v_lshlrev_b32 v13, 3, v13")
        a(f"v_add3_u32 v{240+ct}, v10, v12, v13")
        a(f"v_add_u32 v{242+ct}, {8*16*QKV_RS}, v{240+ct}")

    def reads(xaddr, waddr0, waddr1, ks, X, W):
        r = []
        r.append(f"ds_read_b64_tr_b16 v[{W}:{W+1}], v{waddr0} offset:{8192*ks}")
        r.append(f"ds_read_b64_tr_b16 v[{W+2}:{W+3}], v{waddr0} offset:{8192*ks+1024}")
        r.append(f"ds_read_b64_tr_b16 v[{W+4}:{W+5}], v{waddr1} offset:{8192*ks}")
        r.append(f"ds_read_b64_tr_b16 v[{W+6}:{W+7}], v{waddr1} offset:{8192*ks+1024}")
        for t in range(NRT):
            r.append(f"ds_read_b128 v[{X+4*t}:{X+4*t+3}], v{xaddr} offset:{2048*t}")
        return r

    def mfmas(X, W):
        r = []
        for t in range(NRT):
            for ct in range(2):
                ac = ACC + (ct * NRT + t) * 4
                r.append(f"v_mfma_f32_16x16x32_bf16 v[{ac}:{ac+3}], v[{W+4*ct}:{W+4*ct+3}], v[{X+4*t}:{X+4*t+3}], v[{ac}:{ac+3}]")
        return r

    def inter(m, r):
        for i, x in enumerate(m):
            a(x)
            if i < len(r):
                a(r[i])

    a("s_waitcnt vmcnt(0)")
    a("s_barrier")
    T.stamp(a, 1)
    a("s_barrier")
    T.stamp(a, 2)
    a("v_mov_b32 v6, v2")
    a("v_mov_b32 v7, v3")
    a("v_mov_b32 v8, v4")
    a("v_mov_b32 v9, v5")
    for x in reads(6, 8, 9, 0, XA, WA):
        a(x)
    a("s_mov_b32 s40, 0")
    a("s_mov_b32 s44, 0")
    loop, last = a.newlabel("CL"), a.newlabel("CE")
    a.label(loop)
    a("s_waitcnt lgkmcnt(0)")
    inter(mfmas(XA, WA), reads(7, 8, 9, 1, XB, WB))
    a(f"s_add_u32 s44, s44, {B1_STAGE}")
    a(f"s_cmp_ge_u32 s44, {B1_STAGE*B1_NB}")
    a("s_cselect_b32 s44, 0, s44")
    a("v_add_u32 v6, s44, v2")
    a("v_add_u32 v7, s44, v3")
    a("v_add_u32 v8, s44, v4")
    a("v_add_u32 v9, s44, v5")
    a("s_waitcnt lgkmcnt(0)")
    a("s_barrier")
    if OPT.get("stagets") and T.on:
        a(f"{TS.INSTR} s[96:97]")
        a("s_waitcnt lgkmcnt(0)")
        for i in range(10):
            a(f"s_cmp_eq_u32 s40, {i}")
            a(f"s_cselect_b32 s{83+i}, s96, s{83+i}")
    a("s_cmp_eq_u32 s40, 9")
    a(f"s_cbranch_scc1 {last}")
    inter(mfmas(XB, WB), reads(6, 8, 9, 0, XA, WA))
    a("s_add_u32 s40, s40, 1")
    a(f"s_branch {loop}")
    a.label(last)
    m = mfmas(XB, WB)

    def wr(t, ct, k):
        ac = ACC + (ct * NRT + t) * 4
        d = XA + 2 * (k % 16)
        r = [f"v_cvt_pk_bf16_f32 v{d}, v{ac}, v{ac+1}", f"v_cvt_pk_bf16_f32 v{d+1}, v{ac+2}, v{ac+3}"]
        if t < 8:
            r.append(f"ds_write_b64 v{240+ct}, v[{d}:{d+1}] offset:{16*QKV_RS*t}")
        else:
            r.append(f"ds_write_b64 v{242+ct}, v[{d}:{d+1}] offset:{16*QKV_RS*(t-8)}")
        return r
    k = 0
    pend = []
    LAG = 8
    for i, x in enumerate(m):
        a(x)
        pend.append((i // 2, i % 2))
        if i >= LAG:
            t, ct = pend.pop(0)
            for y in wr(t, ct, k):
                a(y)
            k += 1
    a("s_nop 7")
    for (t, ct) in pend:
        for y in wr(t, ct, k):
            a(y)
        k += 1


def b1_epi_loader(a):
    a("v_and_b32 v10, 255, v0")
    a("v_mov_b32 v16, 0")
    a("v_mov_b32 v17, 0")
    a("v_mov_b32 v18, 0")
    a("v_mov_b32 v19, 0")
    a("v_lshrrev_b32 v11, 2, v10")
    a("v_and_b32 v12, 3, v10")
    a(f"v_mul_u32_u24 v11, {QKV_RS}, v11")
    a("v_lshlrev_b32 v12, 6, v12")
    a("v_add_u32 v11, v11, v12")
    for it in range(4):
        off = it * 64 * QKV_RS
        if it == 3:
            a("v_cmp_gt_u32 vcc, 64, v10")
            a("s_and_saveexec_b64 s[6:7], vcc")
        if it == 2:
            a(f"v_add_u32 v11, {2*64*QKV_RS}, v11")
        o2 = off if it < 2 else off - 2 * 64 * QKV_RS
        a(f"ds_write_b64 v11, v[16:17] offset:{o2+40}")
        a(f"ds_write_b128 v11, v[16:19] offset:{o2+48}")
        if it == 3:
            a("s_mov_b64 exec, s[6:7]")


def attention(a):
    a("v_and_b32 v10, 15, v1")
    a("v_lshrrev_b32 v11, 4, v1")
    a("v_mov_b32 v14, 0")
    a("v_mov_b32 v15, 0xf149f2ca")
    for i in range(4):
        a("v_lshlrev_b32 v12, 2, v11")
        a(f"v_add_u32 v12, {i}, v12")
        a("v_sub_u32 v13, v10, v12")
        a("v_and_b32 v24, 0x80000001, v13")
        a("v_cmp_eq_u32 vcc, 0, v24")
        a("v_add_u32 v13, 16, v13")
        a("v_and_b32 v24, 1, v13")
        a(f"v_cndmask_b32 v{20+i}, v15, v14, vcc")
        a("v_lshlrev_b32 v24, 8, v24")
        a("v_add_u32 v24, v24, v13")
        a("v_cmp_ge_u32 vcc, 14, v24")
        a("s_nop 1")
        a(f"v_cndmask_b32 v{16+i}, v15, v14, vcc")
    a(f"v_mul_u32_u24 v12, {QKV_RS}, v10")
    a("v_lshlrev_b32 v13, 4, v11")
    a("v_add_u32 v25, v12, v13")
    a("v_lshrrev_b32 v12, 2, v1")
    a("v_and_b32 v12, 3, v12")
    a("v_lshlrev_b32 v13, 2, v11")
    a("v_add_u32 v12, v12, v13")
    a(f"v_mul_u32_u24 v12, {QKV_RS}, v12")
    a("v_and_b32 v13, 3, v1")
    a("v_lshlrev_b32 v13, 3, v13")
    a("v_add_u32 v26, v12, v13")
    a("v_mul_u32_u24 v12, 80, v10")
    a("v_lshlrev_b32 v13, 3, v11")
    a("v_add_u32 v27, v12, v13")
    a(f"v_add_u32 v27, {O_LDS}, v27")
    a("s_mov_b32 s45, 0x3ea52b5c")
    R16 = 16 * QKV_RS
    U = [32 + 48 * u for u in range(3)]
    for u in range(3):
        b = U[u]
        a("s_mul_i32 s46, s3, 3")
        if u:
            a(f"s_add_u32 s46, s46, {u}")
        a("s_lshr_b32 s6, s46, 1")
        a("s_and_b32 s7, s46, 1")
        a(f"s_mul_i32 s48, s6, {R16}")
        a("s_lshl_b32 s49, s7, 6")
        a("s_add_u32 s48, s48, s49")
        a("s_mul_i32 s49, s6, 1280")
        a("s_mul_i32 s7, s7, 40")
        a("s_add_u32 s49, s49, s7")
        a(f"v_add_u32 v{b+36}, s48, v25")
        a(f"v_add_u32 v{b+37}, s48, v26")
        a(f"v_add_u32 v{b+38}, s49, v27")
        a(f"ds_read_b128 v[{b}:{b+3}], v{b+36} offset:{R16}")
        a(f"ds_read_b128 v[{b+4}:{b+7}], v{b+36} offset:128")
        a(f"ds_read_b128 v[{b+8}:{b+11}], v{b+36} offset:{R16+128}")
        a("s_or_b32 s6, s6, s60")
        a("s_cmp_eq_u32 s6, 0")
        a("s_cselect_b64 vcc, -1, 0")
        for i in range(4):
            a(f"v_cndmask_b32 v{b+32+i}, v{16+i}, v15, vcc")
    for u in range(3):
        b = U[u]
        a(f"ds_read_b64_tr_b16 v[{b+12}:{b+13}], v{b+37} offset:256")
        a(f"ds_read_b64_tr_b16 v[{b+14}:{b+15}], v{b+37} offset:{R16+256}")
        a(f"ds_read_b64_tr_b16 v[{b+16}:{b+17}], v{b+37} offset:{256+32}")
        a(f"ds_read_b64_tr_b16 v[{b+18}:{b+19}], v{b+37} offset:{R16+256+32}")
    a("s_waitcnt lgkmcnt(12)")
    for u in range(3):
        b = U[u]
        a(f"v_mfma_f32_16x16x32_bf16 v[{b+20}:{b+23}], v[{b+4}:{b+7}], v[{b}:{b+3}], 0")
        a(f"v_mfma_f32_16x16x32_bf16 v[{b+24}:{b+27}], v[{b+8}:{b+11}], v[{b}:{b+3}], 0")
    a("s_nop 7")

    def each(f):
        for step in zip(*[f(U[u]) for u in range(3)]):
            for x in step:
                a(x)
    each(lambda b: [f"v_fma_f32 v{b+20+i}, v{b+20+i}, s45, v{b+32+i}" for i in range(4)])
    each(lambda b: [f"v_fma_f32 v{b+24+i}, v{b+24+i}, s45, v{20+i}" for i in range(4)])
    each(lambda b: [f"v_max3_f32 v{b+28}, v{b+20}, v{b+21}, v{b+22}",
                    f"v_max3_f32 v{b+29}, v{b+23}, v{b+24}, v{b+25}",
                    f"v_max3_f32 v{b+28}, v{b+28}, v{b+26}, v{b+27}",
                    f"v_max_f32 v{b+28}, v{b+28}, v{b+29}",
                    f"v_mov_b32 v{b+29}, v{b+28}",
                    f"v_permlane32_swap_b32 v{b+28}, v{b+29}",
                    f"v_max_f32 v{b+28}, v{b+28}, v{b+29}",
                    f"v_mov_b32 v{b+29}, v{b+28}",
                    f"v_permlane16_swap_b32 v{b+28}, v{b+29}",
                    f"v_max_f32 v{b+28}, v{b+28}, v{b+29}"])
    each(lambda b: [f"v_sub_f32 v{b+20+i}, v{b+20+i}, v{b+28}" for i in range(8)])
    each(lambda b: [f"v_exp_f32 v{b+20+i}, v{b+20+i}" for i in range(8)])
    each(lambda b: [f"v_add_f32 v{b+28}, v{b+20}, v{b+21}",
                    f"v_add_f32 v{b+29}, v{b+22}, v{b+23}",
                    f"v_add_f32 v{b+30}, v{b+24}, v{b+25}",
                    f"v_add_f32 v{b+31}, v{b+26}, v{b+27}",
                    f"v_add_f32 v{b+28}, v{b+28}, v{b+29}",
                    f"v_add_f32 v{b+30}, v{b+30}, v{b+31}",
                    f"v_add_f32 v{b+28}, v{b+28}, v{b+30}",
                    f"v_mov_b32 v{b+29}, v{b+28}",
                    f"v_permlane32_swap_b32 v{b+28}, v{b+29}",
                    f"v_add_f32 v{b+28}, v{b+28}, v{b+29}",
                    f"v_mov_b32 v{b+29}, v{b+28}",
                    f"v_permlane16_swap_b32 v{b+28}, v{b+29}",
                    f"v_add_f32 v{b+28}, v{b+28}, v{b+29}",
                    f"v_rcp_f32 v{b+28}, v{b+28}"])
    each(lambda b: [f"v_mul_f32 v{b+20+i}, v{b+20+i}, v{b+28}" for i in range(8)])
    each(lambda b: [f"v_cvt_pk_bf16_f32 v{b+40+i}, v{b+20+2*i}, v{b+21+2*i}" for i in range(4)])
    a("s_waitcnt lgkmcnt(0)")
    for u in range(3):
        b = U[u]
        a(f"v_mfma_f32_16x16x32_bf16 v[{b+20}:{b+23}], v[{b+12}:{b+15}], v[{b+40}:{b+43}], 0")
        a(f"v_mfma_f32_16x16x32_bf16 v[{b+24}:{b+27}], v[{b+16}:{b+19}], v[{b+40}:{b+43}], 0")
    a("s_nop 7")
    each(lambda b: [f"v_cvt_pk_bf16_f32 v{b+28}, v{b+20}, v{b+21}",
                    f"v_cvt_pk_bf16_f32 v{b+29}, v{b+22}, v{b+23}",
                    f"v_cvt_pk_bf16_f32 v{b+30}, v{b+24}, v{b+25}",
                    f"v_cvt_pk_bf16_f32 v{b+31}, v{b+26}, v{b+27}",
                    f"ds_write_b64 v{b+38}, v[{b+28}:{b+29}]"])
    a("s_mov_b64 exec, 0xffff")
    for u in range(3):
        b = U[u]
        a(f"ds_write_b64 v{b+38}, v[{b+30}:{b+31}] offset:32")
    a("s_mov_b64 exec, -1")


def epoch_issue(a, vdst, vtmp, srdn, off_expr_sgpr):
    srd(a, srdn, P_WS, 0x10000, WS_FL)
    a(f"v_mov_b32 v{vtmp}, s{off_expr_sgpr}")
    a(f"buffer_load_dword v{vdst}, v{vtmp}, s[{srdn}:{srdn+3}], 0 offen sc1")


def poll(a, vaddr, n_lanes, tag_s, srdn):
    l0, l1 = a.newlabel("PF"), a.newlabel("PF")
    a("s_mov_b32 s45, 0")
    if n_lanes < 64:
        a(f"s_mov_b64 exec, 0x{(1 << n_lanes) - 1:x}")
    a.label(l0)
    a(f"buffer_load_dword v11, v{vaddr}, s[{srdn}:{srdn+3}], 0 offen sc1")
    a("s_waitcnt vmcnt(0)")
    a(f"v_cmp_ne_u32 vcc, s{tag_s}, v11")
    a("s_add_u32 s45, s45, 1")
    a("s_nop 3")
    a(f"s_cbranch_vccz {l1}")
    a(f"s_cmp_gt_u32 s45, {OPT['spin']}")
    a(f"s_cbranch_scc1 {l1}")
    a("s_sleep 1")
    a(f"s_branch {l0}")
    a.label(l1)
    if n_lanes < 64:
        a("s_mov_b64 exec, -1")


def o_store(a):
    sc = OPT["sc"]
    srd(a, 48, P_WS, TSZ, WS_OW)
    a("v_lshlrev_b32 v10, 4, v0")
    a(f"v_add_u32 v11, {O_LDS}, v10")
    for i in range(4):
        a(f"ds_read_b128 v[{16+4*i}:{19+4*i}], v11 offset:{4096*i}")
    a("s_mul_i32 s6, s61, 163840")
    a("s_mul_i32 s7, s60, 15360")
    a("s_add_u32 s6, s6, s7")
    a("v_add_u32 v12, s6, v10")
    a("s_movk_i32 s7, 15360")
    a("s_cmp_eq_u32 s60, 10")
    a("s_cselect_b32 s7, 10240, s7")
    a(f"v_mov_b32 v14, 0x{OOB:x}")
    for i in range(4):
        a(f"v_add_u32 v{32+i}, {4096*i}, v12")
        a(f"v_add_u32 v13, {4096*i}, v10")
        a("v_cmp_gt_u32 vcc, s7, v13")
        a("s_nop 1")
        a(f"v_cndmask_b32 v{32+i}, v14, v{32+i}, vcc")
    a("s_waitcnt lgkmcnt(0)")
    for i in range(4):
        a(f"buffer_store_dwordx4 v[{16+4*i}:{19+4*i}], v{32+i}, s[48:51], 0 offen {sc}")


def b2_issue_o(a):
    sc = OPT["sc"]
    loop = a.newlabel("OI")
    a("s_mov_b32 s47, s62")
    a("s_and_b32 s48, s46, 1")
    a(f"s_mul_i32 s48, s48, {B2_OST}")
    a(f"s_add_u32 s48, s48, {B2_O}")
    a("s_lshl_b32 s49, s46, 2")
    a("s_mul_i32 s49, s49, 163840")
    a("s_mul_i32 s50, s67, 7680")
    a("s_add_u32 s49, s49, s50")
    a.label(loop)
    a("s_lshl_b32 s6, s47, 10")
    a("v_add_u32 v10, s6, v239")
    a("v_lshrrev_b32 v11, 9, v10")
    a("v_mul_u32_u24 v11, 4370, v11")
    a("v_lshrrev_b32 v11, 16, v11")
    a("v_mul_u32_u24 v11, 156160, v11")
    a("v_add_u32 v10, v10, v11")
    a("s_add_u32 m0, s6, s48")
    a("s_add_u32 s47, s47, 4")
    a(f"buffer_load_dwordx4 v10, s[52:55], s49 offen {sc} lds")
    a("s_cmp_lt_u32 s47, 30")
    a(f"s_cbranch_scc1 {loop}")


def b2_loader(a, T):
    a("s_mov_b32 s46, 0")
    l = a.newlabel("O01")
    a.label(l)
    b2_issue_o(a)
    a("s_add_u32 s46, s46, 1")
    a("s_cmp_lt_u32 s46, 2")
    a(f"s_cbranch_scc1 {l}")
    a("s_waitcnt vmcnt(7)")
    a("s_barrier")
    a("s_waitcnt vmcnt(0)")
    a("s_barrier")
    l = a.newlabel("O23")
    a.label(l)
    b2_issue_o(a)
    a("s_waitcnt vmcnt(0)")
    a("s_barrier")
    a("s_add_u32 s46, s46, 1")
    a("s_cmp_lt_u32 s46, 4")
    a(f"s_cbranch_scc1 {l}")


def b2_compute_setup(a):
    a("v_and_b32 v10, 15, v1")
    a("v_lshrrev_b32 v11, 4, v1")
    a("s_and_b32 s6, s3, 1")
    a("s_mul_i32 s6, s6, 48")
    a("v_add_u32 v10, s6, v10")
    a("v_mul_u32_u24 v10, 80, v10")
    for ks in range(5):
        a(f"v_add_u32 v12, {4*ks}, v11")
        a("v_mul_u32_u24 v13, 52, v12")
        a("v_lshrrev_b32 v13, 8, v13")
        a("v_mul_u32_u24 v14, 5, v13")
        a("v_sub_u32 v14, v12, v14")
        a("v_mul_u32_u24 v13, 7680, v13")
        a("v_lshlrev_b32 v14, 4, v14")
        a(f"v_add3_u32 v{224+ks}, v10, v13, v14")
    a("v_lshrrev_b32 v12, 2, v1")
    a("v_and_b32 v12, 3, v12")
    a("v_lshlrev_b32 v13, 2, v11")
    a("v_add_u32 v12, v12, v13")
    a("v_mul_u32_u24 v12, 160, v12")
    a("v_and_b32 v13, 3, v1")
    a("v_lshlrev_b32 v13, 3, v13")
    a("v_add_u32 v229, v12, v13")
    for i in range(60):
        a(f"v_mov_b32 v{176+i if False else 16+i}, 0")


def b2_compute(a, T):
    a("s_lshr_b32 s47, s3, 1")
    a("s_mov_b32 s46, 0")
    loop = a.newlabel("C2")
    a.label(loop)
    a("s_barrier")
    a("s_and_b32 s48, s46, 1")
    a(f"s_mul_i32 s49, s48, {B2_OST}")
    a(f"s_add_u32 s49, s49, {B2_O}")
    a("s_mul_i32 s50, s46, 5")
    le, ld = a.newlabel("C2E"), a.newlabel("C2D")
    a("s_cmp_eq_u32 s47, s48")
    a(f"s_cbranch_scc0 {le}")

    def rd(ks, F):
        r = [f"v_add_u32 v10, s49, v{224+ks}",
             f"s_add_u32 s6, s50, {ks}",
             f"s_mul_i32 s7, s6, 5120",
             f"s_cmp_lt_u32 s6, 12",
             f"s_cselect_b32 s6, {B2_WA}, s51",
             f"s_add_u32 s6, s6, s7",
             f"v_add_u32 v11, s6, v229"]
        for t in range(3):
            r.append(f"ds_read_b128 v[{F+4*t}:{F+4*t+3}], v10 offset:{1280*t}")
        for ct in range(5):
            r.append(f"ds_read_b64_tr_b16 v[{F+12+4*ct}:{F+13+4*ct}], v11 offset:{32*ct}")
            r.append(f"ds_read_b64_tr_b16 v[{F+14+4*ct}:{F+15+4*ct}], v11 offset:{32*ct+2560}")
        return r

    def mm(F):
        r = []
        for t in range(3):
            for ct in range(5):
                ac = 16 + (t * 5 + ct) * 4
                r.append(f"v_mfma_f32_16x16x32_bf16 v[{ac}:{ac+3}], v[{F+12+4*ct}:{F+15+4*ct}], v[{F+4*t}:{F+4*t+3}], v[{ac}:{ac+3}]")
        return r

    for var, kss in enumerate([(0, 2, 4), (1, 3)]):
        if var == 1:
            a(f"s_branch {ld}")
            a.label(le)
        F = [80, 112]
        for x in rd(kss[0], F[0]):
            a(x)
        for i, ks in enumerate(kss):
            a("s_waitcnt lgkmcnt(0)")
            m = mm(F[i & 1])
            r = rd(kss[i + 1], F[(i + 1) & 1]) if i + 1 < len(kss) else []
            for j, x in enumerate(m):
                a(x)
                if j < len(r):
                    a(r[j])
            for x in r[len(m):]:
                a(x)
    a.label(ld)
    a("s_add_u32 s46, s46, 1")
    a("s_cmp_lt_u32 s46, 4")
    a(f"s_cbranch_scc1 {loop}")


def b2_finish(a):
    a("s_barrier")
    l_end = a.newlabel("RE")
    l_j = a.newlabel("RJ")
    a("s_cmp_ge_u32 s3, 4")
    a(f"s_cbranch_scc1 {l_j}")
    a("v_lshlrev_b32 v10, 4, v1")
    a("s_lshl_b32 s6, s3, 13")
    a(f"s_add_u32 s6, s6, {B2_O}")
    a("v_add_u32 v11, s6, v10")
    a("s_xor_b32 s7, s3, 2")
    a("s_lshl_b32 s7, s7, 13")
    a(f"s_add_u32 s7, s7, {B2_O}")
    a("v_add_u32 v12, s7, v10")
    l1, l2 = a.newlabel("R"), a.newlabel("R")
    a("s_cmp_ge_u32 s3, 2")
    a(f"s_cbranch_scc1 {l1}")
    for i in range(8, 15):
        a(f"ds_write_b128 v11, v[{16+4*i}:{19+4*i}] offset:{1024*(i-8)}")
    a(f"s_branch {l2}")
    a.label(l1)
    for i in range(8):
        a(f"ds_write_b128 v11, v[{16+4*i}:{19+4*i}] offset:{1024*i}")
    a.label(l2)
    srd(a, 48, P_OUT, 2048 * 2560)
    a("v_and_b32 v13, 15, v1")
    a("s_and_b32 s6, s3, 1")
    a("s_mul_i32 s6, s6, 48")
    a("s_mul_i32 s7, s67, 96")
    a("s_add_u32 s6, s6, s7")
    a("v_add_u32 v13, s6, v13")
    a("v_mul_u32_u24 v13, 2560, v13")
    a("v_lshrrev_b32 v14, 4, v1")
    a("v_lshlrev_b32 v14, 3, v14")
    a("s_mul_i32 s6, s68, 160")
    a("s_add_u32 s6, s6, 1280")
    a("v_add3_u32 v13, v13, v14, s6")
    a("s_waitcnt lgkmcnt(0)")
    a.label(l_j)
    a("s_barrier")
    a("s_cmp_ge_u32 s3, 4")
    a(f"s_cbranch_scc1 {l_end}")
    no = OPT["nt_out"]
    l3, l4 = a.newlabel("R"), a.newlabel("R")
    a("s_cmp_ge_u32 s3, 2")
    a(f"s_cbranch_scc1 {l3}")
    for var, tiles in enumerate([range(0, 8), range(8, 15)]):
        if var == 1:
            a(f"s_branch {l4}")
            a.label(l3)
        tl = list(tiles)
        for n, i in enumerate(tl):
            a(f"ds_read_b128 v[{80+4*n}:{83+4*n}], v12 offset:{1024*n}")
        a("s_waitcnt lgkmcnt(0)")
        for n, i in enumerate(tl):
            t, ct = divmod(i, 5)
            ac, p = 16 + 4 * i, 80 + 4 * n
            a(f"v_pk_add_f32 v[{ac}:{ac+1}], v[{ac}:{ac+1}], v[{p}:{p+1}]")
            a(f"v_pk_add_f32 v[{ac+2}:{ac+3}], v[{ac+2}:{ac+3}], v[{p+2}:{p+3}]")
            a(f"v_cvt_pk_bf16_f32 v{p}, v{ac}, v{ac+1}")
            a(f"v_cvt_pk_bf16_f32 v{p+1}, v{ac+2}, v{ac+3}")
            a(f"s_mov_b32 s6, {40960*t}")
            a(f"buffer_store_dwordx2 v[{p}:{p+1}], v13, s[48:51], s6 offen offset:{32*ct} {no}")
    a.label(l4)
    a.label(l_end)


def b_program(a, T):
    b_decode(a)
    ld, j1 = a.newlabel("BLD"), a.newlabel("BJ1")
    a("s_cmp_ge_u32 s3, 4")
    a(f"s_cbranch_scc1 {ld}")
    b_initial_prefetch(a)
    a("s_lshl_b32 s6, s60, 7")
    a(f"s_add_u32 s6, s6, {FL_EB}")
    epoch_issue(a, 250, 251, 52, 6)
    b1_compute(a, T)
    T.stamp(a, 3)
    a("s_waitcnt lgkmcnt(0)")
    a(f"s_branch {j1}")
    a.label(ld)
    b1_loader(a, T)
    T.stamp(a, 3)
    b1_epi_loader(a)
    a("s_waitcnt lgkmcnt(0)")
    a.label(j1)
    a("s_barrier")
    T.stamp(a, 4)
    attention(a)
    a("s_waitcnt lgkmcnt(0)")
    a("s_barrier")
    T.stamp(a, 5)
    ld2, j2 = a.newlabel("BLD"), a.newlabel("BJ2")
    a("s_cmp_ge_u32 s3, 4")
    a(f"s_cbranch_scc1 {ld2}")
    o_store(a)
    a("s_barrier")
    a("v_readfirstlane_b32 s44, v250")
    a("s_add_u32 s44, s44, 1")
    b2_compute_setup(a)
    a(f"s_mov_b32 s51, 0x{(B2_WB - 12*5120) & 0xffffffff:x}")
    a("s_lshl_b32 s6, s60, 4")
    a("s_add_u32 s6, s6, s61")
    a("s_lshl_b32 s6, s6, 2")
    a("s_add_u32 s6, s6, s3")
    a("s_lshl_b32 s6, s6, 2")
    a("v_mov_b32 v10, s6")
    a("v_mov_b32 v11, s44")
    a("s_waitcnt vmcnt(0)")
    a("s_mov_b64 exec, 1")
    a("buffer_store_dword v11, v10, s[52:55], 0 offen sc1")
    a("s_mov_b64 exec, -1")
    T.stamp(a, 6)
    lp = a.newlabel("NP")
    a("s_cmp_lg_u32 s3, 0")
    a(f"s_cbranch_scc1 {lp}")
    a("s_lshl_b32 s6, s60, 8")
    a("v_lshlrev_b32 v10, 2, v1")
    a("v_add_u32 v10, s6, v10")
    poll(a, 10, 64, 44, 52)
    le = a.newlabel("EU")
    a("s_cmp_lg_u32 s61, 0")
    a(f"s_cbranch_scc1 {le}")
    a("v_mov_b32 v11, s44")
    a("s_mov_b64 exec, 1")
    a("buffer_store_dword v11, v251, s[52:55], 0 offen sc1")
    a("s_mov_b64 exec, -1")
    a.label(le)
    a.label(lp)
    T.stamp(a, 7)
    a("s_barrier")
    b2_compute(a, T)
    T.stamp(a, 8)
    a(f"s_branch {j2}")
    a.label(ld2)
    wo_dma_blocks(a, 12, 8, B2_WB)
    srd(a, 52, P_WS, TSZ, WS_OW)
    a("v_lshlrev_b32 v239, 4, v1")
    a("s_barrier")
    T.stamp(a, 6)
    a("s_waitcnt vmcnt(0)")
    T.stamp(a, 7)
    a("s_barrier")
    b2_loader(a, T)
    T.stamp(a, 8)
    a.label(j2)
    a("s_nop 7")
    b2_finish(a)
    T.stamp(a, 9)


A2_H0 = 0
A2_H1 = 4640
A2_X0 = 9216
A2_X2 = 13696
A2_CH = 17920
T_RS = 528
Y_RS = 528


def a_program(a, T):
    na, nh, sc = OPT["nt_a"], OPT["nt_h"], OPT["sc"]
    a("s_sub_u32 s5, s5, s70")
    a("s_lshl_b32 s6, s4, 1")
    a("s_add_u32 s7, s4, 2")
    a("s_cmp_lt_u32 s4, 2")
    a("s_cselect_b32 s6, s6, s7")
    a("s_lshr_b32 s7, s5, 3")
    a("s_add_u32 s73, s6, s7")
    a("s_and_b32 s72, s5, 7")
    a("s_lshl_b32 s62, s73, 6")
    a("s_lshl_b32 s6, s72, 3")
    a("s_add_u32 s62, s62, s6")
    a("s_add_u32 s63, s62, s3")
    srd(a, 32, P_K, TSZ)
    srd(a, 36, P_V, TSZ)
    srd(a, 40, P_SK, 640 * 8)
    a("v_and_b32 v8, 7, v1")
    a("v_lshrrev_b32 v9, 3, v1")
    a("s_lshl_b32 s6, s3, 3")
    a("v_add_u32 v9, s6, v9")
    a("v_lshlrev_b32 v2, 2, v9")
    a("s_lshl_b32 s6, s72, 8")
    a("v_add_u32 v2, s6, v2")
    a("v_mul_u32_u24 v2, 1280, v2")
    a("v_lshlrev_b32 v3, 4, v8")
    a("s_lshl_b32 s6, s73, 7")
    a("v_add3_u32 v2, v2, v3, s6")
    a("v_add_u32 v3, -3840, v2")
    a("v_add_u32 v4, -2560, v2")
    a("v_add_u32 v5, -1280, v2")
    for m in range(4):
        a(f"buffer_load_dwordx4 v[{64+4*m}:{67+4*m}], v2, s[32:35], 0 offen offset:{1280*m} {na}".replace("offset:0 ", ""))
    for m in range(4):
        a(f"buffer_load_dwordx4 v[{80+4*m}:{83+4*m}], v2, s[36:39], 0 offen offset:{1280*m} {na}".replace("offset:0 ", ""))
    a(f"buffer_load_dwordx4 v[52:55], v3, s[32:35], 0 offen {na}")
    a(f"buffer_load_dwordx4 v[56:59], v4, s[32:35], 0 offen {na}")
    a(f"buffer_load_dwordx4 v[60:63], v5, s[32:35], 0 offen {na}")
    a("v_lshlrev_b32 v6, 6, v8")
    a("s_lshl_b32 s6, s73, 9")
    a("v_add_u32 v6, s6, v6")
    for i in range(4):
        a(f"buffer_load_dwordx4 v[{32+4*i}:{35+4*i}], v6, s[40:43], 0 offen offset:{16*i}".replace("offset:0", ""))
    a("s_lshl_b32 s6, s73, 7")
    a(f"s_add_u32 s6, s6, {FL_EA}")
    epoch_issue(a, 250, 251, 48, 6)
    a("s_lshl_b32 s6, s62, 1")
    a(f"s_add_u32 s44, s{P_SD}, s6")
    a(f"s_addc_u32 s45, s{P_SD+1}, 0")
    a("s_load_dwordx4 s[64:67], s[44:45], 0")
    srd(a, 40, P_H, 640 * 4096) if False else None
    srd(a, 52, P_H, 640 * 4096)
    a(f"s_mul_i32 s60, s3, {A2_CH}")
    a("s_lshl_b32 s59, s63, 12")
    a("v_lshlrev_b32 v10, 4, v1")
    a("v_add_u32 v11, -2, v10")
    for i in range(4):
        a(f"s_add_u32 m0, s60, {A2_H0 + 448 + 1024*i}")
        a(f"s_add_u32 s6, s59, {1024*i}")
        a(f"buffer_load_dwordx4 v10, s[52:55], s6 offen {nh} lds")
    a("v_mov_b32 v13, 0")
    a(f"buffer_load_dwordx4 v[16:19], v13, s[52:55], s59 offen")
    for i in range(4):
        a(f"s_add_u32 m0, s60, {A2_H1 + 448 + 1024*i}")
        if i == 0:
            a("s_mov_b32 s6, s59")
            a(f"buffer_load_dwordx4 v11, s[52:55], s6 offen lds")
        else:
            a(f"s_add_u32 s6, s59, {1024*i - 2}")
            a(f"buffer_load_dwordx4 v10, s[52:55], s6 offen lds")
    T.stamp(a, 1)
    a("v_mov_b32 v28, 0")
    a("v_mov_b32 v29, 0")
    a("v_mov_b32 v30, 0")
    a("v_mov_b32 v31, 0")
    a("v_add_u32 v23, s60, v10")
    a("s_mov_b64 exec, 0xfffffff")
    a(f"ds_write_b128 v23, v[28:31] offset:{A2_H0}")
    a(f"ds_write_b128 v23, v[28:31] offset:{A2_H1}")
    a("s_mov_b64 exec, -1")
    a(f"v_mul_u32_u24 v7, {A2_CH+16}, v8")
    a("v_lshlrev_b32 v12, 3, v9")
    a("v_sub_u32 v7, v7, v12")
    a(f"v_add_u32 v7, {A2_X0 + 504}, v7")
    a("s_mov_b32 s57, 0xffff0000")
    a("s_waitcnt vmcnt(10)")
    T.stamp(a, 2)
    for c in range(4):
        for m in range(4):
            for e in range(2):
                src = 32 + 2 * (2 * c + e) + (m >> 1)
                dst = 96 + (c * 4 + m) * 2 + e
                if m & 1:
                    a(f"v_and_b32 v{dst}, s57, v{src}")
                else:
                    a(f"v_lshlrev_b32 v{dst}, 16, v{src}")
    for c in range(4):
        for jj in range(7):
            a(f"v_lshlrev_b32 v{128+2*jj}, 16, v{52+4*jj+c}")
            a(f"v_and_b32 v{129+2*jj}, s57, v{52+4*jj+c}")
        for m in range(4):
            a(f"v_lshlrev_b32 v{142+2*m}, 16, v{80+4*m+c}")
            a(f"v_and_b32 v{143+2*m}, s57, v{80+4*m+c}")
        W = lambda m: f"v[{96+(c*4+m)*2}:{97+(c*4+m)*2}]"
        K = lambda jj: f"v[{128+2*jj}:{129+2*jj}]"
        for rr in range(4):
            o = 150 + 2 * rr
            a(f"v_pk_mul_f32 v[{o}:{o+1}], {W(3)}, {K(rr)}")
        for m in (2, 1, 0):
            for rr in range(4):
                o = 150 + 2 * rr
                a(f"v_pk_fma_f32 v[{o}:{o+1}], {W(m)}, {K(3+rr-m)}, v[{o}:{o+1}]")
        for rr in range(4):
            o = 150 + 2 * rr
            a(f"v_pk_mul_f32 v[{o}:{o+1}], v[{o}:{o+1}], v[{142+2*rr}:{143+2*rr}]")
        for e in range(2):
            ch = 2 * c + e
            d = 160 + 4 * (c & 1) + 2 * e
            a(f"v_cvt_pk_bf16_f32 v{d}, v{156+e}, v{154+e}")
            a(f"v_cvt_pk_bf16_f32 v{d+1}, v{152+e}, v{150+e}")
            a(f"ds_write_b64 v7, v[{d}:{d+1}] offset:{ch*T_RS}")
    a("v_lshrrev_b32 v12, 5, v1")
    a(f"v_mul_u32_u24 v12, {T_RS}, v12")
    a("v_and_b32 v13, 31, v1")
    a("v_lshlrev_b32 v13, 4, v13")
    a("v_add_u32 v12, v12, v13")
    a(f"s_mul_i32 s6, s3, {A2_CH+16}")
    a(f"s_add_u32 s6, s6, {A2_X0}")
    a("v_add_u32 v12, s6, v12")
    srd(a, 36, P_WS, TSZ, WS_XT)
    a("v_lshrrev_b32 v14, 5, v1")
    a("v_lshlrev_b32 v14, 12, v14")
    a("v_add_u32 v14, v14, v13")
    a("s_lshl_b32 s6, s73, 6")
    a("s_lshl_b32 s7, s3, 3")
    a("s_add_u32 s6, s6, s7")
    a("s_lshl_b32 s6, s6, 12")
    a("s_lshl_b32 s7, s72, 9")
    a("s_sub_u32 s7, 3584, s7")
    a("s_add_u32 s6, s6, s7")
    a("v_add_u32 v14, s6, v14")
    a("s_waitcnt lgkmcnt(0)")
    a("s_barrier")
    for m in range(4):
        a(f"ds_read_b128 v[{64+4*m}:{67+4*m}], v12 offset:{2*m*T_RS}")
    a("s_waitcnt lgkmcnt(0)")
    a("s_mov_b32 s6, 0")
    for m in range(4):
        a(f"buffer_store_dwordx4 v[{64+4*m}:{67+4*m}], v14, s[36:39], s6 offen {sc}")
        if m < 3:
            a("s_add_u32 s6, s6, 8192")
    T.stamp(a, 3)
    a("s_lshr_b32 s6, s3, 1")
    a("s_cmp_eq_u32 s6, 1")
    a("s_cselect_b32 s58, s65, s64")
    a("s_cmp_eq_u32 s6, 2")
    a("s_cselect_b32 s58, s66, s58")
    a("s_cmp_eq_u32 s6, 3")
    a("s_cselect_b32 s58, s67, s58")
    a("s_and_b32 s6, s3, 1")
    a("s_lshl_b32 s6, s6, 4")
    a("s_lshr_b32 s58, s58, s6")
    a("s_lshl_b32 s58, s58, 16")
    a("s_waitcnt vmcnt(4)")
    a("v_readfirstlane_b32 s44, v250")
    a("s_add_u32 s44, s44, 1")
    a("v_lshlrev_b32 v21, 16, v16")
    a("v_add_f32 v21, s58, v21")
    a("v_cvt_pk_bf16_f32 v21, v21, v21")
    a("s_mov_b32 s6, 0xffff")
    a("v_bfi_b32 v16, s6, v21, v16")
    a("v_lshlrev_b32 v24, 16, v16")
    a("v_alignbit_b32 v25, v17, v16, 16")
    a("v_alignbit_b32 v26, v18, v17, 16")
    a("v_alignbit_b32 v27, v19, v18, 16")
    a("v_mov_b32 v22, s60")
    a("s_mov_b64 exec, 1")
    a(f"ds_write_b128 v22, v[16:19] offset:{A2_H0+448}")
    a(f"ds_write_b128 v22, v[24:27] offset:{A2_H1+448}")
    a("s_mov_b64 exec, -1")
    a("s_lshl_b32 s6, s73, 8")
    a("s_lshl_b32 s7, s3, 5")
    a("s_add_u32 s6, s6, s7")
    a("s_lshl_b32 s7, s72, 2")
    a("s_add_u32 s6, s6, s7")
    a(f"s_add_u32 s6, s6, {FL_A1}")
    a("v_mov_b32 v12, s6")
    a("v_mov_b32 v13, s44")
    a("s_waitcnt vmcnt(0)")
    a("s_mov_b64 exec, 1")
    a("buffer_store_dword v13, v12, s[48:51], 0 offen sc1")
    a("s_mov_b64 exec, -1")
    T.stamp(a, 4)
    lp = a.newlabel("AP")
    a("s_cmp_lg_u32 s3, 0")
    a(f"s_cbranch_scc1 {lp}")
    a("s_lshl_b32 s6, s73, 8")
    a("s_lshl_b32 s7, s72, 5")
    a("s_add_u32 s6, s6, s7")
    a(f"s_add_u32 s6, s6, {FL_A1}")
    a("v_lshlrev_b32 v12, 2, v1")
    a("v_add_u32 v12, s6, v12")
    poll(a, 12, 8, 44, 48)
    a.label(lp)
    a("s_waitcnt lgkmcnt(0)")
    a("s_barrier")
    T.stamp(a, 5)
    a("v_add_u32 v12, 4, v10")
    for i in range(4):
        a(f"s_add_u32 m0, s60, {A2_X0 + 1024*i}")
        a(f"s_add_u32 s6, s59, {1024*i}")
        a(f"buffer_load_dwordx4 v10, s[36:39], s6 offen {sc} lds")
    for i in range(4):
        a(f"s_add_u32 m0, s60, {A2_X2 + 1024*i}")
        a(f"s_add_u32 s6, s59, {1024*i}")
        a(f"buffer_load_dwordx4 v12, s[36:39], s6 offen {sc} lds")
    a("s_mov_b64 exec, 0xf")
    a(f"ds_write_b128 v23, v[28:31] offset:{A2_X0+4096}")
    a(f"ds_write_b128 v23, v[28:31] offset:{A2_X2+4096}")
    a("s_mov_b64 exec, -1")
    srd(a, 32, P_Q, TSZ)
    a("v_and_b32 v13, 15, v1")
    a("s_lshl_b32 s6, s72, 8")
    a("s_lshl_b32 s7, s3, 5")
    a("s_add_u32 s6, s6, s7")
    a("v_add_u32 v9, s6, v13")
    a("v_lshrrev_b32 v13, 4, v1")
    a("v_lshlrev_b32 v13, 4, v13")
    a("s_lshl_b32 s61, s73, 7")
    a("v_add_u32 v8, s61, v13")
    a("v_mul_u32_u24 v14, 1280, v9")
    a("v_add_u32 v14, v14, v8")
    a("s_movk_i32 s6, 20480")
    a(f"buffer_load_dwordx4 v[192:195], v14, s[32:35], 0 offen {na}")
    a(f"buffer_load_dwordx4 v[196:199], v14, s[32:35], 0 offen offset:64 {na}")
    a(f"buffer_load_dwordx4 v[200:203], v14, s[32:35], s6 offen {na}")
    a(f"buffer_load_dwordx4 v[204:207], v14, s[32:35], s6 offen offset:64 {na}")
    a("v_and_b32 v10, 15, v1")
    a("v_lshrrev_b32 v11, 4, v1")
    a("v_lshrrev_b32 v12, 1, v10")
    a("v_lshlrev_b32 v12, 6, v12")
    a("v_lshlrev_b32 v13, 4, v11")
    a("v_add_u32 v12, v12, v13")
    a("v_and_b32 v13, 1, v10")
    a(f"v_mov_b32 v14, {A2_H1}")
    a(f"v_mov_b32 v15, {A2_H0}")
    a("v_cmp_eq_u32 vcc, 1, v13")
    a("v_lshrrev_b32 v13, 1, v10")
    a("v_and_b32 v13, 1, v13")
    a("v_cndmask_b32 v14, v14, v15, vcc")
    a("v_add3_u32 v2, v12, v14, s60")
    a("v_lshlrev_b32 v12, 3, v13")
    a("v_lshrrev_b32 v14, 2, v10")
    a("v_lshlrev_b32 v14, 4, v14")
    a("v_add_u32 v12, v12, v14")
    a("v_lshlrev_b32 v14, 4, v11")
    a("v_sub_u32 v12, v14, v12")
    a(f"v_add_u32 v12, {2*1820 - 512*7}, v12")
    a(f"v_mov_b32 v14, {A2_X2}")
    a(f"v_mov_b32 v15, {A2_X0}")
    a("v_cndmask_b32 v14, v14, v15, vcc")
    a("v_add3_u32 v3, v12, v14, s60")
    for i in range(32):
        a(f"v_mov_b32 v{32+i}, 0")
    a("s_waitcnt vmcnt(4)")
    a("v_mov_b32 v22, s60")
    a("s_mov_b64 exec, 1")
    a(f"ds_write_b32 v22, v28 offset:{A2_X2+4092}")
    a("s_mov_b64 exec, -1")
    a("s_waitcnt lgkmcnt(0)")
    T.stamp(a, 6)

    def reads(A, B):
        r = []
        for aa in range(8):
            r.append(f"ds_read_b128 v[{A+4*aa}:{A+4*aa+3}], v2 offset:{512*aa}")
            r.append(f"ds_read_b64 v[{B+4*aa}:{B+4*aa+1}], v3 offset:{512*(7-aa)}")
            r.append(f"ds_read_b64 v[{B+4*aa+2}:{B+4*aa+3}], v3 offset:{512*(7-aa)+8}")
        r.append("v_add_u32 v2, 64, v2")
        r.append("v_add_u32 v3, 64, v3")
        return r

    def mfmas(A, B):
        r = []
        for t in range(8):
            for aa in range(t + 1):
                u = t - aa
                ac = 32 + 4 * t
                r.append(f"v_mfma_f32_16x16x32_bf16 v[{ac}:{ac+3}], v[{A+4*aa}:{A+4*aa+3}], v[{B+4*u}:{B+4*u+3}], v[{ac}:{ac+3}]")
        return r

    def interleave(m, r):
        for i, x in enumerate(m):
            a(x)
            if i < len(r):
                a(r[i])

    for x in reads(64, 96):
        a(x)
    a("s_mov_b32 s40, 0")
    loop, last = a.newlabel("A2L"), a.newlabel("A2E")
    a.label(loop)
    a("s_waitcnt lgkmcnt(0)")
    interleave(mfmas(64, 96), reads(128, 160))
    a("s_waitcnt lgkmcnt(0)")
    a("s_cmp_eq_u32 s40, 3")
    a(f"s_cbranch_scc1 {last}")
    interleave(mfmas(128, 160), reads(64, 96))
    a("s_add_u32 s40, s40, 1")
    a(f"s_branch {loop}")
    a.label(last)
    for x in mfmas(128, 160):
        a(x)
    T.stamp(a, 7)
    a("v_lshlrev_b32 v12, 5, v11")
    a("v_add_u32 v12, v12, v10")
    a("v_lshlrev_b32 v12, 2, v12")
    a("v_add_u32 v12, s60, v12")
    srd(a, 36, P_WS, TSZ, WS_YT)
    a("v_lshlrev_b32 v15, 4, v1")
    a("v_add_u32 v13, s60, v15")
    for t in range(8):
        ac = 32 + 4 * t
        d = 64 + 2 * t
        a(f"v_cvt_pk_bf16_f32 v{d}, v{ac}, v{ac+1}")
        a(f"v_cvt_pk_bf16_f32 v{d+1}, v{ac+2}, v{ac+3}")
        a(f"ds_write_b32 v12, v{d} offset:{512*t}")
        a(f"ds_write_b32 v12, v{d+1} offset:{512*t+64}")
    a("s_waitcnt lgkmcnt(0)")
    for i in range(4):
        a(f"ds_read_b128 v[{80+4*i}:{83+4*i}], v13 offset:{1024*i}")
    a("s_waitcnt lgkmcnt(0)")
    for i in range(4):
        a(f"s_add_u32 s6, s59, {1024*i}")
        a(f"buffer_store_dwordx4 v[{80+4*i}:{83+4*i}], v15, s[36:39], s6 offen {sc}")
    a("s_lshl_b32 s6, s73, 8")
    a("s_lshl_b32 s7, s72, 5")
    a("s_add_u32 s6, s6, s7")
    a("s_lshl_b32 s7, s3, 2")
    a("s_add_u32 s6, s6, s7")
    a(f"s_add_u32 s6, s6, {FL_A2}")
    a("v_mov_b32 v12, s6")
    a("v_mov_b32 v13, s44")
    a("v_lshrrev_b32 v16, 5, v0")
    a("v_and_b32 v17, 31, v0")
    a("v_lshlrev_b32 v17, 4, v17")
    a("s_lshl_b32 s6, s73, 6")
    a("v_add_u32 v18, s6, v16")
    a("v_lshlrev_b32 v18, 12, v18")
    a("s_lshl_b32 s6, s72, 9")
    a("v_add3_u32 v18, v18, v17, s6")
    a(f"v_mul_u32_u24 v16, {Y_RS}, v16")
    a("v_add_u32 v16, v16, v17")
    a("s_waitcnt vmcnt(0)")
    a("s_mov_b64 exec, 1")
    a("buffer_store_dword v13, v12, s[48:51], 0 offen sc1")
    a("s_mov_b64 exec, -1")
    T.stamp(a, 8)
    lp = a.newlabel("AP")
    a("s_cmp_lg_u32 s3, 0")
    a(f"s_cbranch_scc1 {lp}")
    a("s_lshl_b32 s6, s73, 8")
    a(f"s_add_u32 s6, s6, {FL_A2}")
    a("v_lshlrev_b32 v12, 2, v1")
    a("v_add_u32 v12, s6, v12")
    poll(a, 12, 64, 44, 48)
    le = a.newlabel("EU")
    a("s_cmp_lg_u32 s72, 0")
    a(f"s_cbranch_scc1 {le}")
    a("v_mov_b32 v11, s44")
    a("s_mov_b64 exec, 1")
    a("buffer_store_dword v11, v251, s[48:51], 0 offen sc1")
    a("s_mov_b64 exec, -1")
    a.label(le)
    a.label(lp)
    a("s_barrier")
    T.stamp(a, 9)
    a("s_mov_b32 s6, 0")
    for m in range(4):
        a(f"buffer_load_dwordx4 v[{64+4*m}:{67+4*m}], v18, s[36:39], s6 offen {sc}")
        if m < 3:
            a("s_add_u32 s6, s6, 65536")
    a("v_lshrrev_b32 v12, 4, v1")
    a("v_lshlrev_b32 v12, 3, v12")
    a("v_lshrrev_b32 v13, 2, v1")
    a("v_and_b32 v13, 3, v13")
    a("v_add_u32 v12, v12, v13")
    a(f"v_mul_u32_u24 v12, {Y_RS}, v12")
    a("v_and_b32 v13, 3, v1")
    a("v_lshlrev_b32 v13, 3, v13")
    a("s_lshl_b32 s6, s3, 6")
    a("v_add3_u32 v12, v12, v13, s6")
    srd(a, 32, P_OUT, 2048 * 2560)
    a("v_mul_u32_u24 v15, 2560, v9")
    a("v_add_u32 v15, v15, v8")
    for m in range(4):
        a(f"s_waitcnt vmcnt({3-m})")
        a(f"ds_write_b128 v16, v[{64+4*m}:{67+4*m}] offset:{16*Y_RS*m}")
    a("s_waitcnt lgkmcnt(0)")
    a("s_barrier")
    for m in range(4):
        off = (m & 1) * 32 * Y_RS + (m >> 1) * 32
        a(f"ds_read_b64_tr_b16 v[{64+4*m}:{65+4*m}], v12 offset:{off}")
        a(f"ds_read_b64_tr_b16 v[{66+4*m}:{67+4*m}], v12 offset:{off + 4*Y_RS}")
    a("s_waitcnt lgkmcnt(0)")
    no = OPT["nt_out"]
    a("s_mov_b32 s7, 40960")
    for m in range(4):
        for i in range(4):
            y = 64 + 4 * m + i
            q = 192 + 4 * m + i
            t = 80 + 4 * (i & 1)
            a(f"v_lshlrev_b32 v{t}, 16, v{y}")
            a(f"v_and_b32 v{t+1}, s57, v{y}")
            a(f"v_lshlrev_b32 v{t+2}, 16, v{q}")
            a(f"v_and_b32 v{t+3}, s57, v{q}")
            a(f"v_pk_mul_f32 v[{t}:{t+1}], v[{t}:{t+1}], v[{t+2}:{t+3}]")
            a(f"v_cvt_pk_bf16_f32 v{y}, v{t}, v{t+1}")
        so = "s7" if m >= 2 else "0"
        of = " offset:64" if (m & 1) else ""
        a(f"buffer_store_dwordx4 v[{64+4*m}:{67+4*m}], v15, s[32:35], {so} offen{of} {no}")
    T.stamp(a, 10)


def kdesc(name, vgpr=256, sgpr=102):
    return f""".amdhsa_kernel {name}
  .amdhsa_next_free_vgpr {vgpr}
  .amdhsa_next_free_sgpr {sgpr}
  .amdhsa_accum_offset {vgpr}
  .amdhsa_group_segment_fixed_size 0
  .amdhsa_kernarg_size 96
  .amdhsa_user_sgpr_count 2
  .amdhsa_user_sgpr_kernarg_segment_ptr 1
  .amdhsa_system_sgpr_workgroup_id_x 1
  .amdhsa_float_denorm_mode_32 3
  .amdhsa_float_denorm_mode_16_64 3
.end_amdhsa_kernel
"""


def gen(ts=False):
    out = "; concat_heads( H3-style ssm conv , sliding local dilated attention ) -- hand-written streams emitted by a python generator\n"
    out += "; @launch grid=(256,1,1) block=(512,1,1) lds=163840\n"
    out += '.amdgcn_target "amdgcn-amd-amdhsa--gfx950"\n.text\n'
    a = Asm()
    T = TS(ts)
    T.init(a)
    T.stamp(a, 0)
    if OPT.get("dbgt"):
        a("s_memrealtime s[96:97]")
        a("s_waitcnt lgkmcnt(0)")
        a("s_mov_b32 s79, s96")
    a("s_cmp_ge_u32 s2, 256")
    a("s_cbranch_scc1 K_END")
    a("s_load_dwordx16 s[8:23], s[0:1], 0")
    a("s_load_dwordx8 s[24:31], s[0:1], 64")
    a("v_lshrrev_b32 v2, 6, v0")
    a("v_and_b32 v1, 63, v0")
    a("s_and_b32 s4, s2, 7")
    a("v_readfirstlane_b32 s3, v2")
    a("s_lshr_b32 s5, s2, 3")
    a("s_waitcnt lgkmcnt(0)")
    role_decode(a)
    if OPT.get("only") == "A":
        a("s_branch K_END")
    b_program(a, T)
    a("s_branch K_FIN")
    a.label("A_ROLE")
    if OPT.get("only") == "B":
        a("s_branch K_END")
    a_program(a, T)
    a.label("K_FIN")
    if OPT.get("dbgt"):
        a("s_waitcnt vmcnt(0)")
        a("s_memrealtime s[96:97]")
        a("s_waitcnt lgkmcnt(0)")
        lab = a.newlabel("DBG")
        a("s_cmp_lg_u32 s3, 0")
        a(f"s_cbranch_scc1 {lab}")
        a("s_and_b32 s6, s2, 0x3f")
        a("s_cmp_lg_u32 s6, 0")
        a(f"s_cbranch_scc1 {lab}")
        srd(a, 92, P_DBG, 256)
        a("s_lshr_b32 s6, s2, 6")
        a("s_lshl_b32 s6, s6, 3")
        a("v_mov_b32 v2, s6")
        a("v_mov_b32 v4, s79")
        a("v_mov_b32 v5, s96")
        a("s_mov_b64 exec, 1")
        a("buffer_store_dwordx2 v[4:5], v2, s[92:95], 0 offen")
        a("s_waitcnt vmcnt(0)")
        a("s_mov_b64 exec, -1")
        a.label(lab)
    if ts:
        a("s_waitcnt vmcnt(0)")
        T.stamp(a, 15)
        T.flush(a)
    a.label("K_END")
    a("s_endpgm")
    out += f".globl {KNAME}\n.p2align 8\n.type {KNAME},@function\n{KNAME}:\n" + a.text()
    out += '.section .rodata,"a"\n.p2align 6\n' + kdesc(KNAME)
    return out


if __name__ == "__main__":
    mode = sys.argv[1] if len(sys.argv) > 1 else "plain"
    dst = sys.argv[2] if len(sys.argv) > 2 else "k4.s"
    for kv in sys.argv[3:]:
        k, v = kv.split("=")
        OPT[k] = v if k != "spin" else int(v)
    if mode == "tc":
        TS.INSTR = "s_memtime"
    open(dst, "w").write(gen(mode in ("ts", "tc")))
    print("wrote", dst)
```

```python
import sys

KNAME = "concat_heads__ssm_conv_h3__sliding_local_dilated__prompt_kernel"
TSZ = 640 * 4096
WS_OW = 0x0
WS_XT = 0x280000
WS_YT = 0x500000
WS_FL = 0x780000
FL_B = 0x0
FL_A1 = 0x6000
FL_A2 = 0x9000
FL_EB = 0xC000
FL_EA = 0xD000
WS_TS = 0x800000
OOB = 0x80000000

OPT = dict(psleep=1, sc_oload="sc1", sc_ostore="sc1", nt_pf="", nt_a="", nt_h="", nt_x="", nt_w="", nt_out="", sc="sc1", spin=1 << 20)


class Asm:
    def __init__(self):
        self.l = []
        self.uid = 0

    def __call__(self, s=""):
        for line in s.split("\n"):
            line = line.strip()
            if line:
                self.l.append("    " + line)

    def label(self, name):
        self.l.append(name + ":")

    def newlabel(self, p="L"):
        self.uid += 1
        return f"{p}_{self.uid}"

    def text(self):
        return "\n".join(self.l) + "\n"


P_Q, P_K, P_V, P_SK, P_H, P_SD, P_X, P_W, P_WO, P_OUT, P_DBG, P_WS = [8 + 2 * i for i in range(12)]


def srd(a, dst, ptr, nbytes, off=0):
    if off:
        a(f"s_add_u32 s{dst}, s{ptr}, 0x{off:x}")
        a(f"s_addc_u32 s{dst+1}, s{ptr+1}, 0")
    else:
        a(f"s_mov_b32 s{dst}, s{ptr}")
        a(f"s_mov_b32 s{dst+1}, s{ptr+1}")
    a(f"s_mov_b32 s{dst+2}, 0x{nbytes:x}")
    a(f"s_mov_b32 s{dst+3}, 0x00020000")


class TS:
    INSTR = "s_memrealtime"

    def __init__(self, on):
        self.on = on
        self.n = 0

    def stamp(self, a, idx):
        if not self.on:
            return
        if OPT.get("stagets") and 3 <= idx < 14:
            return
        a(f"{TS.INSTR} s[96:97]")
        a("s_waitcnt lgkmcnt(0)")
        a(f"s_mov_b32 s{80+idx}, s96")

    def init(self, a):
        if not self.on:
            return
        for i in range(16):
            a(f"s_mov_b32 s{80+i}, 0")

    def flush(self, a):
        if not self.on:
            return
        srd(a, 96, P_WS, 0x40000, WS_TS)
        a("s_mov_b64 exec, 1")
        a("s_lshl_b32 s7, s2, 3")
        a("s_add_u32 s7, s7, s3")
        a("s_lshl_b32 s7, s7, 6")
        a("v_mov_b32 v3, s7")
        for i in range(16):
            a(f"v_mov_b32 v2, s{80+i}")
            a(f"buffer_store_dword v2, v3, s[96:99], 0 offen offset:{4*i}")
        a("s_waitcnt vmcnt(0)")
        a("s_mov_b64 exec, -1")


NRT = 13
B1_XSZ = NRT * 16 * 128
B1_STAGE = B1_XSZ + 16384
B1_NB = 3
QKV_RS = 400
O_LDS = 83200
B2_WA = 102400
B2_WB = 0
B2_O = 40960
B2_OST = 30720
ACC = 16
XA, XB, WA, WB = 120, 172, 224, 232


def role_decode(a):
    a("s_cmp_lt_u32 s4, 2")
    a("s_cselect_b32 s70, 16, 24")
    a("s_cmp_ge_u32 s5, s70")
    a("s_cbranch_scc1 A_ROLE")


def b_decode(a):
    a("s_cmp_eq_u32 s4, 1")
    a("s_cselect_b32 s71, 1, 0")
    a("s_cmp_ge_u32 s4, 5")
    a("s_cselect_b32 s71, 1, s71")
    a("s_cselect_b32 s7, 3, 0")
    a("s_sub_u32 s6, s4, 2")
    a("s_sub_u32 s6, s6, s7")
    a("s_mul_i32 s6, s6, 3")
    a("s_add_u32 s6, s6, 2")
    a("s_cmp_lt_u32 s4, 2")
    a("s_cselect_b32 s6, 0, s6")
    a("s_lshr_b32 s7, s5, 3")
    a("s_add_u32 s60, s6, s7")
    a("s_and_b32 s68, s5, 7")
    a("s_lshl_b32 s61, s71, 3")
    a("s_add_u32 s61, s61, s68")
    a("s_lshl_b32 s67, s60, 1")
    a("s_add_u32 s67, s67, s71")


def pf_x_addr(a, dst):
    a("v_and_b32 v10, 31, v1")
    a("s_mul_i32 s6, s68, 26")
    a("s_mul_i32 s7, s60, 192")
    a("s_add_u32 s6, s6, s7")
    a("s_sub_u32 s6, s6, 16")
    a("v_add_u32 v11, s6, v10")
    a("s_movk_i32 s7, 1280")
    a("v_mul_lo_u32 v11, v11, s7")
    a("v_lshrrev_b32 v12, 5, v1")
    a("v_lshlrev_b32 v12, 7, v12")
    a("v_add_u32 v11, v11, v12")
    a("v_cmp_gt_u32 vcc, 26, v10")
    a(f"v_mov_b32 v12, 0x{OOB:x}")
    a("s_nop 0")
    a(f"v_cndmask_b32 v{dst}, v12, v11, vcc")


def pf_w_addr(a, dst):
    a("s_cmp_eq_u32 s70, 16")
    a("s_cselect_b32 s6, 60, 40")
    a("s_mul_i32 s7, s5, s6")
    a("v_add_u32 v10, s7, v1")
    a("v_mul_u32_u24 v11, 4370, v10")
    a("v_lshrrev_b32 v11, 16, v11")
    a("v_mul_u32_u24 v12, 15, v11")
    a("v_sub_u32 v12, v10, v12")
    a("v_mul_u32_u24 v13, 52, v12")
    a("v_lshrrev_b32 v13, 8, v13")
    a("v_mul_u32_u24 v14, 5, v13")
    a("v_sub_u32 v14, v12, v14")
    a("v_mul_u32_u24 v11, 3840, v11")
    a("v_mul_u32_u24 v13, 1280, v13")
    a("v_lshlrev_b32 v14, 7, v14")
    a("v_add3_u32 v11, v11, v13, v14")
    a("s_mul_i32 s7, s71, 640")
    a("v_add_u32 v11, s7, v11")
    a("v_cmp_gt_u32 vcc, s6, v1")
    a(f"v_mov_b32 v12, 0x{OOB:x}")
    a("s_nop 0")
    a(f"v_cndmask_b32 v{dst}, v12, v11, vcc")


def b_initial_prefetch(a):
    npf = OPT["nt_pf"]
    srd(a, 32, P_X, TSZ)
    srd(a, 36, P_W, 640 * 3840)
    l1 = a.newlabel("IP")
    a("s_cmp_eq_u32 s3, 3")
    a(f"s_cbranch_scc1 {l1}")
    pf_w_addr(a, 2)
    a("s_mul_i32 s6, s3, 245760")
    a(f"buffer_load_dword v254, v2, s[36:39], s6 offen {npf}")
    a("s_cmp_eq_u32 s3, 2")
    a(f"s_cbranch_scc1 {l1}")
    pf_x_addr(a, 3)
    a("s_lshl_b32 s6, s3, 8")
    a(f"buffer_load_dword v255, v3, s[32:35], s6 offen {npf}")
    a.label(l1)


def b1_loader_setup(a):
    srd(a, 32, P_X, TSZ)
    srd(a, 36, P_W, 640 * 3840)
    a("s_sub_u32 s62, s3, 4")
    a("v_lshrrev_b32 v10, 3, v1")
    a("s_lshl_b32 s6, s62, 3")
    a("v_add_u32 v10, s6, v10")
    a("v_lshrrev_b32 v11, 1, v10")
    a("v_and_b32 v11, 7, v11")
    a("v_and_b32 v12, 7, v1")
    a("v_xor_b32 v11, v11, v12")
    a("v_lshlrev_b32 v11, 4, v11")
    a("s_mul_i32 s6, s60, 192")
    a("s_sub_u32 s6, s6, 16")
    a("v_add_u32 v10, s6, v10")
    a("s_movk_i32 s7, 1280")
    a("v_mul_lo_u32 v10, v10, s7")
    a("v_add_u32 v2, v10, v11")
    a("v_add_u32 v3, 40960, v2")
    a("v_lshrrev_b32 v10, 4, v1")
    a("v_and_b32 v12, 15, v1")
    a("s_mul_i32 s63, s61, 80")
    for which, dst in ((0, 5), (1, 6)):
        a("v_lshlrev_b32 v11, 1, v10")
        if which:
            a("v_add_u32 v11, 8, v11")
        a("v_xor_b32 v11, v11, v12")
        a("v_mul_u32_u24 v13, 52, v11")
        a("v_lshrrev_b32 v13, 8, v13")
        a("v_mul_u32_u24 v14, 5, v13")
        a("v_sub_u32 v14, v11, v14")
        a("v_mul_u32_u24 v13, 1280, v13")
        a("v_lshlrev_b32 v14, 4, v14")
        a("v_add3_u32 v13, v13, v14, s63")
        a("s_lshl_b32 s6, s62, 4")
        if which:
            a("s_add_u32 s6, s6, 8")
        a("v_add_u32 v14, s6, v10")
        a("v_mul_u32_u24 v14, 3840, v14")
        a(f"v_add_u32 v{dst}, v14, v13")
        a("v_cmp_eq_u32 vcc, 15, v11")
        a(f"v_mov_b32 v13, 0x{OOB:x}")
        a("s_nop 0")
        a(f"v_cndmask_b32 v{dst}, v{dst}, v13, vcc")
    a("s_mov_b32 s41, 0")
    a("s_mov_b32 s42, 0")
    a("s_mov_b32 s43, 0")


def b1_issue_stage(a):
    nx, nw = OPT["nt_x"], OPT["nt_w"]
    a("s_lshl_b32 s6, s62, 10")
    a("s_add_u32 s6, s6, s43")
    a("s_mov_b32 m0, s6")
    a("s_mov_b32 s7, s41")
    a(f"buffer_load_dwordx4 v2, s[32:35], s41 offen {nx} lds")
    for m in range(1, 6):
        a(f"s_add_u32 m0, s6, {4096*m}")
        if m > 1:
            a("s_add_u32 s7, s7, 40960")
        else:
            a("s_nop 0")
        a(f"buffer_load_dwordx4 v3, s[32:35], s7 offen {nx} lds")
    l1 = a.newlabel("IS")
    a("s_cmp_lt_u32 s62, 2")
    a(f"s_cbranch_scc0 {l1}")
    a(f"s_add_u32 m0, s6, {4096*6}")
    a("s_add_u32 s7, s7, 40960")
    a(f"buffer_load_dwordx4 v3, s[32:35], s7 offen {nx} lds")
    a.label(l1)
    a("s_lshl_b32 s7, s62, 12")
    a("s_add_u32 s7, s7, s43")
    a(f"s_add_u32 s7, s7, {B1_XSZ}")
    a("s_mov_b32 m0, s7")
    a("s_add_u32 s46, s42, 15360")
    a(f"buffer_load_dwordx4 v5, s[36:39], s42 offen {nw} lds")
    a("s_add_u32 m0, s7, 1024")
    a("s_nop 0")
    a(f"buffer_load_dwordx4 v5, s[36:39], s46 offen {nw} lds")
    a("s_add_u32 m0, s7, 2048")
    a("s_nop 0")
    a(f"buffer_load_dwordx4 v6, s[36:39], s42 offen {nw} lds")
    a("s_add_u32 m0, s7, 3072")
    a("s_nop 0")
    a(f"buffer_load_dwordx4 v6, s[36:39], s46 offen {nw} lds")
    a("s_add_u32 s41, s41, 128")
    a("s_add_u32 s42, s42, 245760")
    a(f"s_add_u32 s43, s43, {B1_STAGE}")
    a(f"s_cmp_ge_u32 s43, {B1_STAGE*B1_NB}")
    a("s_cselect_b32 s43, 0, s43")


def lwait(a, nb, extra):
    l1, l2 = a.newlabel("LW"), a.newlabel("LW")
    a("s_cmp_lt_u32 s62, 2")
    a(f"s_cbranch_scc0 {l1}")
    a(f"s_waitcnt vmcnt({11*nb+extra})")
    a(f"s_branch {l2}")
    a.label(l1)
    a(f"s_waitcnt vmcnt({10*nb+extra})")
    a.label(l2)


def wo_dma_addr(a):
    for j in range(5):
        a(f"v_add_u32 v10, {64*j}, v1")
        a("v_mul_u32_u24 v11, 6554, v10")
        a("v_lshrrev_b32 v11, 16, v11")
        a("v_mul_u32_u24 v12, 10, v11")
        a("v_sub_u32 v12, v10, v12")
        a("v_lshrrev_b32 v13, 4, v11")
        a("v_lshlrev_b32 v13, 2, v13")
        a("v_and_b32 v14, 3, v11")
        a("v_add_u32 v13, v13, v14")
        a("v_lshrrev_b32 v14, 2, v11")
        a("v_and_b32 v14, 3, v14")
        a("v_lshlrev_b32 v14, 3, v14")
        a("v_add_u32 v13, v13, v14")
        a("v_mul_u32_u24 v13, 1280, v13")
        a("v_lshlrev_b32 v12, 4, v12")
        a("s_mul_i32 s6, s68, 160")
        a(f"v_add3_u32 v{230+j}, v13, v12, s6")


def wo_dma_blocks(a, first, n, lds_of_first):
    a(f"s_add_u32 s47, s62, {first}")
    loop, done = a.newlabel("WO"), a.newlabel("WO")
    a.label(loop)
    a(f"s_cmp_ge_u32 s47, {first+n}")
    a(f"s_cbranch_scc1 {done}")
    a("s_mul_i32 s7, s47, 40960")
    a("s_mul_i32 s6, s47, 5120")
    a(f"s_add_u32 s6, s6, 0x{(lds_of_first - first*5120) & 0xffffffff:x}")
    for j in range(5):
        a(f"s_add_u32 m0, s6, {1024*j}")
        a("s_nop 0")
        a(f"buffer_load_dwordx4 v{230+j}, s[56:59], s7 offen lds")
    a("s_add_u32 s47, s47, 4")
    a(f"s_branch {loop}")
    a.label(done)


NPF_LATER = 3


def b_later_prefetch(a):
    npf = OPT["nt_pf"]
    a(f"v_mov_b32 v4, 0x{OOB:x}")
    a("s_add_u32 s6, s62, 3")
    a("s_mul_i32 s6, s6, 245760")
    a(f"buffer_load_dword v235, v8, s[36:39], s6 offen {npf}")
    a("s_cmp_lt_u32 s62, 3")
    a("s_cselect_b64 vcc, -1, 0")
    a("v_cndmask_b32 v10, v4, v9, vcc")
    a("s_add_u32 s6, s62, 2")
    a("s_lshl_b32 s6, s6, 8")
    a(f"buffer_load_dword v236, v10, s[32:35], s6 offen {npf}")
    a("v_cndmask_b32 v10, v4, v8, vcc")
    a("s_add_u32 s6, s62, 7")
    a("s_mul_i32 s6, s6, 245760")
    a(f"buffer_load_dword v237, v10, s[36:39], s6 offen {npf}")


def b1_loader(a, T):
    b1_loader_setup(a)
    pf_w_addr(a, 8)
    pf_x_addr(a, 9)
    srd(a, 56, P_WO, 640 * 1280)
    wo_dma_addr(a)
    att_setup(a)
    o_store_setup(a)
    srd(a, 48, P_WS, TSZ, WS_OW)
    a("s_barrier")
    a("s_mov_b32 s40, 0")
    l0 = a.newlabel("LP")
    a.label(l0)
    b1_issue_stage(a)
    a("s_add_u32 s40, s40, 1")
    a("s_cmp_lt_u32 s40, 3")
    a(f"s_cbranch_scc1 {l0}")
    b_later_prefetch(a)
    T.stamp(a, 1)
    lwait(a, 2, NPF_LATER)
    a("s_barrier")
    a("s_mov_b32 s40, 0")
    loop = a.newlabel("LL")
    lA, lB, lC, lD, lW = [a.newlabel("LLx") for _ in range(5)]
    a.label(loop)
    a("s_cmp_lt_u32 s40, 2")
    a(f"s_cbranch_scc1 {lA}")
    a("s_cmp_lt_u32 s40, 8")
    a(f"s_cbranch_scc1 {lB}")
    a("s_cmp_eq_u32 s40, 8")
    a(f"s_cbranch_scc1 {lC}")
    a(f"s_branch {lW}")
    a.label(lA)
    lwait(a, 1, NPF_LATER)
    a(f"s_branch {lW}")
    a.label(lB)
    lwait(a, 1, 0)
    a(f"s_branch {lW}")
    a.label(lC)
    a("s_waitcnt vmcnt(5)")
    a.label(lW)
    a("s_barrier")
    skip, s7, s8, nxt = a.newlabel("LLS"), a.newlabel("LL7"), a.newlabel("LL8"), a.newlabel("LLN")
    a("s_cmp_ge_u32 s40, 7")
    a(f"s_cbranch_scc1 {skip}")
    b1_issue_stage(a)
    a(f"s_branch {nxt}")
    a.label(skip)
    a("s_cmp_eq_u32 s40, 7")
    a(f"s_cbranch_scc0 {s8}")
    wo_dma_blocks(a, 6, 6, B2_WA + 6 * 5120)
    a(f"s_branch {nxt}")
    a.label(s8)
    a("s_cmp_eq_u32 s40, 8")
    a(f"s_cbranch_scc0 {nxt}")
    wo_dma_blocks(a, 0, 6, B2_WA)
    a.label(nxt)
    a("s_add_u32 s40, s40, 1")
    a("s_cmp_lt_u32 s40, 10")
    a(f"s_cbranch_scc1 {loop}")


def b1_compute(a, T):
    a("v_and_b32 v10, 15, v1")
    a("v_lshrrev_b32 v11, 4, v1")
    a("v_lshrrev_b32 v12, 1, v10")
    a("v_xor_b32 v12, v12, v11")
    a("v_lshlrev_b32 v12, 4, v12")
    a("v_lshlrev_b32 v10, 7, v10")
    a("v_add_u32 v2, v10, v12")
    a("v_xor_b32 v3, 64, v2")
    a("v_lshrrev_b32 v10, 2, v1")
    a("v_and_b32 v10, 3, v10")
    a("v_and_b32 v12, 3, v1")
    a("v_lshlrev_b32 v13, 3, v11")
    a("v_add_u32 v13, v13, v10")
    a("v_lshlrev_b32 v13, 8, v13")
    a("v_and_b32 v14, 1, v11")
    a("v_lshlrev_b32 v14, 3, v14")
    a("v_lshlrev_b32 v10, 1, v10")
    a("v_add_u32 v14, v14, v10")
    a("v_lshrrev_b32 v15, 1, v12")
    a("s_lshl_b32 s6, s3, 2")
    a("v_add_u32 v15, s6, v15")
    a("v_xor_b32 v15, v15, v14")
    a("v_lshlrev_b32 v15, 4, v15")
    a("v_and_b32 v12, 1, v12")
    a("v_lshlrev_b32 v12, 3, v12")
    a("v_add3_u32 v13, v13, v15, v12")
    a(f"v_add_u32 v4, {B1_XSZ}, v13")
    a("v_xor_b32 v5, 32, v4")
    for i in range(NRT * 8):
        a(f"v_mov_b32 v{ACC+i}, 0")
    att_setup(a)
    a("v_and_b32 v10, 15, v1")
    a(f"v_mul_u32_u24 v10, {QKV_RS}, v10")
    a("v_lshrrev_b32 v11, 4, v1")
    a("s_lshl_b32 s6, s3, 3")
    a("v_add_u32 v11, s6, v11")
    for ct in range(2):
        if ct:
            a("v_add_u32 v11, 4, v11")
        a("v_mul_u32_u24 v6, 52, v11")
        a("v_lshrrev_b32 v6, 8, v6")
        a("v_mul_u32_u24 v7, 5, v6")
        a("v_sub_u32 v7, v11, v7")
        a("v_lshlrev_b32 v6, 6, v6")
        a("v_lshlrev_b32 v7, 3, v7")
        a(f"v_add3_u32 v{12+ct}, v10, v6, v7")
        a(f"v_add_u32 v{14+ct}, {8*16*QKV_RS}, v{12+ct}")

    def reads(xaddr, waddr0, waddr1, ks, X, W):
        r = []
        r.append(f"ds_read_b64_tr_b16 v[{W}:{W+1}], v{waddr0} offset:{8192*ks}")
        r.append(f"ds_read_b64_tr_b16 v[{W+2}:{W+3}], v{waddr0} offset:{8192*ks+1024}")
        r.append(f"ds_read_b64_tr_b16 v[{W+4}:{W+5}], v{waddr1} offset:{8192*ks}")
        r.append(f"ds_read_b64_tr_b16 v[{W+6}:{W+7}], v{waddr1} offset:{8192*ks+1024}")
        for t in range(NRT):
            r.append(f"ds_read_b128 v[{X+4*t}:{X+4*t+3}], v{xaddr} offset:{2048*t}")
        return r

    def mfmas(X, W):
        r = []
        for t in range(NRT):
            for ct in range(2):
                ac = ACC + (ct * NRT + t) * 4
                r.append(f"v_mfma_f32_16x16x32_bf16 v[{ac}:{ac+3}], v[{W+4*ct}:{W+4*ct+3}], v[{X+4*t}:{X+4*t+3}], v[{ac}:{ac+3}]")
        return r

    def inter(m, r):
        for i, x in enumerate(m):
            a(x)
            if i < len(r):
                a(r[i])

    a("s_waitcnt vmcnt(0)")
    a("s_barrier")
    T.stamp(a, 1)
    a("s_barrier")
    T.stamp(a, 2)
    a("v_mov_b32 v6, v2")
    a("v_mov_b32 v7, v3")
    a("v_mov_b32 v8, v4")
    a("v_mov_b32 v9, v5")
    for x in reads(6, 8, 9, 0, XA, WA):
        a(x)
    a("s_mov_b32 s40, 0")
    a("s_mov_b32 s44, 0")
    loop, last = a.newlabel("CL"), a.newlabel("CE")
    a.label(loop)
    a("s_waitcnt lgkmcnt(0)")
    inter(mfmas(XA, WA), reads(7, 8, 9, 1, XB, WB))
    a(f"s_add_u32 s44, s44, {B1_STAGE}")
    a(f"s_cmp_ge_u32 s44, {B1_STAGE*B1_NB}")
    a("s_cselect_b32 s44, 0, s44")
    a("v_add_u32 v6, s44, v2")
    a("v_add_u32 v7, s44, v3")
    a("v_add_u32 v8, s44, v4")
    a("v_add_u32 v9, s44, v5")
    a("s_waitcnt lgkmcnt(0)")
    a("s_barrier")
    if OPT.get("stagets") and T.on:
        a(f"{TS.INSTR} s[96:97]")
        a("s_waitcnt lgkmcnt(0)")
        for i in range(10):
            a(f"s_cmp_eq_u32 s40, {i}")
            a(f"s_cselect_b32 s{83+i}, s96, s{83+i}")
    a("s_cmp_eq_u32 s40, 9")
    a(f"s_cbranch_scc1 {last}")
    inter(mfmas(XB, WB), reads(6, 8, 9, 0, XA, WA))
    a("s_add_u32 s40, s40, 1")
    a(f"s_branch {loop}")
    a.label(last)
    m = mfmas(XB, WB)

    def wr(t, ct, k):
        ac = ACC + (ct * NRT + t) * 4
        d = XA + 2 * (k % 16)
        r = [f"v_cvt_pk_bf16_f32 v{d}, v{ac}, v{ac+1}", f"v_cvt_pk_bf16_f32 v{d+1}, v{ac+2}, v{ac+3}"]
        if t < 8:
            r.append(f"ds_write_b64 v{12+ct}, v[{d}:{d+1}] offset:{16*QKV_RS*t}")
        else:
            r.append(f"ds_write_b64 v{14+ct}, v[{d}:{d+1}] offset:{16*QKV_RS*(t-8)}")
        return r
    k = 0
    pend = []
    LAG = 8
    for i, x in enumerate(m):
        a(x)
        pend.append((i // 2, i % 2))
        if i >= LAG:
            t, ct = pend.pop(0)
            for y in wr(t, ct, k):
                a(y)
            k += 1
    a("s_nop 7")
    for (t, ct) in pend:
        for y in wr(t, ct, k):
            a(y)
        k += 1


def b1_epi_loader(a):
    a("v_and_b32 v10, 255, v0")
    a("v_mov_b32 v16, 0")
    a("v_mov_b32 v17, 0")
    a("v_mov_b32 v18, 0")
    a("v_mov_b32 v19, 0")
    a("v_lshrrev_b32 v11, 2, v10")
    a("v_and_b32 v12, 3, v10")
    a(f"v_mul_u32_u24 v11, {QKV_RS}, v11")
    a("v_lshlrev_b32 v12, 6, v12")
    a("v_add_u32 v11, v11, v12")
    for it in range(4):
        off = it * 64 * QKV_RS
        if it == 3:
            a("v_cmp_gt_u32 vcc, 64, v10")
            a("s_and_saveexec_b64 s[6:7], vcc")
        if it == 2:
            a(f"v_add_u32 v11, {2*64*QKV_RS}, v11")
        o2 = off if it < 2 else off - 2 * 64 * QKV_RS
        a(f"ds_write_b64 v11, v[16:17] offset:{o2+40}")
        a(f"ds_write_b128 v11, v[16:19] offset:{o2+48}")
        if it == 3:
            a("s_mov_b64 exec, s[6:7]")


PB, CB, NEG, KQB, VB, OB = 240, 244, 248, 249, 252, 253


def att_setup(a):
    a("v_and_b32 v10, 15, v1")
    a("v_lshrrev_b32 v11, 4, v1")
    a("v_mov_b32 v14, 0")
    a(f"v_mov_b32 v{NEG}, 0xf149f2ca")
    for i in range(4):
        a("v_lshlrev_b32 v12, 2, v11")
        a(f"v_add_u32 v12, {i}, v12")
        a("v_sub_u32 v13, v10, v12")
        a("v_and_b32 v15, 0x80000001, v13")
        a("v_cmp_eq_u32 vcc, 0, v15")
        a("v_add_u32 v13, 16, v13")
        a("v_and_b32 v15, 1, v13")
        a(f"v_cndmask_b32 v{CB+i}, v{NEG}, v14, vcc")
        a("v_lshlrev_b32 v15, 8, v15")
        a("v_add_u32 v15, v15, v13")
        a("v_cmp_ge_u32 vcc, 14, v15")
        a("s_nop 1")
        a(f"v_cndmask_b32 v{PB+i}, v{NEG}, v14, vcc")
    a(f"v_mul_u32_u24 v12, {QKV_RS}, v10")
    a("v_lshlrev_b32 v13, 4, v11")
    a(f"v_add_u32 v{KQB}, v12, v13")
    a("v_lshrrev_b32 v12, 2, v1")
    a("v_and_b32 v12, 3, v12")
    a("v_lshlrev_b32 v13, 2, v11")
    a("v_add_u32 v12, v12, v13")
    a(f"v_mul_u32_u24 v12, {QKV_RS}, v12")
    a("v_and_b32 v13, 3, v1")
    a("v_lshlrev_b32 v13, 3, v13")
    a(f"v_add_u32 v{VB}, v12, v13")
    a("v_mul_u32_u24 v12, 80, v10")
    a("v_lshlrev_b32 v13, 3, v11")
    a("v_add_u32 v12, v12, v13")
    a(f"v_add_u32 v{OB}, {O_LDS}, v12")


def attention(a, T=None):
    a("s_mov_b32 s45, 0x3ea52b5c")
    R16 = 16 * QKV_RS
    U = [32 + 48 * u for u in range(3)]
    for u in range(3):
        b = U[u]
        a("s_mul_i32 s46, s3, 3")
        if u:
            a(f"s_add_u32 s46, s46, {u}")
        a("s_lshr_b32 s6, s46, 1")
        a("s_and_b32 s7, s46, 1")
        a(f"s_mul_i32 s76, s6, {R16}")
        a("s_lshl_b32 s77, s7, 6")
        a("s_add_u32 s76, s76, s77")
        a(f"v_add_u32 v{b+36}, s76, v{KQB}")
        a(f"v_add_u32 v{b+37}, s76, v{VB}")
        a(f"ds_read_b128 v[{b}:{b+3}], v{b+36} offset:{R16}")
        a(f"ds_read_b128 v[{b+4}:{b+7}], v{b+36} offset:128")
        a(f"ds_read_b128 v[{b+8}:{b+11}], v{b+36} offset:{R16+128}")
        a("s_mul_i32 s77, s6, 1280")
        a("s_mul_i32 s7, s7, 40")
        a("s_add_u32 s77, s77, s7")
        a(f"v_add_u32 v{b+38}, s77, v{OB}")
        a("s_or_b32 s6, s6, s60")
        a("s_cmp_eq_u32 s6, 0")
        a("s_cselect_b64 vcc, -1, 0")
        for i in range(4):
            a(f"v_cndmask_b32 v{b+32+i}, v{PB+i}, v{NEG}, vcc")
    for u in range(3):
        b = U[u]
        a(f"ds_read_b64_tr_b16 v[{b+12}:{b+13}], v{b+37} offset:256")
        a(f"ds_read_b64_tr_b16 v[{b+14}:{b+15}], v{b+37} offset:{R16+256}")
        a(f"ds_read_b64_tr_b16 v[{b+16}:{b+17}], v{b+37} offset:{256+32}")
        a(f"ds_read_b64_tr_b16 v[{b+18}:{b+19}], v{b+37} offset:{R16+256+32}")
    if OPT.get("attts"): T.stamp(a, 10)
    a("s_waitcnt lgkmcnt(12)")
    if OPT.get("attts"): T.stamp(a, 11)
    for u in range(3):
        b = U[u]
        a(f"v_mfma_f32_16x16x32_bf16 v[{b+20}:{b+23}], v[{b+4}:{b+7}], v[{b}:{b+3}], 0")
        a(f"v_mfma_f32_16x16x32_bf16 v[{b+24}:{b+27}], v[{b+8}:{b+11}], v[{b}:{b+3}], 0")
    a("s_nop 7")

    def each(f):
        for step in zip(*[f(U[u]) for u in range(3)]):
            for x in step:
                a(x)
    each(lambda b: [f"v_fma_f32 v{b+20+i}, v{b+20+i}, s45, v{b+32+i}" for i in range(4)])
    each(lambda b: [f"v_fma_f32 v{b+24+i}, v{b+24+i}, s45, v{CB+i}" for i in range(4)])
    each(lambda b: [f"v_max3_f32 v{b+28}, v{b+20}, v{b+21}, v{b+22}",
                    f"v_max3_f32 v{b+29}, v{b+23}, v{b+24}, v{b+25}",
                    f"v_max3_f32 v{b+28}, v{b+28}, v{b+26}, v{b+27}",
                    f"v_max_f32 v{b+28}, v{b+28}, v{b+29}",
                    f"v_mov_b32 v{b+29}, v{b+28}",
                    f"v_permlane32_swap_b32 v{b+28}, v{b+29}",
                    f"v_max_f32 v{b+28}, v{b+28}, v{b+29}",
                    f"v_mov_b32 v{b+29}, v{b+28}",
                    f"v_permlane16_swap_b32 v{b+28}, v{b+29}",
                    f"v_max_f32 v{b+28}, v{b+28}, v{b+29}"])
    each(lambda b: [f"v_sub_f32 v{b+20+i}, v{b+20+i}, v{b+28}" for i in range(8)])
    each(lambda b: [f"v_exp_f32 v{b+20+i}, v{b+20+i}" for i in range(8)])
    each(lambda b: [f"v_cvt_pk_bf16_f32 v{b+40+i}, v{b+20+2*i}, v{b+21+2*i}" for i in range(4)])
    if OPT.get("attts"): T.stamp(a, 12)
    each(lambda b: [f"v_add_f32 v{b+28}, v{b+20}, v{b+21}",
                    f"v_add_f32 v{b+29}, v{b+22}, v{b+23}",
                    f"v_add_f32 v{b+30}, v{b+24}, v{b+25}",
                    f"v_add_f32 v{b+31}, v{b+26}, v{b+27}"])
    a("s_waitcnt lgkmcnt(0)")
    for u in range(3):
        b = U[u]
        a(f"v_mfma_f32_16x16x32_bf16 v[{b}:{b+3}], v[{b+12}:{b+15}], v[{b+40}:{b+43}], 0")
        a(f"v_mfma_f32_16x16x32_bf16 v[{b+4}:{b+7}], v[{b+16}:{b+19}], v[{b+40}:{b+43}], 0")
    each(lambda b: [f"v_add_f32 v{b+28}, v{b+28}, v{b+29}",
                    f"v_add_f32 v{b+30}, v{b+30}, v{b+31}",
                    f"v_add_f32 v{b+28}, v{b+28}, v{b+30}",
                    f"v_mov_b32 v{b+29}, v{b+28}",
                    f"v_permlane32_swap_b32 v{b+28}, v{b+29}",
                    f"v_add_f32 v{b+28}, v{b+28}, v{b+29}",
                    f"v_mov_b32 v{b+29}, v{b+28}",
                    f"v_permlane16_swap_b32 v{b+28}, v{b+29}",
                    f"v_add_f32 v{b+28}, v{b+28}, v{b+29}",
                    f"v_rcp_f32 v{b+28}, v{b+28}"])
    each(lambda b: [f"v_mul_f32 v{b+i}, v{b+i}, v{b+28}" for i in range(8)])
    each(lambda b: [f"v_cvt_pk_bf16_f32 v{b+8}, v{b}, v{b+1}",
                    f"v_cvt_pk_bf16_f32 v{b+9}, v{b+2}, v{b+3}",
                    f"v_cvt_pk_bf16_f32 v{b+10}, v{b+4}, v{b+5}",
                    f"v_cvt_pk_bf16_f32 v{b+11}, v{b+6}, v{b+7}",
                    f"ds_write_b64 v{b+38}, v[{b+8}:{b+9}]"])
    if OPT.get("attts"): T.stamp(a, 13)
    a("s_mov_b64 exec, 0xffff")
    for u in range(3):
        b = U[u]
        a(f"ds_write_b64 v{b+38}, v[{b+10}:{b+11}] offset:32")
    a("s_mov_b64 exec, -1")


def epoch_issue(a, vdst, vtmp, srdn, off_expr_sgpr):
    srd(a, srdn, P_WS, 0x10000, WS_FL)
    a(f"v_mov_b32 v{vtmp}, s{off_expr_sgpr}")
    a(f"buffer_load_dword v{vdst}, v{vtmp}, s[{srdn}:{srdn+3}], 0 offen sc1")


def poll(a, vaddr, n_lanes, tag_s, srdn):
    l0, l1 = a.newlabel("PF"), a.newlabel("PF")
    a("s_mov_b32 s45, 0")
    if n_lanes < 64:
        a(f"s_mov_b64 exec, 0x{(1 << n_lanes) - 1:x}")
    a.label(l0)
    a(f"buffer_load_dword v4, v{vaddr}, s[{srdn}:{srdn+3}], 0 offen sc1")
    a("s_waitcnt vmcnt(0)")
    a(f"v_cmp_ne_u32 vcc, s{tag_s}, v4")
    a("s_add_u32 s45, s45, 1")
    a("s_nop 3")
    a(f"s_cbranch_vccz {l1}")
    a(f"s_cmp_gt_u32 s45, {OPT['spin']}")
    a(f"s_cbranch_scc1 {l1}")
    a(f"s_sleep {OPT['psleep']}")
    a(f"s_branch {l0}")
    a.label(l1)
    if n_lanes < 64:
        a("s_mov_b64 exec, -1")


def o_store_setup(a):
    a("v_and_b32 v10, 255, v0")
    a("v_lshlrev_b32 v10, 4, v10")
    a(f"v_add_u32 v216, {O_LDS}, v10")
    a("s_mul_i32 s6, s61, 163840")
    a("s_mul_i32 s7, s60, 15360")
    a("s_add_u32 s6, s6, s7")
    a("v_add_u32 v12, s6, v10")
    a("s_movk_i32 s7, 15360")
    a("s_cmp_eq_u32 s60, 10")
    a("s_cselect_b32 s7, 10240, s7")
    a(f"v_mov_b32 v14, 0x{OOB:x}")
    for i in range(4):
        a(f"v_add_u32 v{217+i}, {4096*i}, v12")
        a(f"v_add_u32 v13, {4096*i}, v10")
        a("v_cmp_gt_u32 vcc, s7, v13")
        a("s_nop 1")
        a(f"v_cndmask_b32 v{217+i}, v14, v{217+i}, vcc")


def o_store(a):
    sc = OPT["sc_ostore"]
    for i in range(4):
        a(f"ds_read_b128 v[{16+4*i}:{19+4*i}], v216 offset:{4096*i}")
    a("s_waitcnt lgkmcnt(0)")
    for i in range(4):
        a(f"buffer_store_dwordx4 v[{16+4*i}:{19+4*i}], v{217+i}, s[48:51], 0 offen {sc}")


def b2_o_addr(a, dst):
    a("s_lshl_b32 s6, s47, 10")
    a("v_add_u32 v10, s6, v239")
    a("v_lshrrev_b32 v11, 9, v10")
    a("v_mul_u32_u24 v11, 4370, v11")
    a("v_lshrrev_b32 v11, 16, v11")
    a("v_mul_u32_u24 v11, 156160, v11")
    a(f"v_add_u32 v{dst}, v10, v11")


def b2_loader_setup(a):
    for i in range(8):
        a(f"s_add_u32 s47, s62, {4*i}")
        b2_o_addr(a, 224 + i)
    a("s_cmp_lt_u32 s62, 2")
    a("s_cselect_b64 vcc, -1, 0")
    a(f"v_mov_b32 v10, 0x{OOB:x}")
    a("v_cndmask_b32 v231, v10, v231, vcc")
    a("s_mul_i32 s49, s67, 7680")


def b2_loader(a, T):
    sc = OPT["sc_oload"]

    def soff(st):
        a(f"s_add_u32 s50, s68, {st}")
        a("s_and_b32 s50, s50, 3")
        a("s_mul_i32 s50, s50, 655360")
        a("s_add_u32 s50, s50, s49")

    def dma(st):
        soff(st)
        a("s_lshl_b32 s6, s62, 10")
        a(f"s_add_u32 s6, s6, {B2_O + st*B2_OST}")
        for i in range(8):
            lab = None
            if i == 7:
                lab = a.newlabel("O7")
                a("s_cmp_ge_u32 s62, 2")
                a(f"s_cbranch_scc1 {lab}")
            a(f"s_add_u32 m0, s6, {4096*i}")
            a("s_nop 0")
            a(f"buffer_load_dwordx4 v{224+i}, s[52:55], s50 offen {sc} lds")
            if lab:
                a.label(lab)

    def vload(st):
        soff(st)
        for i in range(8):
            d = 16 + 32 * (st - 2) + 4 * i
            a(f"buffer_load_dwordx4 v[{d}:{d+3}], v{224+i}, s[52:55], s50 offen {sc}")

    def lwrite(st):
        for i in range(8):
            d = 16 + 32 * (st - 2) + 4 * i
            lab = None
            if i == 7:
                lab = a.newlabel("O7")
                a("s_cmp_ge_u32 s62, 2")
                a(f"s_cbranch_scc1 {lab}")
            a(f"ds_write_b128 v10, v[{d}:{d+3}] offset:{(st & 1) * B2_OST + 4096*i}")
            if lab:
                a.label(lab)
        a("s_waitcnt lgkmcnt(0)")

    a("v_lshlrev_b32 v10, 4, v1")
    a("s_lshl_b32 s6, s62, 10")
    a(f"s_add_u32 s6, s6, {B2_O}")
    a("v_add_u32 v10, s6, v10")
    T.stamp(a, 2)
    dma(0)
    T.stamp(a, 4)
    dma(1)
    T.stamp(a, 5)
    a("s_waitcnt vmcnt(7)")
    if not OPT.get('attts'): T.stamp(a, 10)
    a("s_barrier")
    vload(2)
    a("s_waitcnt vmcnt(8)")
    if not OPT.get('attts'): T.stamp(a, 11)
    a("s_barrier")
    vload(3)
    a("s_waitcnt vmcnt(8)")
    if not OPT.get('attts'): T.stamp(a, 12)
    lwrite(2)
    a("s_barrier")
    a("s_waitcnt vmcnt(0)")
    if not OPT.get('attts'): T.stamp(a, 13)
    lwrite(3)
    a("s_barrier")


def b2_compute_setup(a):
    a("v_and_b32 v10, 15, v1")
    a("v_lshrrev_b32 v11, 4, v1")
    a("s_and_b32 s6, s3, 1")
    a("s_mul_i32 s6, s6, 48")
    a("v_add_u32 v10, s6, v10")
    a("v_mul_u32_u24 v10, 80, v10")
    for ks in range(5):
        a(f"v_add_u32 v12, {4*ks}, v11")
        a("v_mul_u32_u24 v13, 52, v12")
        a("v_lshrrev_b32 v13, 8, v13")
        a("v_mul_u32_u24 v14, 5, v13")
        a("v_sub_u32 v14, v12, v14")
        a("v_mul_u32_u24 v13, 7680, v13")
        a("v_lshlrev_b32 v14, 4, v14")
        a(f"v_add3_u32 v{224+ks}, v10, v13, v14")
    a("v_lshrrev_b32 v12, 2, v1")
    a("v_and_b32 v12, 3, v12")
    a("v_lshlrev_b32 v13, 2, v11")
    a("v_add_u32 v12, v12, v13")
    a("v_mul_u32_u24 v12, 160, v12")
    a("v_and_b32 v13, 3, v1")
    a("v_lshlrev_b32 v13, 3, v13")
    a("s_lshr_b32 s47, s3, 1")
    a("s_mul_i32 s6, s47, 96")
    a("v_add3_u32 v229, v12, v13, s6")
    for i in range(36):
        a(f"v_mov_b32 v{16+i}, 0")
    srd(a, 56, P_OUT, 2048 * 2560)
    a("v_and_b32 v13, 15, v1")
    a("s_and_b32 s6, s3, 1")
    a("s_mul_i32 s6, s6, 48")
    a("s_mul_i32 s7, s67, 96")
    a("s_add_u32 s6, s6, s7")
    a("v_add_u32 v13, s6, v13")
    a("v_mul_u32_u24 v13, 2560, v13")
    a("v_lshrrev_b32 v14, 4, v1")
    a("v_lshlrev_b32 v14, 3, v14")
    a("s_mul_i32 s6, s68, 160")
    a("s_mul_i32 s7, s47, 96")
    a("s_add_u32 s6, s6, s7")
    a("s_add_u32 s6, s6, 1280")
    a("v_add3_u32 v213, v13, v14, s6")
    a("s_mov_b32 s72, 0")
    a("s_mov_b32 s73, 40960")
    a("s_mov_b32 s74, 81920")
    a(f"s_mov_b32 s51, 0x{(B2_WB - 12*5120) & 0xffffffff:x}")


def b2_compute(a, T):
    WF, OF = 56, 120

    def addr(slot, st):
        r = []
        ob, wb = 192 + 5 * slot, 202 + 5 * slot
        r.append(f"s_add_u32 s50, s68, {st}")
        r.append("s_and_b32 s50, s50, 3")
        r.append("s_mul_i32 s50, s50, 5")
        for ks in range(5):
            r.append(f"v_add_u32 v{ob+ks}, {B2_O + (st & 1) * B2_OST}, v{224+ks}")
            r.append(f"s_add_u32 s6, s50, {ks}")
            r.append("s_mul_i32 s7, s6, 5120")
            r.append("s_cmp_lt_u32 s6, 12")
            r.append(f"s_cselect_b32 s6, {B2_WA}, s51")
            r.append("s_add_u32 s6, s6, s7")
            r.append(f"v_add_u32 v{wb+ks}, s6, v229")
        return r

    def rd_w(slot, ks, nct):
        wb = 202 + 5 * slot
        r = []
        for ct in range(nct):
            F = WF + 12 * ks + 4 * ct
            r.append(f"ds_read_b64_tr_b16 v[{F}:{F+1}], v{wb+ks} offset:{32*ct}")
            r.append(f"ds_read_b64_tr_b16 v[{F+2}:{F+3}], v{wb+ks} offset:{32*ct+2560}")
        return r

    def rd_o(slot, ks):
        ob = 192 + 5 * slot
        return [f"ds_read_b128 v[{OF+12*ks+4*t}:{OF+12*ks+4*t+3}], v{ob+ks} offset:{1280*t}" for t in range(3)]

    def mm(ks, nct):
        r = []
        for t in range(3):
            for ct in range(nct):
                ac = 16 + (t * 3 + ct) * 4
                W = WF + 12 * ks + 4 * ct
                O = OF + 12 * ks + 4 * t
                r.append(f"v_mfma_f32_16x16x32_bf16 v[{ac}:{ac+3}], v[{W}:{W+3}], v[{O}:{O+3}], v[{ac}:{ac+3}]")
        return r

    le, ld = a.newlabel("C2E"), a.newlabel("C2D")
    for x in addr(0, 0):
        a(x)
    a("s_cmp_eq_u32 s47, 0")
    a(f"s_cbranch_scc0 {le}")
    for var, nct in enumerate([3, 2]):
        if var == 1:
            a(f"s_branch {ld}")
            a.label(le)
        for ks in range(5):
            for x in rd_w(0, ks, nct):
                a(x)
        for st in range(4):
            slot = st & 1
            a("s_waitcnt lgkmcnt(0)")
            a("s_barrier")
            if T.on and not OPT.get("attts") and var == 0:
                T.stamp(a, 10 + st)
            for ks in range(5):
                for x in rd_o(slot, ks):
                    a(x)
            lg = 12
            nfill = 0
            for ks in range(5):
                fill = []
                if st < 3:
                    fill = addr(slot ^ 1, st + 1) if ks == 0 else rd_w(slot ^ 1, ks - 1, nct)
                a(f"s_waitcnt lgkmcnt({min(15, 3 * (4 - ks) + nfill)})")
                m = mm(ks, nct)
                per = (len(fill) + len(m) - 1) // len(m)
                k = 0
                for x in m:
                    a(x)
                    for _ in range(per):
                        if k < len(fill):
                            a(fill[k])
                            k += 1
                if ks >= 1 and st < 3:
                    nfill += len(fill)
            if st < 3:
                for x in rd_w(slot ^ 1, 4, nct):
                    a(x)
        no = OPT["nt_out"]
        a("s_nop 7")
        for t in range(3):
            for ct in range(nct):
                ac = 16 + (t * 3 + ct) * 4
                p = 56 + 2 * (t * 3 + ct)
                a(f"v_cvt_pk_bf16_f32 v{p}, v{ac}, v{ac+1}")
                a(f"v_cvt_pk_bf16_f32 v{p+1}, v{ac+2}, v{ac+3}")
                a(f"buffer_store_dwordx2 v[{p}:{p+1}], v213, s[56:59], s{72+t} offen offset:{32*ct} {no}")
    a.label(ld)


def b_program(a, T):
    b_decode(a)
    ld, j1 = a.newlabel("BLD"), a.newlabel("BJ1")
    a("s_cmp_ge_u32 s3, 4")
    a(f"s_cbranch_scc1 {ld}")
    b_initial_prefetch(a)
    a("s_lshl_b32 s6, s60, 7")
    a(f"s_add_u32 s6, s6, {FL_EB}")
    epoch_issue(a, 250, 251, 52, 6)
    b1_compute(a, T)
    T.stamp(a, 3)
    a("s_waitcnt lgkmcnt(0)")
    a(f"s_branch {j1}")
    a.label(ld)
    a("s_lshl_b32 s6, s60, 7")
    a(f"s_add_u32 s6, s6, {FL_EB}")
    epoch_issue(a, 250, 251, 52, 6)
    b1_loader(a, T)
    T.stamp(a, 3)
    b1_epi_loader(a)
    a("s_waitcnt lgkmcnt(0)")
    a.label(j1)
    a("s_barrier")
    T.stamp(a, 4)
    attention(a, T)
    a("s_waitcnt lgkmcnt(0)")
    a("s_barrier")
    T.stamp(a, 5)
    ld2, j2 = a.newlabel("BLD"), a.newlabel("BJ2")
    a("s_cmp_ge_u32 s3, 4")
    a(f"s_cbranch_scc1 {ld2}")
    a("v_readfirstlane_b32 s44, v250")
    a("s_add_u32 s44, s44, 1")
    a("s_barrier")
    b2_compute_setup(a)
    a("s_barrier")
    lp = a.newlabel("NP")
    a("s_cmp_lg_u32 s3, 0")
    a(f"s_cbranch_scc1 {lp}")
    a("s_lshl_b32 s6, s60, 4")
    a("s_add_u32 s6, s6, s61")
    a("s_lshl_b32 s6, s6, 7")
    a("v_mov_b32 v10, s6")
    a("v_mov_b32 v11, s44")
    a("s_mov_b64 exec, 1")
    a("buffer_store_dword v11, v10, s[52:55], 0 offen sc1")
    a("s_mov_b64 exec, -1")
    T.stamp(a, 6)
    a("s_lshl_b32 s6, s60, 11")
    a("v_lshlrev_b32 v10, 7, v1")
    a("v_add_u32 v10, s6, v10")
    poll(a, 10, 16, 44, 52)
    le = a.newlabel("EU")
    a("s_cmp_lg_u32 s61, 0")
    a(f"s_cbranch_scc1 {le}")
    a("v_mov_b32 v11, s44")
    a("s_mov_b64 exec, 1")
    a("buffer_store_dword v11, v251, s[52:55], 0 offen sc1")
    a("s_mov_b64 exec, -1")
    a.label(le)
    a.label(lp)
    T.stamp(a, 7)
    a("s_barrier")
    b2_compute(a, T)
    T.stamp(a, 8)
    a(f"s_branch {j2}")
    a.label(ld2)
    o_store(a)
    a("s_barrier")
    a("s_waitcnt vmcnt(0)")
    a("s_barrier")
    wo_dma_blocks(a, 12, 8, B2_WB)
    srd(a, 52, P_WS, TSZ, WS_OW)
    a("v_lshlrev_b32 v239, 4, v1")
    b2_loader_setup(a)
    a("s_waitcnt vmcnt(0)")
    T.stamp(a, 7)
    a("s_barrier")
    b2_loader(a, T)
    T.stamp(a, 8)
    a.label(j2)
    T.stamp(a, 9)


A2_H0 = 0
A2_H1 = 4640
A2_X0 = 9216
A2_X2 = 13696
A2_CH = 17920
T_RS = 528
Y_RS = 528


def a_program(a, T):
    na, nh, sc = OPT["nt_a"], OPT["nt_h"], OPT["sc"]
    a("s_sub_u32 s5, s5, s70")
    a("s_lshl_b32 s6, s4, 1")
    a("s_add_u32 s7, s4, 2")
    a("s_cmp_lt_u32 s4, 2")
    a("s_cselect_b32 s6, s6, s7")
    a("s_lshr_b32 s7, s5, 3")
    a("s_add_u32 s73, s6, s7")
    a("s_and_b32 s72, s5, 7")
    a("s_lshl_b32 s62, s73, 6")
    a("s_lshl_b32 s6, s72, 3")
    a("s_add_u32 s62, s62, s6")
    a("s_add_u32 s63, s62, s3")
    srd(a, 32, P_K, TSZ)
    srd(a, 36, P_V, TSZ)
    srd(a, 40, P_SK, 640 * 8)
    a("v_and_b32 v8, 7, v1")
    a("v_lshrrev_b32 v9, 3, v1")
    a("s_lshl_b32 s6, s3, 3")
    a("v_add_u32 v9, s6, v9")
    a("v_lshlrev_b32 v2, 2, v9")
    a("s_lshl_b32 s6, s72, 8")
    a("v_add_u32 v2, s6, v2")
    a("v_mul_u32_u24 v2, 1280, v2")
    a("v_lshlrev_b32 v3, 4, v8")
    a("s_lshl_b32 s6, s73, 7")
    a("v_add3_u32 v2, v2, v3, s6")
    a("v_add_u32 v3, -3840, v2")
    a("v_add_u32 v4, -2560, v2")
    a("v_add_u32 v5, -1280, v2")
    for m in range(4):
        a(f"buffer_load_dwordx4 v[{64+4*m}:{67+4*m}], v2, s[32:35], 0 offen offset:{1280*m} {na}".replace("offset:0 ", ""))
    for m in range(4):
        a(f"buffer_load_dwordx4 v[{80+4*m}:{83+4*m}], v2, s[36:39], 0 offen offset:{1280*m} {na}".replace("offset:0 ", ""))
    a(f"buffer_load_dwordx4 v[52:55], v3, s[32:35], 0 offen {na}")
    a(f"buffer_load_dwordx4 v[56:59], v4, s[32:35], 0 offen {na}")
    a(f"buffer_load_dwordx4 v[60:63], v5, s[32:35], 0 offen {na}")
    a("v_lshlrev_b32 v6, 6, v8")
    a("s_lshl_b32 s6, s73, 9")
    a("v_add_u32 v6, s6, v6")
    for i in range(4):
        a(f"buffer_load_dwordx4 v[{32+4*i}:{35+4*i}], v6, s[40:43], 0 offen offset:{16*i}".replace("offset:0", ""))
    a("s_lshl_b32 s6, s73, 7")
    a(f"s_add_u32 s6, s6, {FL_EA}")
    epoch_issue(a, 250, 251, 48, 6)
    a("s_lshl_b32 s6, s62, 1")
    a(f"s_add_u32 s44, s{P_SD}, s6")
    a(f"s_addc_u32 s45, s{P_SD+1}, 0")
    a("s_load_dwordx4 s[64:67], s[44:45], 0")
    a(f"s_mul_i32 s60, s3, {A2_CH}")
    a("s_lshl_b32 s59, s63, 12")
    a("v_lshlrev_b32 v10, 4, v1")
    a("v_add_u32 v11, -2, v10")
    T.stamp(a, 1)
    a("v_mov_b32 v28, 0")
    a("v_mov_b32 v29, 0")
    a("v_mov_b32 v30, 0")
    a("v_mov_b32 v31, 0")
    a("v_add_u32 v23, s60, v10")
    a("s_mov_b64 exec, 0xfffffff")
    a(f"ds_write_b128 v23, v[28:31] offset:{A2_H0}")
    a(f"ds_write_b128 v23, v[28:31] offset:{A2_H1}")
    a("s_mov_b64 exec, -1")
    a(f"v_mul_u32_u24 v7, {A2_CH+16}, v8")
    a("v_lshlrev_b32 v12, 3, v9")
    a("v_sub_u32 v7, v7, v12")
    a(f"v_add_u32 v7, {A2_X0 + 504}, v7")
    a("s_mov_b32 s57, 0xffff0000")
    a("s_waitcnt vmcnt(1)")
    T.stamp(a, 2)
    for c in range(4):
        for m in range(4):
            for e in range(2):
                src = 32 + 2 * (2 * c + e) + (m >> 1)
                dst = 96 + (c * 4 + m) * 2 + e
                if m & 1:
                    a(f"v_and_b32 v{dst}, s57, v{src}")
                else:
                    a(f"v_lshlrev_b32 v{dst}, 16, v{src}")
    for c in range(4):
        for jj in range(7):
            a(f"v_lshlrev_b32 v{128+2*jj}, 16, v{52+4*jj+c}")
            a(f"v_and_b32 v{129+2*jj}, s57, v{52+4*jj+c}")
        for m in range(4):
            a(f"v_lshlrev_b32 v{142+2*m}, 16, v{80+4*m+c}")
            a(f"v_and_b32 v{143+2*m}, s57, v{80+4*m+c}")
        W = lambda m: f"v[{96+(c*4+m)*2}:{97+(c*4+m)*2}]"
        K = lambda jj: f"v[{128+2*jj}:{129+2*jj}]"
        for rr in range(4):
            o = 150 + 2 * rr
            a(f"v_pk_mul_f32 v[{o}:{o+1}], {W(3)}, {K(rr)}")
        for m in (2, 1, 0):
            for rr in range(4):
                o = 150 + 2 * rr
                a(f"v_pk_fma_f32 v[{o}:{o+1}], {W(m)}, {K(3+rr-m)}, v[{o}:{o+1}]")
        for rr in range(4):
            o = 150 + 2 * rr
            a(f"v_pk_mul_f32 v[{o}:{o+1}], v[{o}:{o+1}], v[{142+2*rr}:{143+2*rr}]")
        for e in range(2):
            ch = 2 * c + e
            d = 160 + 4 * (c & 1) + 2 * e
            a(f"v_cvt_pk_bf16_f32 v{d}, v{156+e}, v{154+e}")
            a(f"v_cvt_pk_bf16_f32 v{d+1}, v{152+e}, v{150+e}")
            a(f"ds_write_b64 v7, v[{d}:{d+1}] offset:{ch*T_RS}")
    a("v_lshrrev_b32 v12, 5, v1")
    a(f"v_mul_u32_u24 v12, {T_RS}, v12")
    a("v_and_b32 v13, 31, v1")
    a("v_lshlrev_b32 v13, 4, v13")
    a("v_add_u32 v12, v12, v13")
    a(f"s_mul_i32 s6, s3, {A2_CH+16}")
    a(f"s_add_u32 s6, s6, {A2_X0}")
    a("v_add_u32 v12, s6, v12")
    srd(a, 36, P_WS, TSZ, WS_XT)
    a("v_lshrrev_b32 v14, 5, v1")
    a("v_lshlrev_b32 v14, 12, v14")
    a("v_add_u32 v14, v14, v13")
    a("s_lshl_b32 s6, s73, 6")
    a("s_lshl_b32 s7, s3, 3")
    a("s_add_u32 s6, s6, s7")
    a("s_lshl_b32 s6, s6, 12")
    a("s_lshl_b32 s7, s72, 9")
    a("s_sub_u32 s7, 3584, s7")
    a("s_add_u32 s6, s6, s7")
    a("v_add_u32 v14, s6, v14")
    a("s_waitcnt lgkmcnt(0)")
    a("s_barrier")
    for m in range(4):
        a(f"ds_read_b128 v[{64+4*m}:{67+4*m}], v12 offset:{2*m*T_RS}")
    a("s_waitcnt lgkmcnt(0)")
    a("s_mov_b32 s6, 0")
    for m in range(4):
        a(f"buffer_store_dwordx4 v[{64+4*m}:{67+4*m}], v14, s[36:39], s6 offen {sc}")
        if m < 3:
            a("s_add_u32 s6, s6, 8192")
    T.stamp(a, 3)
    srd(a, 52, P_H, 640 * 4096)
    for i in range(4):
        a(f"s_add_u32 m0, s60, {A2_H0 + 448 + 1024*i}")
        a(f"s_add_u32 s6, s59, {1024*i}")
        a(f"buffer_load_dwordx4 v10, s[52:55], s6 offen {nh} lds")
    a("v_mov_b32 v13, 0")
    a(f"buffer_load_dwordx4 v[16:19], v13, s[52:55], s59 offen")
    for i in range(4):
        a(f"s_add_u32 m0, s60, {A2_H1 + 448 + 1024*i}")
        if i == 0:
            a("s_mov_b32 s6, s59")
            a(f"buffer_load_dwordx4 v11, s[52:55], s6 offen lds")
        else:
            a(f"s_add_u32 s6, s59, {1024*i - 2}")
            a(f"buffer_load_dwordx4 v10, s[52:55], s6 offen lds")
    a("s_lshr_b32 s6, s3, 1")
    a("s_cmp_eq_u32 s6, 1")
    a("s_cselect_b32 s58, s65, s64")
    a("s_cmp_eq_u32 s6, 2")
    a("s_cselect_b32 s58, s66, s58")
    a("s_cmp_eq_u32 s6, 3")
    a("s_cselect_b32 s58, s67, s58")
    a("s_and_b32 s6, s3, 1")
    a("s_lshl_b32 s6, s6, 4")
    a("s_lshr_b32 s58, s58, s6")
    a("s_lshl_b32 s58, s58, 16")
    a("s_waitcnt vmcnt(9)")
    a("v_readfirstlane_b32 s44, v250")
    a("s_add_u32 s44, s44, 1")
    a("s_barrier")
    lp = a.newlabel("AP")
    a("s_cmp_lg_u32 s3, 0")
    a(f"s_cbranch_scc1 {lp}")
    a("s_lshl_b32 s6, s73, 3")
    a("s_add_u32 s6, s6, s72")
    a("s_lshl_b32 s6, s6, 7")
    a(f"s_add_u32 s6, s6, {FL_A1}")
    a("v_mov_b32 v12, s6")
    a("v_mov_b32 v13, s44")
    a("s_mov_b64 exec, 1")
    a("buffer_store_dword v13, v12, s[48:51], 0 offen sc1")
    a("s_mov_b64 exec, -1")
    T.stamp(a, 4)
    a("s_lshl_b32 s6, s73, 10")
    a(f"s_add_u32 s6, s6, {FL_A1}")
    a("v_lshlrev_b32 v12, 7, v1")
    a("v_add_u32 v12, s6, v12")
    poll(a, 12, 8, 44, 48)
    a.label(lp)
    a("s_waitcnt lgkmcnt(0)")
    a("s_barrier")
    T.stamp(a, 5)
    a("v_add_u32 v12, 4, v10")
    for i in range(4):
        a(f"s_add_u32 m0, s60, {A2_X0 + 1024*i}")
        a(f"s_add_u32 s6, s59, {1024*i}")
        a(f"buffer_load_dwordx4 v10, s[36:39], s6 offen {sc} lds")
    for i in range(4):
        a(f"s_add_u32 m0, s60, {A2_X2 + 1024*i}")
        a(f"s_add_u32 s6, s59, {1024*i}")
        a(f"buffer_load_dwordx4 v12, s[36:39], s6 offen {sc} lds")
    a("s_mov_b64 exec, 0xf")
    a(f"ds_write_b128 v23, v[28:31] offset:{A2_X0+4096}")
    a(f"ds_write_b128 v23, v[28:31] offset:{A2_X2+4096}")
    a("s_mov_b64 exec, -1")
    srd(a, 32, P_Q, TSZ)
    a("v_and_b32 v13, 15, v1")
    a("s_lshl_b32 s6, s72, 8")
    a("s_lshl_b32 s7, s3, 5")
    a("s_add_u32 s6, s6, s7")
    a("v_add_u32 v9, s6, v13")
    a("v_lshrrev_b32 v13, 4, v1")
    a("v_lshlrev_b32 v13, 4, v13")
    a("s_lshl_b32 s61, s73, 7")
    a("v_add_u32 v8, s61, v13")
    a("v_mul_u32_u24 v14, 1280, v9")
    a("v_add_u32 v14, v14, v8")
    a("s_movk_i32 s6, 20480")
    a(f"buffer_load_dwordx4 v[192:195], v14, s[32:35], 0 offen {na}")
    a(f"buffer_load_dwordx4 v[196:199], v14, s[32:35], 0 offen offset:64 {na}")
    a(f"buffer_load_dwordx4 v[200:203], v14, s[32:35], s6 offen {na}")
    a(f"buffer_load_dwordx4 v[204:207], v14, s[32:35], s6 offen offset:64 {na}")
    a("s_waitcnt vmcnt(12)")
    a("v_lshlrev_b32 v21, 16, v16")
    a("v_add_f32 v21, s58, v21")
    a("v_cvt_pk_bf16_f32 v21, v21, v21")
    a("s_mov_b32 s6, 0xffff")
    a("v_bfi_b32 v16, s6, v21, v16")
    a("v_lshlrev_b32 v24, 16, v16")
    a("v_alignbit_b32 v25, v17, v16, 16")
    a("v_alignbit_b32 v26, v18, v17, 16")
    a("v_alignbit_b32 v27, v19, v18, 16")
    a("v_mov_b32 v22, s60")
    a("s_mov_b64 exec, 1")
    a(f"ds_write_b128 v22, v[16:19] offset:{A2_H0+448}")
    a(f"ds_write_b128 v22, v[24:27] offset:{A2_H1+448}")
    a("s_mov_b64 exec, -1")
    a("v_and_b32 v10, 15, v1")
    a("v_lshrrev_b32 v11, 4, v1")
    a("v_lshrrev_b32 v12, 1, v10")
    a("v_lshlrev_b32 v12, 6, v12")
    a("v_lshlrev_b32 v13, 4, v11")
    a("v_add_u32 v12, v12, v13")
    a("v_and_b32 v13, 1, v10")
    a(f"v_mov_b32 v14, {A2_H1}")
    a(f"v_mov_b32 v15, {A2_H0}")
    a("v_cmp_eq_u32 vcc, 1, v13")
    a("v_lshrrev_b32 v13, 1, v10")
    a("v_and_b32 v13, 1, v13")
    a("v_cndmask_b32 v14, v14, v15, vcc")
    a("v_add3_u32 v2, v12, v14, s60")
    a("v_lshlrev_b32 v12, 3, v13")
    a("v_lshrrev_b32 v14, 2, v10")
    a("v_lshlrev_b32 v14, 4, v14")
    a("v_add_u32 v12, v12, v14")
    a("v_lshlrev_b32 v14, 4, v11")
    a("v_sub_u32 v12, v14, v12")
    a(f"v_add_u32 v12, {2*1820 - 512*7}, v12")
    a(f"v_mov_b32 v14, {A2_X2}")
    a(f"v_mov_b32 v15, {A2_X0}")
    a("v_cndmask_b32 v14, v14, v15, vcc")
    a("v_add3_u32 v3, v12, v14, s60")
    for i in range(32):
        a(f"v_mov_b32 v{32+i}, 0")
    a("s_waitcnt vmcnt(4)")
    a("v_mov_b32 v22, s60")
    a("s_mov_b64 exec, 1")
    a(f"ds_write_b32 v22, v28 offset:{A2_X2+4092}")
    a("s_mov_b64 exec, -1")
    a("s_waitcnt lgkmcnt(0)")
    T.stamp(a, 6)

    def reads(A, B):
        r = []
        for aa in range(8):
            r.append(f"ds_read_b128 v[{A+4*aa}:{A+4*aa+3}], v2 offset:{512*aa}")
            r.append(f"ds_read_b64 v[{B+4*aa}:{B+4*aa+1}], v3 offset:{512*(7-aa)}")
            r.append(f"ds_read_b64 v[{B+4*aa+2}:{B+4*aa+3}], v3 offset:{512*(7-aa)+8}")
        r.append("v_add_u32 v2, 64, v2")
        r.append("v_add_u32 v3, 64, v3")
        return r

    def mfmas(A, B):
        r = []
        for t in range(8):
            for aa in range(t + 1):
                u = t - aa
                ac = 32 + 4 * t
                r.append(f"v_mfma_f32_16x16x32_bf16 v[{ac}:{ac+3}], v[{A+4*aa}:{A+4*aa+3}], v[{B+4*u}:{B+4*u+3}], v[{ac}:{ac+3}]")
        return r

    def interleave(m, r):
        for i, x in enumerate(m):
            a(x)
            if i < len(r):
                a(r[i])

    for x in reads(64, 96):
        a(x)
    a("s_mov_b32 s40, 0")
    loop, last = a.newlabel("A2L"), a.newlabel("A2E")
    a.label(loop)
    a("s_waitcnt lgkmcnt(0)")
    interleave(mfmas(64, 96), reads(128, 160))
    a("s_waitcnt lgkmcnt(0)")
    a("s_cmp_eq_u32 s40, 3")
    a(f"s_cbranch_scc1 {last}")
    interleave(mfmas(128, 160), reads(64, 96))
    a("s_add_u32 s40, s40, 1")
    a(f"s_branch {loop}")
    a.label(last)
    for x in mfmas(128, 160):
        a(x)
    T.stamp(a, 7)
    a("v_lshlrev_b32 v12, 5, v11")
    a("v_add_u32 v12, v12, v10")
    a("v_lshlrev_b32 v12, 2, v12")
    a("v_add_u32 v12, s60, v12")
    srd(a, 36, P_WS, TSZ, WS_YT)
    a("v_lshlrev_b32 v15, 4, v1")
    a("v_add_u32 v13, s60, v15")
    for t in range(8):
        ac = 32 + 4 * t
        d = 64 + 2 * t
        a(f"v_cvt_pk_bf16_f32 v{d}, v{ac}, v{ac+1}")
        a(f"v_cvt_pk_bf16_f32 v{d+1}, v{ac+2}, v{ac+3}")
        a(f"ds_write_b32 v12, v{d} offset:{512*t}")
        a(f"ds_write_b32 v12, v{d+1} offset:{512*t+64}")
    a("s_waitcnt lgkmcnt(0)")
    for i in range(4):
        a(f"ds_read_b128 v[{80+4*i}:{83+4*i}], v13 offset:{1024*i}")
    a("s_waitcnt lgkmcnt(0)")
    for i in range(4):
        a(f"s_add_u32 s6, s59, {1024*i}")
        a(f"buffer_store_dwordx4 v[{80+4*i}:{83+4*i}], v15, s[36:39], s6 offen {sc}")
    a("v_lshrrev_b32 v16, 5, v0")
    a("v_and_b32 v17, 31, v0")
    a("v_lshlrev_b32 v17, 4, v17")
    a("s_lshl_b32 s6, s73, 6")
    a("v_add_u32 v18, s6, v16")
    a("v_lshlrev_b32 v18, 12, v18")
    a("s_lshl_b32 s6, s72, 9")
    a("v_add3_u32 v18, v18, v17, s6")
    a(f"v_mul_u32_u24 v16, {Y_RS}, v16")
    a("v_add_u32 v16, v16, v17")
    a("s_waitcnt vmcnt(0)")
    a("s_barrier")
    lp = a.newlabel("AP")
    a("s_cmp_lg_u32 s3, 0")
    a(f"s_cbranch_scc1 {lp}")
    a("s_lshl_b32 s6, s73, 3")
    a("s_add_u32 s6, s6, s72")
    a("s_lshl_b32 s6, s6, 7")
    a(f"s_add_u32 s6, s6, {FL_A2}")
    a("v_mov_b32 v12, s6")
    a("v_mov_b32 v13, s44")
    a("s_mov_b64 exec, 1")
    a("buffer_store_dword v13, v12, s[48:51], 0 offen sc1")
    a("s_mov_b64 exec, -1")
    T.stamp(a, 8)
    a("s_lshl_b32 s6, s73, 10")
    a(f"s_add_u32 s6, s6, {FL_A2}")
    a("v_lshlrev_b32 v12, 7, v1")
    a("v_add_u32 v12, s6, v12")
    poll(a, 12, 8, 44, 48)
    le = a.newlabel("EU")
    a("s_cmp_lg_u32 s72, 0")
    a(f"s_cbranch_scc1 {le}")
    a("v_mov_b32 v11, s44")
    a("s_mov_b64 exec, 1")
    a("buffer_store_dword v11, v251, s[48:51], 0 offen sc1")
    a("s_mov_b64 exec, -1")
    a.label(le)
    a.label(lp)
    a("s_barrier")
    T.stamp(a, 9)
    a("s_mov_b32 s6, 0")
    for m in range(4):
        a(f"buffer_load_dwordx4 v[{64+4*m}:{67+4*m}], v18, s[36:39], s6 offen {sc}")
        if m < 3:
            a("s_add_u32 s6, s6, 65536")
    a("v_lshrrev_b32 v12, 4, v1")
    a("v_lshlrev_b32 v12, 3, v12")
    a("v_lshrrev_b32 v13, 2, v1")
    a("v_and_b32 v13, 3, v13")
    a("v_add_u32 v12, v12, v13")
    a(f"v_mul_u32_u24 v12, {Y_RS}, v12")
    a("v_and_b32 v13, 3, v1")
    a("v_lshlrev_b32 v13, 3, v13")
    a("s_lshl_b32 s6, s3, 6")
    a("v_add3_u32 v12, v12, v13, s6")
    srd(a, 32, P_OUT, 2048 * 2560)
    a("v_mul_u32_u24 v15, 2560, v9")
    a("v_add_u32 v15, v15, v8")
    for m in range(4):
        a(f"s_waitcnt vmcnt({3-m})")
        a(f"ds_write_b128 v16, v[{64+4*m}:{67+4*m}] offset:{16*Y_RS*m}")
    a("s_waitcnt lgkmcnt(0)")
    a("s_barrier")
    for m in range(4):
        off = (m & 1) * 32 * Y_RS + (m >> 1) * 32
        a(f"ds_read_b64_tr_b16 v[{64+4*m}:{65+4*m}], v12 offset:{off}")
        a(f"ds_read_b64_tr_b16 v[{66+4*m}:{67+4*m}], v12 offset:{off + 4*Y_RS}")
    a("s_waitcnt lgkmcnt(0)")
    no = OPT["nt_out"]
    a("s_mov_b32 s7, 40960")
    for m in range(4):
        for i in range(4):
            y = 64 + 4 * m + i
            q = 192 + 4 * m + i
            t = 80 + 4 * (i & 1)
            a(f"v_lshlrev_b32 v{t}, 16, v{y}")
            a(f"v_and_b32 v{t+1}, s57, v{y}")
            a(f"v_lshlrev_b32 v{t+2}, 16, v{q}")
            a(f"v_and_b32 v{t+3}, s57, v{q}")
            a(f"v_pk_mul_f32 v[{t}:{t+1}], v[{t}:{t+1}], v[{t+2}:{t+3}]")
            a(f"v_cvt_pk_bf16_f32 v{y}, v{t}, v{t+1}")
        so = "s7" if m >= 2 else "0"
        of = " offset:64" if (m & 1) else ""
        a(f"buffer_store_dwordx4 v[{64+4*m}:{67+4*m}], v15, s[32:35], {so} offen{of} {no}")
    T.stamp(a, 10)


def kdesc(name, vgpr=256, sgpr=102):
    return f""".amdhsa_kernel {name}
  .amdhsa_next_free_vgpr {vgpr}
  .amdhsa_next_free_sgpr {sgpr}
  .amdhsa_accum_offset {vgpr}
  .amdhsa_group_segment_fixed_size 0
  .amdhsa_kernarg_size 96
  .amdhsa_user_sgpr_count 2
  .amdhsa_user_sgpr_kernarg_segment_ptr 1
  .amdhsa_system_sgpr_workgroup_id_x 1
  .amdhsa_float_denorm_mode_32 3
  .amdhsa_float_denorm_mode_16_64 3
.end_amdhsa_kernel
"""


def gen(ts=False):
    out = "; concat_heads( H3-style ssm conv , sliding local dilated attention ) -- hand-written streams emitted by a python generator\n"
    out += "; @launch grid=(256,1,1) block=(512,1,1) lds=163840\n"
    out += '.amdgcn_target "amdgcn-amd-amdhsa--gfx950"\n.text\n'
    a = Asm()
    T = TS(ts)
    T.init(a)
    T.stamp(a, 0)
    if OPT.get("dbgt"):
        a("s_memrealtime s[96:97]")
        a("s_waitcnt lgkmcnt(0)")
        a("s_mov_b32 s79, s96")
    a("s_cmp_ge_u32 s2, 256")
    a("s_cbranch_scc1 K_END")
    a("s_load_dwordx16 s[8:23], s[0:1], 0")
    a("s_load_dwordx8 s[24:31], s[0:1], 64")
    a("v_lshrrev_b32 v2, 6, v0")
    a("v_and_b32 v1, 63, v0")
    a("s_and_b32 s4, s2, 7")
    a("v_readfirstlane_b32 s3, v2")
    a("s_lshr_b32 s5, s2, 3")
    a("s_waitcnt lgkmcnt(0)")
    role_decode(a)
    if OPT.get("only") == "A":
        a("s_branch K_END")
    b_program(a, T)
    a("s_branch K_FIN")
    a.label("A_ROLE")
    if OPT.get("only") == "B":
        a("s_branch K_END")
    a_program(a, T)
    a.label("K_FIN")
    if OPT.get("dbgt"):
        a("s_waitcnt vmcnt(0)")
        a("s_memrealtime s[96:97]")
        a("s_waitcnt lgkmcnt(0)")
        lab = a.newlabel("DBG")
        a("s_cmp_lg_u32 s3, 0")
        a(f"s_cbranch_scc1 {lab}")
        a("s_and_b32 s6, s2, 0x3f")
        a("s_cmp_lg_u32 s6, 0")
        a(f"s_cbranch_scc1 {lab}")
        srd(a, 92, P_DBG, 256)
        a("s_lshr_b32 s6, s2, 6")
        a("s_lshl_b32 s6, s6, 3")
        a("v_mov_b32 v2, s6")
        a("v_mov_b32 v4, s79")
        a("v_mov_b32 v5, s96")
        a("s_mov_b64 exec, 1")
        a("buffer_store_dwordx2 v[4:5], v2, s[92:95], 0 offen")
        a("s_waitcnt vmcnt(0)")
        a("s_mov_b64 exec, -1")
        a.label(lab)
    if ts:
        a("s_waitcnt vmcnt(0)")
        T.stamp(a, 15)
        T.flush(a)
    a.label("K_END")
    a("s_endpgm")
    out += f".globl {KNAME}\n.p2align 8\n.type {KNAME},@function\n{KNAME}:\n" + a.text()
    out += '.section .rodata,"a"\n.p2align 6\n' + kdesc(KNAME)
    return out


if __name__ == "__main__":
    mode = sys.argv[1] if len(sys.argv) > 1 else "plain"
    dst = sys.argv[2] if len(sys.argv) > 2 else "k4.s"
    for kv in sys.argv[3:]:
        k, v = kv.split("=")
        OPT[k] = v if k != "spin" else int(v)
    if mode == "tc":
        TS.INSTR = "s_memtime"
    open(dst, "w").write(gen(mode in ("ts", "tc")))
    print("wrote", dst)
```

```python
import sys

KNAME = "concat_heads__ssm_conv_h3__sliding_local_dilated__prompt_kernel"
TSZ = 640 * 4096
WS_OW = 0x0
WS_XT = 0x280000
WS_YT = 0x500000
WS_FL = 0x780000
FL_B = 0x0
FL_A1 = 0x6000
FL_A2 = 0x9000
FL_EB = 0xC000
FL_EA = 0xD000
WS_TS = 0x800000
OOB = 0x80000000

OPT = dict(psleep=1, sc_oload="sc1", sc_ostore="sc1", nt_pf="", nt_a="", nt_h="", nt_x="", nt_w="", nt_out="", sc="sc1", spin=1 << 20)


class Asm:
    def __init__(self):
        self.l = []
        self.uid = 0

    def __call__(self, s=""):
        for line in s.split("\n"):
            line = line.strip()
            if line:
                self.l.append("    " + line)

    def label(self, name):
        self.l.append(name + ":")

    def newlabel(self, p="L"):
        self.uid += 1
        return f"{p}_{self.uid}"

    def text(self):
        return "\n".join(self.l) + "\n"


P_Q, P_K, P_V, P_SK, P_H, P_SD, P_X, P_W, P_WO, P_OUT, P_DBG, P_WS = [8 + 2 * i for i in range(12)]


def srd(a, dst, ptr, nbytes, off=0):
    if off:
        a(f"s_add_u32 s{dst}, s{ptr}, 0x{off:x}")
        a(f"s_addc_u32 s{dst+1}, s{ptr+1}, 0")
    else:
        a(f"s_mov_b32 s{dst}, s{ptr}")
        a(f"s_mov_b32 s{dst+1}, s{ptr+1}")
    a(f"s_mov_b32 s{dst+2}, 0x{nbytes:x}")
    a(f"s_mov_b32 s{dst+3}, 0x00020000")


class TS:
    INSTR = "s_memrealtime"

    def __init__(self, on):
        self.on = on
        self.n = 0

    def stamp(self, a, idx):
        if not self.on:
            return
        if OPT.get("stagets") and 3 <= idx < 14:
            return
        a(f"{TS.INSTR} s[96:97]")
        a("s_waitcnt lgkmcnt(0)")
        a(f"s_mov_b32 s{80+idx}, s96")

    def init(self, a):
        if not self.on:
            return
        for i in range(16):
            a(f"s_mov_b32 s{80+i}, 0")

    def flush(self, a):
        if not self.on:
            return
        srd(a, 96, P_WS, 0x40000, WS_TS)
        a("s_mov_b64 exec, 1")
        a("s_lshl_b32 s7, s2, 3")
        a("s_add_u32 s7, s7, s3")
        a("s_lshl_b32 s7, s7, 6")
        a("v_mov_b32 v3, s7")
        for i in range(16):
            a(f"v_mov_b32 v2, s{80+i}")
            a(f"buffer_store_dword v2, v3, s[96:99], 0 offen offset:{4*i}")
        a("s_waitcnt vmcnt(0)")
        a("s_mov_b64 exec, -1")


NRT = 13
B1_XSZ = NRT * 16 * 128
B1_STAGE = B1_XSZ + 16384
B1_NB = 3
QKV_RS = 400
O_LDS = 83200
B2_WA = 102400
B2_WB = 0
B2_O = 40960
B2_OST = 30720
ACC = 16
XA, XB, WA, WB = 120, 172, 224, 232


def role_decode(a):
    a("s_cmp_lt_u32 s4, 2")
    a("s_cselect_b32 s70, 16, 24")
    a("s_cmp_ge_u32 s5, s70")
    a("s_cbranch_scc1 A_ROLE")


def b_decode(a):
    a("s_cmp_eq_u32 s4, 1")
    a("s_cselect_b32 s71, 1, 0")
    a("s_cmp_ge_u32 s4, 5")
    a("s_cselect_b32 s71, 1, s71")
    a("s_cselect_b32 s7, 3, 0")
    a("s_sub_u32 s6, s4, 2")
    a("s_sub_u32 s6, s6, s7")
    a("s_mul_i32 s6, s6, 3")
    a("s_add_u32 s6, s6, 2")
    a("s_cmp_lt_u32 s4, 2")
    a("s_cselect_b32 s6, 0, s6")
    a("s_lshr_b32 s7, s5, 3")
    a("s_add_u32 s60, s6, s7")
    a("s_and_b32 s68, s5, 7")
    a("s_lshl_b32 s61, s71, 3")
    a("s_add_u32 s61, s61, s68")
    a("s_lshl_b32 s67, s60, 1")
    a("s_add_u32 s67, s67, s71")


def pf_x_addr(a, dst):
    a("v_and_b32 v10, 31, v1")
    a("s_mul_i32 s6, s68, 26")
    a("s_mul_i32 s7, s60, 192")
    a("s_add_u32 s6, s6, s7")
    a("s_sub_u32 s6, s6, 16")
    a("v_add_u32 v11, s6, v10")
    a("s_movk_i32 s7, 1280")
    a("v_mul_lo_u32 v11, v11, s7")
    a("v_lshrrev_b32 v12, 5, v1")
    a("v_lshlrev_b32 v12, 7, v12")
    a("v_add_u32 v11, v11, v12")
    a("v_cmp_gt_u32 vcc, 26, v10")
    a(f"v_mov_b32 v12, 0x{OOB:x}")
    a("s_nop 0")
    a(f"v_cndmask_b32 v{dst}, v12, v11, vcc")


def pf_w_addr(a, dst):
    a("s_cmp_eq_u32 s70, 16")
    a("s_cselect_b32 s6, 60, 40")
    a("s_mul_i32 s7, s5, s6")
    a("v_add_u32 v10, s7, v1")
    a("v_mul_u32_u24 v11, 4370, v10")
    a("v_lshrrev_b32 v11, 16, v11")
    a("v_mul_u32_u24 v12, 15, v11")
    a("v_sub_u32 v12, v10, v12")
    a("v_mul_u32_u24 v13, 52, v12")
    a("v_lshrrev_b32 v13, 8, v13")
    a("v_mul_u32_u24 v14, 5, v13")
    a("v_sub_u32 v14, v12, v14")
    a("v_mul_u32_u24 v11, 3840, v11")
    a("v_mul_u32_u24 v13, 1280, v13")
    a("v_lshlrev_b32 v14, 7, v14")
    a("v_add3_u32 v11, v11, v13, v14")
    a("s_mul_i32 s7, s71, 640")
    a("v_add_u32 v11, s7, v11")
    a("v_cmp_gt_u32 vcc, s6, v1")
    a(f"v_mov_b32 v12, 0x{OOB:x}")
    a("s_nop 0")
    a(f"v_cndmask_b32 v{dst}, v12, v11, vcc")


def b_initial_prefetch(a):
    npf = OPT["nt_pf"]
    srd(a, 32, P_X, TSZ)
    srd(a, 36, P_W, 640 * 3840)
    l1 = a.newlabel("IP")
    a("s_cmp_eq_u32 s3, 3")
    a(f"s_cbranch_scc1 {l1}")
    pf_w_addr(a, 2)
    a("s_mul_i32 s6, s3, 245760")
    a(f"buffer_load_dword v254, v2, s[36:39], s6 offen {npf}")
    a("s_cmp_eq_u32 s3, 2")
    a(f"s_cbranch_scc1 {l1}")
    pf_x_addr(a, 3)
    a("s_lshl_b32 s6, s3, 8")
    a(f"buffer_load_dword v255, v3, s[32:35], s6 offen {npf}")
    a.label(l1)


def b1_loader_setup(a):
    srd(a, 32, P_X, TSZ)
    srd(a, 36, P_W, 640 * 3840)
    a("s_sub_u32 s62, s3, 4")
    a("v_lshrrev_b32 v10, 3, v1")
    a("s_lshl_b32 s6, s62, 3")
    a("v_add_u32 v10, s6, v10")
    a("v_lshrrev_b32 v11, 1, v10")
    a("v_and_b32 v11, 7, v11")
    a("v_and_b32 v12, 7, v1")
    a("v_xor_b32 v11, v11, v12")
    a("v_lshlrev_b32 v11, 4, v11")
    a("s_mul_i32 s6, s60, 192")
    a("s_sub_u32 s6, s6, 16")
    a("v_add_u32 v10, s6, v10")
    a("s_movk_i32 s7, 1280")
    a("v_mul_lo_u32 v10, v10, s7")
    a("v_add_u32 v2, v10, v11")
    a("v_add_u32 v3, 40960, v2")
    a("v_lshrrev_b32 v10, 4, v1")
    a("v_and_b32 v12, 15, v1")
    a("s_mul_i32 s63, s61, 80")
    for which, dst in ((0, 5), (1, 6)):
        a("v_lshlrev_b32 v11, 1, v10")
        if which:
            a("v_add_u32 v11, 8, v11")
        a("v_xor_b32 v11, v11, v12")
        a("v_mul_u32_u24 v13, 52, v11")
        a("v_lshrrev_b32 v13, 8, v13")
        a("v_mul_u32_u24 v14, 5, v13")
        a("v_sub_u32 v14, v11, v14")
        a("v_mul_u32_u24 v13, 1280, v13")
        a("v_lshlrev_b32 v14, 4, v14")
        a("v_add3_u32 v13, v13, v14, s63")
        if OPT.get("walign"):
            a("v_lshlrev_b32 v13, 4, v11")
            a("s_lshl_b32 s6, s61, 7")
            a("v_add_u32 v13, s6, v13")
        a("s_lshl_b32 s6, s62, 4")
        if which:
            a("s_add_u32 s6, s6, 8")
        a("v_add_u32 v14, s6, v10")
        a("v_mul_u32_u24 v14, 3840, v14")
        a(f"v_add_u32 v{dst}, v14, v13")
        a("v_cmp_eq_u32 vcc, 15, v11")
        a(f"v_mov_b32 v13, 0x{OOB:x}")
        a("s_nop 0")
        a(f"v_cndmask_b32 v{dst}, v{dst}, v13, vcc")
    a("s_mov_b32 s41, 0")
    a("s_mov_b32 s42, 0")
    a("s_mov_b32 s43, 0")


def b1_issue_stage(a):
    nx, nw = OPT["nt_x"], OPT["nt_w"]
    a("s_lshl_b32 s6, s62, 10")
    a("s_add_u32 s6, s6, s43")
    a("s_mov_b32 m0, s6")
    a("s_mov_b32 s7, s41")
    a(f"buffer_load_dwordx4 v2, s[32:35], s41 offen {nx} lds")
    for m in range(1, 6):
        a(f"s_add_u32 m0, s6, {4096*m}")
        if m > 1:
            a("s_add_u32 s7, s7, 40960")
        else:
            a("s_nop 0")
        a(f"buffer_load_dwordx4 v3, s[32:35], s7 offen {nx} lds")
    l1 = a.newlabel("IS")
    a("s_cmp_lt_u32 s62, 2")
    a(f"s_cbranch_scc0 {l1}")
    a(f"s_add_u32 m0, s6, {4096*6}")
    a("s_add_u32 s7, s7, 40960")
    a(f"buffer_load_dwordx4 v3, s[32:35], s7 offen {nx} lds")
    a.label(l1)
    a("s_lshl_b32 s7, s62, 12")
    a("s_add_u32 s7, s7, s43")
    a(f"s_add_u32 s7, s7, {B1_XSZ}")
    a("s_mov_b32 m0, s7")
    a("s_add_u32 s46, s42, 15360")
    a(f"buffer_load_dwordx4 v5, s[36:39], s42 offen {nw} lds")
    a("s_add_u32 m0, s7, 1024")
    a("s_nop 0")
    a(f"buffer_load_dwordx4 v5, s[36:39], s46 offen {nw} lds")
    a("s_add_u32 m0, s7, 2048")
    a("s_nop 0")
    a(f"buffer_load_dwordx4 v6, s[36:39], s42 offen {nw} lds")
    a("s_add_u32 m0, s7, 3072")
    a("s_nop 0")
    a(f"buffer_load_dwordx4 v6, s[36:39], s46 offen {nw} lds")
    a("s_add_u32 s41, s41, 128")
    a("s_add_u32 s42, s42, 245760")
    a(f"s_add_u32 s43, s43, {B1_STAGE}")
    a(f"s_cmp_ge_u32 s43, {B1_STAGE*B1_NB}")
    a("s_cselect_b32 s43, 0, s43")


def lwait(a, nb, extra):
    l1, l2 = a.newlabel("LW"), a.newlabel("LW")
    a("s_cmp_lt_u32 s62, 2")
    a(f"s_cbranch_scc0 {l1}")
    a(f"s_waitcnt vmcnt({11*nb+extra})")
    a(f"s_branch {l2}")
    a.label(l1)
    a(f"s_waitcnt vmcnt({10*nb+extra})")
    a.label(l2)


def wo_dma_addr(a):
    for j in range(5):
        a(f"v_add_u32 v10, {64*j}, v1")
        a("v_mul_u32_u24 v11, 6554, v10")
        a("v_lshrrev_b32 v11, 16, v11")
        a("v_mul_u32_u24 v12, 10, v11")
        a("v_sub_u32 v12, v10, v12")
        a("v_lshrrev_b32 v13, 4, v11")
        a("v_lshlrev_b32 v13, 2, v13")
        a("v_and_b32 v14, 3, v11")
        a("v_add_u32 v13, v13, v14")
        a("v_lshrrev_b32 v14, 2, v11")
        a("v_and_b32 v14, 3, v14")
        a("v_lshlrev_b32 v14, 3, v14")
        a("v_add_u32 v13, v13, v14")
        a("v_mul_u32_u24 v13, 1280, v13")
        a("v_lshlrev_b32 v12, 4, v12")
        a("s_mul_i32 s6, s68, 160")
        a(f"v_add3_u32 v{230+j}, v13, v12, s6")


def wo_dma_blocks(a, first, n, lds_of_first):
    a(f"s_add_u32 s47, s62, {first}")
    loop, done = a.newlabel("WO"), a.newlabel("WO")
    a.label(loop)
    a(f"s_cmp_ge_u32 s47, {first+n}")
    a(f"s_cbranch_scc1 {done}")
    a("s_mul_i32 s7, s47, 40960")
    a("s_mul_i32 s6, s47, 5120")
    a(f"s_add_u32 s6, s6, 0x{(lds_of_first - first*5120) & 0xffffffff:x}")
    for j in range(5):
        a(f"s_add_u32 m0, s6, {1024*j}")
        a("s_nop 0")
        a(f"buffer_load_dwordx4 v{230+j}, s[56:59], s7 offen lds")
    a("s_add_u32 s47, s47, 4")
    a(f"s_branch {loop}")
    a.label(done)


def NPFL():
    return 0 if int(OPT.get('apf', 1)) else 3


def b_later_prefetch(a):
    npf = OPT["nt_pf"]
    a(f"v_mov_b32 v4, 0x{OOB:x}")
    a("s_add_u32 s6, s62, 3")
    a("s_mul_i32 s6, s6, 245760")
    a(f"buffer_load_dword v235, v8, s[36:39], s6 offen {npf}")
    a("s_cmp_lt_u32 s62, 3")
    a("s_cselect_b64 vcc, -1, 0")
    a("v_cndmask_b32 v10, v4, v9, vcc")
    a("s_add_u32 s6, s62, 2")
    a("s_lshl_b32 s6, s6, 8")
    a(f"buffer_load_dword v236, v10, s[32:35], s6 offen {npf}")
    a("v_cndmask_b32 v10, v4, v8, vcc")
    a("s_add_u32 s6, s62, 7")
    a("s_mul_i32 s6, s6, 245760")
    a(f"buffer_load_dword v237, v10, s[36:39], s6 offen {npf}")


def b1_loader(a, T):
    b1_loader_setup(a)
    pf_w_addr(a, 8)
    pf_x_addr(a, 9)
    srd(a, 56, P_WO, 640 * 1280)
    wo_dma_addr(a)
    att_setup(a)
    o_store_setup(a)
    srd(a, 48, P_WS, TSZ, WS_OW)
    a("s_barrier")
    a("s_mov_b32 s40, 0")
    l0 = a.newlabel("LP")
    a.label(l0)
    b1_issue_stage(a)
    a("s_add_u32 s40, s40, 1")
    lP = a.newlabel("LP")
    a("s_cmp_eq_u32 s40, 2")
    a(f"s_cbranch_scc0 {lP}")
    T.stamp(a, 1)
    lwait(a, 1, 0)
    a("s_barrier")
    a.label(lP)
    a("s_cmp_lt_u32 s40, 3")
    a(f"s_cbranch_scc1 {l0}")
    if NPFL():
        b_later_prefetch(a)
    a("s_mov_b32 s40, 0")
    loop = a.newlabel("LL")
    lA, lB, lC, lD, lW = [a.newlabel("LLx") for _ in range(5)]
    a.label(loop)
    a("s_cmp_lt_u32 s40, 2")
    a(f"s_cbranch_scc1 {lA}")
    a("s_cmp_lt_u32 s40, 8")
    a(f"s_cbranch_scc1 {lB}")
    a("s_cmp_eq_u32 s40, 8")
    a(f"s_cbranch_scc1 {lC}")
    a(f"s_branch {lW}")
    a.label(lA)
    lwait(a, 1, NPFL())
    a(f"s_branch {lW}")
    a.label(lB)
    lwait(a, 1, 0)
    a(f"s_branch {lW}")
    a.label(lC)
    a("s_waitcnt vmcnt(5)")
    a.label(lW)
    a("s_barrier")
    skip, s7, s8, nxt = a.newlabel("LLS"), a.newlabel("LL7"), a.newlabel("LL8"), a.newlabel("LLN")
    a("s_cmp_ge_u32 s40, 7")
    a(f"s_cbranch_scc1 {skip}")
    b1_issue_stage(a)
    a(f"s_branch {nxt}")
    a.label(skip)
    a("s_cmp_eq_u32 s40, 7")
    a(f"s_cbranch_scc0 {s8}")
    wo_dma_blocks(a, 6, 6, B2_WA + 6 * 5120)
    a(f"s_branch {nxt}")
    a.label(s8)
    a("s_cmp_eq_u32 s40, 8")
    a(f"s_cbranch_scc0 {nxt}")
    wo_dma_blocks(a, 0, 6, B2_WA)
    a.label(nxt)
    a("s_add_u32 s40, s40, 1")
    a("s_cmp_lt_u32 s40, 10")
    a(f"s_cbranch_scc1 {loop}")


def b1_compute(a, T):
    a("v_and_b32 v10, 15, v1")
    a("v_lshrrev_b32 v11, 4, v1")
    a("v_lshrrev_b32 v12, 1, v10")
    a("v_xor_b32 v12, v12, v11")
    a("v_lshlrev_b32 v12, 4, v12")
    a("v_lshlrev_b32 v10, 7, v10")
    a("v_add_u32 v2, v10, v12")
    a("v_xor_b32 v3, 64, v2")
    a("v_lshrrev_b32 v10, 2, v1")
    a("v_and_b32 v10, 3, v10")
    a("v_and_b32 v12, 3, v1")
    a("v_lshlrev_b32 v13, 3, v11")
    a("v_add_u32 v13, v13, v10")
    a("v_lshlrev_b32 v13, 8, v13")
    a("v_and_b32 v14, 1, v11")
    a("v_lshlrev_b32 v14, 3, v14")
    a("v_lshlrev_b32 v10, 1, v10")
    a("v_add_u32 v14, v14, v10")
    a("v_lshrrev_b32 v15, 1, v12")
    a("s_lshl_b32 s6, s3, 2")
    a("v_add_u32 v15, s6, v15")
    a("v_xor_b32 v15, v15, v14")
    a("v_lshlrev_b32 v15, 4, v15")
    a("v_and_b32 v12, 1, v12")
    a("v_lshlrev_b32 v12, 3, v12")
    a("v_add3_u32 v13, v13, v15, v12")
    a(f"v_add_u32 v4, {B1_XSZ}, v13")
    a("v_xor_b32 v5, 32, v4")
    for i in range(NRT * 8):
        a(f"v_mov_b32 v{ACC+i}, 0")
    att_setup(a)
    a("v_and_b32 v10, 15, v1")
    a(f"v_mul_u32_u24 v10, {QKV_RS}, v10")
    a("v_lshrrev_b32 v11, 4, v1")
    a("s_lshl_b32 s6, s3, 3")
    a("v_add_u32 v11, s6, v11")
    for ct in range(2):
        if ct:
            a("v_add_u32 v11, 4, v11")
        a("v_mul_u32_u24 v6, 52, v11")
        a("v_lshrrev_b32 v6, 8, v6")
        a("v_mul_u32_u24 v7, 5, v6")
        a("v_sub_u32 v7, v11, v7")
        a("v_lshlrev_b32 v6, 6, v6")
        a("v_lshlrev_b32 v7, 3, v7")
        a(f"v_add3_u32 v{12+ct}, v10, v6, v7")
        a(f"v_add_u32 v{14+ct}, {8*16*QKV_RS}, v{12+ct}")

    def reads(xaddr, waddr0, waddr1, ks, X, W):
        r = []
        r.append(f"ds_read_b64_tr_b16 v[{W}:{W+1}], v{waddr0} offset:{8192*ks}")
        r.append(f"ds_read_b64_tr_b16 v[{W+2}:{W+3}], v{waddr0} offset:{8192*ks+1024}")
        r.append(f"ds_read_b64_tr_b16 v[{W+4}:{W+5}], v{waddr1} offset:{8192*ks}")
        r.append(f"ds_read_b64_tr_b16 v[{W+6}:{W+7}], v{waddr1} offset:{8192*ks+1024}")
        for t in range(NRT):
            r.append(f"ds_read_b128 v[{X+4*t}:{X+4*t+3}], v{xaddr} offset:{2048*t}")
        return r

    def mfmas(X, W):
        r = []
        for t in range(NRT):
            for ct in range(2):
                ac = ACC + (ct * NRT + t) * 4
                r.append(f"v_mfma_f32_16x16x32_bf16 v[{ac}:{ac+3}], v[{W+4*ct}:{W+4*ct+3}], v[{X+4*t}:{X+4*t+3}], v[{ac}:{ac+3}]")
        return r

    def inter(m, r):
        if OPT.get("nomfma"):
            return
        for i, x in enumerate(m):
            a(x)
            if i < len(r):
                a(r[i])

    a("s_waitcnt vmcnt(0)")
    a("s_barrier")
    T.stamp(a, 1)
    a("s_barrier")
    T.stamp(a, 2)
    a("v_mov_b32 v6, v2")
    a("v_mov_b32 v7, v3")
    a("v_mov_b32 v8, v4")
    a("v_mov_b32 v9, v5")
    for x in reads(6, 8, 9, 0, XA, WA):
        a(x)
    a("s_mov_b32 s40, 0")
    a("s_mov_b32 s44, 0")
    loop, last = a.newlabel("CL"), a.newlabel("CE")
    a.label(loop)
    a("s_waitcnt lgkmcnt(0)")
    inter(mfmas(XA, WA), reads(7, 8, 9, 1, XB, WB))
    a(f"s_add_u32 s44, s44, {B1_STAGE}")
    a(f"s_cmp_ge_u32 s44, {B1_STAGE*B1_NB}")
    a("s_cselect_b32 s44, 0, s44")
    a("v_add_u32 v6, s44, v2")
    a("v_add_u32 v7, s44, v3")
    a("v_add_u32 v8, s44, v4")
    a("v_add_u32 v9, s44, v5")
    a("s_waitcnt lgkmcnt(0)")
    a("s_barrier")
    if OPT.get("stagets") and T.on:
        a(f"{TS.INSTR} s[96:97]")
        a("s_waitcnt lgkmcnt(0)")
        for i in range(10):
            a(f"s_cmp_eq_u32 s40, {i}")
            a(f"s_cselect_b32 s{83+i}, s96, s{83+i}")
    a("s_cmp_eq_u32 s40, 9")
    a(f"s_cbranch_scc1 {last}")
    inter(mfmas(XB, WB), reads(6, 8, 9, 0, XA, WA))
    a("s_add_u32 s40, s40, 1")
    a(f"s_branch {loop}")
    a.label(last)
    m = mfmas(XB, WB)

    def wr(t, ct, k):
        ac = ACC + (ct * NRT + t) * 4
        d = XA + 2 * (k % 16)
        r = [f"v_cvt_pk_bf16_f32 v{d}, v{ac}, v{ac+1}", f"v_cvt_pk_bf16_f32 v{d+1}, v{ac+2}, v{ac+3}"]
        if t < 8:
            r.append(f"ds_write_b64 v{12+ct}, v[{d}:{d+1}] offset:{16*QKV_RS*t}")
        else:
            r.append(f"ds_write_b64 v{14+ct}, v[{d}:{d+1}] offset:{16*QKV_RS*(t-8)}")
        return r
    k = 0
    pend = []
    LAG = 8
    for i, x in enumerate(m):
        a(x)
        pend.append((i // 2, i % 2))
        if i >= LAG:
            t, ct = pend.pop(0)
            for y in wr(t, ct, k):
                a(y)
            k += 1
    a("s_nop 7")
    for (t, ct) in pend:
        for y in wr(t, ct, k):
            a(y)
        k += 1


def b1_epi_loader(a):
    a("v_and_b32 v10, 255, v0")
    a("v_mov_b32 v16, 0")
    a("v_mov_b32 v17, 0")
    a("v_mov_b32 v18, 0")
    a("v_mov_b32 v19, 0")
    a("v_lshrrev_b32 v11, 2, v10")
    a("v_and_b32 v12, 3, v10")
    a(f"v_mul_u32_u24 v11, {QKV_RS}, v11")
    a("v_lshlrev_b32 v12, 6, v12")
    a("v_add_u32 v11, v11, v12")
    for it in range(4):
        off = it * 64 * QKV_RS
        if it == 3:
            a("v_cmp_gt_u32 vcc, 64, v10")
            a("s_and_saveexec_b64 s[6:7], vcc")
        if it == 2:
            a(f"v_add_u32 v11, {2*64*QKV_RS}, v11")
        o2 = off if it < 2 else off - 2 * 64 * QKV_RS
        a(f"ds_write_b64 v11, v[16:17] offset:{o2+40}")
        a(f"ds_write_b128 v11, v[16:19] offset:{o2+48}")
        if it == 3:
            a("s_mov_b64 exec, s[6:7]")


KP0, KC0, KP1, KC1, NEG, KQB, VB, OB = 240, 241, 242, 243, 248, 249, 252, 253
S_PAR, S_M0, S_M1 = 64, 72, 74
S_D1, S_D2, S_O1, S_O2 = 76, 77, 66, 78


def att_setup(a):
    R16 = 16 * QKV_RS
    a("v_and_b32 v10, 15, v1")
    a("v_lshrrev_b32 v11, 4, v1")
    a(f"v_mov_b32 v{NEG}, 0xf149f2ca")
    a("v_and_b32 v12, 1, v10")
    a(f"v_cmp_eq_u32 s[{S_PAR}:{S_PAR+1}], 1, v12")
    a("v_lshlrev_b32 v13, 2, v11")
    a("v_add_u32 v13, v13, v12")
    a(f"v_cmp_le_u32 s[{S_M0}:{S_M0+1}], v13, v10")
    a("v_add_u32 v13, 2, v13")
    a(f"v_cmp_le_u32 s[{S_M1}:{S_M1+1}], v13, v10")
    a("v_mov_b32 v14, 0xffff")
    a("v_mov_b32 v15, 0xffff0000")
    a(f"v_cndmask_b32 v14, v14, v15, s[{S_PAR}:{S_PAR+1}]")
    a("v_mov_b32 v15, 0")
    a(f"v_cndmask_b32 v{KC0}, v15, v14, s[{S_M0}:{S_M0+1}]")
    a(f"v_cndmask_b32 v{KP0}, v14, v15, s[{S_M0}:{S_M0+1}]")
    a(f"v_cndmask_b32 v{KC1}, v15, v14, s[{S_M1}:{S_M1+1}]")
    a(f"v_cndmask_b32 v{KP1}, v14, v15, s[{S_M1}:{S_M1+1}]")
    a("s_mul_i32 s46, s3, 3")
    a("s_lshr_b32 s6, s46, 1")
    a("s_and_b32 s7, s46, 1")
    a(f"s_mul_i32 s45, s6, {R16}")
    a("s_lshl_b32 s47, s7, 6")
    a("s_add_u32 s45, s45, s47")
    a("s_mul_i32 s47, s6, 1280")
    a("s_mul_i32 s6, s7, 40")
    a("s_add_u32 s47, s47, s6")
    a("s_cmp_eq_u32 s7, 0")
    a(f"s_cselect_b32 s{S_D1}, 64, {R16-64}")
    a(f"s_mov_b32 s{S_D2}, {R16}")
    a(f"s_cselect_b32 s{S_O1}, 40, {1280-40}")
    a(f"s_mov_b32 s{S_O2}, 1280")
    a(f"v_mul_u32_u24 v12, {QKV_RS}, v10")
    a("v_lshlrev_b32 v13, 4, v11")
    a(f"v_add3_u32 v{KQB}, v12, v13, s45")
    a("v_lshrrev_b32 v12, 2, v1")
    a("v_and_b32 v12, 3, v12")
    a("v_lshlrev_b32 v13, 2, v11")
    a("v_add_u32 v12, v12, v13")
    a(f"v_mul_u32_u24 v12, {QKV_RS}, v12")
    a("v_and_b32 v13, 3, v1")
    a("v_lshlrev_b32 v13, 3, v13")
    a(f"v_add3_u32 v{VB}, v12, v13, s45")
    a("v_mul_u32_u24 v12, 80, v10")
    a("v_lshlrev_b32 v13, 3, v11")
    a("v_add3_u32 v12, v12, v13, s47")
    a(f"v_add_u32 v{OB}, {O_LDS}, v12")


def attention(a, T=None):
    R16 = 16 * QKV_RS
    U = [32 + 48 * u for u in range(3)]
    kq = [KQB, U[1] + 36, U[2] + 36]
    vv = [VB, U[1] + 37, U[2] + 37]
    oo = [OB, U[1] + 38, U[2] + 38]
    a(f"v_add_u32 v{kq[1]}, s{S_D1}, v{KQB}")
    a(f"v_add_u32 v{kq[2]}, s{S_D2}, v{KQB}")
    for u in range(3):
        b = U[u]
        a(f"ds_read_b128 v[{b}:{b+3}], v{kq[u]} offset:{R16}")
        a(f"ds_read_b128 v[{b+4}:{b+7}], v{kq[u]} offset:128")
        a(f"ds_read_b128 v[{b+8}:{b+11}], v{kq[u]} offset:{R16+128}")
    a(f"v_add_u32 v{vv[1]}, s{S_D1}, v{VB}")
    a(f"v_add_u32 v{vv[2]}, s{S_D2}, v{VB}")
    for u in range(3):
        b = U[u]
        a(f"ds_read_b64_tr_b16 v[{b+12}:{b+13}], v{vv[u]} offset:256")
        a(f"ds_read_b64_tr_b16 v[{b+14}:{b+15}], v{vv[u]} offset:{R16+256}")
        a(f"ds_read_b64_tr_b16 v[{b+16}:{b+17}], v{vv[u]} offset:{256+32}")
        a(f"ds_read_b64_tr_b16 v[{b+18}:{b+19}], v{vv[u]} offset:{R16+256+32}")
    a(f"v_add_u32 v{oo[1]}, s{S_O1}, v{OB}")
    a(f"v_add_u32 v{oo[2]}, s{S_O2}, v{OB}")
    a("s_mov_b32 s45, 0x3ea52b5c")
    a("s_waitcnt lgkmcnt(12)")
    for u in range(3):
        b = U[u]
        a(f"v_mfma_f32_16x16x32_bf16 v[{b+20}:{b+23}], v[{b+4}:{b+7}], v[{b}:{b+3}], 0")
        a(f"v_mfma_f32_16x16x32_bf16 v[{b+24}:{b+27}], v[{b+8}:{b+11}], v[{b}:{b+3}], 0")
    a("s_nop 7")

    def each(f):
        for step in zip(*[f(U[u]) for u in range(3)]):
            for x in step:
                a(x)
    P_, M0_, M1_ = f"s[{S_PAR}:{S_PAR+1}]", f"s[{S_M0}:{S_M0+1}]", f"s[{S_M1}:{S_M1+1}]"
    each(lambda b: [f"v_cndmask_b32 v{b+20}, v{b+20}, v{b+21}, {P_}",
                    f"v_cndmask_b32 v{b+22}, v{b+22}, v{b+23}, {P_}",
                    f"v_cndmask_b32 v{b+24}, v{b+24}, v{b+25}, {P_}",
                    f"v_cndmask_b32 v{b+26}, v{b+26}, v{b+27}, {P_}"])
    lsp = a.newlabel("ATS")
    a("s_or_b32 s6, s60, s3")
    a("s_cmp_lg_u32 s6, 0")
    a(f"s_cbranch_scc1 {lsp}")
    for u in range(2):
        a(f"v_mov_b32 v{U[u]+20}, v{NEG}")
        a(f"v_mov_b32 v{U[u]+22}, v{NEG}")
    a.label(lsp)
    each(lambda b: [f"v_cndmask_b32 v{b+20}, v{b+20}, v{b+24}, {M0_}",
                    f"v_cndmask_b32 v{b+22}, v{b+22}, v{b+26}, {M1_}",
                    f"v_max_f32 v{b+28}, v{b+20}, v{b+22}",
                    f"v_mov_b32 v{b+29}, v{b+28}",
                    f"v_permlane32_swap_b32 v{b+28}, v{b+29}",
                    f"v_max_f32 v{b+28}, v{b+28}, v{b+29}",
                    f"v_mov_b32 v{b+29}, v{b+28}",
                    f"v_permlane16_swap_b32 v{b+28}, v{b+29}",
                    f"v_max_f32 v{b+28}, v{b+28}, v{b+29}",
                    f"v_mul_f32 v{b+28}, s45, v{b+28}",
                    f"v_fma_f32 v{b+20}, v{b+20}, s45, -v{b+28}",
                    f"v_fma_f32 v{b+22}, v{b+22}, s45, -v{b+28}",
                    f"v_exp_f32 v{b+20}, v{b+20}",
                    f"v_exp_f32 v{b+22}, v{b+22}",
                    f"v_add_f32 v{b+28}, v{b+20}, v{b+22}",
                    f"v_mov_b32 v{b+29}, v{b+28}",
                    f"v_permlane32_swap_b32 v{b+28}, v{b+29}",
                    f"v_add_f32 v{b+28}, v{b+28}, v{b+29}",
                    f"v_mov_b32 v{b+29}, v{b+28}",
                    f"v_permlane16_swap_b32 v{b+28}, v{b+29}",
                    f"v_add_f32 v{b+28}, v{b+28}, v{b+29}",
                    f"v_rcp_f32 v{b+28}, v{b+28}",
                    f"v_mul_f32 v{b+20}, v{b+20}, v{b+28}",
                    f"v_mul_f32 v{b+22}, v{b+22}, v{b+28}",
                    f"v_cvt_pk_bf16_f32 v{b+20}, v{b+20}, v{b+20}",
                    f"v_cvt_pk_bf16_f32 v{b+22}, v{b+22}, v{b+22}",
                    f"v_and_b32 v{b+40}, v{KP0}, v{b+20}",
                    f"v_and_b32 v{b+41}, v{KP1}, v{b+22}",
                    f"v_and_b32 v{b+42}, v{KC0}, v{b+20}",
                    f"v_and_b32 v{b+43}, v{KC1}, v{b+22}"])
    a("s_waitcnt lgkmcnt(0)")
    for u in range(3):
        b = U[u]
        a(f"v_mfma_f32_16x16x32_bf16 v[{b}:{b+3}], v[{b+12}:{b+15}], v[{b+40}:{b+43}], 0")
        a(f"v_mfma_f32_16x16x32_bf16 v[{b+4}:{b+7}], v[{b+16}:{b+19}], v[{b+40}:{b+43}], 0")
    a("s_nop 7")
    for u in range(3):
        b = U[u]
        a(f"v_cvt_pk_bf16_f32 v{b+8}, v{b}, v{b+1}")
        a(f"v_cvt_pk_bf16_f32 v{b+9}, v{b+2}, v{b+3}")
        a(f"v_cvt_pk_bf16_f32 v{b+10}, v{b+4}, v{b+5}")
        a(f"v_cvt_pk_bf16_f32 v{b+11}, v{b+6}, v{b+7}")
        a(f"ds_write_b64 v{oo[u]}, v[{b+8}:{b+9}]")
    a("s_mov_b64 exec, 0xffff")
    for u in range(3):
        b = U[u]
        a(f"ds_write_b64 v{oo[u]}, v[{b+10}:{b+11}] offset:32")
    a("s_mov_b64 exec, -1")


def epoch_issue(a, vdst, vtmp, srdn, off_expr_sgpr):
    srd(a, srdn, P_WS, 0x10000, WS_FL)
    a(f"v_mov_b32 v{vtmp}, s{off_expr_sgpr}")
    a(f"buffer_load_dword v{vdst}, v{vtmp}, s[{srdn}:{srdn+3}], 0 offen sc1")


def poll(a, vaddr, n_lanes, tag_s, srdn):
    l0, l1 = a.newlabel("PF"), a.newlabel("PF")
    a("s_mov_b32 s45, 0")
    if n_lanes < 64:
        a(f"s_mov_b64 exec, 0x{(1 << n_lanes) - 1:x}")
    a.label(l0)
    a(f"buffer_load_dword v4, v{vaddr}, s[{srdn}:{srdn+3}], 0 offen sc1")
    a("s_waitcnt vmcnt(0)")
    a(f"v_cmp_ne_u32 vcc, s{tag_s}, v4")
    a("s_add_u32 s45, s45, 1")
    a("s_nop 3")
    a(f"s_cbranch_vccz {l1}")
    a(f"s_cmp_gt_u32 s45, {OPT['spin']}")
    a(f"s_cbranch_scc1 {l1}")
    a(f"s_sleep {OPT['psleep']}")
    a(f"s_branch {l0}")
    a.label(l1)
    if n_lanes < 64:
        a("s_mov_b64 exec, -1")


def o_store_setup(a):
    a("v_and_b32 v10, 255, v0")
    a("v_lshlrev_b32 v10, 4, v10")
    a(f"v_add_u32 v216, {O_LDS}, v10")
    a("s_mul_i32 s6, s61, 163840")
    a("s_mul_i32 s7, s60, 15360")
    a("s_add_u32 s6, s6, s7")
    a("v_add_u32 v12, s6, v10")
    a("s_movk_i32 s7, 15360")
    a("s_cmp_eq_u32 s60, 10")
    a("s_cselect_b32 s7, 10240, s7")
    a(f"v_mov_b32 v14, 0x{OOB:x}")
    for i in range(4):
        a(f"v_add_u32 v{217+i}, {4096*i}, v12")
        a(f"v_add_u32 v13, {4096*i}, v10")
        a("v_cmp_gt_u32 vcc, s7, v13")
        a("s_nop 1")
        a(f"v_cndmask_b32 v{217+i}, v14, v{217+i}, vcc")


def o_store(a):
    sc = OPT["sc_ostore"]
    for i in range(4):
        a(f"ds_read_b128 v[{16+4*i}:{19+4*i}], v216 offset:{4096*i}")
    a("s_waitcnt lgkmcnt(0)")
    for i in range(4):
        a(f"buffer_store_dwordx4 v[{16+4*i}:{19+4*i}], v{217+i}, s[48:51], 0 offen {sc}")


def b2_o_addr(a, dst):
    a("s_lshl_b32 s6, s47, 10")
    a("v_add_u32 v10, s6, v239")
    a("v_lshrrev_b32 v11, 9, v10")
    a("v_mul_u32_u24 v11, 4370, v11")
    a("v_lshrrev_b32 v11, 16, v11")
    a("v_mul_u32_u24 v11, 156160, v11")
    a(f"v_add_u32 v{dst}, v10, v11")


def b2_loader_setup(a):
    for i in range(8):
        a(f"s_add_u32 s47, s62, {4*i}")
        b2_o_addr(a, 224 + i)
    a("s_cmp_lt_u32 s62, 2")
    a("s_cselect_b64 vcc, -1, 0")
    a(f"v_mov_b32 v10, 0x{OOB:x}")
    a("v_cndmask_b32 v231, v10, v231, vcc")
    a("s_mul_i32 s49, s67, 7680")


def b2_loader(a, T):
    sc = OPT["sc_oload"]

    def soff(st):
        a(f"s_add_u32 s50, s68, {st}")
        a("s_and_b32 s50, s50, 3")
        a("s_mul_i32 s50, s50, 655360")
        a("s_add_u32 s50, s50, s49")

    def dma(st):
        soff(st)
        a("s_lshl_b32 s6, s62, 10")
        a(f"s_add_u32 s6, s6, {B2_O + st*B2_OST}")
        for i in range(8):
            lab = None
            if i == 7:
                lab = a.newlabel("O7")
                a("s_cmp_ge_u32 s62, 2")
                a(f"s_cbranch_scc1 {lab}")
            a(f"s_add_u32 m0, s6, {4096*i}")
            a("s_nop 0")
            a(f"buffer_load_dwordx4 v{224+i}, s[52:55], s50 offen {sc} lds")
            if lab:
                a.label(lab)

    def vload(st):
        soff(st)
        for i in range(8):
            d = 16 + 32 * (st - 2) + 4 * i
            a(f"buffer_load_dwordx4 v[{d}:{d+3}], v{224+i}, s[52:55], s50 offen {sc}")

    def lwrite(st):
        for i in range(8):
            d = 16 + 32 * (st - 2) + 4 * i
            lab = None
            if i == 7:
                lab = a.newlabel("O7")
                a("s_cmp_ge_u32 s62, 2")
                a(f"s_cbranch_scc1 {lab}")
            a(f"ds_write_b128 v10, v[{d}:{d+3}] offset:{(st & 1) * B2_OST + 4096*i}")
            if lab:
                a.label(lab)
        a("s_waitcnt lgkmcnt(0)")

    a("v_lshlrev_b32 v10, 4, v1")
    a("s_lshl_b32 s6, s62, 10")
    a(f"s_add_u32 s6, s6, {B2_O}")
    a("v_add_u32 v10, s6, v10")
    T.stamp(a, 2)
    dma(0)
    T.stamp(a, 4)
    dma(1)
    T.stamp(a, 5)
    a("s_waitcnt vmcnt(7)")
    if not OPT.get('attts'): T.stamp(a, 10)
    a("s_barrier")
    vload(2)
    a("s_waitcnt vmcnt(8)")
    if not OPT.get('attts'): T.stamp(a, 11)
    a("s_barrier")
    vload(3)
    a("s_waitcnt vmcnt(8)")
    if not OPT.get('attts'): T.stamp(a, 12)
    lwrite(2)
    a("s_barrier")
    a("s_waitcnt vmcnt(0)")
    if not OPT.get('attts'): T.stamp(a, 13)
    lwrite(3)
    a("s_barrier")


def b2_compute_setup(a):
    a("v_and_b32 v10, 15, v1")
    a("v_lshrrev_b32 v11, 4, v1")
    a("s_and_b32 s6, s3, 1")
    a("s_mul_i32 s6, s6, 48")
    a("v_add_u32 v10, s6, v10")
    a("v_mul_u32_u24 v10, 80, v10")
    for ks in range(5):
        a(f"v_add_u32 v12, {4*ks}, v11")
        a("v_mul_u32_u24 v13, 52, v12")
        a("v_lshrrev_b32 v13, 8, v13")
        a("v_mul_u32_u24 v14, 5, v13")
        a("v_sub_u32 v14, v12, v14")
        a("v_mul_u32_u24 v13, 7680, v13")
        a("v_lshlrev_b32 v14, 4, v14")
        a(f"v_add3_u32 v{224+ks}, v10, v13, v14")
    a("v_lshrrev_b32 v12, 2, v1")
    a("v_and_b32 v12, 3, v12")
    a("v_lshlrev_b32 v13, 2, v11")
    a("v_add_u32 v12, v12, v13")
    a("v_mul_u32_u24 v12, 160, v12")
    a("v_and_b32 v13, 3, v1")
    a("v_lshlrev_b32 v13, 3, v13")
    a("s_lshr_b32 s47, s3, 1")
    a("s_mul_i32 s6, s47, 96")
    a("v_add3_u32 v229, v12, v13, s6")
    for i in range(36):
        a(f"v_mov_b32 v{16+i}, 0")
    srd(a, 56, P_OUT, 2048 * 2560)
    a("v_and_b32 v13, 15, v1")
    a("s_and_b32 s6, s3, 1")
    a("s_mul_i32 s6, s6, 48")
    a("s_mul_i32 s7, s67, 96")
    a("s_add_u32 s6, s6, s7")
    a("v_add_u32 v13, s6, v13")
    a("v_mul_u32_u24 v13, 2560, v13")
    a("v_lshrrev_b32 v14, 4, v1")
    a("v_lshlrev_b32 v14, 3, v14")
    a("s_mul_i32 s6, s68, 160")
    a("s_mul_i32 s7, s47, 96")
    a("s_add_u32 s6, s6, s7")
    a("s_add_u32 s6, s6, 1280")
    a("v_add3_u32 v213, v13, v14, s6")
    a("s_mov_b32 s72, 0")
    a("s_mov_b32 s73, 40960")
    a("s_mov_b32 s74, 81920")
    a(f"s_mov_b32 s51, 0x{(B2_WB - 12*5120) & 0xffffffff:x}")


def b2_compute(a, T):
    WF, OF = 56, 120

    def addr(slot, st):
        r = []
        ob, wb = 192 + 5 * slot, 202 + 5 * slot
        r.append(f"s_add_u32 s50, s68, {st}")
        r.append("s_and_b32 s50, s50, 3")
        r.append("s_mul_i32 s50, s50, 5")
        for ks in range(5):
            r.append(f"v_add_u32 v{ob+ks}, {B2_O + (st & 1) * B2_OST}, v{224+ks}")
            r.append(f"s_add_u32 s6, s50, {ks}")
            r.append("s_mul_i32 s7, s6, 5120")
            r.append("s_cmp_lt_u32 s6, 12")
            r.append(f"s_cselect_b32 s6, {B2_WA}, s51")
            r.append("s_add_u32 s6, s6, s7")
            r.append(f"v_add_u32 v{wb+ks}, s6, v229")
        return r

    def rd_w(slot, ks, nct):
        wb = 202 + 5 * slot
        r = []
        for ct in range(nct):
            F = WF + 12 * ks + 4 * ct
            r.append(f"ds_read_b64_tr_b16 v[{F}:{F+1}], v{wb+ks} offset:{32*ct}")
            r.append(f"ds_read_b64_tr_b16 v[{F+2}:{F+3}], v{wb+ks} offset:{32*ct+2560}")
        return r

    def rd_o(slot, ks):
        ob = 192 + 5 * slot
        return [f"ds_read_b128 v[{OF+12*ks+4*t}:{OF+12*ks+4*t+3}], v{ob+ks} offset:{1280*t}" for t in range(3)]

    def mm(ks, nct):
        r = []
        for t in range(3):
            for ct in range(nct):
                ac = 16 + (t * 3 + ct) * 4
                W = WF + 12 * ks + 4 * ct
                O = OF + 12 * ks + 4 * t
                r.append(f"v_mfma_f32_16x16x32_bf16 v[{ac}:{ac+3}], v[{W}:{W+3}], v[{O}:{O+3}], v[{ac}:{ac+3}]")
        return r

    le, ld = a.newlabel("C2E"), a.newlabel("C2D")
    for x in addr(0, 0):
        a(x)
    a("s_cmp_eq_u32 s47, 0")
    a(f"s_cbranch_scc0 {le}")
    for var, nct in enumerate([3, 2]):
        if var == 1:
            a(f"s_branch {ld}")
            a.label(le)
        for ks in range(5):
            for x in rd_w(0, ks, nct):
                a(x)
        for st in range(4):
            slot = st & 1
            a("s_waitcnt lgkmcnt(0)")
            a("s_barrier")
            if T.on and not OPT.get("attts") and var == 0:
                T.stamp(a, 10 + st)
            for ks in range(5):
                for x in rd_o(slot, ks):
                    a(x)
            lg = 12
            nfill = 0
            for ks in range(5):
                fill = []
                if st < 3:
                    fill = addr(slot ^ 1, st + 1) if ks == 0 else rd_w(slot ^ 1, ks - 1, nct)
                a(f"s_waitcnt lgkmcnt({min(15, 3 * (4 - ks) + nfill)})")
                m = mm(ks, nct)
                per = (len(fill) + len(m) - 1) // len(m)
                k = 0
                for x in m:
                    a(x)
                    for _ in range(per):
                        if k < len(fill):
                            a(fill[k])
                            k += 1
                if ks >= 1 and st < 3:
                    nfill += len(fill)
            if st < 3:
                for x in rd_w(slot ^ 1, 4, nct):
                    a(x)
        no = OPT["nt_out"]
        a("s_nop 7")
        for t in range(3):
            for ct in range(nct):
                ac = 16 + (t * 3 + ct) * 4
                p = 56 + 2 * (t * 3 + ct)
                a(f"v_cvt_pk_bf16_f32 v{p}, v{ac}, v{ac+1}")
                a(f"v_cvt_pk_bf16_f32 v{p+1}, v{ac+2}, v{ac+3}")
                a(f"buffer_store_dwordx2 v[{p}:{p+1}], v213, s[56:59], s{72+t} offen offset:{32*ct} {no}")
    a.label(ld)


def b_program(a, T):
    b_decode(a)
    ld, j1 = a.newlabel("BLD"), a.newlabel("BJ1")
    a("s_cmp_ge_u32 s3, 4")
    a(f"s_cbranch_scc1 {ld}")
    b_initial_prefetch(a)
    a("s_lshl_b32 s6, s60, 7")
    a(f"s_add_u32 s6, s6, {FL_EB}")
    epoch_issue(a, 250, 251, 52, 6)
    b1_compute(a, T)
    T.stamp(a, 3)
    a("s_waitcnt lgkmcnt(0)")
    a(f"s_branch {j1}")
    a.label(ld)
    a("s_lshl_b32 s6, s60, 7")
    a(f"s_add_u32 s6, s6, {FL_EB}")
    epoch_issue(a, 250, 251, 52, 6)
    b1_loader(a, T)
    T.stamp(a, 3)
    b1_epi_loader(a)
    a("s_waitcnt lgkmcnt(0)")
    a.label(j1)
    a("s_barrier")
    T.stamp(a, 4)
    attention(a, T)
    a("s_waitcnt lgkmcnt(0)")
    a("s_barrier")
    T.stamp(a, 5)
    ld2, j2 = a.newlabel("BLD"), a.newlabel("BJ2")
    a("s_cmp_ge_u32 s3, 4")
    a(f"s_cbranch_scc1 {ld2}")
    a("v_readfirstlane_b32 s44, v250")
    a("s_add_u32 s44, s44, 1")
    a("s_barrier")
    b2_compute_setup(a)
    a("s_barrier")
    lp = a.newlabel("NP")
    a("s_cmp_lg_u32 s3, 0")
    a(f"s_cbranch_scc1 {lp}")
    a("s_lshl_b32 s6, s60, 4")
    a("s_add_u32 s6, s6, s61")
    a("s_lshl_b32 s6, s6, 7")
    a("v_mov_b32 v10, s6")
    a("v_mov_b32 v11, s44")
    a("s_mov_b64 exec, 1")
    a("buffer_store_dword v11, v10, s[52:55], 0 offen sc1")
    a("s_mov_b64 exec, -1")
    T.stamp(a, 6)
    a("s_lshl_b32 s6, s60, 11")
    a("v_lshlrev_b32 v10, 7, v1")
    a("v_add_u32 v10, s6, v10")
    poll(a, 10, 16, 44, 52)
    le = a.newlabel("EU")
    a("s_cmp_lg_u32 s61, 0")
    a(f"s_cbranch_scc1 {le}")
    a("v_mov_b32 v11, s44")
    a("s_mov_b64 exec, 1")
    a("buffer_store_dword v11, v251, s[52:55], 0 offen sc1")
    a("s_mov_b64 exec, -1")
    a.label(le)
    a.label(lp)
    T.stamp(a, 7)
    a("s_barrier")
    b2_compute(a, T)
    T.stamp(a, 8)
    a(f"s_branch {j2}")
    a.label(ld2)
    o_store(a)
    a("s_barrier")
    a("s_waitcnt vmcnt(0)")
    a("s_barrier")
    wo_dma_blocks(a, 12, 8, B2_WB)
    srd(a, 52, P_WS, TSZ, WS_OW)
    a("v_lshlrev_b32 v239, 4, v1")
    b2_loader_setup(a)
    a("s_waitcnt vmcnt(0)")
    T.stamp(a, 7)
    a("s_barrier")
    b2_loader(a, T)
    T.stamp(a, 8)
    a.label(j2)
    T.stamp(a, 9)


A2_H0 = 0
A2_H1 = 4640
A2_X0 = 9216
A2_X2 = 13696
A2_CH = 17920
T_RS = 528
Y_RS = 528


def a_program(a, T):
    na, nh, sc = OPT["nt_a"], OPT["nt_h"], OPT["sc"]
    a("s_sub_u32 s5, s5, s70")
    a("s_lshl_b32 s6, s4, 1")
    a("s_add_u32 s7, s4, 2")
    a("s_cmp_lt_u32 s4, 2")
    a("s_cselect_b32 s6, s6, s7")
    a("s_lshr_b32 s7, s5, 3")
    a("s_add_u32 s73, s6, s7")
    a("s_and_b32 s72, s5, 7")
    a("s_lshl_b32 s62, s73, 6")
    a("s_lshl_b32 s6, s72, 3")
    a("s_add_u32 s62, s62, s6")
    a("s_add_u32 s63, s62, s3")
    srd(a, 32, P_K, TSZ)
    srd(a, 36, P_V, TSZ)
    srd(a, 40, P_SK, 640 * 8)
    a("v_and_b32 v8, 7, v1")
    a("v_lshrrev_b32 v9, 3, v1")
    a("s_lshl_b32 s6, s3, 3")
    a("v_add_u32 v9, s6, v9")
    a("v_lshlrev_b32 v2, 2, v9")
    a("s_lshl_b32 s6, s72, 8")
    a("v_add_u32 v2, s6, v2")
    a("v_mul_u32_u24 v2, 1280, v2")
    a("v_lshlrev_b32 v3, 4, v8")
    a("s_lshl_b32 s6, s73, 7")
    a("v_add3_u32 v2, v2, v3, s6")
    a("v_add_u32 v3, -3840, v2")
    a("v_add_u32 v4, -2560, v2")
    a("v_add_u32 v5, -1280, v2")
    for m in range(4):
        a(f"buffer_load_dwordx4 v[{64+4*m}:{67+4*m}], v2, s[32:35], 0 offen offset:{1280*m} {na}".replace("offset:0 ", ""))
    for m in range(4):
        a(f"buffer_load_dwordx4 v[{80+4*m}:{83+4*m}], v2, s[36:39], 0 offen offset:{1280*m} {na}".replace("offset:0 ", ""))
    a(f"buffer_load_dwordx4 v[52:55], v3, s[32:35], 0 offen {na}")
    a(f"buffer_load_dwordx4 v[56:59], v4, s[32:35], 0 offen {na}")
    a(f"buffer_load_dwordx4 v[60:63], v5, s[32:35], 0 offen {na}")
    a("v_lshlrev_b32 v6, 6, v8")
    a("s_lshl_b32 s6, s73, 9")
    a("v_add_u32 v6, s6, v6")
    for i in range(4):
        a(f"buffer_load_dwordx4 v[{32+4*i}:{35+4*i}], v6, s[40:43], 0 offen offset:{16*i}".replace("offset:0", ""))
    a("s_lshl_b32 s6, s73, 7")
    a(f"s_add_u32 s6, s6, {FL_EA}")
    epoch_issue(a, 250, 251, 48, 6)
    a("s_lshl_b32 s6, s62, 1")
    a(f"s_add_u32 s44, s{P_SD}, s6")
    a(f"s_addc_u32 s45, s{P_SD+1}, 0")
    a("s_load_dwordx4 s[64:67], s[44:45], 0")
    if int(OPT.get("apf", 1)):
        npf = OPT["nt_pf"]
        a("s_cmp_eq_u32 s4, 1")
        a("s_cselect_b32 s74, 1, 0")
        a("s_cmp_ge_u32 s4, 5")
        a("s_cselect_b32 s74, 1, s74")
        a("s_cselect_b32 s7, 3, 0")
        a("s_sub_u32 s6, s4, 2")
        a("s_sub_u32 s6, s6, s7")
        a("s_mul_i32 s6, s6, 3")
        a("s_add_u32 s6, s6, 2")
        a("s_cmp_lt_u32 s4, 2")
        a("s_cselect_b32 s75, 0, s6")
        a("s_cselect_b32 s76, 128, 64")
        a("s_cselect_b32 s77, 2400, s76")
        a("s_cselect_b32 s77, 2400, 3552") if False else None
        a("s_movk_i32 s77, 3552")
        a("s_cmp_lt_u32 s4, 2")
        a("s_cselect_b32 s77, 2400, s77")
        a("s_lshl_b32 s78, s5, 3")
        a("s_add_u32 s78, s78, s3")
        srd(a, 52, P_W, 640 * 3840)
        srd(a, 56, P_X, TSZ)
        a(f"v_mov_b32 v20, 0x{OOB:x}")

        def wpf(dst):
            a("s_lshl_b32 s6, s6, 6")
            a("v_add_u32 v21, s6, v1")
            a("v_mul_u32_u24 v22, 34953, v21")
            a("v_lshrrev_b32 v22, 19, v22")
            a("v_mul_u32_u24 v23, 15, v22")
            a("v_sub_u32 v23, v21, v23")
            a("v_mul_u32_u24 v24, 52, v23")
            a("v_lshrrev_b32 v24, 8, v24")
            a("v_mul_u32_u24 v25, 5, v24")
            a("v_sub_u32 v25, v23, v25")
            a("v_add_u32 v22, 192, v22")
            a("v_mul_u32_u24 v22, 3840, v22")
            a("v_mul_u32_u24 v24, 1280, v24")
            a("v_lshlrev_b32 v25, 7, v25")
            a("v_add3_u32 v22, v22, v24, v25")
            a("s_mul_i32 s7, s74, 640")
            a("v_add_u32 v22, s7, v22")
            a("s_movk_i32 s7, 6720")
            a("v_cmp_gt_u32 vcc, s7, v21")
            a("s_nop 1")
            a("v_cndmask_b32 v22, v20, v22, vcc")
            a(f"buffer_load_dword v{dst}, v22, s[52:55], 0 offen {npf}")
        a("s_mov_b32 s6, s78")
        wpf(240)
        a("s_lshl_b32 s6, s78, 6")
        a("v_add_u32 v21, s6, v1")
        a("v_mul_u32_u24 v22, 10923, v21")
        a("v_lshrrev_b32 v22, 16, v22")
        a("v_mul_u32_u24 v23, 6, v22")
        a("v_sub_u32 v23, v21, v23")
        a("s_mul_i32 s6, s75, 192")
        a("s_sub_u32 s6, s6, 16")
        a("v_add_u32 v22, s6, v22")
        a("s_movk_i32 s7, 1280")
        a("v_mul_lo_u32 v22, v22, s7")
        a("v_lshlrev_b32 v23, 7, v23")
        a("v_add_u32 v22, v22, v23")
        a("v_add_u32 v22, 512, v22")
        a("v_cmp_gt_u32 vcc, s77, v21")
        a("s_nop 1")
        a("v_cndmask_b32 v22, v20, v22, vcc")
        a(f"buffer_load_dword v241, v22, s[56:59], 0 offen {npf}")
        a("s_add_u32 s6, s78, s76")
        wpf(242)
    a(f"s_mul_i32 s60, s3, {A2_CH}")
    a("s_lshl_b32 s59, s63, 12")
    a("v_lshlrev_b32 v10, 4, v1")
    a("v_add_u32 v11, -2, v10")
    T.stamp(a, 1)
    a("v_mov_b32 v28, 0")
    a("v_mov_b32 v29, 0")
    a("v_mov_b32 v30, 0")
    a("v_mov_b32 v31, 0")
    a("v_add_u32 v23, s60, v10")
    a("s_mov_b64 exec, 0xfffffff")
    a(f"ds_write_b128 v23, v[28:31] offset:{A2_H0}")
    a(f"ds_write_b128 v23, v[28:31] offset:{A2_H1}")
    a("s_mov_b64 exec, -1")
    a(f"v_mul_u32_u24 v7, {A2_CH+16}, v8")
    a("v_lshlrev_b32 v12, 3, v9")
    a("v_sub_u32 v7, v7, v12")
    a(f"v_add_u32 v7, {A2_X0 + 504}, v7")
    a("s_mov_b32 s57, 0xffff0000")
    a(f"s_waitcnt vmcnt({1 + (3 if int(OPT.get('apf', 1)) else 0)})")
    T.stamp(a, 2)
    for c in range(4):
        for m in range(4):
            for e in range(2):
                src = 32 + 2 * (2 * c + e) + (m >> 1)
                dst = 96 + (c * 4 + m) * 2 + e
                if m & 1:
                    a(f"v_and_b32 v{dst}, s57, v{src}")
                else:
                    a(f"v_lshlrev_b32 v{dst}, 16, v{src}")
    for c in range(4):
        for jj in range(7):
            a(f"v_lshlrev_b32 v{128+2*jj}, 16, v{52+4*jj+c}")
            a(f"v_and_b32 v{129+2*jj}, s57, v{52+4*jj+c}")
        for m in range(4):
            a(f"v_lshlrev_b32 v{142+2*m}, 16, v{80+4*m+c}")
            a(f"v_and_b32 v{143+2*m}, s57, v{80+4*m+c}")
        W = lambda m: f"v[{96+(c*4+m)*2}:{97+(c*4+m)*2}]"
        K = lambda jj: f"v[{128+2*jj}:{129+2*jj}]"
        for rr in range(4):
            o = 150 + 2 * rr
            a(f"v_pk_mul_f32 v[{o}:{o+1}], {W(3)}, {K(rr)}")
        for m in (2, 1, 0):
            for rr in range(4):
                o = 150 + 2 * rr
                a(f"v_pk_fma_f32 v[{o}:{o+1}], {W(m)}, {K(3+rr-m)}, v[{o}:{o+1}]")
        for rr in range(4):
            o = 150 + 2 * rr
            a(f"v_pk_mul_f32 v[{o}:{o+1}], v[{o}:{o+1}], v[{142+2*rr}:{143+2*rr}]")
        for e in range(2):
            ch = 2 * c + e
            d = 160 + 4 * (c & 1) + 2 * e
            a(f"v_cvt_pk_bf16_f32 v{d}, v{156+e}, v{154+e}")
            a(f"v_cvt_pk_bf16_f32 v{d+1}, v{152+e}, v{150+e}")
            a(f"ds_write_b64 v7, v[{d}:{d+1}] offset:{ch*T_RS}")
    a("v_lshrrev_b32 v12, 5, v1")
    a(f"v_mul_u32_u24 v12, {T_RS}, v12")
    a("v_and_b32 v13, 31, v1")
    a("v_lshlrev_b32 v13, 4, v13")
    a("v_add_u32 v12, v12, v13")
    a(f"s_mul_i32 s6, s3, {A2_CH+16}")
    a(f"s_add_u32 s6, s6, {A2_X0}")
    a("v_add_u32 v12, s6, v12")
    srd(a, 36, P_WS, TSZ, WS_XT)
    a("v_lshrrev_b32 v14, 5, v1")
    a("v_lshlrev_b32 v14, 12, v14")
    a("v_add_u32 v14, v14, v13")
    a("s_lshl_b32 s6, s73, 6")
    a("s_lshl_b32 s7, s3, 3")
    a("s_add_u32 s6, s6, s7")
    a("s_lshl_b32 s6, s6, 12")
    a("s_lshl_b32 s7, s72, 9")
    a("s_sub_u32 s7, 3584, s7")
    a("s_add_u32 s6, s6, s7")
    a("v_add_u32 v14, s6, v14")
    a("s_waitcnt lgkmcnt(0)")
    a("s_barrier")
    for m in range(4):
        a(f"ds_read_b128 v[{64+4*m}:{67+4*m}], v12 offset:{2*m*T_RS}")
    a("s_waitcnt lgkmcnt(0)")
    a("s_mov_b32 s6, 0")
    for m in range(4):
        a(f"buffer_store_dwordx4 v[{64+4*m}:{67+4*m}], v14, s[36:39], s6 offen {sc}")
        if m < 3:
            a("s_add_u32 s6, s6, 8192")
    T.stamp(a, 3)
    srd(a, 52, P_H, 640 * 4096)
    for i in range(4):
        a(f"s_add_u32 m0, s60, {A2_H0 + 448 + 1024*i}")
        a(f"s_add_u32 s6, s59, {1024*i}")
        a(f"buffer_load_dwordx4 v10, s[52:55], s6 offen {nh} lds")
    a("v_mov_b32 v13, 0")
    a(f"buffer_load_dwordx4 v[16:19], v13, s[52:55], s59 offen")
    for i in range(4):
        a(f"s_add_u32 m0, s60, {A2_H1 + 448 + 1024*i}")
        if i == 0:
            a("s_mov_b32 s6, s59")
            a(f"buffer_load_dwordx4 v11, s[52:55], s6 offen lds")
        else:
            a(f"s_add_u32 s6, s59, {1024*i - 2}")
            a(f"buffer_load_dwordx4 v10, s[52:55], s6 offen lds")
    a("s_lshr_b32 s6, s3, 1")
    a("s_cmp_eq_u32 s6, 1")
    a("s_cselect_b32 s58, s65, s64")
    a("s_cmp_eq_u32 s6, 2")
    a("s_cselect_b32 s58, s66, s58")
    a("s_cmp_eq_u32 s6, 3")
    a("s_cselect_b32 s58, s67, s58")
    a("s_and_b32 s6, s3, 1")
    a("s_lshl_b32 s6, s6, 4")
    a("s_lshr_b32 s58, s58, s6")
    a("s_lshl_b32 s58, s58, 16")
    a("s_waitcnt vmcnt(9)")
    a("v_readfirstlane_b32 s44, v250")
    a("s_add_u32 s44, s44, 1")
    a("s_barrier")
    lp = a.newlabel("AP")
    a("s_cmp_lg_u32 s3, 0")
    a(f"s_cbranch_scc1 {lp}")
    a("s_lshl_b32 s6, s73, 3")
    a("s_add_u32 s6, s6, s72")
    a("s_lshl_b32 s6, s6, 7")
    a(f"s_add_u32 s6, s6, {FL_A1}")
    a("v_mov_b32 v12, s6")
    a("v_mov_b32 v13, s44")
    a("s_mov_b64 exec, 1")
    a("buffer_store_dword v13, v12, s[48:51], 0 offen sc1")
    a("s_mov_b64 exec, -1")
    T.stamp(a, 4)
    a("s_lshl_b32 s6, s73, 10")
    a(f"s_add_u32 s6, s6, {FL_A1}")
    a("v_lshlrev_b32 v12, 7, v1")
    a("v_add_u32 v12, s6, v12")
    poll(a, 12, 8, 44, 48)
    a.label(lp)
    a("s_waitcnt lgkmcnt(0)")
    a("s_barrier")
    T.stamp(a, 5)
    a("v_add_u32 v12, 4, v10")
    for i in range(4):
        a(f"s_add_u32 m0, s60, {A2_X0 + 1024*i}")
        a(f"s_add_u32 s6, s59, {1024*i}")
        a(f"buffer_load_dwordx4 v10, s[36:39], s6 offen {sc} lds")
    for i in range(4):
        a(f"s_add_u32 m0, s60, {A2_X2 + 1024*i}")
        a(f"s_add_u32 s6, s59, {1024*i}")
        a(f"buffer_load_dwordx4 v12, s[36:39], s6 offen {sc} lds")
    a("s_mov_b64 exec, 0xf")
    a(f"ds_write_b128 v23, v[28:31] offset:{A2_X0+4096}")
    a(f"ds_write_b128 v23, v[28:31] offset:{A2_X2+4096}")
    a("s_mov_b64 exec, -1")
    srd(a, 32, P_Q, TSZ)
    a("v_and_b32 v13, 15, v1")
    a("s_lshl_b32 s6, s72, 8")
    a("s_lshl_b32 s7, s3, 5")
    a("s_add_u32 s6, s6, s7")
    a("v_add_u32 v9, s6, v13")
    a("v_lshrrev_b32 v13, 4, v1")
    a("v_lshlrev_b32 v13, 4, v13")
    a("s_lshl_b32 s61, s73, 7")
    a("v_add_u32 v8, s61, v13")
    a("v_mul_u32_u24 v14, 1280, v9")
    a("v_add_u32 v14, v14, v8")
    a("s_movk_i32 s6, 20480")
    a(f"buffer_load_dwordx4 v[192:195], v14, s[32:35], 0 offen {na}")
    a(f"buffer_load_dwordx4 v[196:199], v14, s[32:35], 0 offen offset:64 {na}")
    a(f"buffer_load_dwordx4 v[200:203], v14, s[32:35], s6 offen {na}")
    a(f"buffer_load_dwordx4 v[204:207], v14, s[32:35], s6 offen offset:64 {na}")
    a("s_waitcnt vmcnt(12)")
    a("v_lshlrev_b32 v21, 16, v16")
    a("v_add_f32 v21, s58, v21")
    a("v_cvt_pk_bf16_f32 v21, v21, v21")
    a("s_mov_b32 s6, 0xffff")
    a("v_bfi_b32 v16, s6, v21, v16")
    a("v_lshlrev_b32 v24, 16, v16")
    a("v_alignbit_b32 v25, v17, v16, 16")
    a("v_alignbit_b32 v26, v18, v17, 16")
    a("v_alignbit_b32 v27, v19, v18, 16")
    a("v_mov_b32 v22, s60")
    a("s_mov_b64 exec, 1")
    a(f"ds_write_b128 v22, v[16:19] offset:{A2_H0+448}")
    a(f"ds_write_b128 v22, v[24:27] offset:{A2_H1+448}")
    a("s_mov_b64 exec, -1")
    a("v_and_b32 v10, 15, v1")
    a("v_lshrrev_b32 v11, 4, v1")
    a("v_lshrrev_b32 v12, 1, v10")
    a("v_lshlrev_b32 v12, 6, v12")
    a("v_lshlrev_b32 v13, 4, v11")
    a("v_add_u32 v12, v12, v13")
    a("v_and_b32 v13, 1, v10")
    a(f"v_mov_b32 v14, {A2_H1}")
    a(f"v_mov_b32 v15, {A2_H0}")
    a("v_cmp_eq_u32 vcc, 1, v13")
    a("v_lshrrev_b32 v13, 1, v10")
    a("v_and_b32 v13, 1, v13")
    a("v_cndmask_b32 v14, v14, v15, vcc")
    a("v_add3_u32 v2, v12, v14, s60")
    a("v_lshlrev_b32 v12, 3, v13")
    a("v_lshrrev_b32 v14, 2, v10")
    a("v_lshlrev_b32 v14, 4, v14")
    a("v_add_u32 v12, v12, v14")
    a("v_lshlrev_b32 v14, 4, v11")
    a("v_sub_u32 v12, v14, v12")
    a(f"v_add_u32 v12, {2*1820 - 512*7}, v12")
    a(f"v_mov_b32 v14, {A2_X2}")
    a(f"v_mov_b32 v15, {A2_X0}")
    a("v_cndmask_b32 v14, v14, v15, vcc")
    a("v_add3_u32 v3, v12, v14, s60")
    for i in range(32):
        a(f"v_mov_b32 v{32+i}, 0")
    a("s_waitcnt vmcnt(4)")
    a("v_mov_b32 v22, s60")
    a("s_mov_b64 exec, 1")
    a(f"ds_write_b32 v22, v28 offset:{A2_X2+4092}")
    a("s_mov_b64 exec, -1")
    a("s_waitcnt lgkmcnt(0)")
    T.stamp(a, 6)

    def reads(A, B):
        r = []
        for aa in range(8):
            r.append(f"ds_read_b128 v[{A+4*aa}:{A+4*aa+3}], v2 offset:{512*aa}")
            r.append(f"ds_read_b64 v[{B+4*aa}:{B+4*aa+1}], v3 offset:{512*(7-aa)}")
            r.append(f"ds_read_b64 v[{B+4*aa+2}:{B+4*aa+3}], v3 offset:{512*(7-aa)+8}")
        r.append("v_add_u32 v2, 64, v2")
        r.append("v_add_u32 v3, 64, v3")
        return r

    def mfmas(A, B):
        r = []
        for t in range(8):
            for aa in range(t + 1):
                u = t - aa
                ac = 32 + 4 * t
                r.append(f"v_mfma_f32_16x16x32_bf16 v[{ac}:{ac+3}], v[{A+4*aa}:{A+4*aa+3}], v[{B+4*u}:{B+4*u+3}], v[{ac}:{ac+3}]")
        return r

    def interleave(m, r):
        for i, x in enumerate(m):
            a(x)
            if i < len(r):
                a(r[i])

    for x in reads(64, 96):
        a(x)
    a("s_mov_b32 s40, 0")
    loop, last = a.newlabel("A2L"), a.newlabel("A2E")
    a.label(loop)
    a("s_waitcnt lgkmcnt(0)")
    interleave(mfmas(64, 96), reads(128, 160))
    a("s_waitcnt lgkmcnt(0)")
    a("s_cmp_eq_u32 s40, 3")
    a(f"s_cbranch_scc1 {last}")
    interleave(mfmas(128, 160), reads(64, 96))
    a("s_add_u32 s40, s40, 1")
    a(f"s_branch {loop}")
    a.label(last)
    for x in mfmas(128, 160):
        a(x)
    T.stamp(a, 7)
    a("v_lshlrev_b32 v12, 5, v11")
    a("v_add_u32 v12, v12, v10")
    a("v_lshlrev_b32 v12, 2, v12")
    a("v_add_u32 v12, s60, v12")
    srd(a, 36, P_WS, TSZ, WS_YT)
    a("v_lshlrev_b32 v15, 4, v1")
    a("v_add_u32 v13, s60, v15")
    for t in range(8):
        ac = 32 + 4 * t
        d = 64 + 2 * t
        a(f"v_cvt_pk_bf16_f32 v{d}, v{ac}, v{ac+1}")
        a(f"v_cvt_pk_bf16_f32 v{d+1}, v{ac+2}, v{ac+3}")
        a(f"ds_write_b32 v12, v{d} offset:{512*t}")
        a(f"ds_write_b32 v12, v{d+1} offset:{512*t+64}")
    a("s_waitcnt lgkmcnt(0)")
    for i in range(4):
        a(f"ds_read_b128 v[{80+4*i}:{83+4*i}], v13 offset:{1024*i}")
    a("s_waitcnt lgkmcnt(0)")
    for i in range(4):
        a(f"s_add_u32 s6, s59, {1024*i}")
        a(f"buffer_store_dwordx4 v[{80+4*i}:{83+4*i}], v15, s[36:39], s6 offen {sc}")
    a("v_lshrrev_b32 v16, 5, v0")
    a("v_and_b32 v17, 31, v0")
    a("v_lshlrev_b32 v17, 4, v17")
    a("s_lshl_b32 s6, s73, 6")
    a("v_add_u32 v18, s6, v16")
    a("v_lshlrev_b32 v18, 12, v18")
    a("s_lshl_b32 s6, s72, 9")
    a("v_add3_u32 v18, v18, v17, s6")
    a(f"v_mul_u32_u24 v16, {Y_RS}, v16")
    a("v_add_u32 v16, v16, v17")
    a("s_waitcnt vmcnt(0)")
    a("s_barrier")
    lp = a.newlabel("AP")
    a("s_cmp_lg_u32 s3, 0")
    a(f"s_cbranch_scc1 {lp}")
    a("s_lshl_b32 s6, s73, 3")
    a("s_add_u32 s6, s6, s72")
    a("s_lshl_b32 s6, s6, 7")
    a(f"s_add_u32 s6, s6, {FL_A2}")
    a("v_mov_b32 v12, s6")
    a("v_mov_b32 v13, s44")
    a("s_mov_b64 exec, 1")
    a("buffer_store_dword v13, v12, s[48:51], 0 offen sc1")
    a("s_mov_b64 exec, -1")
    T.stamp(a, 8)
    a("s_lshl_b32 s6, s73, 10")
    a(f"s_add_u32 s6, s6, {FL_A2}")
    a("v_lshlrev_b32 v12, 7, v1")
    a("v_add_u32 v12, s6, v12")
    poll(a, 12, 8, 44, 48)
    le = a.newlabel("EU")
    a("s_cmp_lg_u32 s72, 0")
    a(f"s_cbranch_scc1 {le}")
    a("v_mov_b32 v11, s44")
    a("s_mov_b64 exec, 1")
    a("buffer_store_dword v11, v251, s[48:51], 0 offen sc1")
    a("s_mov_b64 exec, -1")
    a.label(le)
    a.label(lp)
    a("s_barrier")
    T.stamp(a, 9)
    a("s_mov_b32 s6, 0")
    for m in range(4):
        a(f"buffer_load_dwordx4 v[{64+4*m}:{67+4*m}], v18, s[36:39], s6 offen {sc}")
        if m < 3:
            a("s_add_u32 s6, s6, 65536")
    a("v_lshrrev_b32 v12, 4, v1")
    a("v_lshlrev_b32 v12, 3, v12")
    a("v_lshrrev_b32 v13, 2, v1")
    a("v_and_b32 v13, 3, v13")
    a("v_add_u32 v12, v12, v13")
    a(f"v_mul_u32_u24 v12, {Y_RS}, v12")
    a("v_and_b32 v13, 3, v1")
    a("v_lshlrev_b32 v13, 3, v13")
    a("s_lshl_b32 s6, s3, 6")
    a("v_add3_u32 v12, v12, v13, s6")
    srd(a, 32, P_OUT, 2048 * 2560)
    a("v_mul_u32_u24 v15, 2560, v9")
    a("v_add_u32 v15, v15, v8")
    for m in range(4):
        a(f"s_waitcnt vmcnt({3-m})")
        a(f"ds_write_b128 v16, v[{64+4*m}:{67+4*m}] offset:{16*Y_RS*m}")
    a("s_waitcnt lgkmcnt(0)")
    a("s_barrier")
    for m in range(4):
        off = (m & 1) * 32 * Y_RS + (m >> 1) * 32
        a(f"ds_read_b64_tr_b16 v[{64+4*m}:{65+4*m}], v12 offset:{off}")
        a(f"ds_read_b64_tr_b16 v[{66+4*m}:{67+4*m}], v12 offset:{off + 4*Y_RS}")
    a("s_waitcnt lgkmcnt(0)")
    no = OPT["nt_out"]
    a("s_mov_b32 s7, 40960")
    for m in range(4):
        for i in range(4):
            y = 64 + 4 * m + i
            q = 192 + 4 * m + i
            t = 80 + 4 * (i & 1)
            a(f"v_lshlrev_b32 v{t}, 16, v{y}")
            a(f"v_and_b32 v{t+1}, s57, v{y}")
            a(f"v_lshlrev_b32 v{t+2}, 16, v{q}")
            a(f"v_and_b32 v{t+3}, s57, v{q}")
            a(f"v_pk_mul_f32 v[{t}:{t+1}], v[{t}:{t+1}], v[{t+2}:{t+3}]")
            a(f"v_cvt_pk_bf16_f32 v{y}, v{t}, v{t+1}")
        so = "s7" if m >= 2 else "0"
        of = " offset:64" if (m & 1) else ""
        a(f"buffer_store_dwordx4 v[{64+4*m}:{67+4*m}], v15, s[32:35], {so} offen{of} {no}")
    T.stamp(a, 10)


def kdesc(name, vgpr=256, sgpr=102):
    return f""".amdhsa_kernel {name}
  .amdhsa_next_free_vgpr {vgpr}
  .amdhsa_next_free_sgpr {sgpr}
  .amdhsa_accum_offset {vgpr}
  .amdhsa_group_segment_fixed_size 0
  .amdhsa_kernarg_size 96
  .amdhsa_user_sgpr_count 2
  .amdhsa_user_sgpr_kernarg_segment_ptr 1
  .amdhsa_system_sgpr_workgroup_id_x 1
  .amdhsa_float_denorm_mode_32 3
  .amdhsa_float_denorm_mode_16_64 3
.end_amdhsa_kernel
"""


def gen(ts=False):
    out = "; concat_heads( H3-style ssm conv , sliding local dilated attention ) -- hand-written streams emitted by a python generator\n"
    out += "; @launch grid=(256,1,1) block=(512,1,1) lds=163840\n"
    out += '.amdgcn_target "amdgcn-amd-amdhsa--gfx950"\n.text\n'
    a = Asm()
    T = TS(ts)
    T.init(a)
    T.stamp(a, 0)
    if OPT.get("dbgt"):
        a("s_memrealtime s[96:97]")
        a("s_waitcnt lgkmcnt(0)")
        a("s_mov_b32 s79, s96")
    a("s_cmp_ge_u32 s2, 256")
    a("s_cbranch_scc1 K_END")
    a("s_load_dwordx16 s[8:23], s[0:1], 0")
    a("s_load_dwordx8 s[24:31], s[0:1], 64")
    a("v_lshrrev_b32 v2, 6, v0")
    a("v_and_b32 v1, 63, v0")
    a("s_and_b32 s4, s2, 7")
    a("v_readfirstlane_b32 s3, v2")
    a("s_lshr_b32 s5, s2, 3")
    a("s_waitcnt lgkmcnt(0)")
    role_decode(a)
    if OPT.get("only") == "A":
        a("s_branch K_END")
    b_program(a, T)
    a("s_branch K_FIN")
    a.label("A_ROLE")
    if OPT.get("only") == "B":
        a("s_branch K_END")
    a_program(a, T)
    a.label("K_FIN")
    if OPT.get("dbgt"):
        a("s_waitcnt vmcnt(0)")
        a("s_memrealtime s[96:97]")
        a("s_waitcnt lgkmcnt(0)")
        lab = a.newlabel("DBG")
        a("s_cmp_lg_u32 s3, 0")
        a(f"s_cbranch_scc1 {lab}")
        a("s_and_b32 s6, s2, 0x3f")
        a("s_cmp_lg_u32 s6, 0")
        a(f"s_cbranch_scc1 {lab}")
        srd(a, 92, P_DBG, 256)
        a("s_lshr_b32 s6, s2, 6")
        a("s_lshl_b32 s6, s6, 3")
        a("v_mov_b32 v2, s6")
        a("v_mov_b32 v4, s79")
        a("v_mov_b32 v5, s96")
        a("s_mov_b64 exec, 1")
        a("buffer_store_dwordx2 v[4:5], v2, s[92:95], 0 offen")
        a("s_waitcnt vmcnt(0)")
        a("s_mov_b64 exec, -1")
        a.label(lab)
    if ts:
        a("s_waitcnt vmcnt(0)")
        T.stamp(a, 15)
        T.flush(a)
    a.label("K_END")
    a("s_endpgm")
    out += f".globl {KNAME}\n.p2align 8\n.type {KNAME},@function\n{KNAME}:\n" + a.text()
    out += '.section .rodata,"a"\n.p2align 6\n' + kdesc(KNAME)
    return out


if __name__ == "__main__":
    mode = sys.argv[1] if len(sys.argv) > 1 else "plain"
    dst = sys.argv[2] if len(sys.argv) > 2 else "k4.s"
    for kv in sys.argv[3:]:
        k, v = kv.split("=")
        OPT[k] = v if k != "spin" else int(v)
    if mode == "tc":
        TS.INSTR = "s_memtime"
    open(dst, "w").write(gen(mode in ("ts", "tc")))
    print("wrote", dst)
```

```python
import sys

KNAME = "concat_heads__ssm_conv_h3__sliding_local_dilated__prompt_kernel"
TSZ = 640 * 4096
WS_OW = 0x0
WS_XT = 0x280000
WS_YT = 0x500000
WS_FL = 0x780000
FL_B = 0x0
FL_A1 = 0x6000
FL_A2 = 0x9000
FL_EB = 0xC000
FL_EA = 0xD000
WS_TS = 0x800000
OOB = 0x80000000

OPT = dict(b2dma=1, psleep=2, sc_oload="sc1", sc_ostore="sc1", nt_pf="", nt_a="", nt_h="", nt_x="", nt_w="", nt_out="", sc="sc1", spin=1 << 20)


class Asm:
    def __init__(self):
        self.l = []
        self.uid = 0

    def __call__(self, s=""):
        for line in s.split("\n"):
            line = line.strip()
            if line:
                self.l.append("    " + line)

    def label(self, name):
        self.l.append(name + ":")

    def newlabel(self, p="L"):
        self.uid += 1
        return f"{p}_{self.uid}"

    def text(self):
        return "\n".join(self.l) + "\n"


P_Q, P_K, P_V, P_SK, P_H, P_SD, P_X, P_W, P_WO, P_OUT, P_DBG, P_WS = [8 + 2 * i for i in range(12)]


def srd(a, dst, ptr, nbytes, off=0):
    if off:
        a(f"s_add_u32 s{dst}, s{ptr}, 0x{off:x}")
        a(f"s_addc_u32 s{dst+1}, s{ptr+1}, 0")
    else:
        a(f"s_mov_b32 s{dst}, s{ptr}")
        a(f"s_mov_b32 s{dst+1}, s{ptr+1}")
    a(f"s_mov_b32 s{dst+2}, 0x{nbytes:x}")
    a(f"s_mov_b32 s{dst+3}, 0x00020000")


class TS:
    INSTR = "s_memrealtime"

    def __init__(self, on):
        self.on = on
        self.n = 0

    def stamp(self, a, idx):
        if not self.on:
            return
        if OPT.get("stagets") and 3 <= idx < 14:
            return
        a(f"{TS.INSTR} s[96:97]")
        a("s_waitcnt lgkmcnt(0)")
        a(f"s_mov_b32 s{80+idx}, s96")

    def init(self, a):
        if not self.on:
            return
        for i in range(16):
            a(f"s_mov_b32 s{80+i}, 0")

    def flush(self, a):
        if not self.on:
            return
        srd(a, 96, P_WS, 0x40000, WS_TS)
        a("s_mov_b64 exec, 1")
        a("s_lshl_b32 s7, s2, 3")
        a("s_add_u32 s7, s7, s3")
        a("s_lshl_b32 s7, s7, 6")
        a("v_mov_b32 v3, s7")
        for i in range(16):
            a(f"v_mov_b32 v2, s{80+i}")
            a(f"buffer_store_dword v2, v3, s[96:99], 0 offen offset:{4*i}")
        a("s_waitcnt vmcnt(0)")
        a("s_mov_b64 exec, -1")


NRT = 13
B1_XSZ = NRT * 16 * 128
B1_STAGE = B1_XSZ + 16384
B1_NB = 3
QKV_RS = 400
O_LDS = 83200
B2_WA = 102400
B2_WB = 0
B2_O = 40960
B2_OST = 30720
ACC = 16
XA, XB, WA, WB = 120, 172, 224, 232


def role_decode(a):
    a("s_cmp_lt_u32 s4, 2")
    a("s_cselect_b32 s70, 16, 24")
    a("s_cmp_ge_u32 s5, s70")
    a("s_cbranch_scc1 A_ROLE")


def b_decode(a):
    a("s_cmp_eq_u32 s4, 1")
    a("s_cselect_b32 s71, 1, 0")
    a("s_cmp_ge_u32 s4, 5")
    a("s_cselect_b32 s71, 1, s71")
    a("s_cselect_b32 s7, 3, 0")
    a("s_sub_u32 s6, s4, 2")
    a("s_sub_u32 s6, s6, s7")
    a("s_mul_i32 s6, s6, 3")
    a("s_add_u32 s6, s6, 2")
    a("s_cmp_lt_u32 s4, 2")
    a("s_cselect_b32 s6, 0, s6")
    a("s_lshr_b32 s7, s5, 3")
    a("s_add_u32 s60, s6, s7")
    a("s_and_b32 s68, s5, 7")
    a("s_lshl_b32 s61, s71, 3")
    a("s_add_u32 s61, s61, s68")
    a("s_lshl_b32 s67, s60, 1")
    a("s_add_u32 s67, s67, s71")


def pf_x_addr(a, dst):
    a("v_and_b32 v10, 31, v1")
    a("s_mul_i32 s6, s68, 26")
    a("s_mul_i32 s7, s60, 192")
    a("s_add_u32 s6, s6, s7")
    a("s_sub_u32 s6, s6, 16")
    a("v_add_u32 v11, s6, v10")
    a("s_movk_i32 s7, 1280")
    a("v_mul_lo_u32 v11, v11, s7")
    a("v_lshrrev_b32 v12, 5, v1")
    a("v_lshlrev_b32 v12, 7, v12")
    a("v_add_u32 v11, v11, v12")
    a("v_cmp_gt_u32 vcc, 26, v10")
    a(f"v_mov_b32 v12, 0x{OOB:x}")
    a("s_nop 0")
    a(f"v_cndmask_b32 v{dst}, v12, v11, vcc")


def pf_w_addr(a, dst):
    a("s_cmp_eq_u32 s70, 16")
    a("s_cselect_b32 s6, 60, 40")
    a("s_mul_i32 s7, s5, s6")
    a("v_add_u32 v10, s7, v1")
    a("v_mul_u32_u24 v11, 4370, v10")
    a("v_lshrrev_b32 v11, 16, v11")
    a("v_mul_u32_u24 v12, 15, v11")
    a("v_sub_u32 v12, v10, v12")
    a("v_mul_u32_u24 v13, 52, v12")
    a("v_lshrrev_b32 v13, 8, v13")
    a("v_mul_u32_u24 v14, 5, v13")
    a("v_sub_u32 v14, v12, v14")
    a("v_mul_u32_u24 v11, 3840, v11")
    a("v_mul_u32_u24 v13, 1280, v13")
    a("v_lshlrev_b32 v14, 7, v14")
    a("v_add3_u32 v11, v11, v13, v14")
    a("s_mul_i32 s7, s71, 640")
    a("v_add_u32 v11, s7, v11")
    a("v_cmp_gt_u32 vcc, s6, v1")
    a(f"v_mov_b32 v12, 0x{OOB:x}")
    a("s_nop 0")
    a(f"v_cndmask_b32 v{dst}, v12, v11, vcc")


def b_initial_prefetch(a):
    npf = OPT["nt_pf"]
    srd(a, 32, P_X, TSZ)
    srd(a, 36, P_W, 640 * 3840)
    l1 = a.newlabel("IP")
    a("s_cmp_eq_u32 s3, 3")
    a(f"s_cbranch_scc1 {l1}")
    pf_w_addr(a, 2)
    a("s_mul_i32 s6, s3, 245760")
    a(f"buffer_load_dword v254, v2, s[36:39], s6 offen {npf}")
    a("s_cmp_eq_u32 s3, 2")
    a(f"s_cbranch_scc1 {l1}")
    pf_x_addr(a, 3)
    a("s_lshl_b32 s6, s3, 8")
    a(f"buffer_load_dword v255, v3, s[32:35], s6 offen {npf}")
    a.label(l1)


def b1_loader_setup(a):
    srd(a, 32, P_X, TSZ)
    srd(a, 36, P_W, 640 * 3840)
    a("s_sub_u32 s62, s3, 4")
    a("v_lshrrev_b32 v10, 3, v1")
    a("s_lshl_b32 s6, s62, 3")
    a("v_add_u32 v10, s6, v10")
    a("v_lshrrev_b32 v11, 1, v10")
    a("v_and_b32 v11, 7, v11")
    a("v_and_b32 v12, 7, v1")
    a("v_xor_b32 v11, v11, v12")
    a("v_lshlrev_b32 v11, 4, v11")
    a("s_mul_i32 s6, s60, 192")
    a("s_sub_u32 s6, s6, 16")
    a("v_add_u32 v10, s6, v10")
    a("s_movk_i32 s7, 1280")
    a("v_mul_lo_u32 v10, v10, s7")
    a("v_add_u32 v2, v10, v11")
    a("v_add_u32 v3, 40960, v2")
    a("v_lshrrev_b32 v10, 4, v1")
    a("v_and_b32 v12, 15, v1")
    a("s_mul_i32 s63, s61, 80")
    for which, dst in ((0, 5), (1, 6)):
        a("v_lshlrev_b32 v11, 1, v10")
        if which:
            a("v_add_u32 v11, 8, v11")
        a("v_xor_b32 v11, v11, v12")
        a("v_mul_u32_u24 v13, 52, v11")
        a("v_lshrrev_b32 v13, 8, v13")
        a("v_mul_u32_u24 v14, 5, v13")
        a("v_sub_u32 v14, v11, v14")
        a("v_mul_u32_u24 v13, 1280, v13")
        a("v_lshlrev_b32 v14, 4, v14")
        a("v_add3_u32 v13, v13, v14, s63")
        if OPT.get("walign"):
            a("v_lshlrev_b32 v13, 4, v11")
            a("s_lshl_b32 s6, s61, 7")
            a("v_add_u32 v13, s6, v13")
        a("s_lshl_b32 s6, s62, 4")
        if which:
            a("s_add_u32 s6, s6, 8")
        a("v_add_u32 v14, s6, v10")
        a("v_mul_u32_u24 v14, 3840, v14")
        a(f"v_add_u32 v{dst}, v14, v13")
        a("v_cmp_eq_u32 vcc, 15, v11")
        a(f"v_mov_b32 v13, 0x{OOB:x}")
        a("s_nop 0")
        a(f"v_cndmask_b32 v{dst}, v{dst}, v13, vcc")
    a("s_mov_b32 s41, 0")
    a("s_mov_b32 s42, 0")
    a("s_mov_b32 s43, 0")


def b1_issue_stage(a):
    nx, nw = OPT["nt_x"], OPT["nt_w"]
    a("s_lshl_b32 s6, s62, 10")
    a("s_add_u32 s6, s6, s43")
    a("s_mov_b32 m0, s6")
    a("s_mov_b32 s7, s41")
    a(f"buffer_load_dwordx4 v2, s[32:35], s41 offen {nx} lds")
    for m in range(1, 6):
        a(f"s_add_u32 m0, s6, {4096*m}")
        if m > 1:
            a("s_add_u32 s7, s7, 40960")
        else:
            a("s_nop 0")
        a(f"buffer_load_dwordx4 v3, s[32:35], s7 offen {nx} lds")
    l1 = a.newlabel("IS")
    a("s_cmp_lt_u32 s62, 2")
    a(f"s_cbranch_scc0 {l1}")
    a(f"s_add_u32 m0, s6, {4096*6}")
    a("s_add_u32 s7, s7, 40960")
    a(f"buffer_load_dwordx4 v3, s[32:35], s7 offen {nx} lds")
    a.label(l1)
    a("s_lshl_b32 s7, s62, 12")
    a("s_add_u32 s7, s7, s43")
    a(f"s_add_u32 s7, s7, {B1_XSZ}")
    a("s_mov_b32 m0, s7")
    a("s_add_u32 s46, s42, 15360")
    a(f"buffer_load_dwordx4 v5, s[36:39], s42 offen {nw} lds")
    a("s_add_u32 m0, s7, 1024")
    a("s_nop 0")
    a(f"buffer_load_dwordx4 v5, s[36:39], s46 offen {nw} lds")
    a("s_add_u32 m0, s7, 2048")
    a("s_nop 0")
    a(f"buffer_load_dwordx4 v6, s[36:39], s42 offen {nw} lds")
    a("s_add_u32 m0, s7, 3072")
    a("s_nop 0")
    a(f"buffer_load_dwordx4 v6, s[36:39], s46 offen {nw} lds")
    a("s_add_u32 s41, s41, 128")
    a("s_add_u32 s42, s42, 245760")
    a(f"s_add_u32 s43, s43, {B1_STAGE}")
    a(f"s_cmp_ge_u32 s43, {B1_STAGE*B1_NB}")
    a("s_cselect_b32 s43, 0, s43")


def lwait(a, nb, extra):
    l1, l2 = a.newlabel("LW"), a.newlabel("LW")
    a("s_cmp_lt_u32 s62, 2")
    a(f"s_cbranch_scc0 {l1}")
    a(f"s_waitcnt vmcnt({11*nb+extra})")
    a(f"s_branch {l2}")
    a.label(l1)
    a(f"s_waitcnt vmcnt({10*nb+extra})")
    a.label(l2)


def wo_dma_addr(a):
    for j in range(5):
        a(f"v_add_u32 v10, {64*j}, v1")
        a("v_mul_u32_u24 v11, 6554, v10")
        a("v_lshrrev_b32 v11, 16, v11")
        a("v_mul_u32_u24 v12, 10, v11")
        a("v_sub_u32 v12, v10, v12")
        a("v_lshrrev_b32 v13, 4, v11")
        a("v_lshlrev_b32 v13, 2, v13")
        a("v_and_b32 v14, 3, v11")
        a("v_add_u32 v13, v13, v14")
        a("v_lshrrev_b32 v14, 2, v11")
        a("v_and_b32 v14, 3, v14")
        a("v_lshlrev_b32 v14, 3, v14")
        a("v_add_u32 v13, v13, v14")
        a("v_mul_u32_u24 v13, 1280, v13")
        a("v_lshlrev_b32 v12, 4, v12")
        a("s_mul_i32 s6, s68, 160")
        a(f"v_add3_u32 v{230+j}, v13, v12, s6")


def wo_dma_blocks(a, first, n, lds_of_first):
    a(f"s_add_u32 s47, s62, {first}")
    loop, done = a.newlabel("WO"), a.newlabel("WO")
    a.label(loop)
    a(f"s_cmp_ge_u32 s47, {first+n}")
    a(f"s_cbranch_scc1 {done}")
    a("s_mul_i32 s7, s47, 40960")
    a("s_mul_i32 s6, s47, 5120")
    a(f"s_add_u32 s6, s6, 0x{(lds_of_first - first*5120) & 0xffffffff:x}")
    for j in range(5):
        a(f"s_add_u32 m0, s6, {1024*j}")
        a("s_nop 0")
        a(f"buffer_load_dwordx4 v{230+j}, s[56:59], s7 offen lds")
    a("s_add_u32 s47, s47, 4")
    a(f"s_branch {loop}")
    a.label(done)


def NPFL():
    return 0 if int(OPT.get('apf', 1)) else 3


def b_later_prefetch(a):
    npf = OPT["nt_pf"]
    a(f"v_mov_b32 v4, 0x{OOB:x}")
    a("s_add_u32 s6, s62, 3")
    a("s_mul_i32 s6, s6, 245760")
    a(f"buffer_load_dword v235, v8, s[36:39], s6 offen {npf}")
    a("s_cmp_lt_u32 s62, 3")
    a("s_cselect_b64 vcc, -1, 0")
    a("v_cndmask_b32 v10, v4, v9, vcc")
    a("s_add_u32 s6, s62, 2")
    a("s_lshl_b32 s6, s6, 8")
    a(f"buffer_load_dword v236, v10, s[32:35], s6 offen {npf}")
    a("v_cndmask_b32 v10, v4, v8, vcc")
    a("s_add_u32 s6, s62, 7")
    a("s_mul_i32 s6, s6, 245760")
    a(f"buffer_load_dword v237, v10, s[36:39], s6 offen {npf}")


def b1_loader(a, T):
    b1_loader_setup(a)
    pf_w_addr(a, 8)
    pf_x_addr(a, 9)
    srd(a, 56, P_WO, 640 * 1280)
    wo_dma_addr(a)
    att_setup(a)
    o_store_setup(a)
    srd(a, 48, P_WS, TSZ, WS_OW)
    a("s_barrier")
    a("s_mov_b32 s40, 0")
    l0 = a.newlabel("LP")
    a.label(l0)
    b1_issue_stage(a)
    a("s_add_u32 s40, s40, 1")
    lP = a.newlabel("LP")
    a("s_cmp_eq_u32 s40, 2")
    a(f"s_cbranch_scc0 {lP}")
    T.stamp(a, 1)
    lwait(a, 1, 0)
    a("s_barrier")
    a.label(lP)
    a("s_cmp_lt_u32 s40, 3")
    a(f"s_cbranch_scc1 {l0}")
    if NPFL():
        b_later_prefetch(a)
    a("s_mov_b32 s40, 0")
    loop = a.newlabel("LL")
    lA, lB, lC, lD, lW = [a.newlabel("LLx") for _ in range(5)]
    a.label(loop)
    a("s_cmp_lt_u32 s40, 2")
    a(f"s_cbranch_scc1 {lA}")
    a("s_cmp_lt_u32 s40, 8")
    a(f"s_cbranch_scc1 {lB}")
    a("s_cmp_eq_u32 s40, 8")
    a(f"s_cbranch_scc1 {lC}")
    a(f"s_branch {lW}")
    a.label(lA)
    lwait(a, 1, NPFL())
    a(f"s_branch {lW}")
    a.label(lB)
    lwait(a, 1, 0)
    a(f"s_branch {lW}")
    a.label(lC)
    a("s_waitcnt vmcnt(5)")
    a.label(lW)
    a("s_barrier")
    skip, s7, s8, nxt = a.newlabel("LLS"), a.newlabel("LL7"), a.newlabel("LL8"), a.newlabel("LLN")
    a("s_cmp_ge_u32 s40, 7")
    a(f"s_cbranch_scc1 {skip}")
    b1_issue_stage(a)
    a(f"s_branch {nxt}")
    a.label(skip)
    a("s_cmp_eq_u32 s40, 7")
    a(f"s_cbranch_scc0 {s8}")
    wo_dma_blocks(a, 6, 6, B2_WA + 6 * 5120)
    a(f"s_branch {nxt}")
    a.label(s8)
    a("s_cmp_eq_u32 s40, 8")
    a(f"s_cbranch_scc0 {nxt}")
    wo_dma_blocks(a, 0, 6, B2_WA)
    a.label(nxt)
    a("s_add_u32 s40, s40, 1")
    a("s_cmp_lt_u32 s40, 10")
    a(f"s_cbranch_scc1 {loop}")


def b1_compute(a, T):
    a("v_and_b32 v10, 15, v1")
    a("v_lshrrev_b32 v11, 4, v1")
    a("v_lshrrev_b32 v12, 1, v10")
    a("v_xor_b32 v12, v12, v11")
    a("v_lshlrev_b32 v12, 4, v12")
    a("v_lshlrev_b32 v10, 7, v10")
    a("v_add_u32 v2, v10, v12")
    a("v_xor_b32 v3, 64, v2")
    a("v_lshrrev_b32 v10, 2, v1")
    a("v_and_b32 v10, 3, v10")
    a("v_and_b32 v12, 3, v1")
    a("v_lshlrev_b32 v13, 3, v11")
    a("v_add_u32 v13, v13, v10")
    a("v_lshlrev_b32 v13, 8, v13")
    a("v_and_b32 v14, 1, v11")
    a("v_lshlrev_b32 v14, 3, v14")
    a("v_lshlrev_b32 v10, 1, v10")
    a("v_add_u32 v14, v14, v10")
    a("v_lshrrev_b32 v15, 1, v12")
    a("s_lshl_b32 s6, s3, 2")
    a("v_add_u32 v15, s6, v15")
    a("v_xor_b32 v15, v15, v14")
    a("v_lshlrev_b32 v15, 4, v15")
    a("v_and_b32 v12, 1, v12")
    a("v_lshlrev_b32 v12, 3, v12")
    a("v_add3_u32 v13, v13, v15, v12")
    a(f"v_add_u32 v4, {B1_XSZ}, v13")
    a("v_xor_b32 v5, 32, v4")
    for i in range(NRT * 8):
        a(f"v_mov_b32 v{ACC+i}, 0")
    att_setup(a)
    a("v_and_b32 v10, 15, v1")
    a(f"v_mul_u32_u24 v10, {QKV_RS}, v10")
    a("v_lshrrev_b32 v11, 4, v1")
    a("s_lshl_b32 s6, s3, 3")
    a("v_add_u32 v11, s6, v11")
    for ct in range(2):
        if ct:
            a("v_add_u32 v11, 4, v11")
        a("v_mul_u32_u24 v6, 52, v11")
        a("v_lshrrev_b32 v6, 8, v6")
        a("v_mul_u32_u24 v7, 5, v6")
        a("v_sub_u32 v7, v11, v7")
        a("v_lshlrev_b32 v6, 6, v6")
        a("v_lshlrev_b32 v7, 3, v7")
        a(f"v_add3_u32 v{12+ct}, v10, v6, v7")
        a(f"v_add_u32 v{14+ct}, {8*16*QKV_RS}, v{12+ct}")

    def reads(xaddr, waddr0, waddr1, ks, X, W):
        r = []
        r.append(f"ds_read_b64_tr_b16 v[{W}:{W+1}], v{waddr0} offset:{8192*ks}")
        r.append(f"ds_read_b64_tr_b16 v[{W+2}:{W+3}], v{waddr0} offset:{8192*ks+1024}")
        r.append(f"ds_read_b64_tr_b16 v[{W+4}:{W+5}], v{waddr1} offset:{8192*ks}")
        r.append(f"ds_read_b64_tr_b16 v[{W+6}:{W+7}], v{waddr1} offset:{8192*ks+1024}")
        for t in range(NRT):
            r.append(f"ds_read_b128 v[{X+4*t}:{X+4*t+3}], v{xaddr} offset:{2048*t}")
        return r

    def mfmas(X, W):
        r = []
        for t in range(NRT):
            for ct in range(2):
                ac = ACC + (ct * NRT + t) * 4
                r.append(f"v_mfma_f32_16x16x32_bf16 v[{ac}:{ac+3}], v[{W+4*ct}:{W+4*ct+3}], v[{X+4*t}:{X+4*t+3}], v[{ac}:{ac+3}]")
        return r

    def inter(m, r):
        if OPT.get("nomfma"):
            return
        for i, x in enumerate(m):
            a(x)
            if i < len(r):
                a(r[i])

    a("s_waitcnt vmcnt(0)")
    a("s_barrier")
    T.stamp(a, 1)
    a("s_barrier")
    T.stamp(a, 2)
    a("v_mov_b32 v6, v2")
    a("v_mov_b32 v7, v3")
    a("v_mov_b32 v8, v4")
    a("v_mov_b32 v9, v5")
    for x in reads(6, 8, 9, 0, XA, WA):
        a(x)
    a("s_mov_b32 s40, 0")
    a("s_mov_b32 s44, 0")
    loop, last = a.newlabel("CL"), a.newlabel("CE")
    a.label(loop)
    a("s_waitcnt lgkmcnt(0)")
    inter(mfmas(XA, WA), reads(7, 8, 9, 1, XB, WB))
    a(f"s_add_u32 s44, s44, {B1_STAGE}")
    a(f"s_cmp_ge_u32 s44, {B1_STAGE*B1_NB}")
    a("s_cselect_b32 s44, 0, s44")
    a("v_add_u32 v6, s44, v2")
    a("v_add_u32 v7, s44, v3")
    a("v_add_u32 v8, s44, v4")
    a("v_add_u32 v9, s44, v5")
    a("s_waitcnt lgkmcnt(0)")
    a("s_barrier")
    if OPT.get("stagets") and T.on:
        a(f"{TS.INSTR} s[96:97]")
        a("s_waitcnt lgkmcnt(0)")
        for i in range(10):
            a(f"s_cmp_eq_u32 s40, {i}")
            a(f"s_cselect_b32 s{83+i}, s96, s{83+i}")
    a("s_cmp_eq_u32 s40, 9")
    a(f"s_cbranch_scc1 {last}")
    inter(mfmas(XB, WB), reads(6, 8, 9, 0, XA, WA))
    a("s_add_u32 s40, s40, 1")
    a(f"s_branch {loop}")
    a.label(last)
    m = mfmas(XB, WB)

    def wr(t, ct, k):
        ac = ACC + (ct * NRT + t) * 4
        d = XA + 2 * (k % 16)
        r = [f"v_cvt_pk_bf16_f32 v{d}, v{ac}, v{ac+1}", f"v_cvt_pk_bf16_f32 v{d+1}, v{ac+2}, v{ac+3}"]
        if t < 8:
            r.append(f"ds_write_b64 v{12+ct}, v[{d}:{d+1}] offset:{16*QKV_RS*t}")
        else:
            r.append(f"ds_write_b64 v{14+ct}, v[{d}:{d+1}] offset:{16*QKV_RS*(t-8)}")
        return r
    k = 0
    pend = []
    LAG = 8
    for i, x in enumerate(m):
        a(x)
        pend.append((i // 2, i % 2))
        if i >= LAG:
            t, ct = pend.pop(0)
            for y in wr(t, ct, k):
                a(y)
            k += 1
    a("s_nop 7")
    for (t, ct) in pend:
        for y in wr(t, ct, k):
            a(y)
        k += 1


def b1_epi_loader(a):
    a("v_and_b32 v10, 255, v0")
    a("v_mov_b32 v16, 0")
    a("v_mov_b32 v17, 0")
    a("v_mov_b32 v18, 0")
    a("v_mov_b32 v19, 0")
    a("v_lshrrev_b32 v11, 2, v10")
    a("v_and_b32 v12, 3, v10")
    a(f"v_mul_u32_u24 v11, {QKV_RS}, v11")
    a("v_lshlrev_b32 v12, 6, v12")
    a("v_add_u32 v11, v11, v12")
    for it in range(4):
        off = it * 64 * QKV_RS
        if it == 3:
            a("v_cmp_gt_u32 vcc, 64, v10")
            a("s_and_saveexec_b64 s[6:7], vcc")
        if it == 2:
            a(f"v_add_u32 v11, {2*64*QKV_RS}, v11")
        o2 = off if it < 2 else off - 2 * 64 * QKV_RS
        a(f"ds_write_b64 v11, v[16:17] offset:{o2+40}")
        a(f"ds_write_b128 v11, v[16:19] offset:{o2+48}")
        if it == 3:
            a("s_mov_b64 exec, s[6:7]")


KP0, KC0, KP1, KC1, NEG, KQB, VB, OB = 240, 241, 242, 243, 248, 249, 252, 253
S_PAR, S_M0, S_M1 = 64, 72, 74
S_D1, S_D2, S_O1, S_O2 = 76, 77, 66, 78


def att_setup(a):
    R16 = 16 * QKV_RS
    a("v_and_b32 v10, 15, v1")
    a("v_lshrrev_b32 v11, 4, v1")
    a(f"v_mov_b32 v{NEG}, 0xf149f2ca")
    a("v_and_b32 v12, 1, v10")
    a(f"v_cmp_eq_u32 s[{S_PAR}:{S_PAR+1}], 1, v12")
    a("v_lshlrev_b32 v13, 2, v11")
    a("v_add_u32 v13, v13, v12")
    a(f"v_cmp_le_u32 s[{S_M0}:{S_M0+1}], v13, v10")
    a("v_add_u32 v13, 2, v13")
    a(f"v_cmp_le_u32 s[{S_M1}:{S_M1+1}], v13, v10")
    a("v_mov_b32 v14, 0xffff")
    a("v_mov_b32 v15, 0xffff0000")
    a(f"v_cndmask_b32 v14, v14, v15, s[{S_PAR}:{S_PAR+1}]")
    a("v_mov_b32 v15, 0")
    a(f"v_cndmask_b32 v{KC0}, v15, v14, s[{S_M0}:{S_M0+1}]")
    a(f"v_cndmask_b32 v{KP0}, v14, v15, s[{S_M0}:{S_M0+1}]")
    a(f"v_cndmask_b32 v{KC1}, v15, v14, s[{S_M1}:{S_M1+1}]")
    a(f"v_cndmask_b32 v{KP1}, v14, v15, s[{S_M1}:{S_M1+1}]")
    a("s_mul_i32 s46, s3, 3")
    a("s_lshr_b32 s6, s46, 1")
    a("s_and_b32 s7, s46, 1")
    a(f"s_mul_i32 s45, s6, {R16}")
    a("s_lshl_b32 s47, s7, 6")
    a("s_add_u32 s45, s45, s47")
    a("s_mul_i32 s47, s6, 1280")
    a("s_mul_i32 s6, s7, 40")
    a("s_add_u32 s47, s47, s6")
    a("s_cmp_eq_u32 s7, 0")
    a(f"s_cselect_b32 s{S_D1}, 64, {R16-64}")
    a(f"s_mov_b32 s{S_D2}, {R16}")
    a(f"s_cselect_b32 s{S_O1}, 40, {1280-40}")
    a(f"s_mov_b32 s{S_O2}, 1280")
    a(f"v_mul_u32_u24 v12, {QKV_RS}, v10")
    a("v_lshlrev_b32 v13, 4, v11")
    a(f"v_add3_u32 v{KQB}, v12, v13, s45")
    a("v_lshrrev_b32 v12, 2, v1")
    a("v_and_b32 v12, 3, v12")
    a("v_lshlrev_b32 v13, 2, v11")
    a("v_add_u32 v12, v12, v13")
    a(f"v_mul_u32_u24 v12, {QKV_RS}, v12")
    a("v_and_b32 v13, 3, v1")
    a("v_lshlrev_b32 v13, 3, v13")
    a(f"v_add3_u32 v{VB}, v12, v13, s45")
    a("v_mul_u32_u24 v12, 80, v10")
    a("v_lshlrev_b32 v13, 3, v11")
    a("v_add3_u32 v12, v12, v13, s47")
    a(f"v_add_u32 v{OB}, {O_LDS}, v12")


def attention(a, T=None):
    R16 = 16 * QKV_RS
    U = [32 + 48 * u for u in range(3)]
    kq = [KQB, U[1] + 36, U[2] + 36]
    vv = [VB, U[1] + 37, U[2] + 37]
    oo = [OB, U[1] + 38, U[2] + 38]
    a(f"v_add_u32 v{kq[1]}, s{S_D1}, v{KQB}")
    a(f"v_add_u32 v{kq[2]}, s{S_D2}, v{KQB}")
    for u in range(3):
        b = U[u]
        a(f"ds_read_b128 v[{b}:{b+3}], v{kq[u]} offset:{R16}")
        a(f"ds_read_b128 v[{b+4}:{b+7}], v{kq[u]} offset:128")
        a(f"ds_read_b128 v[{b+8}:{b+11}], v{kq[u]} offset:{R16+128}")
    a(f"v_add_u32 v{vv[1]}, s{S_D1}, v{VB}")
    a(f"v_add_u32 v{vv[2]}, s{S_D2}, v{VB}")
    for u in range(3):
        b = U[u]
        a(f"ds_read_b64_tr_b16 v[{b+12}:{b+13}], v{vv[u]} offset:256")
        a(f"ds_read_b64_tr_b16 v[{b+14}:{b+15}], v{vv[u]} offset:{R16+256}")
        a(f"ds_read_b64_tr_b16 v[{b+16}:{b+17}], v{vv[u]} offset:{256+32}")
        a(f"ds_read_b64_tr_b16 v[{b+18}:{b+19}], v{vv[u]} offset:{R16+256+32}")
    a(f"v_add_u32 v{oo[1]}, s{S_O1}, v{OB}")
    a(f"v_add_u32 v{oo[2]}, s{S_O2}, v{OB}")
    a("s_mov_b32 s45, 0x3ea52b5c")
    a("s_waitcnt lgkmcnt(12)")
    for u in range(3):
        b = U[u]
        a(f"v_mfma_f32_16x16x32_bf16 v[{b+20}:{b+23}], v[{b+4}:{b+7}], v[{b}:{b+3}], 0")
        a(f"v_mfma_f32_16x16x32_bf16 v[{b+24}:{b+27}], v[{b+8}:{b+11}], v[{b}:{b+3}], 0")
    a("s_nop 7")

    def each(f):
        for step in zip(*[f(U[u]) for u in range(3)]):
            for x in step:
                a(x)
    P_, M0_, M1_ = f"s[{S_PAR}:{S_PAR+1}]", f"s[{S_M0}:{S_M0+1}]", f"s[{S_M1}:{S_M1+1}]"
    each(lambda b: [f"v_cndmask_b32 v{b+20}, v{b+20}, v{b+21}, {P_}",
                    f"v_cndmask_b32 v{b+22}, v{b+22}, v{b+23}, {P_}",
                    f"v_cndmask_b32 v{b+24}, v{b+24}, v{b+25}, {P_}",
                    f"v_cndmask_b32 v{b+26}, v{b+26}, v{b+27}, {P_}"])
    lsp = a.newlabel("ATS")
    a("s_or_b32 s6, s60, s3")
    a("s_cmp_lg_u32 s6, 0")
    a(f"s_cbranch_scc1 {lsp}")
    for u in range(2):
        a(f"v_mov_b32 v{U[u]+20}, v{NEG}")
        a(f"v_mov_b32 v{U[u]+22}, v{NEG}")
    a.label(lsp)
    each(lambda b: [f"v_cndmask_b32 v{b+20}, v{b+20}, v{b+24}, {M0_}",
                    f"v_cndmask_b32 v{b+22}, v{b+22}, v{b+26}, {M1_}",
                    f"v_max_f32 v{b+28}, v{b+20}, v{b+22}",
                    f"v_mov_b32 v{b+29}, v{b+28}",
                    f"v_permlane32_swap_b32 v{b+28}, v{b+29}",
                    f"v_max_f32 v{b+28}, v{b+28}, v{b+29}",
                    f"v_mov_b32 v{b+29}, v{b+28}",
                    f"v_permlane16_swap_b32 v{b+28}, v{b+29}",
                    f"v_max_f32 v{b+28}, v{b+28}, v{b+29}",
                    f"v_mul_f32 v{b+28}, s45, v{b+28}",
                    f"v_fma_f32 v{b+20}, v{b+20}, s45, -v{b+28}",
                    f"v_fma_f32 v{b+22}, v{b+22}, s45, -v{b+28}",
                    f"v_exp_f32 v{b+20}, v{b+20}",
                    f"v_exp_f32 v{b+22}, v{b+22}",
                    f"v_add_f32 v{b+28}, v{b+20}, v{b+22}",
                    f"v_mov_b32 v{b+29}, v{b+28}",
                    f"v_permlane32_swap_b32 v{b+28}, v{b+29}",
                    f"v_add_f32 v{b+28}, v{b+28}, v{b+29}",
                    f"v_mov_b32 v{b+29}, v{b+28}",
                    f"v_permlane16_swap_b32 v{b+28}, v{b+29}",
                    f"v_add_f32 v{b+28}, v{b+28}, v{b+29}",
                    f"v_rcp_f32 v{b+28}, v{b+28}",
                    f"v_mul_f32 v{b+20}, v{b+20}, v{b+28}",
                    f"v_mul_f32 v{b+22}, v{b+22}, v{b+28}",
                    f"v_cvt_pk_bf16_f32 v{b+20}, v{b+20}, v{b+20}",
                    f"v_cvt_pk_bf16_f32 v{b+22}, v{b+22}, v{b+22}",
                    f"v_and_b32 v{b+40}, v{KP0}, v{b+20}",
                    f"v_and_b32 v{b+41}, v{KP1}, v{b+22}",
                    f"v_and_b32 v{b+42}, v{KC0}, v{b+20}",
                    f"v_and_b32 v{b+43}, v{KC1}, v{b+22}"])
    a("s_waitcnt lgkmcnt(0)")
    for u in range(3):
        b = U[u]
        a(f"v_mfma_f32_16x16x32_bf16 v[{b}:{b+3}], v[{b+12}:{b+15}], v[{b+40}:{b+43}], 0")
        a(f"v_mfma_f32_16x16x32_bf16 v[{b+4}:{b+7}], v[{b+16}:{b+19}], v[{b+40}:{b+43}], 0")
    a("s_nop 7")
    for u in range(3):
        b = U[u]
        a(f"v_cvt_pk_bf16_f32 v{b+8}, v{b}, v{b+1}")
        a(f"v_cvt_pk_bf16_f32 v{b+9}, v{b+2}, v{b+3}")
        a(f"v_cvt_pk_bf16_f32 v{b+10}, v{b+4}, v{b+5}")
        a(f"v_cvt_pk_bf16_f32 v{b+11}, v{b+6}, v{b+7}")
        a(f"ds_write_b64 v{oo[u]}, v[{b+8}:{b+9}]")
    a("s_mov_b64 exec, 0xffff")
    for u in range(3):
        b = U[u]
        a(f"ds_write_b64 v{oo[u]}, v[{b+10}:{b+11}] offset:32")
    a("s_mov_b64 exec, -1")


def epoch_issue(a, vdst, vtmp, srdn, off_expr_sgpr):
    srd(a, srdn, P_WS, 0x10000, WS_FL)
    a(f"v_mov_b32 v{vtmp}, s{off_expr_sgpr}")
    a(f"buffer_load_dword v{vdst}, v{vtmp}, s[{srdn}:{srdn+3}], 0 offen sc1")


def poll(a, vaddr, n_lanes, tag_s, srdn):
    l0, l1 = a.newlabel("PF"), a.newlabel("PF")
    a("s_mov_b32 s45, 0")
    if n_lanes < 64:
        a(f"s_mov_b64 exec, 0x{(1 << n_lanes) - 1:x}")
    a.label(l0)
    a(f"buffer_load_dword v4, v{vaddr}, s[{srdn}:{srdn+3}], 0 offen sc1")
    a("s_waitcnt vmcnt(0)")
    a(f"v_cmp_ne_u32 vcc, s{tag_s}, v4")
    a("s_add_u32 s45, s45, 1")
    a("s_nop 3")
    a(f"s_cbranch_vccz {l1}")
    a(f"s_cmp_gt_u32 s45, {OPT['spin']}")
    a(f"s_cbranch_scc1 {l1}")
    a(f"s_sleep {OPT['psleep']}")
    a(f"s_branch {l0}")
    a.label(l1)
    if n_lanes < 64:
        a("s_mov_b64 exec, -1")


def o_store_setup(a):
    a("v_and_b32 v10, 255, v0")
    a("v_lshlrev_b32 v10, 4, v10")
    a(f"v_add_u32 v216, {O_LDS}, v10")
    a("s_mul_i32 s6, s61, 163840")
    a("s_mul_i32 s7, s60, 15360")
    a("s_add_u32 s6, s6, s7")
    a("v_add_u32 v12, s6, v10")
    a("s_movk_i32 s7, 15360")
    a("s_cmp_eq_u32 s60, 10")
    a("s_cselect_b32 s7, 10240, s7")
    a(f"v_mov_b32 v14, 0x{OOB:x}")
    for i in range(4):
        a(f"v_add_u32 v{217+i}, {4096*i}, v12")
        a(f"v_add_u32 v13, {4096*i}, v10")
        a("v_cmp_gt_u32 vcc, s7, v13")
        a("s_nop 1")
        a(f"v_cndmask_b32 v{217+i}, v14, v{217+i}, vcc")


def o_store(a):
    sc = OPT["sc_ostore"]
    for i in range(4):
        a(f"ds_read_b128 v[{16+4*i}:{19+4*i}], v216 offset:{4096*i}")
    a("s_waitcnt lgkmcnt(0)")
    for i in range(4):
        a(f"buffer_store_dwordx4 v[{16+4*i}:{19+4*i}], v{217+i}, s[48:51], 0 offen {sc}")


def b2_o_addr(a, dst):
    a("s_lshl_b32 s6, s47, 10")
    a("v_add_u32 v10, s6, v239")
    a("v_lshrrev_b32 v11, 9, v10")
    a("v_mul_u32_u24 v11, 4370, v11")
    a("v_lshrrev_b32 v11, 16, v11")
    a("v_mul_u32_u24 v11, 156160, v11")
    a(f"v_add_u32 v{dst}, v10, v11")


def b2_loader_setup(a):
    for i in range(8):
        a(f"s_add_u32 s47, s62, {4*i}")
        b2_o_addr(a, 224 + i)
    a("s_cmp_lt_u32 s62, 2")
    a("s_cselect_b64 vcc, -1, 0")
    a(f"v_mov_b32 v10, 0x{OOB:x}")
    a("v_cndmask_b32 v231, v10, v231, vcc")
    a("s_mul_i32 s49, s67, 7680")


def b2_loader(a, T):
    sc = OPT["sc_oload"]

    def soff(st):
        a(f"s_add_u32 s50, s68, {st}")
        a("s_and_b32 s50, s50, 1")
        a(f"s_add_u32 s50, s50, s{75 if st < 2 else 63}")
        a("s_mul_i32 s50, s50, 655360")
        a("s_add_u32 s50, s50, s49")

    def dma(st):
        soff(st)
        a("s_lshl_b32 s6, s62, 10")
        a(f"s_add_u32 s6, s6, {B2_O + (st & 1)*B2_OST}")
        for i in range(8):
            lab = None
            if i == 7:
                lab = a.newlabel("O7")
                a("s_cmp_ge_u32 s62, 2")
                a(f"s_cbranch_scc1 {lab}")
            a(f"s_add_u32 m0, s6, {4096*i}")
            a("s_nop 0")
            a(f"buffer_load_dwordx4 v{224+i}, s[52:55], s50 offen {sc} lds")
            if lab:
                a.label(lab)

    def vload(st):
        soff(st)
        for i in range(8):
            d = 16 + 32 * (st - 2) + 4 * i
            a(f"buffer_load_dwordx4 v[{d}:{d+3}], v{224+i}, s[52:55], s50 offen {sc}")

    def lwrite(st):
        for i in range(8):
            d = 16 + 32 * (st - 2) + 4 * i
            lab = None
            if i == 7:
                lab = a.newlabel("O7")
                a("s_cmp_ge_u32 s62, 2")
                a(f"s_cbranch_scc1 {lab}")
            a(f"ds_write_b128 v10, v[{d}:{d+3}] offset:{(st & 1) * B2_OST + 4096*i}")
            if lab:
                a.label(lab)
        a("s_waitcnt lgkmcnt(0)")

    a("v_lshlrev_b32 v10, 4, v1")
    a("s_lshl_b32 s6, s62, 10")
    a(f"s_add_u32 s6, s6, {B2_O}")
    a("v_add_u32 v10, s6, v10")
    T.stamp(a, 2)
    dma(0)
    T.stamp(a, 4)
    dma(1)
    T.stamp(a, 5)
    a("s_waitcnt vmcnt(7)")
    if not OPT.get('attts'): T.stamp(a, 10)
    a("s_barrier")
    if OPT.get("b2dma"):
        lq = a.newlabel("P2")
        a("s_cmp_lg_u32 s62, 0")
        a(f"s_cbranch_scc1 {lq}")
        a("s_lshl_b32 s6, s60, 11")
        a("s_lshl_b32 s7, s63, 9")
        a("s_add_u32 s6, s6, s7")
        a("v_lshlrev_b32 v12, 7, v1")
        a("v_add_u32 v12, s6, v12")
        poll(a, 12, 8, 44, 36)
        le = a.newlabel("EU")
        a("s_cmp_lg_u32 s61, 0")
        a(f"s_cbranch_scc1 {le}")
        a("v_mov_b32 v11, s44")
        a("s_mov_b64 exec, 1")
        a("buffer_store_dword v11, v251, s[36:39], 0 offen sc1")
        a("s_mov_b64 exec, -1")
        a.label(le)
        a.label(lq)
        a("s_waitcnt vmcnt(0)")
        a("s_barrier")
        dma(2)
        a("s_waitcnt vmcnt(0)")
        a("s_barrier")
        dma(3)
        a("s_waitcnt vmcnt(0)")
        a("s_barrier")
        return
    vload(2)
    a("s_waitcnt vmcnt(8)")
    if not OPT.get('attts'): T.stamp(a, 11)
    a("s_barrier")
    vload(3)
    a("s_waitcnt vmcnt(8)")
    if not OPT.get('attts'): T.stamp(a, 12)
    lwrite(2)
    a("s_barrier")
    a("s_waitcnt vmcnt(0)")
    if not OPT.get('attts'): T.stamp(a, 13)
    lwrite(3)
    a("s_barrier")


def b2_compute_setup(a):
    a("v_and_b32 v10, 15, v1")
    a("v_lshrrev_b32 v11, 4, v1")
    a("s_and_b32 s6, s3, 1")
    a("s_mul_i32 s6, s6, 48")
    a("v_add_u32 v10, s6, v10")
    a("v_mul_u32_u24 v10, 80, v10")
    for ks in range(5):
        a(f"v_add_u32 v12, {4*ks}, v11")
        a("v_mul_u32_u24 v13, 52, v12")
        a("v_lshrrev_b32 v13, 8, v13")
        a("v_mul_u32_u24 v14, 5, v13")
        a("v_sub_u32 v14, v12, v14")
        a("v_mul_u32_u24 v13, 7680, v13")
        a("v_lshlrev_b32 v14, 4, v14")
        a(f"v_add3_u32 v{224+ks}, v10, v13, v14")
    a("v_lshrrev_b32 v12, 2, v1")
    a("v_and_b32 v12, 3, v12")
    a("v_lshlrev_b32 v13, 2, v11")
    a("v_add_u32 v12, v12, v13")
    a("v_mul_u32_u24 v12, 160, v12")
    a("v_and_b32 v13, 3, v1")
    a("v_lshlrev_b32 v13, 3, v13")
    a("s_lshr_b32 s47, s3, 1")
    a("s_mul_i32 s6, s47, 96")
    a("v_add3_u32 v229, v12, v13, s6")
    for i in range(36):
        a(f"v_mov_b32 v{16+i}, 0")
    srd(a, 56, P_OUT, 2048 * 2560)
    a("v_and_b32 v13, 15, v1")
    a("s_and_b32 s6, s3, 1")
    a("s_mul_i32 s6, s6, 48")
    a("s_mul_i32 s7, s67, 96")
    a("s_add_u32 s6, s6, s7")
    a("v_add_u32 v13, s6, v13")
    a("v_mul_u32_u24 v13, 2560, v13")
    a("v_lshrrev_b32 v14, 4, v1")
    a("v_lshlrev_b32 v14, 3, v14")
    a("s_mul_i32 s6, s68, 160")
    a("s_mul_i32 s7, s47, 96")
    a("s_add_u32 s6, s6, s7")
    a("s_add_u32 s6, s6, 1280")
    a("v_add3_u32 v213, v13, v14, s6")
    a("s_mov_b32 s72, 0")
    a("s_mov_b32 s73, 40960")
    a("s_mov_b32 s74, 81920")
    a(f"s_mov_b32 s51, 0x{(B2_WB - 12*5120) & 0xffffffff:x}")


def b2_compute(a, T):
    WF, OF = 56, 120

    def addr(slot, st):
        r = []
        ob, wb = 192 + 5 * slot, 202 + 5 * slot
        r.append(f"s_add_u32 s50, s68, {st}")
        r.append("s_and_b32 s50, s50, 1")
        r.append(f"s_add_u32 s50, s50, s{75 if st < 2 else 63}")
        r.append("s_mul_i32 s50, s50, 5")
        for ks in range(5):
            r.append(f"v_add_u32 v{ob+ks}, {B2_O + (st & 1) * B2_OST}, v{224+ks}")
            r.append(f"s_add_u32 s6, s50, {ks}")
            r.append("s_mul_i32 s7, s6, 5120")
            r.append("s_cmp_lt_u32 s6, 12")
            r.append(f"s_cselect_b32 s6, {B2_WA}, s51")
            r.append("s_add_u32 s6, s6, s7")
            r.append(f"v_add_u32 v{wb+ks}, s6, v229")
        return r

    def rd_w(slot, ks, nct):
        wb = 202 + 5 * slot
        r = []
        for ct in range(nct):
            F = WF + 12 * ks + 4 * ct
            r.append(f"ds_read_b64_tr_b16 v[{F}:{F+1}], v{wb+ks} offset:{32*ct}")
            r.append(f"ds_read_b64_tr_b16 v[{F+2}:{F+3}], v{wb+ks} offset:{32*ct+2560}")
        return r

    def rd_o(slot, ks):
        ob = 192 + 5 * slot
        return [f"ds_read_b128 v[{OF+12*ks+4*t}:{OF+12*ks+4*t+3}], v{ob+ks} offset:{1280*t}" for t in range(3)]

    def mm(ks, nct):
        r = []
        for t in range(3):
            for ct in range(nct):
                ac = 16 + (t * 3 + ct) * 4
                W = WF + 12 * ks + 4 * ct
                O = OF + 12 * ks + 4 * t
                r.append(f"v_mfma_f32_16x16x32_bf16 v[{ac}:{ac+3}], v[{W}:{W+3}], v[{O}:{O+3}], v[{ac}:{ac+3}]")
        return r

    le, ld = a.newlabel("C2E"), a.newlabel("C2D")
    for x in addr(0, 0):
        a(x)
    a("s_cmp_eq_u32 s47, 0")
    a(f"s_cbranch_scc0 {le}")
    for var, nct in enumerate([3, 2]):
        if var == 1:
            a(f"s_branch {ld}")
            a.label(le)
        for ks in range(5):
            for x in rd_w(0, ks, nct):
                a(x)
        for st in range(4):
            slot = st & 1
            a("s_waitcnt lgkmcnt(0)")
            a("s_barrier")
            if T.on and not OPT.get("attts") and var == 0:
                T.stamp(a, 10 + st)
            for ks in range(5):
                for x in rd_o(slot, ks):
                    a(x)
            lg = 12
            nfill = 0
            for ks in range(5):
                fill = []
                if st < 3:
                    fill = addr(slot ^ 1, st + 1) if ks == 0 else rd_w(slot ^ 1, ks - 1, nct)
                a(f"s_waitcnt lgkmcnt({min(15, 3 * (4 - ks) + nfill)})")
                m = mm(ks, nct)
                per = (len(fill) + len(m) - 1) // len(m)
                k = 0
                for x in m:
                    a(x)
                    for _ in range(per):
                        if k < len(fill):
                            a(fill[k])
                            k += 1
                if ks >= 1 and st < 3:
                    nfill += len(fill)
            if st < 3:
                for x in rd_w(slot ^ 1, 4, nct):
                    a(x)
        no = OPT["nt_out"]
        a("s_nop 7")
        for t in range(3):
            for ct in range(nct):
                ac = 16 + (t * 3 + ct) * 4
                p = 56 + 2 * (t * 3 + ct)
                a(f"v_cvt_pk_bf16_f32 v{p}, v{ac}, v{ac+1}")
                a(f"v_cvt_pk_bf16_f32 v{p+1}, v{ac+2}, v{ac+3}")
                a(f"buffer_store_dwordx2 v[{p}:{p+1}], v213, s[56:59], s{72+t} offen offset:{32*ct} {no}")
    a.label(ld)


def read_fh(a):
    a(f"v_mov_b32 v11, {B2_O}")
    a("ds_read_b32 v10, v11")
    a("s_waitcnt lgkmcnt(0)")
    a("v_readfirstlane_b32 s75, v10")
    a("s_barrier")
    a("s_lshl_b32 s75, s75, 1")
    a("s_sub_u32 s63, 2, s75")


def b_program(a, T):
    b_decode(a)
    ld, j1 = a.newlabel("BLD"), a.newlabel("BJ1")
    a("s_cmp_ge_u32 s3, 4")
    a(f"s_cbranch_scc1 {ld}")
    b_initial_prefetch(a)
    a("s_lshl_b32 s6, s60, 7")
    a(f"s_add_u32 s6, s6, {FL_EB}")
    epoch_issue(a, 250, 251, 52, 6)
    b1_compute(a, T)
    T.stamp(a, 3)
    a("s_waitcnt lgkmcnt(0)")
    a(f"s_branch {j1}")
    a.label(ld)
    a("s_lshl_b32 s6, s60, 7")
    a(f"s_add_u32 s6, s6, {FL_EB}")
    epoch_issue(a, 250, 251, 52, 6)
    b1_loader(a, T)
    T.stamp(a, 3)
    b1_epi_loader(a)
    a("s_waitcnt lgkmcnt(0)")
    a.label(j1)
    a("s_barrier")
    T.stamp(a, 4)
    attention(a, T)
    a("s_waitcnt lgkmcnt(0)")
    a("s_barrier")
    T.stamp(a, 5)
    ld2, j2 = a.newlabel("BLD"), a.newlabel("BJ2")
    a("s_cmp_ge_u32 s3, 4")
    a(f"s_cbranch_scc1 {ld2}")
    a("v_readfirstlane_b32 s44, v250")
    a("s_add_u32 s44, s44, 1")
    a("s_barrier")
    b2_compute_setup(a)
    a("s_barrier")
    lp = a.newlabel("NP")
    a("s_cmp_lg_u32 s3, 0")
    a(f"s_cbranch_scc1 {lp}")
    a("s_lshl_b32 s6, s60, 4")
    a("s_add_u32 s6, s6, s61")
    a("s_lshl_b32 s6, s6, 7")
    a("v_mov_b32 v10, s6")
    a("v_mov_b32 v11, s44")
    a("s_mov_b64 exec, 1")
    a("buffer_store_dword v11, v10, s[52:55], 0 offen sc1")
    a("s_mov_b64 exec, -1")
    T.stamp(a, 6)
    a("s_lshl_b32 s6, s60, 11")
    a("v_lshlrev_b32 v10, 7, v1")
    a("v_add_u32 v10, s6, v10")
    l0, l1, l2 = a.newlabel("PH"), a.newlabel("PH"), a.newlabel("PH")
    a("s_mov_b32 s45, 0")
    a("s_mov_b64 exec, 0xffff")
    a.label(l0)
    a("buffer_load_dword v4, v10, s[52:55], 0 offen sc1")
    a("s_waitcnt vmcnt(0)")
    a("v_cmp_ne_u32 vcc, s44, v4")
    a("s_add_u32 s45, s45, 1")
    a("s_nop 3")
    a("s_and_b32 s6, vcc_lo, 0xff")
    a("s_and_b32 s7, vcc_lo, 0xff00")
    a("s_cmp_eq_u32 s6, 0")
    a(f"s_cbranch_scc1 {l1}")
    a("s_cmp_eq_u32 s7, 0")
    a(f"s_cbranch_scc1 {l1}")
    a(f"s_cmp_gt_u32 s45, {OPT['spin']}")
    a(f"s_cbranch_scc1 {l1}")
    a(f"s_sleep {OPT['psleep']}")
    a(f"s_branch {l0}")
    a.label(l1)
    a("s_mov_b64 exec, -1")
    a("s_lshr_b32 s46, s68, 1")
    a("s_and_b32 s46, s46, 1")
    a("s_cmp_lg_u32 s6, 0")
    a("s_cselect_b32 s46, 1, s46")
    a("s_cmp_lg_u32 s7, 0")
    a("s_cselect_b32 s46, 0, s46")
    a("v_mov_b32 v10, s46")
    a(f"v_mov_b32 v11, {B2_O}")
    a("ds_write_b32 v11, v10")
    a("s_waitcnt lgkmcnt(0)")
    a.label(lp)
    T.stamp(a, 7)
    a("s_barrier")
    read_fh(a)
    b2_compute(a, T)
    T.stamp(a, 8)
    a(f"s_branch {j2}")
    a.label(ld2)
    o_store(a)
    a("s_barrier")
    a("s_waitcnt vmcnt(0)")
    a("s_barrier")
    wo_dma_blocks(a, 12, 8, B2_WB)
    srd(a, 52, P_WS, TSZ, WS_OW)
    a("v_lshlrev_b32 v239, 4, v1")
    b2_loader_setup(a)
    a("s_waitcnt vmcnt(0)")
    srd(a, 36, P_WS, 0x10000, WS_FL)
    a("v_readfirstlane_b32 s44, v250")
    a("s_add_u32 s44, s44, 1")
    T.stamp(a, 7)
    a("s_barrier")
    read_fh(a)
    b2_loader(a, T)
    T.stamp(a, 8)
    a.label(j2)
    T.stamp(a, 9)


A2_H0 = 0
A2_H1 = 4640
A2_X0 = 9216
A2_X2 = 13696
A2_CH = 17920
T_RS = 528
Y_RS = 528


def a_program(a, T):
    na, nh, sc = OPT["nt_a"], OPT["nt_h"], OPT["sc"]
    a("s_sub_u32 s5, s5, s70")
    a("s_lshl_b32 s6, s4, 1")
    a("s_add_u32 s7, s4, 2")
    a("s_cmp_lt_u32 s4, 2")
    a("s_cselect_b32 s6, s6, s7")
    a("s_lshr_b32 s7, s5, 3")
    a("s_add_u32 s73, s6, s7")
    a("s_and_b32 s72, s5, 7")
    a("s_lshl_b32 s62, s73, 6")
    a("s_lshl_b32 s6, s72, 3")
    a("s_add_u32 s62, s62, s6")
    a("s_add_u32 s63, s62, s3")
    srd(a, 32, P_K, TSZ)
    srd(a, 36, P_V, TSZ)
    srd(a, 40, P_SK, 640 * 8)
    a("v_and_b32 v8, 7, v1")
    a("v_lshrrev_b32 v9, 3, v1")
    a("s_lshl_b32 s6, s3, 3")
    a("v_add_u32 v9, s6, v9")
    a("v_lshlrev_b32 v2, 2, v9")
    a("s_lshl_b32 s6, s72, 8")
    a("v_add_u32 v2, s6, v2")
    a("v_mul_u32_u24 v2, 1280, v2")
    a("v_lshlrev_b32 v3, 4, v8")
    a("s_lshl_b32 s6, s73, 7")
    a("v_add3_u32 v2, v2, v3, s6")
    a("v_add_u32 v3, -3840, v2")
    a("v_add_u32 v4, -2560, v2")
    a("v_add_u32 v5, -1280, v2")
    for m in range(4):
        a(f"buffer_load_dwordx4 v[{64+4*m}:{67+4*m}], v2, s[32:35], 0 offen offset:{1280*m} {na}".replace("offset:0 ", ""))
    for m in range(4):
        a(f"buffer_load_dwordx4 v[{80+4*m}:{83+4*m}], v2, s[36:39], 0 offen offset:{1280*m} {na}".replace("offset:0 ", ""))
    a(f"buffer_load_dwordx4 v[52:55], v3, s[32:35], 0 offen {na}")
    a(f"buffer_load_dwordx4 v[56:59], v4, s[32:35], 0 offen {na}")
    a(f"buffer_load_dwordx4 v[60:63], v5, s[32:35], 0 offen {na}")
    a("v_lshlrev_b32 v6, 6, v8")
    a("s_lshl_b32 s6, s73, 9")
    a("v_add_u32 v6, s6, v6")
    for i in range(4):
        a(f"buffer_load_dwordx4 v[{32+4*i}:{35+4*i}], v6, s[40:43], 0 offen offset:{16*i}".replace("offset:0", ""))
    a("s_lshl_b32 s6, s73, 7")
    a(f"s_add_u32 s6, s6, {FL_EA}")
    epoch_issue(a, 250, 251, 48, 6)
    a("s_lshl_b32 s6, s62, 1")
    a(f"s_add_u32 s44, s{P_SD}, s6")
    a(f"s_addc_u32 s45, s{P_SD+1}, 0")
    a("s_load_dwordx4 s[64:67], s[44:45], 0")
    if int(OPT.get("apf", 1)):
        npf = OPT["nt_pf"]
        a("s_cmp_eq_u32 s4, 1")
        a("s_cselect_b32 s74, 1, 0")
        a("s_cmp_ge_u32 s4, 5")
        a("s_cselect_b32 s74, 1, s74")
        a("s_cselect_b32 s7, 3, 0")
        a("s_sub_u32 s6, s4, 2")
        a("s_sub_u32 s6, s6, s7")
        a("s_mul_i32 s6, s6, 3")
        a("s_add_u32 s6, s6, 2")
        a("s_cmp_lt_u32 s4, 2")
        a("s_cselect_b32 s75, 0, s6")
        a("s_cselect_b32 s76, 128, 64")
        a("s_cselect_b32 s77, 2400, s76")
        a("s_cselect_b32 s77, 2400, 3552") if False else None
        a("s_movk_i32 s77, 3552")
        a("s_cmp_lt_u32 s4, 2")
        a("s_cselect_b32 s77, 2400, s77")
        a("s_lshl_b32 s78, s5, 3")
        a("s_add_u32 s78, s78, s3")
        srd(a, 52, P_W, 640 * 3840)
        srd(a, 56, P_X, TSZ)
        a(f"v_mov_b32 v20, 0x{OOB:x}")

        def wpf(dst):
            a("s_lshl_b32 s6, s6, 6")
            a("v_add_u32 v21, s6, v1")
            a("v_mul_u32_u24 v22, 34953, v21")
            a("v_lshrrev_b32 v22, 19, v22")
            a("v_mul_u32_u24 v23, 15, v22")
            a("v_sub_u32 v23, v21, v23")
            a("v_mul_u32_u24 v24, 52, v23")
            a("v_lshrrev_b32 v24, 8, v24")
            a("v_mul_u32_u24 v25, 5, v24")
            a("v_sub_u32 v25, v23, v25")
            a("v_add_u32 v22, 192, v22")
            a("v_mul_u32_u24 v22, 3840, v22")
            a("v_mul_u32_u24 v24, 1280, v24")
            a("v_lshlrev_b32 v25, 7, v25")
            a("v_add3_u32 v22, v22, v24, v25")
            a("s_mul_i32 s7, s74, 640")
            a("v_add_u32 v22, s7, v22")
            a("s_movk_i32 s7, 6720")
            a("v_cmp_gt_u32 vcc, s7, v21")
            a("s_nop 1")
            a("v_cndmask_b32 v22, v20, v22, vcc")
            a(f"buffer_load_dword v{dst}, v22, s[52:55], 0 offen {npf}")
        a("s_mov_b32 s6, s78")
        wpf(240)
        a("s_lshl_b32 s6, s78, 6")
        a("v_add_u32 v21, s6, v1")
        a("v_mul_u32_u24 v22, 10923, v21")
        a("v_lshrrev_b32 v22, 16, v22")
        a("v_mul_u32_u24 v23, 6, v22")
        a("v_sub_u32 v23, v21, v23")
        a("s_mul_i32 s6, s75, 192")
        a("s_sub_u32 s6, s6, 16")
        a("v_add_u32 v22, s6, v22")
        a("s_movk_i32 s7, 1280")
        a("v_mul_lo_u32 v22, v22, s7")
        a("v_lshlrev_b32 v23, 7, v23")
        a("v_add_u32 v22, v22, v23")
        a("v_add_u32 v22, 512, v22")
        a("v_cmp_gt_u32 vcc, s77, v21")
        a("s_nop 1")
        a("v_cndmask_b32 v22, v20, v22, vcc")
        a(f"buffer_load_dword v241, v22, s[56:59], 0 offen {npf}")
        a("s_add_u32 s6, s78, s76")
        wpf(242)
    a(f"s_mul_i32 s60, s3, {A2_CH}")
    a("s_lshl_b32 s59, s63, 12")
    a("v_lshlrev_b32 v10, 4, v1")
    a("v_add_u32 v11, -2, v10")
    T.stamp(a, 1)
    a("v_mov_b32 v28, 0")
    a("v_mov_b32 v29, 0")
    a("v_mov_b32 v30, 0")
    a("v_mov_b32 v31, 0")
    a("v_add_u32 v23, s60, v10")
    a("s_mov_b64 exec, 0xfffffff")
    a(f"ds_write_b128 v23, v[28:31] offset:{A2_H0}")
    a(f"ds_write_b128 v23, v[28:31] offset:{A2_H1}")
    a("s_mov_b64 exec, -1")
    a(f"v_mul_u32_u24 v7, {A2_CH+16}, v8")
    a("v_lshlrev_b32 v12, 3, v9")
    a("v_sub_u32 v7, v7, v12")
    a(f"v_add_u32 v7, {A2_X0 + 504}, v7")
    a("s_mov_b32 s57, 0xffff0000")
    a(f"s_waitcnt vmcnt({1 + (3 if int(OPT.get('apf', 1)) else 0)})")
    T.stamp(a, 2)
    for c in range(4):
        for m in range(4):
            for e in range(2):
                src = 32 + 2 * (2 * c + e) + (m >> 1)
                dst = 96 + (c * 4 + m) * 2 + e
                if m & 1:
                    a(f"v_and_b32 v{dst}, s57, v{src}")
                else:
                    a(f"v_lshlrev_b32 v{dst}, 16, v{src}")
    for c in range(4):
        for jj in range(7):
            a(f"v_lshlrev_b32 v{128+2*jj}, 16, v{52+4*jj+c}")
            a(f"v_and_b32 v{129+2*jj}, s57, v{52+4*jj+c}")
        for m in range(4):
            a(f"v_lshlrev_b32 v{142+2*m}, 16, v{80+4*m+c}")
            a(f"v_and_b32 v{143+2*m}, s57, v{80+4*m+c}")
        W = lambda m: f"v[{96+(c*4+m)*2}:{97+(c*4+m)*2}]"
        K = lambda jj: f"v[{128+2*jj}:{129+2*jj}]"
        for rr in range(4):
            o = 150 + 2 * rr
            a(f"v_pk_mul_f32 v[{o}:{o+1}], {W(3)}, {K(rr)}")
        for m in (2, 1, 0):
            for rr in range(4):
                o = 150 + 2 * rr
                a(f"v_pk_fma_f32 v[{o}:{o+1}], {W(m)}, {K(3+rr-m)}, v[{o}:{o+1}]")
        for rr in range(4):
            o = 150 + 2 * rr
            a(f"v_pk_mul_f32 v[{o}:{o+1}], v[{o}:{o+1}], v[{142+2*rr}:{143+2*rr}]")
        for e in range(2):
            ch = 2 * c + e
            d = 160 + 4 * (c & 1) + 2 * e
            a(f"v_cvt_pk_bf16_f32 v{d}, v{156+e}, v{154+e}")
            a(f"v_cvt_pk_bf16_f32 v{d+1}, v{152+e}, v{150+e}")
            a(f"ds_write_b64 v7, v[{d}:{d+1}] offset:{ch*T_RS}")
    a("v_lshrrev_b32 v12, 5, v1")
    a(f"v_mul_u32_u24 v12, {T_RS}, v12")
    a("v_and_b32 v13, 31, v1")
    a("v_lshlrev_b32 v13, 4, v13")
    a("v_add_u32 v12, v12, v13")
    a(f"s_mul_i32 s6, s3, {A2_CH+16}")
    a(f"s_add_u32 s6, s6, {A2_X0}")
    a("v_add_u32 v12, s6, v12")
    srd(a, 36, P_WS, TSZ, WS_XT)
    a("v_lshrrev_b32 v14, 5, v1")
    a("v_lshlrev_b32 v14, 12, v14")
    a("v_add_u32 v14, v14, v13")
    a("s_lshl_b32 s6, s73, 6")
    a("s_lshl_b32 s7, s3, 3")
    a("s_add_u32 s6, s6, s7")
    a("s_lshl_b32 s6, s6, 12")
    a("s_lshl_b32 s7, s72, 9")
    a("s_sub_u32 s7, 3584, s7")
    a("s_add_u32 s6, s6, s7")
    a("v_add_u32 v14, s6, v14")
    a("s_waitcnt lgkmcnt(0)")
    a("s_barrier")
    for m in range(4):
        a(f"ds_read_b128 v[{64+4*m}:{67+4*m}], v12 offset:{2*m*T_RS}")
    a("s_waitcnt lgkmcnt(0)")
    a("s_mov_b32 s6, 0")
    for m in range(4):
        a(f"buffer_store_dwordx4 v[{64+4*m}:{67+4*m}], v14, s[36:39], s6 offen {sc}")
        if m < 3:
            a("s_add_u32 s6, s6, 8192")
    T.stamp(a, 3)
    srd(a, 52, P_H, 640 * 4096)
    for i in range(4):
        a(f"s_add_u32 m0, s60, {A2_H0 + 448 + 1024*i}")
        a(f"s_add_u32 s6, s59, {1024*i}")
        a(f"buffer_load_dwordx4 v10, s[52:55], s6 offen {nh} lds")
    a("v_mov_b32 v13, 0")
    a(f"buffer_load_dwordx4 v[16:19], v13, s[52:55], s59 offen")
    a("s_lshr_b32 s6, s3, 1")
    a("s_cmp_eq_u32 s6, 1")
    a("s_cselect_b32 s58, s65, s64")
    a("s_cmp_eq_u32 s6, 2")
    a("s_cselect_b32 s58, s66, s58")
    a("s_cmp_eq_u32 s6, 3")
    a("s_cselect_b32 s58, s67, s58")
    a("s_and_b32 s6, s3, 1")
    a("s_lshl_b32 s6, s6, 4")
    a("s_lshr_b32 s58, s58, s6")
    a("s_lshl_b32 s58, s58, 16")
    a("s_waitcnt vmcnt(5)")
    a("v_readfirstlane_b32 s44, v250")
    a("s_add_u32 s44, s44, 1")
    a("s_barrier")
    lf = a.newlabel("AF")
    a("s_cmp_lg_u32 s3, 0")
    a(f"s_cbranch_scc1 {lf}")
    a("s_lshl_b32 s6, s73, 3")
    a("s_add_u32 s6, s6, s72")
    a("s_lshl_b32 s6, s6, 7")
    a(f"s_add_u32 s6, s6, {FL_A1}")
    a("v_mov_b32 v12, s6")
    a("v_mov_b32 v13, s44")
    a("s_mov_b64 exec, 1")
    a("buffer_store_dword v13, v12, s[48:51], 0 offen sc1")
    a("s_mov_b64 exec, -1")
    T.stamp(a, 4)
    a.label(lf)
    lp = a.newlabel("AP")
    a("s_cmp_lg_u32 s3, 0")
    a(f"s_cbranch_scc1 {lp}")
    a("s_lshl_b32 s6, s73, 10")
    a(f"s_add_u32 s6, s6, {FL_A1}")
    a("v_lshlrev_b32 v12, 7, v1")
    a("v_add_u32 v12, s6, v12")
    poll(a, 12, 8, 44, 48)
    a.label(lp)
    a("s_waitcnt lgkmcnt(0)")
    a("s_barrier")
    T.stamp(a, 5)
    for i in range(4):
        a(f"s_add_u32 m0, s60, {A2_X0 + 1024*i}")
        a(f"s_add_u32 s6, s59, {1024*i}")
        a(f"buffer_load_dwordx4 v10, s[36:39], s6 offen {sc} lds")
    a("s_mov_b64 exec, 0x1f")
    a(f"ds_write_b128 v23, v[28:31] offset:{A2_X0+4096}")
    a("s_mov_b64 exec, 0xf")
    a(f"ds_write_b128 v23, v[28:31] offset:{A2_X2+4096}")
    a("s_mov_b64 exec, -1")
    srd(a, 32, P_Q, TSZ)
    a("v_and_b32 v13, 15, v1")
    a("s_lshl_b32 s6, s72, 8")
    a("s_lshl_b32 s7, s3, 5")
    a("s_add_u32 s6, s6, s7")
    a("v_add_u32 v9, s6, v13")
    a("v_lshrrev_b32 v13, 4, v1")
    a("v_lshlrev_b32 v13, 4, v13")
    a("s_lshl_b32 s61, s73, 7")
    a("v_add_u32 v8, s61, v13")
    a("v_mul_u32_u24 v14, 1280, v9")
    a("v_add_u32 v14, v14, v8")
    a("s_movk_i32 s6, 20480")
    a(f"buffer_load_dwordx4 v[192:195], v14, s[32:35], 0 offen {na}")
    a(f"buffer_load_dwordx4 v[196:199], v14, s[32:35], 0 offen offset:64 {na}")
    a(f"buffer_load_dwordx4 v[200:203], v14, s[32:35], s6 offen {na}")
    a(f"buffer_load_dwordx4 v[204:207], v14, s[32:35], s6 offen offset:64 {na}")
    a("s_waitcnt vmcnt(8)")
    a("v_lshlrev_b32 v21, 16, v16")
    a("v_add_f32 v21, s58, v21")
    a("v_cvt_pk_bf16_f32 v21, v21, v21")
    a("v_mov_b32 v22, s60")
    a("s_mov_b64 exec, 1")
    a(f"ds_write_b16 v22, v21 offset:{A2_H0+448}")
    a("s_mov_b64 exec, -1")
    a("s_waitcnt lgkmcnt(0)")
    for i in range(4):
        a(f"ds_read_b128 v[{64+8*i}:{67+8*i}], v23 offset:{A2_H0+448+1024*i}")
        a(f"ds_read_b32 v{68+8*i}, v23 offset:{A2_H0+448-4+1024*i}")
    for i in range(4):
        b = 64 + 8 * i
        a(f"s_waitcnt lgkmcnt({2*(3-i)})")
        a(f"v_alignbit_b32 v{b+7}, v{b+3}, v{b+2}, 16")
        a(f"v_alignbit_b32 v{b+6}, v{b+2}, v{b+1}, 16")
        a(f"v_alignbit_b32 v{b+5}, v{b+1}, v{b}, 16")
        a(f"v_alignbit_b32 v{b+4}, v{b}, v{b+4}, 16")
        a(f"ds_write_b128 v23, v[{b+4}:{b+7}] offset:{A2_H1+448+1024*i}")
    a("v_and_b32 v10, 15, v1")
    a("v_lshrrev_b32 v11, 4, v1")
    a("v_lshrrev_b32 v12, 1, v10")
    a("v_lshlrev_b32 v12, 6, v12")
    a("v_lshlrev_b32 v13, 4, v11")
    a("v_add_u32 v12, v12, v13")
    a("v_and_b32 v13, 1, v10")
    a(f"v_mov_b32 v14, {A2_H1}")
    a(f"v_mov_b32 v15, {A2_H0}")
    a("v_cmp_eq_u32 vcc, 1, v13")
    a("v_lshrrev_b32 v13, 1, v10")
    a("v_and_b32 v13, 1, v13")
    a("v_cndmask_b32 v14, v14, v15, vcc")
    a("v_add3_u32 v2, v12, v14, s60")
    a("v_lshlrev_b32 v12, 3, v13")
    a("v_lshrrev_b32 v14, 2, v10")
    a("v_lshlrev_b32 v14, 4, v14")
    a("v_add_u32 v12, v12, v14")
    a("v_lshlrev_b32 v14, 4, v11")
    a("v_sub_u32 v12, v14, v12")
    a(f"v_add_u32 v12, {2*1820 - 512*7}, v12")
    a(f"v_mov_b32 v14, {A2_X2}")
    a(f"v_mov_b32 v15, {A2_X0}")
    a("v_cndmask_b32 v14, v14, v15, vcc")
    a("v_add3_u32 v3, v12, v14, s60")
    for i in range(32):
        a(f"v_mov_b32 v{32+i}, 0")
    a("s_waitcnt vmcnt(4)")
    for i in range(4):
        for d in range(4):
            a(f"ds_read_b32 v{96+4*i+d}, v23 offset:{A2_X0+1024*i+4*(d+1)}")
    for i in range(4):
        a(f"s_waitcnt lgkmcnt({4*(3-i)})")
        a(f"ds_write_b128 v23, v[{96+4*i}:{99+4*i}] offset:{A2_X2+1024*i}")
    a("s_waitcnt lgkmcnt(0)")
    T.stamp(a, 6)

    def reads(A, B):
        r = []
        for aa in range(8):
            r.append(f"ds_read_b128 v[{A+4*aa}:{A+4*aa+3}], v2 offset:{512*aa}")
            r.append(f"ds_read_b64 v[{B+4*aa}:{B+4*aa+1}], v3 offset:{512*(7-aa)}")
            r.append(f"ds_read_b64 v[{B+4*aa+2}:{B+4*aa+3}], v3 offset:{512*(7-aa)+8}")
        r.append("v_add_u32 v2, 64, v2")
        r.append("v_add_u32 v3, 64, v3")
        return r

    def mfmas(A, B):
        r = []
        for t in range(8):
            for aa in range(t + 1):
                u = t - aa
                ac = 32 + 4 * t
                r.append(f"v_mfma_f32_16x16x32_bf16 v[{ac}:{ac+3}], v[{A+4*aa}:{A+4*aa+3}], v[{B+4*u}:{B+4*u+3}], v[{ac}:{ac+3}]")
        return r

    def interleave(m, r):
        for i, x in enumerate(m):
            a(x)
            if i < len(r):
                a(r[i])

    for x in reads(64, 96):
        a(x)
    a("s_mov_b32 s40, 0")
    loop, last = a.newlabel("A2L"), a.newlabel("A2E")
    a.label(loop)
    a("s_waitcnt lgkmcnt(0)")
    interleave(mfmas(64, 96), reads(128, 160))
    a("s_waitcnt lgkmcnt(0)")
    a("s_cmp_eq_u32 s40, 3")
    a(f"s_cbranch_scc1 {last}")
    interleave(mfmas(128, 160), reads(64, 96))
    a("s_add_u32 s40, s40, 1")
    a(f"s_branch {loop}")
    a.label(last)
    for x in mfmas(128, 160):
        a(x)
    T.stamp(a, 7)
    a("v_lshlrev_b32 v12, 5, v11")
    a("v_add_u32 v12, v12, v10")
    a("v_lshlrev_b32 v12, 2, v12")
    a("v_add_u32 v12, s60, v12")
    srd(a, 36, P_WS, TSZ, WS_YT)
    a("v_lshlrev_b32 v15, 4, v1")
    a("v_add_u32 v13, s60, v15")
    for t in range(8):
        ac = 32 + 4 * t
        d = 64 + 2 * t
        a(f"v_cvt_pk_bf16_f32 v{d}, v{ac}, v{ac+1}")
        a(f"v_cvt_pk_bf16_f32 v{d+1}, v{ac+2}, v{ac+3}")
        a(f"ds_write_b32 v12, v{d} offset:{512*t}")
        a(f"ds_write_b32 v12, v{d+1} offset:{512*t+64}")
    a("s_waitcnt lgkmcnt(0)")
    for i in range(4):
        a(f"ds_read_b128 v[{80+4*i}:{83+4*i}], v13 offset:{1024*i}")
    a("s_waitcnt lgkmcnt(0)")
    for i in range(4):
        a(f"s_add_u32 s6, s59, {1024*i}")
        a(f"buffer_store_dwordx4 v[{80+4*i}:{83+4*i}], v15, s[36:39], s6 offen {sc}")
    a("v_lshrrev_b32 v16, 5, v0")
    a("v_and_b32 v17, 31, v0")
    a("v_lshlrev_b32 v17, 4, v17")
    a("s_lshl_b32 s6, s73, 6")
    a("v_add_u32 v18, s6, v16")
    a("v_lshlrev_b32 v18, 12, v18")
    a("s_lshl_b32 s6, s72, 9")
    a("v_add3_u32 v18, v18, v17, s6")
    a(f"v_mul_u32_u24 v16, {Y_RS}, v16")
    a("v_add_u32 v16, v16, v17")
    a("s_waitcnt vmcnt(0)")
    a("s_barrier")
    lp = a.newlabel("AP")
    a("s_cmp_lg_u32 s3, 0")
    a(f"s_cbranch_scc1 {lp}")
    a("s_lshl_b32 s6, s73, 3")
    a("s_add_u32 s6, s6, s72")
    a("s_lshl_b32 s6, s6, 7")
    a(f"s_add_u32 s6, s6, {FL_A2}")
    a("v_mov_b32 v12, s6")
    a("v_mov_b32 v13, s44")
    a("s_mov_b64 exec, 1")
    a("buffer_store_dword v13, v12, s[48:51], 0 offen sc1")
    a("s_mov_b64 exec, -1")
    T.stamp(a, 8)
    a("s_lshl_b32 s6, s73, 10")
    a(f"s_add_u32 s6, s6, {FL_A2}")
    a("v_lshlrev_b32 v12, 7, v1")
    a("v_add_u32 v12, s6, v12")
    poll(a, 12, 8, 44, 48)
    le = a.newlabel("EU")
    a("s_cmp_lg_u32 s72, 0")
    a(f"s_cbranch_scc1 {le}")
    a("v_mov_b32 v11, s44")
    a("s_mov_b64 exec, 1")
    a("buffer_store_dword v11, v251, s[48:51], 0 offen sc1")
    a("s_mov_b64 exec, -1")
    a.label(le)
    a.label(lp)
    a("s_barrier")
    T.stamp(a, 9)
    a("s_mov_b32 s6, 0")
    for m in range(4):
        a(f"buffer_load_dwordx4 v[{64+4*m}:{67+4*m}], v18, s[36:39], s6 offen {sc}")
        if m < 3:
            a("s_add_u32 s6, s6, 65536")
    a("v_lshrrev_b32 v12, 4, v1")
    a("v_lshlrev_b32 v12, 3, v12")
    a("v_lshrrev_b32 v13, 2, v1")
    a("v_and_b32 v13, 3, v13")
    a("v_add_u32 v12, v12, v13")
    a(f"v_mul_u32_u24 v12, {Y_RS}, v12")
    a("v_and_b32 v13, 3, v1")
    a("v_lshlrev_b32 v13, 3, v13")
    a("s_lshl_b32 s6, s3, 6")
    a("v_add3_u32 v12, v12, v13, s6")
    srd(a, 32, P_OUT, 2048 * 2560)
    a("v_mul_u32_u24 v15, 2560, v9")
    a("v_add_u32 v15, v15, v8")
    for m in range(4):
        a(f"s_waitcnt vmcnt({3-m})")
        a(f"ds_write_b128 v16, v[{64+4*m}:{67+4*m}] offset:{16*Y_RS*m}")
    a("s_waitcnt lgkmcnt(0)")
    a("s_barrier")
    for m in range(4):
        off = (m & 1) * 32 * Y_RS + (m >> 1) * 32
        a(f"ds_read_b64_tr_b16 v[{64+4*m}:{65+4*m}], v12 offset:{off}")
        a(f"ds_read_b64_tr_b16 v[{66+4*m}:{67+4*m}], v12 offset:{off + 4*Y_RS}")
    a("s_waitcnt lgkmcnt(0)")
    no = OPT["nt_out"]
    a("s_mov_b32 s7, 40960")
    for m in range(4):
        for i in range(4):
            y = 64 + 4 * m + i
            q = 192 + 4 * m + i
            t = 80 + 4 * (i & 1)
            a(f"v_lshlrev_b32 v{t}, 16, v{y}")
            a(f"v_and_b32 v{t+1}, s57, v{y}")
            a(f"v_lshlrev_b32 v{t+2}, 16, v{q}")
            a(f"v_and_b32 v{t+3}, s57, v{q}")
            a(f"v_pk_mul_f32 v[{t}:{t+1}], v[{t}:{t+1}], v[{t+2}:{t+3}]")
            a(f"v_cvt_pk_bf16_f32 v{y}, v{t}, v{t+1}")
        so = "s7" if m >= 2 else "0"
        of = " offset:64" if (m & 1) else ""
        a(f"buffer_store_dwordx4 v[{64+4*m}:{67+4*m}], v15, s[32:35], {so} offen{of} {no}")
    T.stamp(a, 10)


def kdesc(name, vgpr=256, sgpr=102):
    return f""".amdhsa_kernel {name}
  .amdhsa_next_free_vgpr {vgpr}
  .amdhsa_next_free_sgpr {sgpr}
  .amdhsa_accum_offset {vgpr}
  .amdhsa_group_segment_fixed_size 0
  .amdhsa_kernarg_size 96
  .amdhsa_user_sgpr_count 2
  .amdhsa_user_sgpr_kernarg_segment_ptr 1
  .amdhsa_system_sgpr_workgroup_id_x 1
  .amdhsa_float_denorm_mode_32 3
  .amdhsa_float_denorm_mode_16_64 3
.end_amdhsa_kernel
"""


def gen(ts=False):
    out = "; concat_heads( H3-style ssm conv , sliding local dilated attention ) -- hand-written streams emitted by a python generator\n"
    out += "; @launch grid=(256,1,1) block=(512,1,1) lds=163840\n"
    out += '.amdgcn_target "amdgcn-amd-amdhsa--gfx950"\n.text\n'
    a = Asm()
    T = TS(ts)
    T.init(a)
    T.stamp(a, 0)
    if OPT.get("dbgt"):
        a("s_memrealtime s[96:97]")
        a("s_waitcnt lgkmcnt(0)")
        a("s_mov_b32 s79, s96")
    a("s_cmp_ge_u32 s2, 256")
    a("s_cbranch_scc1 K_END")
    a("s_load_dwordx16 s[8:23], s[0:1], 0")
    a("s_load_dwordx8 s[24:31], s[0:1], 64")
    a("v_lshrrev_b32 v2, 6, v0")
    a("v_and_b32 v1, 63, v0")
    a("s_and_b32 s4, s2, 7")
    a("v_readfirstlane_b32 s3, v2")
    a("s_lshr_b32 s5, s2, 3")
    a("s_waitcnt lgkmcnt(0)")
    role_decode(a)
    if OPT.get("only") == "A":
        a("s_branch K_END")
    b_program(a, T)
    a("s_branch K_FIN")
    a.label("A_ROLE")
    if OPT.get("only") == "B":
        a("s_branch K_END")
    a_program(a, T)
    a.label("K_FIN")
    if OPT.get("dbgt"):
        a("s_waitcnt vmcnt(0)")
        a("s_memrealtime s[96:97]")
        a("s_waitcnt lgkmcnt(0)")
        lab = a.newlabel("DBG")
        a("s_cmp_lg_u32 s3, 0")
        a(f"s_cbranch_scc1 {lab}")
        a("s_and_b32 s6, s2, 0x3f")
        a("s_cmp_lg_u32 s6, 0")
        a(f"s_cbranch_scc1 {lab}")
        srd(a, 92, P_DBG, 256)
        a("s_lshr_b32 s6, s2, 6")
        a("s_lshl_b32 s6, s6, 3")
        a("v_mov_b32 v2, s6")
        a("v_mov_b32 v4, s79")
        a("v_mov_b32 v5, s96")
        a("s_mov_b64 exec, 1")
        a("buffer_store_dwordx2 v[4:5], v2, s[92:95], 0 offen")
        a("s_waitcnt vmcnt(0)")
        a("s_mov_b64 exec, -1")
        a.label(lab)
    if ts:
        a("s_waitcnt vmcnt(0)")
        T.stamp(a, 15)
        T.flush(a)
    a.label("K_END")
    a("s_endpgm")
    out += f".globl {KNAME}\n.p2align 8\n.type {KNAME},@function\n{KNAME}:\n" + a.text()
    out += '.section .rodata,"a"\n.p2align 6\n' + kdesc(KNAME)
    return out


if __name__ == "__main__":
    mode = sys.argv[1] if len(sys.argv) > 1 else "plain"
    dst = sys.argv[2] if len(sys.argv) > 2 else "k4.s"
    for kv in sys.argv[3:]:
        k, v = kv.split("=")
        OPT[k] = v if k != "spin" else int(v)
    if mode == "tc":
        TS.INSTR = "s_memtime"
    open(dst, "w").write(gen(mode in ("ts", "tc")))
    print("wrote", dst)
```

```python
import sys

KNAME = "concat_heads__ssm_conv_h3__sliding_local_dilated__prompt_kernel"
TSZ = 640 * 4096
WS_OW = 0x0
WS_XT = 0x280000
WS_YT = 0x500000
WS_FL = 0x780000
FL_B = 0x0
FL_A1 = 0x6000
FL_A2 = 0x9000
FL_EB = 0xC000
FL_EA = 0xD000
WS_TS = 0x800000
OOB = 0x80000000

OPT = dict(b2dma=1, psleep=2, sc_oload="sc1", sc_ostore="sc1", nt_pf="", nt_a="", nt_h="", nt_x="", nt_w="", nt_out="", sc="sc1", spin=1 << 20)


class Asm:
    def __init__(self):
        self.l = []
        self.uid = 0

    def __call__(self, s=""):
        for line in s.split("\n"):
            line = line.strip()
            if line:
                self.l.append("    " + line)

    def label(self, name):
        self.l.append(name + ":")

    def newlabel(self, p="L"):
        self.uid += 1
        return f"{p}_{self.uid}"

    def text(self):
        return "\n".join(self.l) + "\n"


P_Q, P_K, P_V, P_SK, P_H, P_SD, P_X, P_W, P_WO, P_OUT, P_DBG, P_WS = [8 + 2 * i for i in range(12)]


def srd(a, dst, ptr, nbytes, off=0):
    if off:
        a(f"s_add_u32 s{dst}, s{ptr}, 0x{off:x}")
        a(f"s_addc_u32 s{dst+1}, s{ptr+1}, 0")
    else:
        a(f"s_mov_b32 s{dst}, s{ptr}")
        a(f"s_mov_b32 s{dst+1}, s{ptr+1}")
    a(f"s_mov_b32 s{dst+2}, 0x{nbytes:x}")
    a(f"s_mov_b32 s{dst+3}, 0x00020000")


class TS:
    INSTR = "s_memrealtime"

    def __init__(self, on):
        self.on = on
        self.n = 0

    def stamp(self, a, idx):
        if not self.on:
            return
        if OPT.get("stagets") and 3 <= idx < 14:
            return
        a(f"{TS.INSTR} s[96:97]")
        a("s_waitcnt lgkmcnt(0)")
        a(f"s_mov_b32 s{80+idx}, s96")

    def init(self, a):
        if not self.on:
            return
        for i in range(16):
            a(f"s_mov_b32 s{80+i}, 0")

    def flush(self, a):
        if not self.on:
            return
        srd(a, 96, P_WS, 0x40000, WS_TS)
        a("s_mov_b64 exec, 1")
        a("s_lshl_b32 s7, s2, 3")
        a("s_add_u32 s7, s7, s3")
        a("s_lshl_b32 s7, s7, 6")
        a("v_mov_b32 v3, s7")
        for i in range(16):
            a(f"v_mov_b32 v2, s{80+i}")
            a(f"buffer_store_dword v2, v3, s[96:99], 0 offen offset:{4*i}")
        a("s_waitcnt vmcnt(0)")
        a("s_mov_b64 exec, -1")


NRT = 13
B1_XSZ = NRT * 16 * 128
B1_STAGE = B1_XSZ + 16384
B1_NB = 3
QKV_RS = 400
O_LDS = 83200
B2_WA = 102400
B2_WB = 0
B2_O = 40960
B2_OST = 30720
ACC = 16
XA, XB, WA, WB = 120, 172, 224, 232


def role_decode(a):
    a("s_cmp_lt_u32 s4, 2")
    a("s_cselect_b32 s70, 16, 24")
    a("s_cmp_ge_u32 s5, s70")
    a("s_cbranch_scc1 A_ROLE")


def b_decode(a):
    a("s_cmp_eq_u32 s4, 1")
    a("s_cselect_b32 s71, 1, 0")
    a("s_cmp_ge_u32 s4, 5")
    a("s_cselect_b32 s71, 1, s71")
    a("s_cselect_b32 s7, 3, 0")
    a("s_sub_u32 s6, s4, 2")
    a("s_sub_u32 s6, s6, s7")
    a("s_mul_i32 s6, s6, 3")
    a("s_add_u32 s6, s6, 2")
    a("s_cmp_lt_u32 s4, 2")
    a("s_cselect_b32 s6, 0, s6")
    a("s_lshr_b32 s7, s5, 3")
    a("s_add_u32 s60, s6, s7")
    a("s_and_b32 s68, s5, 7")
    a("s_lshl_b32 s61, s71, 3")
    a("s_add_u32 s61, s61, s68")
    a("s_lshl_b32 s67, s60, 1")
    a("s_add_u32 s67, s67, s71")


def pf_x_addr(a, dst):
    a("v_and_b32 v10, 31, v1")
    a("s_mul_i32 s6, s68, 26")
    a("s_mul_i32 s7, s60, 192")
    a("s_add_u32 s6, s6, s7")
    a("s_sub_u32 s6, s6, 16")
    a("v_add_u32 v11, s6, v10")
    a("s_movk_i32 s7, 1280")
    a("v_mul_lo_u32 v11, v11, s7")
    a("v_lshrrev_b32 v12, 5, v1")
    a("v_lshlrev_b32 v12, 7, v12")
    a("v_add_u32 v11, v11, v12")
    a("v_cmp_gt_u32 vcc, 26, v10")
    a(f"v_mov_b32 v12, 0x{OOB:x}")
    a("s_nop 0")
    a(f"v_cndmask_b32 v{dst}, v12, v11, vcc")


def pf_w_addr(a, dst):
    a("s_cmp_eq_u32 s70, 16")
    a("s_cselect_b32 s6, 60, 40")
    a("s_mul_i32 s7, s5, s6")
    a("v_add_u32 v10, s7, v1")
    a("v_mul_u32_u24 v11, 4370, v10")
    a("v_lshrrev_b32 v11, 16, v11")
    a("v_mul_u32_u24 v12, 15, v11")
    a("v_sub_u32 v12, v10, v12")
    a("v_mul_u32_u24 v13, 52, v12")
    a("v_lshrrev_b32 v13, 8, v13")
    a("v_mul_u32_u24 v14, 5, v13")
    a("v_sub_u32 v14, v12, v14")
    a("v_mul_u32_u24 v11, 3840, v11")
    a("v_mul_u32_u24 v13, 1280, v13")
    a("v_lshlrev_b32 v14, 7, v14")
    a("v_add3_u32 v11, v11, v13, v14")
    a("s_mul_i32 s7, s71, 640")
    a("v_add_u32 v11, s7, v11")
    a("v_cmp_gt_u32 vcc, s6, v1")
    a(f"v_mov_b32 v12, 0x{OOB:x}")
    a("s_nop 0")
    a(f"v_cndmask_b32 v{dst}, v12, v11, vcc")


def b_initial_prefetch(a):
    npf = OPT["nt_pf"]
    srd(a, 32, P_X, TSZ)
    srd(a, 36, P_W, 640 * 3840)
    l1 = a.newlabel("IP")
    a("s_cmp_eq_u32 s3, 3")
    a(f"s_cbranch_scc1 {l1}")
    pf_w_addr(a, 2)
    a("s_mul_i32 s6, s3, 245760")
    a(f"buffer_load_dword v254, v2, s[36:39], s6 offen {npf}")
    a("s_cmp_eq_u32 s3, 2")
    a(f"s_cbranch_scc1 {l1}")
    pf_x_addr(a, 3)
    a("s_lshl_b32 s6, s3, 8")
    a(f"buffer_load_dword v255, v3, s[32:35], s6 offen {npf}")
    a.label(l1)


def b1_loader_setup(a):
    srd(a, 32, P_X, TSZ)
    srd(a, 36, P_W, 640 * 3840)
    a("s_sub_u32 s62, s3, 4")
    a("v_lshrrev_b32 v10, 3, v1")
    a("s_lshl_b32 s6, s62, 3")
    a("v_add_u32 v10, s6, v10")
    a("v_lshrrev_b32 v11, 1, v10")
    a("v_and_b32 v11, 7, v11")
    a("v_and_b32 v12, 7, v1")
    a("v_xor_b32 v11, v11, v12")
    a("v_lshlrev_b32 v11, 4, v11")
    a("s_mul_i32 s6, s60, 192")
    a("s_sub_u32 s6, s6, 16")
    a("v_add_u32 v10, s6, v10")
    a("s_movk_i32 s7, 1280")
    a("v_mul_lo_u32 v10, v10, s7")
    a("v_add_u32 v2, v10, v11")
    a("v_add_u32 v3, 40960, v2")
    a("v_lshrrev_b32 v10, 4, v1")
    a("v_and_b32 v12, 15, v1")
    a("s_mul_i32 s63, s61, 80")
    for which, dst in ((0, 5), (1, 6)):
        a("v_lshlrev_b32 v11, 1, v10")
        if which:
            a("v_add_u32 v11, 8, v11")
        a("v_xor_b32 v11, v11, v12")
        a("v_mul_u32_u24 v13, 52, v11")
        a("v_lshrrev_b32 v13, 8, v13")
        a("v_mul_u32_u24 v14, 5, v13")
        a("v_sub_u32 v14, v11, v14")
        a("v_mul_u32_u24 v13, 1280, v13")
        a("v_lshlrev_b32 v14, 4, v14")
        a("v_add3_u32 v13, v13, v14, s63")
        if OPT.get("walign"):
            a("v_lshlrev_b32 v13, 4, v11")
            a("s_lshl_b32 s6, s61, 7")
            a("v_add_u32 v13, s6, v13")
        a("s_lshl_b32 s6, s62, 4")
        if which:
            a("s_add_u32 s6, s6, 8")
        a("v_add_u32 v14, s6, v10")
        a("v_mul_u32_u24 v14, 3840, v14")
        a(f"v_add_u32 v{dst}, v14, v13")
        a("v_cmp_eq_u32 vcc, 15, v11")
        a(f"v_mov_b32 v13, 0x{OOB:x}")
        a("s_nop 0")
        a(f"v_cndmask_b32 v{dst}, v{dst}, v13, vcc")
    a("s_mov_b32 s41, 0")
    a("s_mov_b32 s42, 0")
    a("s_mov_b32 s43, 0")


def b1_issue_stage(a):
    nx, nw = OPT["nt_x"], OPT["nt_w"]
    a("s_lshl_b32 s6, s62, 10")
    a("s_add_u32 s6, s6, s43")
    a("s_mov_b32 m0, s6")
    a("s_mov_b32 s7, s41")
    a(f"buffer_load_dwordx4 v2, s[32:35], s41 offen {nx} lds")
    for m in range(1, 6):
        a(f"s_add_u32 m0, s6, {4096*m}")
        if m > 1:
            a("s_add_u32 s7, s7, 40960")
        else:
            a("s_nop 0")
        a(f"buffer_load_dwordx4 v3, s[32:35], s7 offen {nx} lds")
    l1 = a.newlabel("IS")
    a("s_cmp_lt_u32 s62, 2")
    a(f"s_cbranch_scc0 {l1}")
    a(f"s_add_u32 m0, s6, {4096*6}")
    a("s_add_u32 s7, s7, 40960")
    a(f"buffer_load_dwordx4 v3, s[32:35], s7 offen {nx} lds")
    a.label(l1)
    a("s_lshl_b32 s7, s62, 12")
    a("s_add_u32 s7, s7, s43")
    a(f"s_add_u32 s7, s7, {B1_XSZ}")
    a("s_mov_b32 m0, s7")
    a("s_add_u32 s46, s42, 15360")
    a(f"buffer_load_dwordx4 v5, s[36:39], s42 offen {nw} lds")
    a("s_add_u32 m0, s7, 1024")
    a("s_nop 0")
    a(f"buffer_load_dwordx4 v5, s[36:39], s46 offen {nw} lds")
    a("s_add_u32 m0, s7, 2048")
    a("s_nop 0")
    a(f"buffer_load_dwordx4 v6, s[36:39], s42 offen {nw} lds")
    a("s_add_u32 m0, s7, 3072")
    a("s_nop 0")
    a(f"buffer_load_dwordx4 v6, s[36:39], s46 offen {nw} lds")
    a("s_add_u32 s41, s41, 128")
    a("s_add_u32 s42, s42, 245760")
    a(f"s_add_u32 s43, s43, {B1_STAGE}")
    a(f"s_cmp_ge_u32 s43, {B1_STAGE*B1_NB}")
    a("s_cselect_b32 s43, 0, s43")


def lwait(a, nb, extra):
    l1, l2 = a.newlabel("LW"), a.newlabel("LW")
    a("s_cmp_lt_u32 s62, 2")
    a(f"s_cbranch_scc0 {l1}")
    a(f"s_waitcnt vmcnt({11*nb+extra})")
    a(f"s_branch {l2}")
    a.label(l1)
    a(f"s_waitcnt vmcnt({10*nb+extra})")
    a.label(l2)


def wo_dma_addr(a):
    for j in range(5):
        a(f"v_add_u32 v10, {64*j}, v1")
        a("v_mul_u32_u24 v11, 6554, v10")
        a("v_lshrrev_b32 v11, 16, v11")
        a("v_mul_u32_u24 v12, 10, v11")
        a("v_sub_u32 v12, v10, v12")
        a("v_lshrrev_b32 v13, 4, v11")
        a("v_lshlrev_b32 v13, 2, v13")
        a("v_and_b32 v14, 3, v11")
        a("v_add_u32 v13, v13, v14")
        a("v_lshrrev_b32 v14, 2, v11")
        a("v_and_b32 v14, 3, v14")
        a("v_lshlrev_b32 v14, 3, v14")
        a("v_add_u32 v13, v13, v14")
        a("v_mul_u32_u24 v13, 1280, v13")
        a("v_lshlrev_b32 v12, 4, v12")
        a("s_mul_i32 s6, s68, 160")
        a(f"v_add3_u32 v{230+j}, v13, v12, s6")


def wo_dma_blocks(a, first, n, lds_of_first):
    a(f"s_add_u32 s47, s62, {first}")
    loop, done = a.newlabel("WO"), a.newlabel("WO")
    a.label(loop)
    a(f"s_cmp_ge_u32 s47, {first+n}")
    a(f"s_cbranch_scc1 {done}")
    a("s_mul_i32 s7, s47, 40960")
    a("s_mul_i32 s6, s47, 5120")
    a(f"s_add_u32 s6, s6, 0x{(lds_of_first - first*5120) & 0xffffffff:x}")
    for j in range(5):
        a(f"s_add_u32 m0, s6, {1024*j}")
        a("s_nop 0")
        a(f"buffer_load_dwordx4 v{230+j}, s[56:59], s7 offen lds")
    a("s_add_u32 s47, s47, 4")
    a(f"s_branch {loop}")
    a.label(done)


def NPFL():
    return 0 if int(OPT.get('apf', 1)) else 3


def b_later_prefetch(a):
    npf = OPT["nt_pf"]
    a(f"v_mov_b32 v4, 0x{OOB:x}")
    a("s_add_u32 s6, s62, 3")
    a("s_mul_i32 s6, s6, 245760")
    a(f"buffer_load_dword v235, v8, s[36:39], s6 offen {npf}")
    a("s_cmp_lt_u32 s62, 3")
    a("s_cselect_b64 vcc, -1, 0")
    a("v_cndmask_b32 v10, v4, v9, vcc")
    a("s_add_u32 s6, s62, 2")
    a("s_lshl_b32 s6, s6, 8")
    a(f"buffer_load_dword v236, v10, s[32:35], s6 offen {npf}")
    a("v_cndmask_b32 v10, v4, v8, vcc")
    a("s_add_u32 s6, s62, 7")
    a("s_mul_i32 s6, s6, 245760")
    a(f"buffer_load_dword v237, v10, s[36:39], s6 offen {npf}")


def b1_loader(a, T):
    b1_loader_setup(a)
    pf_w_addr(a, 8)
    pf_x_addr(a, 9)
    srd(a, 56, P_WO, 640 * 1280)
    wo_dma_addr(a)
    att_setup(a)
    o_store_setup(a)
    srd(a, 48, P_WS, TSZ, WS_OW)
    a("s_barrier")
    a("s_mov_b32 s40, 0")
    l0 = a.newlabel("LP")
    a.label(l0)
    b1_issue_stage(a)
    a("s_add_u32 s40, s40, 1")
    lP = a.newlabel("LP")
    a("s_cmp_eq_u32 s40, 2")
    a(f"s_cbranch_scc0 {lP}")
    T.stamp(a, 1)
    lwait(a, 1, 0)
    a("s_barrier")
    a.label(lP)
    a("s_cmp_lt_u32 s40, 3")
    a(f"s_cbranch_scc1 {l0}")
    if NPFL():
        b_later_prefetch(a)
    a("s_mov_b32 s40, 0")
    loop = a.newlabel("LL")
    lA, lB, lC, lD, lW = [a.newlabel("LLx") for _ in range(5)]
    a.label(loop)
    a("s_cmp_lt_u32 s40, 2")
    a(f"s_cbranch_scc1 {lA}")
    a("s_cmp_lt_u32 s40, 8")
    a(f"s_cbranch_scc1 {lB}")
    a("s_cmp_eq_u32 s40, 8")
    a(f"s_cbranch_scc1 {lC}")
    a(f"s_branch {lW}")
    a.label(lA)
    lwait(a, 1, NPFL())
    a(f"s_branch {lW}")
    a.label(lB)
    lwait(a, 1, 0)
    a(f"s_branch {lW}")
    a.label(lC)
    a("s_waitcnt vmcnt(5)")
    a.label(lW)
    a("s_barrier")
    skip, s7, s8, nxt = a.newlabel("LLS"), a.newlabel("LL7"), a.newlabel("LL8"), a.newlabel("LLN")
    a("s_cmp_ge_u32 s40, 7")
    a(f"s_cbranch_scc1 {skip}")
    b1_issue_stage(a)
    a(f"s_branch {nxt}")
    a.label(skip)
    a("s_cmp_eq_u32 s40, 7")
    a(f"s_cbranch_scc0 {s8}")
    wo_dma_blocks(a, 6, 6, B2_WA + 6 * 5120)
    a(f"s_branch {nxt}")
    a.label(s8)
    s9 = a.newlabel("LL9")
    a("s_cmp_eq_u32 s40, 8")
    a(f"s_cbranch_scc0 {s9}")
    wo_dma_blocks(a, 0, 6, B2_WA)
    a(f"s_branch {nxt}")
    a.label(s9)
    a("s_lshl_b32 s6, s62, 6")
    a("s_add_u32 s6, s6, 384")
    a("v_add_u32 v10, s6, v1")
    a("v_mul_u32_u24 v10, 1280, v10")
    a("s_mul_i32 s6, s68, 160")
    a("s_and_b32 s6, s6, 0xffffff80")
    a("v_add_u32 v10, s6, v10")
    a("buffer_load_dword v235, v10, s[56:59], 0 offen")
    a("buffer_load_dword v236, v10, s[56:59], 0 offen offset:128")
    a.label(nxt)
    a("s_add_u32 s40, s40, 1")
    a("s_cmp_lt_u32 s40, 10")
    a(f"s_cbranch_scc1 {loop}")


def b1_compute(a, T):
    a("v_and_b32 v10, 15, v1")
    a("v_lshrrev_b32 v11, 4, v1")
    a("v_lshrrev_b32 v12, 1, v10")
    a("v_xor_b32 v12, v12, v11")
    a("v_lshlrev_b32 v12, 4, v12")
    a("v_lshlrev_b32 v10, 7, v10")
    a("v_add_u32 v2, v10, v12")
    a("v_xor_b32 v3, 64, v2")
    a("v_lshrrev_b32 v10, 2, v1")
    a("v_and_b32 v10, 3, v10")
    a("v_and_b32 v12, 3, v1")
    a("v_lshlrev_b32 v13, 3, v11")
    a("v_add_u32 v13, v13, v10")
    a("v_lshlrev_b32 v13, 8, v13")
    a("v_and_b32 v14, 1, v11")
    a("v_lshlrev_b32 v14, 3, v14")
    a("v_lshlrev_b32 v10, 1, v10")
    a("v_add_u32 v14, v14, v10")
    a("v_lshrrev_b32 v15, 1, v12")
    a("s_lshl_b32 s6, s3, 2")
    a("v_add_u32 v15, s6, v15")
    a("v_xor_b32 v15, v15, v14")
    a("v_lshlrev_b32 v15, 4, v15")
    a("v_and_b32 v12, 1, v12")
    a("v_lshlrev_b32 v12, 3, v12")
    a("v_add3_u32 v13, v13, v15, v12")
    a(f"v_add_u32 v4, {B1_XSZ}, v13")
    a("v_xor_b32 v5, 32, v4")
    for i in range(NRT * 8):
        a(f"v_mov_b32 v{ACC+i}, 0")
    att_setup(a)
    a("v_and_b32 v10, 15, v1")
    a(f"v_mul_u32_u24 v10, {QKV_RS}, v10")
    a("v_lshrrev_b32 v11, 4, v1")
    a("s_lshl_b32 s6, s3, 3")
    a("v_add_u32 v11, s6, v11")
    for ct in range(2):
        if ct:
            a("v_add_u32 v11, 4, v11")
        a("v_mul_u32_u24 v6, 52, v11")
        a("v_lshrrev_b32 v6, 8, v6")
        a("v_mul_u32_u24 v7, 5, v6")
        a("v_sub_u32 v7, v11, v7")
        a("v_lshlrev_b32 v6, 6, v6")
        a("v_lshlrev_b32 v7, 3, v7")
        a(f"v_add3_u32 v{12+ct}, v10, v6, v7")
        a(f"v_add_u32 v{14+ct}, {8*16*QKV_RS}, v{12+ct}")

    def reads(xaddr, waddr0, waddr1, ks, X, W):
        r = []
        r.append(f"ds_read_b64_tr_b16 v[{W}:{W+1}], v{waddr0} offset:{8192*ks}")
        r.append(f"ds_read_b64_tr_b16 v[{W+2}:{W+3}], v{waddr0} offset:{8192*ks+1024}")
        r.append(f"ds_read_b64_tr_b16 v[{W+4}:{W+5}], v{waddr1} offset:{8192*ks}")
        r.append(f"ds_read_b64_tr_b16 v[{W+6}:{W+7}], v{waddr1} offset:{8192*ks+1024}")
        for t in range(NRT):
            r.append(f"ds_read_b128 v[{X+4*t}:{X+4*t+3}], v{xaddr} offset:{2048*t}")
        return r

    def mfmas(X, W):
        r = []
        for t in range(NRT):
            for ct in range(2):
                ac = ACC + (ct * NRT + t) * 4
                r.append(f"v_mfma_f32_16x16x32_bf16 v[{ac}:{ac+3}], v[{W+4*ct}:{W+4*ct+3}], v[{X+4*t}:{X+4*t+3}], v[{ac}:{ac+3}]")
        return r

    def inter(m, r):
        if OPT.get("nomfma"):
            return
        for i, x in enumerate(m):
            a(x)
            if i < len(r):
                a(r[i])

    a("s_waitcnt vmcnt(0)")
    a("s_barrier")
    T.stamp(a, 1)
    a("s_barrier")
    T.stamp(a, 2)
    a("v_mov_b32 v6, v2")
    a("v_mov_b32 v7, v3")
    a("v_mov_b32 v8, v4")
    a("v_mov_b32 v9, v5")
    for x in reads(6, 8, 9, 0, XA, WA):
        a(x)
    a("s_mov_b32 s40, 0")
    a("s_mov_b32 s44, 0")
    loop, last = a.newlabel("CL"), a.newlabel("CE")
    a.label(loop)
    a("s_waitcnt lgkmcnt(0)")
    inter(mfmas(XA, WA), reads(7, 8, 9, 1, XB, WB))
    a(f"s_add_u32 s44, s44, {B1_STAGE}")
    a(f"s_cmp_ge_u32 s44, {B1_STAGE*B1_NB}")
    a("s_cselect_b32 s44, 0, s44")
    a("v_add_u32 v6, s44, v2")
    a("v_add_u32 v7, s44, v3")
    a("v_add_u32 v8, s44, v4")
    a("v_add_u32 v9, s44, v5")
    a("s_waitcnt lgkmcnt(0)")
    a("s_barrier")
    if OPT.get("stagets") and T.on:
        a(f"{TS.INSTR} s[96:97]")
        a("s_waitcnt lgkmcnt(0)")
        for i in range(10):
            a(f"s_cmp_eq_u32 s40, {i}")
            a(f"s_cselect_b32 s{83+i}, s96, s{83+i}")
    a("s_cmp_eq_u32 s40, 9")
    a(f"s_cbranch_scc1 {last}")
    inter(mfmas(XB, WB), reads(6, 8, 9, 0, XA, WA))
    a("s_add_u32 s40, s40, 1")
    a(f"s_branch {loop}")
    a.label(last)
    m = mfmas(XB, WB)

    def wr(t, ct, k):
        ac = ACC + (ct * NRT + t) * 4
        d = XA + 2 * (k % 16)
        r = [f"v_cvt_pk_bf16_f32 v{d}, v{ac}, v{ac+1}", f"v_cvt_pk_bf16_f32 v{d+1}, v{ac+2}, v{ac+3}"]
        if t < 8:
            r.append(f"ds_write_b64 v{12+ct}, v[{d}:{d+1}] offset:{16*QKV_RS*t}")
        else:
            r.append(f"ds_write_b64 v{14+ct}, v[{d}:{d+1}] offset:{16*QKV_RS*(t-8)}")
        return r
    k = 0
    pend = []
    LAG = 8
    for i, x in enumerate(m):
        a(x)
        pend.append((i // 2, i % 2))
        if i >= LAG:
            t, ct = pend.pop(0)
            for y in wr(t, ct, k):
                a(y)
            k += 1
    a("s_nop 7")
    for (t, ct) in pend:
        for y in wr(t, ct, k):
            a(y)
        k += 1


def b1_epi_loader(a):
    a("v_and_b32 v10, 255, v0")
    a("v_mov_b32 v16, 0")
    a("v_mov_b32 v17, 0")
    a("v_mov_b32 v18, 0")
    a("v_mov_b32 v19, 0")
    a("v_lshrrev_b32 v11, 2, v10")
    a("v_and_b32 v12, 3, v10")
    a(f"v_mul_u32_u24 v11, {QKV_RS}, v11")
    a("v_lshlrev_b32 v12, 6, v12")
    a("v_add_u32 v11, v11, v12")
    for it in range(4):
        off = it * 64 * QKV_RS
        if it == 3:
            a("v_cmp_gt_u32 vcc, 64, v10")
            a("s_and_saveexec_b64 s[6:7], vcc")
        if it == 2:
            a(f"v_add_u32 v11, {2*64*QKV_RS}, v11")
        o2 = off if it < 2 else off - 2 * 64 * QKV_RS
        a(f"ds_write_b64 v11, v[16:17] offset:{o2+40}")
        a(f"ds_write_b128 v11, v[16:19] offset:{o2+48}")
        if it == 3:
            a("s_mov_b64 exec, s[6:7]")


KP0, KC0, KP1, KC1, NEG, KQB, VB, OB = 240, 241, 242, 243, 248, 249, 252, 253
S_PAR, S_M0, S_M1 = 64, 72, 74
S_D1, S_D2, S_O1, S_O2 = 76, 77, 66, 78


def att_setup(a):
    R16 = 16 * QKV_RS
    a("v_and_b32 v10, 15, v1")
    a("v_lshrrev_b32 v11, 4, v1")
    a(f"v_mov_b32 v{NEG}, 0xf149f2ca")
    a("v_and_b32 v12, 1, v10")
    a(f"v_cmp_eq_u32 s[{S_PAR}:{S_PAR+1}], 1, v12")
    a("v_lshlrev_b32 v13, 2, v11")
    a("v_add_u32 v13, v13, v12")
    a(f"v_cmp_le_u32 s[{S_M0}:{S_M0+1}], v13, v10")
    a("v_add_u32 v13, 2, v13")
    a(f"v_cmp_le_u32 s[{S_M1}:{S_M1+1}], v13, v10")
    a("v_mov_b32 v14, 0xffff")
    a("v_mov_b32 v15, 0xffff0000")
    a(f"v_cndmask_b32 v14, v14, v15, s[{S_PAR}:{S_PAR+1}]")
    a("v_mov_b32 v15, 0")
    a(f"v_cndmask_b32 v{KC0}, v15, v14, s[{S_M0}:{S_M0+1}]")
    a(f"v_cndmask_b32 v{KP0}, v14, v15, s[{S_M0}:{S_M0+1}]")
    a(f"v_cndmask_b32 v{KC1}, v15, v14, s[{S_M1}:{S_M1+1}]")
    a(f"v_cndmask_b32 v{KP1}, v14, v15, s[{S_M1}:{S_M1+1}]")
    a("s_mul_i32 s46, s3, 3")
    a("s_lshr_b32 s6, s46, 1")
    a("s_and_b32 s7, s46, 1")
    a(f"s_mul_i32 s45, s6, {R16}")
    a("s_lshl_b32 s47, s7, 6")
    a("s_add_u32 s45, s45, s47")
    a("s_mul_i32 s47, s6, 1280")
    a("s_mul_i32 s6, s7, 40")
    a("s_add_u32 s47, s47, s6")
    a("s_cmp_eq_u32 s7, 0")
    a(f"s_cselect_b32 s{S_D1}, 64, {R16-64}")
    a(f"s_mov_b32 s{S_D2}, {R16}")
    a(f"s_cselect_b32 s{S_O1}, 40, {1280-40}")
    a(f"s_mov_b32 s{S_O2}, 1280")
    a(f"v_mul_u32_u24 v12, {QKV_RS}, v10")
    a("v_lshlrev_b32 v13, 4, v11")
    a(f"v_add3_u32 v{KQB}, v12, v13, s45")
    a("v_lshrrev_b32 v12, 2, v1")
    a("v_and_b32 v12, 3, v12")
    a("v_lshlrev_b32 v13, 2, v11")
    a("v_add_u32 v12, v12, v13")
    a(f"v_mul_u32_u24 v12, {QKV_RS}, v12")
    a("v_and_b32 v13, 3, v1")
    a("v_lshlrev_b32 v13, 3, v13")
    a(f"v_add3_u32 v{VB}, v12, v13, s45")
    a("v_mul_u32_u24 v12, 80, v10")
    a("v_lshlrev_b32 v13, 3, v11")
    a("v_add3_u32 v12, v12, v13, s47")
    a(f"v_add_u32 v{OB}, {O_LDS}, v12")


def attention(a, T=None):
    R16 = 16 * QKV_RS
    U = [32 + 48 * u for u in range(3)]
    kq = [KQB, U[1] + 36, U[2] + 36]
    vv = [VB, U[1] + 37, U[2] + 37]
    oo = [OB, U[1] + 38, U[2] + 38]
    a(f"v_add_u32 v{kq[1]}, s{S_D1}, v{KQB}")
    a(f"v_add_u32 v{kq[2]}, s{S_D2}, v{KQB}")
    for u in range(3):
        b = U[u]
        a(f"ds_read_b128 v[{b}:{b+3}], v{kq[u]} offset:{R16}")
        a(f"ds_read_b128 v[{b+4}:{b+7}], v{kq[u]} offset:128")
        a(f"ds_read_b128 v[{b+8}:{b+11}], v{kq[u]} offset:{R16+128}")
    a(f"v_add_u32 v{vv[1]}, s{S_D1}, v{VB}")
    a(f"v_add_u32 v{vv[2]}, s{S_D2}, v{VB}")
    for u in range(3):
        b = U[u]
        a(f"ds_read_b64_tr_b16 v[{b+12}:{b+13}], v{vv[u]} offset:256")
        a(f"ds_read_b64_tr_b16 v[{b+14}:{b+15}], v{vv[u]} offset:{R16+256}")
        a(f"ds_read_b64_tr_b16 v[{b+16}:{b+17}], v{vv[u]} offset:{256+32}")
        a(f"ds_read_b64_tr_b16 v[{b+18}:{b+19}], v{vv[u]} offset:{R16+256+32}")
    a(f"v_add_u32 v{oo[1]}, s{S_O1}, v{OB}")
    a(f"v_add_u32 v{oo[2]}, s{S_O2}, v{OB}")
    a("s_mov_b32 s45, 0x3ea52b5c")
    a("s_waitcnt lgkmcnt(12)")
    for u in range(3):
        b = U[u]
        a(f"v_mfma_f32_16x16x32_bf16 v[{b+20}:{b+23}], v[{b+4}:{b+7}], v[{b}:{b+3}], 0")
        a(f"v_mfma_f32_16x16x32_bf16 v[{b+24}:{b+27}], v[{b+8}:{b+11}], v[{b}:{b+3}], 0")
    a("s_nop 7")

    def each(f):
        for step in zip(*[f(U[u]) for u in range(3)]):
            for x in step:
                a(x)
    P_, M0_, M1_ = f"s[{S_PAR}:{S_PAR+1}]", f"s[{S_M0}:{S_M0+1}]", f"s[{S_M1}:{S_M1+1}]"
    each(lambda b: [f"v_cndmask_b32 v{b+20}, v{b+20}, v{b+21}, {P_}",
                    f"v_cndmask_b32 v{b+22}, v{b+22}, v{b+23}, {P_}",
                    f"v_cndmask_b32 v{b+24}, v{b+24}, v{b+25}, {P_}",
                    f"v_cndmask_b32 v{b+26}, v{b+26}, v{b+27}, {P_}"])
    lsp = a.newlabel("ATS")
    a("s_or_b32 s6, s60, s3")
    a("s_cmp_lg_u32 s6, 0")
    a(f"s_cbranch_scc1 {lsp}")
    for u in range(2):
        a(f"v_mov_b32 v{U[u]+20}, v{NEG}")
        a(f"v_mov_b32 v{U[u]+22}, v{NEG}")
    a.label(lsp)
    each(lambda b: [f"v_cndmask_b32 v{b+20}, v{b+20}, v{b+24}, {M0_}",
                    f"v_cndmask_b32 v{b+22}, v{b+22}, v{b+26}, {M1_}",
                    f"v_max_f32 v{b+28}, v{b+20}, v{b+22}",
                    f"v_mov_b32 v{b+29}, v{b+28}",
                    f"v_permlane32_swap_b32 v{b+28}, v{b+29}",
                    f"v_max_f32 v{b+28}, v{b+28}, v{b+29}",
                    f"v_mov_b32 v{b+29}, v{b+28}",
                    f"v_permlane16_swap_b32 v{b+28}, v{b+29}",
                    f"v_max_f32 v{b+28}, v{b+28}, v{b+29}",
                    f"v_mul_f32 v{b+28}, s45, v{b+28}",
                    f"v_fma_f32 v{b+20}, v{b+20}, s45, -v{b+28}",
                    f"v_fma_f32 v{b+22}, v{b+22}, s45, -v{b+28}",
                    f"v_exp_f32 v{b+20}, v{b+20}",
                    f"v_exp_f32 v{b+22}, v{b+22}",
                    f"v_add_f32 v{b+28}, v{b+20}, v{b+22}",
                    f"v_mov_b32 v{b+29}, v{b+28}",
                    f"v_permlane32_swap_b32 v{b+28}, v{b+29}",
                    f"v_add_f32 v{b+28}, v{b+28}, v{b+29}",
                    f"v_mov_b32 v{b+29}, v{b+28}",
                    f"v_permlane16_swap_b32 v{b+28}, v{b+29}",
                    f"v_add_f32 v{b+28}, v{b+28}, v{b+29}",
                    f"v_rcp_f32 v{b+28}, v{b+28}",
                    f"v_mul_f32 v{b+20}, v{b+20}, v{b+28}",
                    f"v_mul_f32 v{b+22}, v{b+22}, v{b+28}",
                    f"v_cvt_pk_bf16_f32 v{b+20}, v{b+20}, v{b+20}",
                    f"v_cvt_pk_bf16_f32 v{b+22}, v{b+22}, v{b+22}",
                    f"v_and_b32 v{b+40}, v{KP0}, v{b+20}",
                    f"v_and_b32 v{b+41}, v{KP1}, v{b+22}",
                    f"v_and_b32 v{b+42}, v{KC0}, v{b+20}",
                    f"v_and_b32 v{b+43}, v{KC1}, v{b+22}"])
    a("s_waitcnt lgkmcnt(0)")
    for u in range(3):
        b = U[u]
        a(f"v_mfma_f32_16x16x32_bf16 v[{b}:{b+3}], v[{b+12}:{b+15}], v[{b+40}:{b+43}], 0")
        a(f"v_mfma_f32_16x16x32_bf16 v[{b+4}:{b+7}], v[{b+16}:{b+19}], v[{b+40}:{b+43}], 0")
    a("s_nop 7")
    for u in range(3):
        b = U[u]
        a(f"v_cvt_pk_bf16_f32 v{b+8}, v{b}, v{b+1}")
        a(f"v_cvt_pk_bf16_f32 v{b+9}, v{b+2}, v{b+3}")
        a(f"v_cvt_pk_bf16_f32 v{b+10}, v{b+4}, v{b+5}")
        a(f"v_cvt_pk_bf16_f32 v{b+11}, v{b+6}, v{b+7}")
        a(f"ds_write_b64 v{oo[u]}, v[{b+8}:{b+9}]")
    a("s_mov_b64 exec, 0xffff")
    for u in range(3):
        b = U[u]
        a(f"ds_write_b64 v{oo[u]}, v[{b+10}:{b+11}] offset:32")
    a("s_mov_b64 exec, -1")


def epoch_issue(a, vdst, vtmp, srdn, off_expr_sgpr):
    srd(a, srdn, P_WS, 0x10000, WS_FL)
    a(f"v_mov_b32 v{vtmp}, s{off_expr_sgpr}")
    a(f"buffer_load_dword v{vdst}, v{vtmp}, s[{srdn}:{srdn+3}], 0 offen sc1")


def poll(a, vaddr, n_lanes, tag_s, srdn):
    l0, l1 = a.newlabel("PF"), a.newlabel("PF")
    a("s_mov_b32 s45, 0")
    if n_lanes < 64:
        a(f"s_mov_b64 exec, 0x{(1 << n_lanes) - 1:x}")
    a.label(l0)
    a(f"buffer_load_dword v4, v{vaddr}, s[{srdn}:{srdn+3}], 0 offen sc1")
    a("s_waitcnt vmcnt(0)")
    a(f"v_cmp_ne_u32 vcc, s{tag_s}, v4")
    a("s_add_u32 s45, s45, 1")
    a("s_nop 3")
    a(f"s_cbranch_vccz {l1}")
    a(f"s_cmp_gt_u32 s45, {OPT['spin']}")
    a(f"s_cbranch_scc1 {l1}")
    a(f"s_sleep {OPT['psleep']}")
    a(f"s_branch {l0}")
    a.label(l1)
    if n_lanes < 64:
        a("s_mov_b64 exec, -1")


def o_store_setup(a):
    a("v_and_b32 v10, 255, v0")
    a("v_lshlrev_b32 v10, 4, v10")
    a(f"v_add_u32 v216, {O_LDS}, v10")
    a("s_mul_i32 s6, s61, 163840")
    a("s_mul_i32 s7, s60, 15360")
    a("s_add_u32 s6, s6, s7")
    a("v_add_u32 v12, s6, v10")
    a("s_movk_i32 s7, 15360")
    a("s_cmp_eq_u32 s60, 10")
    a("s_cselect_b32 s7, 10240, s7")
    a(f"v_mov_b32 v14, 0x{OOB:x}")
    for i in range(4):
        a(f"v_add_u32 v{217+i}, {4096*i}, v12")
        a(f"v_add_u32 v13, {4096*i}, v10")
        a("v_cmp_gt_u32 vcc, s7, v13")
        a("s_nop 1")
        a(f"v_cndmask_b32 v{217+i}, v14, v{217+i}, vcc")


def o_store(a):
    sc = OPT["sc_ostore"]
    for i in range(4):
        a(f"ds_read_b128 v[{16+4*i}:{19+4*i}], v216 offset:{4096*i}")
    a("s_waitcnt lgkmcnt(0)")
    for i in range(4):
        a(f"buffer_store_dwordx4 v[{16+4*i}:{19+4*i}], v{217+i}, s[48:51], 0 offen {sc}")


def b2_o_addr(a, dst):
    a("s_lshl_b32 s6, s47, 10")
    a("v_add_u32 v10, s6, v239")
    a("v_lshrrev_b32 v11, 9, v10")
    a("v_mul_u32_u24 v11, 4370, v11")
    a("v_lshrrev_b32 v11, 16, v11")
    a("v_mul_u32_u24 v11, 156160, v11")
    a(f"v_add_u32 v{dst}, v10, v11")


def b2_loader_setup(a):
    for i in range(8):
        a(f"s_add_u32 s47, s62, {4*i}")
        b2_o_addr(a, 224 + i)
    a("s_cmp_lt_u32 s62, 2")
    a("s_cselect_b64 vcc, -1, 0")
    a(f"v_mov_b32 v10, 0x{OOB:x}")
    a("v_cndmask_b32 v231, v10, v231, vcc")
    a("s_mul_i32 s49, s67, 7680")


def b2_loader(a, T):
    sc = OPT["sc_oload"]

    def soff(st):
        a(f"s_add_u32 s50, s68, {st}")
        a("s_and_b32 s50, s50, 1")
        a(f"s_add_u32 s50, s50, s{75 if st < 2 else 63}")
        a("s_mul_i32 s50, s50, 655360")
        a("s_add_u32 s50, s50, s49")

    def dma(st):
        soff(st)
        a("s_lshl_b32 s6, s62, 10")
        a(f"s_add_u32 s6, s6, {B2_O + (st & 1)*B2_OST}")
        for i in range(8):
            lab = None
            if i == 7:
                lab = a.newlabel("O7")
                a("s_cmp_ge_u32 s62, 2")
                a(f"s_cbranch_scc1 {lab}")
            a(f"s_add_u32 m0, s6, {4096*i}")
            a("s_nop 0")
            a(f"buffer_load_dwordx4 v{224+i}, s[52:55], s50 offen {sc} lds")
            if lab:
                a.label(lab)

    def vload(st):
        soff(st)
        for i in range(8):
            d = 16 + 32 * (st - 2) + 4 * i
            a(f"buffer_load_dwordx4 v[{d}:{d+3}], v{224+i}, s[52:55], s50 offen {sc}")

    def lwrite(st):
        for i in range(8):
            d = 16 + 32 * (st - 2) + 4 * i
            lab = None
            if i == 7:
                lab = a.newlabel("O7")
                a("s_cmp_ge_u32 s62, 2")
                a(f"s_cbranch_scc1 {lab}")
            a(f"ds_write_b128 v10, v[{d}:{d+3}] offset:{(st & 1) * B2_OST + 4096*i}")
            if lab:
                a.label(lab)
        a("s_waitcnt lgkmcnt(0)")

    a("v_lshlrev_b32 v10, 4, v1")
    a("s_lshl_b32 s6, s62, 10")
    a(f"s_add_u32 s6, s6, {B2_O}")
    a("v_add_u32 v10, s6, v10")
    T.stamp(a, 2)
    dma(0)
    T.stamp(a, 4)
    dma(1)
    T.stamp(a, 5)
    a("s_waitcnt vmcnt(7)")
    if not OPT.get('attts'): T.stamp(a, 10)
    a("s_barrier")
    if OPT.get("b2dma"):
        lq = a.newlabel("P2")
        a("s_cmp_lg_u32 s62, 0")
        a(f"s_cbranch_scc1 {lq}")
        a("s_lshl_b32 s6, s60, 11")
        a("s_lshl_b32 s7, s63, 9")
        a("s_add_u32 s6, s6, s7")
        a("v_lshlrev_b32 v12, 7, v1")
        a("v_add_u32 v12, s6, v12")
        poll(a, 12, 8, 44, 36)
        le = a.newlabel("EU")
        a("s_cmp_lg_u32 s61, 0")
        a(f"s_cbranch_scc1 {le}")
        a("v_mov_b32 v11, s44")
        a("s_mov_b64 exec, 1")
        a("buffer_store_dword v11, v251, s[36:39], 0 offen sc1")
        a("s_mov_b64 exec, -1")
        a.label(le)
        a.label(lq)
        a("s_waitcnt vmcnt(0)")
        a("s_barrier")
        dma(2)
        a("s_waitcnt vmcnt(0)")
        a("s_barrier")
        dma(3)
        a("s_waitcnt vmcnt(0)")
        a("s_barrier")
        return
    vload(2)
    a("s_waitcnt vmcnt(8)")
    if not OPT.get('attts'): T.stamp(a, 11)
    a("s_barrier")
    vload(3)
    a("s_waitcnt vmcnt(8)")
    if not OPT.get('attts'): T.stamp(a, 12)
    lwrite(2)
    a("s_barrier")
    a("s_waitcnt vmcnt(0)")
    if not OPT.get('attts'): T.stamp(a, 13)
    lwrite(3)
    a("s_barrier")


def b2_compute_setup(a):
    a("v_and_b32 v10, 15, v1")
    a("v_lshrrev_b32 v11, 4, v1")
    a("s_and_b32 s6, s3, 1")
    a("s_mul_i32 s6, s6, 48")
    a("v_add_u32 v10, s6, v10")
    a("v_mul_u32_u24 v10, 80, v10")
    for ks in range(5):
        a(f"v_add_u32 v12, {4*ks}, v11")
        a("v_mul_u32_u24 v13, 52, v12")
        a("v_lshrrev_b32 v13, 8, v13")
        a("v_mul_u32_u24 v14, 5, v13")
        a("v_sub_u32 v14, v12, v14")
        a("v_mul_u32_u24 v13, 7680, v13")
        a("v_lshlrev_b32 v14, 4, v14")
        a(f"v_add3_u32 v{224+ks}, v10, v13, v14")
    a("v_lshrrev_b32 v12, 2, v1")
    a("v_and_b32 v12, 3, v12")
    a("v_lshlrev_b32 v13, 2, v11")
    a("v_add_u32 v12, v12, v13")
    a("v_mul_u32_u24 v12, 160, v12")
    a("v_and_b32 v13, 3, v1")
    a("v_lshlrev_b32 v13, 3, v13")
    a("s_lshr_b32 s47, s3, 1")
    a("s_mul_i32 s6, s47, 96")
    a("v_add3_u32 v229, v12, v13, s6")
    for i in range(36):
        a(f"v_mov_b32 v{16+i}, 0")
    srd(a, 56, P_OUT, 2048 * 2560)
    a("v_and_b32 v13, 15, v1")
    a("s_and_b32 s6, s3, 1")
    a("s_mul_i32 s6, s6, 48")
    a("s_mul_i32 s7, s67, 96")
    a("s_add_u32 s6, s6, s7")
    a("v_add_u32 v13, s6, v13")
    a("v_mul_u32_u24 v13, 2560, v13")
    a("v_lshrrev_b32 v14, 4, v1")
    a("v_lshlrev_b32 v14, 3, v14")
    a("s_mul_i32 s6, s68, 160")
    a("s_mul_i32 s7, s47, 96")
    a("s_add_u32 s6, s6, s7")
    a("s_add_u32 s6, s6, 1280")
    a("v_add3_u32 v213, v13, v14, s6")
    a("s_mov_b32 s72, 0")
    a("s_mov_b32 s73, 40960")
    a("s_mov_b32 s74, 81920")
    a(f"s_mov_b32 s51, 0x{(B2_WB - 12*5120) & 0xffffffff:x}")


def b2_compute(a, T):
    WF, OF = 56, 120

    def addr(slot, st):
        r = []
        ob, wb = 192 + 5 * slot, 202 + 5 * slot
        r.append(f"s_add_u32 s50, s68, {st}")
        r.append("s_and_b32 s50, s50, 1")
        r.append(f"s_add_u32 s50, s50, s{75 if st < 2 else 63}")
        r.append("s_mul_i32 s50, s50, 5")
        for ks in range(5):
            r.append(f"v_add_u32 v{ob+ks}, {B2_O + (st & 1) * B2_OST}, v{224+ks}")
            r.append(f"s_add_u32 s6, s50, {ks}")
            r.append("s_mul_i32 s7, s6, 5120")
            r.append("s_cmp_lt_u32 s6, 12")
            r.append(f"s_cselect_b32 s6, {B2_WA}, s51")
            r.append("s_add_u32 s6, s6, s7")
            r.append(f"v_add_u32 v{wb+ks}, s6, v229")
        return r

    def rd_w(slot, ks, nct):
        wb = 202 + 5 * slot
        r = []
        for ct in range(nct):
            F = WF + 12 * ks + 4 * ct
            r.append(f"ds_read_b64_tr_b16 v[{F}:{F+1}], v{wb+ks} offset:{32*ct}")
            r.append(f"ds_read_b64_tr_b16 v[{F+2}:{F+3}], v{wb+ks} offset:{32*ct+2560}")
        return r

    def rd_o(slot, ks):
        ob = 192 + 5 * slot
        return [f"ds_read_b128 v[{OF+12*ks+4*t}:{OF+12*ks+4*t+3}], v{ob+ks} offset:{1280*t}" for t in range(3)]

    def mm(ks, nct):
        r = []
        for t in range(3):
            for ct in range(nct):
                ac = 16 + (t * 3 + ct) * 4
                W = WF + 12 * ks + 4 * ct
                O = OF + 12 * ks + 4 * t
                r.append(f"v_mfma_f32_16x16x32_bf16 v[{ac}:{ac+3}], v[{W}:{W+3}], v[{O}:{O+3}], v[{ac}:{ac+3}]")
        return r

    le, ld = a.newlabel("C2E"), a.newlabel("C2D")
    for x in addr(0, 0):
        a(x)
    a("s_cmp_eq_u32 s47, 0")
    a(f"s_cbranch_scc0 {le}")
    for var, nct in enumerate([3, 2]):
        if var == 1:
            a(f"s_branch {ld}")
            a.label(le)
        for ks in range(5):
            for x in rd_w(0, ks, nct):
                a(x)
        for st in range(4):
            slot = st & 1
            a("s_waitcnt lgkmcnt(0)")
            a("s_barrier")
            if T.on and not OPT.get("attts") and var == 0:
                T.stamp(a, 10 + st)
            for ks in range(5):
                for x in rd_o(slot, ks):
                    a(x)
            lg = 12
            nfill = 0
            for ks in range(5):
                fill = []
                if st < 3:
                    fill = addr(slot ^ 1, st + 1) if ks == 0 else rd_w(slot ^ 1, ks - 1, nct)
                a(f"s_waitcnt lgkmcnt({min(15, 3 * (4 - ks) + nfill)})")
                m = mm(ks, nct)
                per = (len(fill) + len(m) - 1) // len(m)
                k = 0
                for x in m:
                    a(x)
                    for _ in range(per):
                        if k < len(fill):
                            a(fill[k])
                            k += 1
                if ks >= 1 and st < 3:
                    nfill += len(fill)
            if st < 3:
                for x in rd_w(slot ^ 1, 4, nct):
                    a(x)
        no = OPT["nt_out"]
        a("s_nop 7")
        for t in range(3):
            for ct in range(nct):
                ac = 16 + (t * 3 + ct) * 4
                p = 56 + 2 * (t * 3 + ct)
                a(f"v_cvt_pk_bf16_f32 v{p}, v{ac}, v{ac+1}")
                a(f"v_cvt_pk_bf16_f32 v{p+1}, v{ac+2}, v{ac+3}")
                a(f"buffer_store_dwordx2 v[{p}:{p+1}], v213, s[56:59], s{72+t} offen offset:{32*ct} {no}")
    a.label(ld)


def read_fh(a):
    a(f"v_mov_b32 v11, {B2_O}")
    a("ds_read_b32 v10, v11")
    a("s_waitcnt lgkmcnt(0)")
    a("v_readfirstlane_b32 s75, v10")
    a("s_barrier")
    a("s_lshl_b32 s75, s75, 1")
    a("s_sub_u32 s63, 2, s75")


def b_program(a, T):
    b_decode(a)
    ld, j1 = a.newlabel("BLD"), a.newlabel("BJ1")
    a("s_cmp_ge_u32 s3, 4")
    a(f"s_cbranch_scc1 {ld}")
    b_initial_prefetch(a)
    a("s_lshl_b32 s6, s60, 7")
    a(f"s_add_u32 s6, s6, {FL_EB}")
    epoch_issue(a, 250, 251, 52, 6)
    b1_compute(a, T)
    T.stamp(a, 3)
    a("s_waitcnt lgkmcnt(0)")
    a(f"s_branch {j1}")
    a.label(ld)
    a("s_lshl_b32 s6, s60, 7")
    a(f"s_add_u32 s6, s6, {FL_EB}")
    epoch_issue(a, 250, 251, 52, 6)
    b1_loader(a, T)
    T.stamp(a, 3)
    b1_epi_loader(a)
    a("s_waitcnt lgkmcnt(0)")
    a.label(j1)
    a("s_barrier")
    T.stamp(a, 4)
    attention(a, T)
    a("s_waitcnt lgkmcnt(0)")
    a("s_barrier")
    T.stamp(a, 5)
    ld2, j2 = a.newlabel("BLD"), a.newlabel("BJ2")
    a("s_cmp_ge_u32 s3, 4")
    a(f"s_cbranch_scc1 {ld2}")
    a("v_readfirstlane_b32 s44, v250")
    a("s_add_u32 s44, s44, 1")
    a("s_barrier")
    b2_compute_setup(a)
    a("s_barrier")
    lp = a.newlabel("NP")
    a("s_cmp_lg_u32 s3, 0")
    a(f"s_cbranch_scc1 {lp}")
    a("s_lshl_b32 s6, s60, 4")
    a("s_add_u32 s6, s6, s61")
    a("s_lshl_b32 s6, s6, 7")
    a("v_mov_b32 v10, s6")
    a("v_mov_b32 v11, s44")
    a("s_mov_b64 exec, 1")
    a("buffer_store_dword v11, v10, s[52:55], 0 offen sc1")
    a("s_mov_b64 exec, -1")
    T.stamp(a, 6)
    a("s_lshl_b32 s6, s60, 11")
    a("v_lshlrev_b32 v10, 7, v1")
    a("v_add_u32 v10, s6, v10")
    l0, l1, l2 = a.newlabel("PH"), a.newlabel("PH"), a.newlabel("PH")
    a("s_mov_b32 s45, 0")
    a("s_mov_b64 exec, 0xffff")
    a.label(l0)
    a("buffer_load_dword v4, v10, s[52:55], 0 offen sc1")
    a("s_waitcnt vmcnt(0)")
    a("v_cmp_ne_u32 vcc, s44, v4")
    a("s_add_u32 s45, s45, 1")
    a("s_nop 3")
    a("s_and_b32 s6, vcc_lo, 0xff")
    a("s_and_b32 s7, vcc_lo, 0xff00")
    a("s_cmp_eq_u32 s6, 0")
    a(f"s_cbranch_scc1 {l1}")
    a("s_cmp_eq_u32 s7, 0")
    a(f"s_cbranch_scc1 {l1}")
    a(f"s_cmp_gt_u32 s45, {OPT['spin']}")
    a(f"s_cbranch_scc1 {l1}")
    a(f"s_sleep {OPT['psleep']}")
    a(f"s_branch {l0}")
    a.label(l1)
    a("s_mov_b64 exec, -1")
    a("s_lshr_b32 s46, s68, 1")
    a("s_and_b32 s46, s46, 1")
    a("s_cmp_lg_u32 s6, 0")
    a("s_cselect_b32 s46, 1, s46")
    a("s_cmp_lg_u32 s7, 0")
    a("s_cselect_b32 s46, 0, s46")
    a("v_mov_b32 v10, s46")
    a(f"v_mov_b32 v11, {B2_O}")
    a("ds_write_b32 v11, v10")
    a("s_waitcnt lgkmcnt(0)")
    a.label(lp)
    T.stamp(a, 7)
    a("s_barrier")
    read_fh(a)
    b2_compute(a, T)
    T.stamp(a, 8)
    a(f"s_branch {j2}")
    a.label(ld2)
    o_store(a)
    a("s_barrier")
    a("s_waitcnt vmcnt(0)")
    a("s_barrier")
    wo_dma_blocks(a, 12, 8, B2_WB)
    srd(a, 52, P_WS, TSZ, WS_OW)
    a("v_lshlrev_b32 v239, 4, v1")
    b2_loader_setup(a)
    a("s_waitcnt vmcnt(0)")
    srd(a, 36, P_WS, 0x10000, WS_FL)
    a("v_readfirstlane_b32 s44, v250")
    a("s_add_u32 s44, s44, 1")
    T.stamp(a, 7)
    a("s_barrier")
    read_fh(a)
    b2_loader(a, T)
    T.stamp(a, 8)
    a.label(j2)
    T.stamp(a, 9)


A2_H0 = 0
A2_H1 = 4640
A2_X0 = 9216
A2_X2 = 13696
A2_CH = 17920
T_RS = 528
Y_RS = 528


def a_program(a, T):
    na, nh, sc = OPT["nt_a"], OPT["nt_h"], OPT["sc"]
    a("s_sub_u32 s5, s5, s70")
    a("s_lshl_b32 s6, s4, 1")
    a("s_add_u32 s7, s4, 2")
    a("s_cmp_lt_u32 s4, 2")
    a("s_cselect_b32 s6, s6, s7")
    a("s_lshr_b32 s7, s5, 3")
    a("s_add_u32 s73, s6, s7")
    a("s_and_b32 s72, s5, 7")
    a("s_lshl_b32 s62, s73, 6")
    a("s_lshl_b32 s6, s72, 3")
    a("s_add_u32 s62, s62, s6")
    a("s_add_u32 s63, s62, s3")
    srd(a, 32, P_K, TSZ)
    srd(a, 36, P_V, TSZ)
    srd(a, 40, P_SK, 640 * 8)
    a("v_and_b32 v8, 7, v1")
    a("v_lshrrev_b32 v9, 3, v1")
    a("s_lshl_b32 s6, s3, 3")
    a("v_add_u32 v9, s6, v9")
    a("v_lshlrev_b32 v2, 2, v9")
    a("s_lshl_b32 s6, s72, 8")
    a("v_add_u32 v2, s6, v2")
    a("v_mul_u32_u24 v2, 1280, v2")
    a("v_lshlrev_b32 v3, 4, v8")
    a("s_lshl_b32 s6, s73, 7")
    a("v_add3_u32 v2, v2, v3, s6")
    a("v_add_u32 v3, -3840, v2")
    a("v_add_u32 v4, -2560, v2")
    a("v_add_u32 v5, -1280, v2")
    for m in range(4):
        a(f"buffer_load_dwordx4 v[{64+4*m}:{67+4*m}], v2, s[32:35], 0 offen offset:{1280*m} {na}".replace("offset:0 ", ""))
    for m in range(4):
        a(f"buffer_load_dwordx4 v[{80+4*m}:{83+4*m}], v2, s[36:39], 0 offen offset:{1280*m} {na}".replace("offset:0 ", ""))
    a(f"buffer_load_dwordx4 v[52:55], v3, s[32:35], 0 offen {na}")
    a(f"buffer_load_dwordx4 v[56:59], v4, s[32:35], 0 offen {na}")
    a(f"buffer_load_dwordx4 v[60:63], v5, s[32:35], 0 offen {na}")
    a("v_lshlrev_b32 v6, 6, v8")
    a("s_lshl_b32 s6, s73, 9")
    a("v_add_u32 v6, s6, v6")
    for i in range(4):
        a(f"buffer_load_dwordx4 v[{32+4*i}:{35+4*i}], v6, s[40:43], 0 offen offset:{16*i}".replace("offset:0", ""))
    a("s_lshl_b32 s6, s73, 7")
    a(f"s_add_u32 s6, s6, {FL_EA}")
    epoch_issue(a, 250, 251, 48, 6)
    a("s_lshl_b32 s6, s62, 1")
    a(f"s_add_u32 s44, s{P_SD}, s6")
    a(f"s_addc_u32 s45, s{P_SD+1}, 0")
    a("s_load_dwordx4 s[64:67], s[44:45], 0")
    if int(OPT.get("apf", 1)):
        npf = OPT["nt_pf"]
        a("s_cmp_eq_u32 s4, 1")
        a("s_cselect_b32 s74, 1, 0")
        a("s_cmp_ge_u32 s4, 5")
        a("s_cselect_b32 s74, 1, s74")
        a("s_cselect_b32 s7, 3, 0")
        a("s_sub_u32 s6, s4, 2")
        a("s_sub_u32 s6, s6, s7")
        a("s_mul_i32 s6, s6, 3")
        a("s_add_u32 s6, s6, 2")
        a("s_cmp_lt_u32 s4, 2")
        a("s_cselect_b32 s75, 0, s6")
        a("s_cselect_b32 s76, 128, 64")
        a("s_cselect_b32 s77, 2400, s76")
        a("s_cselect_b32 s77, 2400, 3552") if False else None
        a("s_movk_i32 s77, 3552")
        a("s_cmp_lt_u32 s4, 2")
        a("s_cselect_b32 s77, 2400, s77")
        a("s_lshl_b32 s78, s5, 3")
        a("s_add_u32 s78, s78, s3")
        srd(a, 52, P_W, 640 * 3840)
        srd(a, 56, P_X, TSZ)
        a(f"v_mov_b32 v20, 0x{OOB:x}")

        def wpf(dst):
            a("s_lshl_b32 s6, s6, 6")
            a("v_add_u32 v21, s6, v1")
            a("v_mul_u32_u24 v22, 34953, v21")
            a("v_lshrrev_b32 v22, 19, v22")
            a("v_mul_u32_u24 v23, 15, v22")
            a("v_sub_u32 v23, v21, v23")
            a("v_mul_u32_u24 v24, 52, v23")
            a("v_lshrrev_b32 v24, 8, v24")
            a("v_mul_u32_u24 v25, 5, v24")
            a("v_sub_u32 v25, v23, v25")
            a("v_add_u32 v22, 192, v22")
            a("v_mul_u32_u24 v22, 3840, v22")
            a("v_mul_u32_u24 v24, 1280, v24")
            a("v_lshlrev_b32 v25, 7, v25")
            a("v_add3_u32 v22, v22, v24, v25")
            a("s_mul_i32 s7, s74, 640")
            a("v_add_u32 v22, s7, v22")
            a("s_movk_i32 s7, 6720")
            a("v_cmp_gt_u32 vcc, s7, v21")
            a("s_nop 1")
            a("v_cndmask_b32 v22, v20, v22, vcc")
            a(f"buffer_load_dword v{dst}, v22, s[52:55], 0 offen {npf}")
        a("s_mov_b32 s6, s78")
        wpf(240)
        a("s_lshl_b32 s6, s78, 6")
        a("v_add_u32 v21, s6, v1")
        a("v_mul_u32_u24 v22, 10923, v21")
        a("v_lshrrev_b32 v22, 16, v22")
        a("v_mul_u32_u24 v23, 6, v22")
        a("v_sub_u32 v23, v21, v23")
        a("s_mul_i32 s6, s75, 192")
        a("s_sub_u32 s6, s6, 16")
        a("v_add_u32 v22, s6, v22")
        a("s_movk_i32 s7, 1280")
        a("v_mul_lo_u32 v22, v22, s7")
        a("v_lshlrev_b32 v23, 7, v23")
        a("v_add_u32 v22, v22, v23")
        a("v_add_u32 v22, 512, v22")
        a("v_cmp_gt_u32 vcc, s77, v21")
        a("s_nop 1")
        a("v_cndmask_b32 v22, v20, v22, vcc")
        a(f"buffer_load_dword v241, v22, s[56:59], 0 offen {npf}")
        a("s_add_u32 s6, s78, s76")
        wpf(242)
    a(f"s_mul_i32 s60, s3, {A2_CH}")
    a("s_lshl_b32 s59, s63, 12")
    a("v_lshlrev_b32 v10, 4, v1")
    a("v_add_u32 v11, -2, v10")
    T.stamp(a, 1)
    a("v_mov_b32 v28, 0")
    a("v_mov_b32 v29, 0")
    a("v_mov_b32 v30, 0")
    a("v_mov_b32 v31, 0")
    a("v_add_u32 v23, s60, v10")
    a("s_mov_b64 exec, 0xfffffff")
    a(f"ds_write_b128 v23, v[28:31] offset:{A2_H0}")
    a(f"ds_write_b128 v23, v[28:31] offset:{A2_H1}")
    a("s_mov_b64 exec, -1")
    a(f"v_mul_u32_u24 v7, {A2_CH+16}, v8")
    a("v_lshlrev_b32 v12, 3, v9")
    a("v_sub_u32 v7, v7, v12")
    a(f"v_add_u32 v7, {A2_X0 + 504}, v7")
    a("s_mov_b32 s57, 0xffff0000")
    a(f"s_waitcnt vmcnt({1 + (3 if int(OPT.get('apf', 1)) else 0)})")
    T.stamp(a, 2)
    for c in range(4):
        for m in range(4):
            for e in range(2):
                src = 32 + 2 * (2 * c + e) + (m >> 1)
                dst = 96 + (c * 4 + m) * 2 + e
                if m & 1:
                    a(f"v_and_b32 v{dst}, s57, v{src}")
                else:
                    a(f"v_lshlrev_b32 v{dst}, 16, v{src}")
    for c in range(4):
        for jj in range(7):
            a(f"v_lshlrev_b32 v{128+2*jj}, 16, v{52+4*jj+c}")
            a(f"v_and_b32 v{129+2*jj}, s57, v{52+4*jj+c}")
        for m in range(4):
            a(f"v_lshlrev_b32 v{142+2*m}, 16, v{80+4*m+c}")
            a(f"v_and_b32 v{143+2*m}, s57, v{80+4*m+c}")
        W = lambda m: f"v[{96+(c*4+m)*2}:{97+(c*4+m)*2}]"
        K = lambda jj: f"v[{128+2*jj}:{129+2*jj}]"
        for rr in range(4):
            o = 150 + 2 * rr
            a(f"v_pk_mul_f32 v[{o}:{o+1}], {W(3)}, {K(rr)}")
        for m in (2, 1, 0):
            for rr in range(4):
                o = 150 + 2 * rr
                a(f"v_pk_fma_f32 v[{o}:{o+1}], {W(m)}, {K(3+rr-m)}, v[{o}:{o+1}]")
        for rr in range(4):
            o = 150 + 2 * rr
            a(f"v_pk_mul_f32 v[{o}:{o+1}], v[{o}:{o+1}], v[{142+2*rr}:{143+2*rr}]")
        for e in range(2):
            ch = 2 * c + e
            d = 160 + 4 * (c & 1) + 2 * e
            a(f"v_cvt_pk_bf16_f32 v{d}, v{156+e}, v{154+e}")
            a(f"v_cvt_pk_bf16_f32 v{d+1}, v{152+e}, v{150+e}")
            a(f"ds_write_b64 v7, v[{d}:{d+1}] offset:{ch*T_RS}")
    a("v_lshrrev_b32 v12, 5, v1")
    a(f"v_mul_u32_u24 v12, {T_RS}, v12")
    a("v_and_b32 v13, 31, v1")
    a("v_lshlrev_b32 v13, 4, v13")
    a("v_add_u32 v12, v12, v13")
    a(f"s_mul_i32 s6, s3, {A2_CH+16}")
    a(f"s_add_u32 s6, s6, {A2_X0}")
    a("v_add_u32 v12, s6, v12")
    srd(a, 36, P_WS, TSZ, WS_XT)
    a("v_lshrrev_b32 v14, 5, v1")
    a("v_lshlrev_b32 v14, 12, v14")
    a("v_add_u32 v14, v14, v13")
    a("s_lshl_b32 s6, s73, 6")
    a("s_lshl_b32 s7, s3, 3")
    a("s_add_u32 s6, s6, s7")
    a("s_lshl_b32 s6, s6, 12")
    a("s_lshl_b32 s7, s72, 9")
    a("s_sub_u32 s7, 3584, s7")
    a("s_add_u32 s6, s6, s7")
    a("v_add_u32 v14, s6, v14")
    a("s_waitcnt lgkmcnt(0)")
    a("s_barrier")
    for m in range(4):
        a(f"ds_read_b128 v[{64+4*m}:{67+4*m}], v12 offset:{2*m*T_RS}")
    a("s_waitcnt lgkmcnt(0)")
    a("s_mov_b32 s6, 0")
    for m in range(4):
        a(f"buffer_store_dwordx4 v[{64+4*m}:{67+4*m}], v14, s[36:39], s6 offen {sc}")
        if m < 3:
            a("s_add_u32 s6, s6, 8192")
    T.stamp(a, 3)
    srd(a, 52, P_H, 640 * 4096)
    for i in range(4):
        a(f"s_add_u32 m0, s60, {A2_H0 + 448 + 1024*i}")
        a(f"s_add_u32 s6, s59, {1024*i}")
        a(f"buffer_load_dwordx4 v10, s[52:55], s6 offen {nh} lds")
    a("v_mov_b32 v13, 0")
    a(f"buffer_load_dwordx4 v[16:19], v13, s[52:55], s59 offen")
    a("s_lshr_b32 s6, s3, 1")
    a("s_cmp_eq_u32 s6, 1")
    a("s_cselect_b32 s58, s65, s64")
    a("s_cmp_eq_u32 s6, 2")
    a("s_cselect_b32 s58, s66, s58")
    a("s_cmp_eq_u32 s6, 3")
    a("s_cselect_b32 s58, s67, s58")
    a("s_and_b32 s6, s3, 1")
    a("s_lshl_b32 s6, s6, 4")
    a("s_lshr_b32 s58, s58, s6")
    a("s_lshl_b32 s58, s58, 16")
    a("s_waitcnt vmcnt(5)")
    a("v_readfirstlane_b32 s44, v250")
    a("s_add_u32 s44, s44, 1")
    a("s_barrier")
    lf = a.newlabel("AF")
    a("s_cmp_lg_u32 s3, 0")
    a(f"s_cbranch_scc1 {lf}")
    a("s_lshl_b32 s6, s73, 3")
    a("s_add_u32 s6, s6, s72")
    a("s_lshl_b32 s6, s6, 7")
    a(f"s_add_u32 s6, s6, {FL_A1}")
    a("v_mov_b32 v12, s6")
    a("v_mov_b32 v13, s44")
    a("s_mov_b64 exec, 1")
    a("buffer_store_dword v13, v12, s[48:51], 0 offen sc1")
    a("s_mov_b64 exec, -1")
    T.stamp(a, 4)
    a.label(lf)
    lp = a.newlabel("AP")
    a("s_cmp_lg_u32 s3, 0")
    a(f"s_cbranch_scc1 {lp}")
    a("s_lshl_b32 s6, s73, 10")
    a(f"s_add_u32 s6, s6, {FL_A1}")
    a("v_lshlrev_b32 v12, 7, v1")
    a("v_add_u32 v12, s6, v12")
    poll(a, 12, 8, 44, 48)
    a.label(lp)
    a("s_waitcnt lgkmcnt(0)")
    a("s_barrier")
    T.stamp(a, 5)
    for i in range(4):
        a(f"s_add_u32 m0, s60, {A2_X0 + 1024*i}")
        a(f"s_add_u32 s6, s59, {1024*i}")
        a(f"buffer_load_dwordx4 v10, s[36:39], s6 offen {sc} lds")
    a("s_mov_b64 exec, 0x1f")
    a(f"ds_write_b128 v23, v[28:31] offset:{A2_X0+4096}")
    a("s_mov_b64 exec, 0xf")
    a(f"ds_write_b128 v23, v[28:31] offset:{A2_X2+4096}")
    a("s_mov_b64 exec, -1")
    srd(a, 32, P_Q, TSZ)
    a("v_and_b32 v13, 15, v1")
    a("s_lshl_b32 s6, s72, 8")
    a("s_lshl_b32 s7, s3, 5")
    a("s_add_u32 s6, s6, s7")
    a("v_add_u32 v9, s6, v13")
    a("v_lshrrev_b32 v13, 4, v1")
    a("v_lshlrev_b32 v13, 4, v13")
    a("s_lshl_b32 s61, s73, 7")
    a("v_add_u32 v8, s61, v13")
    a("v_mul_u32_u24 v14, 1280, v9")
    a("v_add_u32 v14, v14, v8")
    a("s_movk_i32 s6, 20480")
    a(f"buffer_load_dwordx4 v[192:195], v14, s[32:35], 0 offen {na}")
    a(f"buffer_load_dwordx4 v[196:199], v14, s[32:35], 0 offen offset:64 {na}")
    a(f"buffer_load_dwordx4 v[200:203], v14, s[32:35], s6 offen {na}")
    a(f"buffer_load_dwordx4 v[204:207], v14, s[32:35], s6 offen offset:64 {na}")
    a("s_waitcnt vmcnt(8)")
    a("v_lshlrev_b32 v21, 16, v16")
    a("v_add_f32 v21, s58, v21")
    a("v_cvt_pk_bf16_f32 v21, v21, v21")
    a("v_mov_b32 v22, s60")
    a("s_mov_b64 exec, 1")
    a(f"ds_write_b16 v22, v21 offset:{A2_H0+448}")
    a("s_mov_b64 exec, -1")
    a("s_waitcnt lgkmcnt(0)")
    for i in range(4):
        a(f"ds_read_b128 v[{64+8*i}:{67+8*i}], v23 offset:{A2_H0+448+1024*i}")
        a(f"ds_read_b32 v{68+8*i}, v23 offset:{A2_H0+448-4+1024*i}")
    for i in range(4):
        b = 64 + 8 * i
        a(f"s_waitcnt lgkmcnt({2*(3-i)})")
        a(f"v_alignbit_b32 v{b+7}, v{b+3}, v{b+2}, 16")
        a(f"v_alignbit_b32 v{b+6}, v{b+2}, v{b+1}, 16")
        a(f"v_alignbit_b32 v{b+5}, v{b+1}, v{b}, 16")
        a(f"v_alignbit_b32 v{b+4}, v{b}, v{b+4}, 16")
        a(f"ds_write_b128 v23, v[{b+4}:{b+7}] offset:{A2_H1+448+1024*i}")
    a("v_and_b32 v10, 15, v1")
    a("v_lshrrev_b32 v11, 4, v1")
    a("v_lshrrev_b32 v12, 1, v10")
    a("v_lshlrev_b32 v12, 6, v12")
    a("v_lshlrev_b32 v13, 4, v11")
    a("v_add_u32 v12, v12, v13")
    a("v_and_b32 v13, 1, v10")
    a(f"v_mov_b32 v14, {A2_H1}")
    a(f"v_mov_b32 v15, {A2_H0}")
    a("v_cmp_eq_u32 vcc, 1, v13")
    a("v_lshrrev_b32 v13, 1, v10")
    a("v_and_b32 v13, 1, v13")
    a("v_cndmask_b32 v14, v14, v15, vcc")
    a("v_add3_u32 v2, v12, v14, s60")
    a("v_lshlrev_b32 v12, 3, v13")
    a("v_lshrrev_b32 v14, 2, v10")
    a("v_lshlrev_b32 v14, 4, v14")
    a("v_add_u32 v12, v12, v14")
    a("v_lshlrev_b32 v14, 4, v11")
    a("v_sub_u32 v12, v14, v12")
    a(f"v_add_u32 v12, {2*1820 - 512*7}, v12")
    a(f"v_mov_b32 v14, {A2_X2}")
    a(f"v_mov_b32 v15, {A2_X0}")
    a("v_cndmask_b32 v14, v14, v15, vcc")
    a("v_add3_u32 v3, v12, v14, s60")
    for i in range(32):
        a(f"v_mov_b32 v{32+i}, 0")
    a("s_waitcnt vmcnt(4)")
    for i in range(4):
        for d in range(4):
            a(f"ds_read_b32 v{96+4*i+d}, v23 offset:{A2_X0+1024*i+4*(d+1)}")
    for i in range(4):
        a(f"s_waitcnt lgkmcnt({4*(3-i)})")
        a(f"ds_write_b128 v23, v[{96+4*i}:{99+4*i}] offset:{A2_X2+1024*i}")
    a("s_waitcnt lgkmcnt(0)")
    T.stamp(a, 6)

    def reads(A, B):
        r = []
        for aa in range(8):
            r.append(f"ds_read_b128 v[{A+4*aa}:{A+4*aa+3}], v2 offset:{512*aa}")
            r.append(f"ds_read_b64 v[{B+4*aa}:{B+4*aa+1}], v3 offset:{512*(7-aa)}")
            r.append(f"ds_read_b64 v[{B+4*aa+2}:{B+4*aa+3}], v3 offset:{512*(7-aa)+8}")
        r.append("v_add_u32 v2, 64, v2")
        r.append("v_add_u32 v3, 64, v3")
        return r

    def mfmas(A, B):
        r = []
        for t in range(8):
            for aa in range(t + 1):
                u = t - aa
                ac = 32 + 4 * t
                r.append(f"v_mfma_f32_16x16x32_bf16 v[{ac}:{ac+3}], v[{A+4*aa}:{A+4*aa+3}], v[{B+4*u}:{B+4*u+3}], v[{ac}:{ac+3}]")
        return r

    def interleave(m, r):
        for i, x in enumerate(m):
            a(x)
            if i < len(r):
                a(r[i])

    for x in reads(64, 96):
        a(x)
    a("s_mov_b32 s40, 0")
    loop, last = a.newlabel("A2L"), a.newlabel("A2E")
    a.label(loop)
    a("s_waitcnt lgkmcnt(0)")
    interleave(mfmas(64, 96), reads(128, 160))
    a("s_waitcnt lgkmcnt(0)")
    a("s_cmp_eq_u32 s40, 3")
    a(f"s_cbranch_scc1 {last}")
    interleave(mfmas(128, 160), reads(64, 96))
    a("s_add_u32 s40, s40, 1")
    a(f"s_branch {loop}")
    a.label(last)
    for x in mfmas(128, 160):
        a(x)
    T.stamp(a, 7)
    a("v_lshlrev_b32 v12, 5, v11")
    a("v_add_u32 v12, v12, v10")
    a("v_lshlrev_b32 v12, 2, v12")
    a("v_add_u32 v12, s60, v12")
    srd(a, 36, P_WS, TSZ, WS_YT)
    a("v_lshlrev_b32 v15, 4, v1")
    a("v_add_u32 v13, s60, v15")
    for t in range(8):
        ac = 32 + 4 * t
        d = 64 + 2 * t
        a(f"v_cvt_pk_bf16_f32 v{d}, v{ac}, v{ac+1}")
        a(f"v_cvt_pk_bf16_f32 v{d+1}, v{ac+2}, v{ac+3}")
        a(f"ds_write_b32 v12, v{d} offset:{512*t}")
        a(f"ds_write_b32 v12, v{d+1} offset:{512*t+64}")
    a("s_waitcnt lgkmcnt(0)")
    for i in range(4):
        a(f"ds_read_b128 v[{80+4*i}:{83+4*i}], v13 offset:{1024*i}")
    a("s_waitcnt lgkmcnt(0)")
    for i in range(4):
        a(f"s_add_u32 s6, s59, {1024*i}")
        a(f"buffer_store_dwordx4 v[{80+4*i}:{83+4*i}], v15, s[36:39], s6 offen {sc}")
    a("v_lshrrev_b32 v16, 5, v0")
    a("v_and_b32 v17, 31, v0")
    a("v_lshlrev_b32 v17, 4, v17")
    a("s_lshl_b32 s6, s73, 6")
    a("v_add_u32 v18, s6, v16")
    a("v_lshlrev_b32 v18, 12, v18")
    a("s_lshl_b32 s6, s72, 9")
    a("v_add3_u32 v18, v18, v17, s6")
    a(f"v_mul_u32_u24 v16, {Y_RS}, v16")
    a("v_add_u32 v16, v16, v17")
    a("s_waitcnt vmcnt(0)")
    a("s_barrier")
    lp = a.newlabel("AP")
    a("s_cmp_lg_u32 s3, 0")
    a(f"s_cbranch_scc1 {lp}")
    a("s_lshl_b32 s6, s73, 3")
    a("s_add_u32 s6, s6, s72")
    a("s_lshl_b32 s6, s6, 7")
    a(f"s_add_u32 s6, s6, {FL_A2}")
    a("v_mov_b32 v12, s6")
    a("v_mov_b32 v13, s44")
    a("s_mov_b64 exec, 1")
    a("buffer_store_dword v13, v12, s[48:51], 0 offen sc1")
    a("s_mov_b64 exec, -1")
    T.stamp(a, 8)
    a("s_lshl_b32 s6, s73, 10")
    a(f"s_add_u32 s6, s6, {FL_A2}")
    a("v_lshlrev_b32 v12, 7, v1")
    a("v_add_u32 v12, s6, v12")
    poll(a, 12, 8, 44, 48)
    le = a.newlabel("EU")
    a("s_cmp_lg_u32 s72, 0")
    a(f"s_cbranch_scc1 {le}")
    a("v_mov_b32 v11, s44")
    a("s_mov_b64 exec, 1")
    a("buffer_store_dword v11, v251, s[48:51], 0 offen sc1")
    a("s_mov_b64 exec, -1")
    a.label(le)
    a.label(lp)
    a("s_barrier")
    T.stamp(a, 9)
    a("s_mov_b32 s6, 0")
    for m in range(4):
        a(f"buffer_load_dwordx4 v[{64+4*m}:{67+4*m}], v18, s[36:39], s6 offen {sc}")
        if m < 3:
            a("s_add_u32 s6, s6, 65536")
    a("v_lshrrev_b32 v12, 4, v1")
    a("v_lshlrev_b32 v12, 3, v12")
    a("v_lshrrev_b32 v13, 2, v1")
    a("v_and_b32 v13, 3, v13")
    a("v_add_u32 v12, v12, v13")
    a(f"v_mul_u32_u24 v12, {Y_RS}, v12")
    a("v_and_b32 v13, 3, v1")
    a("v_lshlrev_b32 v13, 3, v13")
    a("s_lshl_b32 s6, s3, 6")
    a("v_add3_u32 v12, v12, v13, s6")
    srd(a, 32, P_OUT, 2048 * 2560)
    a("v_mul_u32_u24 v15, 2560, v9")
    a("v_add_u32 v15, v15, v8")
    for m in range(4):
        a(f"s_waitcnt vmcnt({3-m})")
        a(f"ds_write_b128 v16, v[{64+4*m}:{67+4*m}] offset:{16*Y_RS*m}")
    a("s_waitcnt lgkmcnt(0)")
    a("s_barrier")
    for m in range(4):
        off = (m & 1) * 32 * Y_RS + (m >> 1) * 32
        a(f"ds_read_b64_tr_b16 v[{64+4*m}:{65+4*m}], v12 offset:{off}")
        a(f"ds_read_b64_tr_b16 v[{66+4*m}:{67+4*m}], v12 offset:{off + 4*Y_RS}")
    a("s_waitcnt lgkmcnt(0)")
    no = OPT["nt_out"]
    a("s_mov_b32 s7, 40960")
    for m in range(4):
        for i in range(4):
            y = 64 + 4 * m + i
            q = 192 + 4 * m + i
            t = 80 + 4 * (i & 1)
            a(f"v_lshlrev_b32 v{t}, 16, v{y}")
            a(f"v_and_b32 v{t+1}, s57, v{y}")
            a(f"v_lshlrev_b32 v{t+2}, 16, v{q}")
            a(f"v_and_b32 v{t+3}, s57, v{q}")
            a(f"v_pk_mul_f32 v[{t}:{t+1}], v[{t}:{t+1}], v[{t+2}:{t+3}]")
            a(f"v_cvt_pk_bf16_f32 v{y}, v{t}, v{t+1}")
        so = "s7" if m >= 2 else "0"
        of = " offset:64" if (m & 1) else ""
        a(f"buffer_store_dwordx4 v[{64+4*m}:{67+4*m}], v15, s[32:35], {so} offen{of} {no}")
    T.stamp(a, 10)


def kdesc(name, vgpr=256, sgpr=102):
    return f""".amdhsa_kernel {name}
  .amdhsa_next_free_vgpr {vgpr}
  .amdhsa_next_free_sgpr {sgpr}
  .amdhsa_accum_offset {vgpr}
  .amdhsa_group_segment_fixed_size 0
  .amdhsa_kernarg_size 96
  .amdhsa_user_sgpr_count 2
  .amdhsa_user_sgpr_kernarg_segment_ptr 1
  .amdhsa_system_sgpr_workgroup_id_x 1
  .amdhsa_float_denorm_mode_32 3
  .amdhsa_float_denorm_mode_16_64 3
.end_amdhsa_kernel
"""


def gen(ts=False):
    out = "; concat_heads( H3-style ssm conv , sliding local dilated attention ) -- hand-written streams emitted by a python generator\n"
    out += "; @launch grid=(256,1,1) block=(512,1,1) lds=163840\n"
    out += '.amdgcn_target "amdgcn-amd-amdhsa--gfx950"\n.text\n'
    a = Asm()
    T = TS(ts)
    T.init(a)
    T.stamp(a, 0)
    if OPT.get("dbgt"):
        a("s_memrealtime s[96:97]")
        a("s_waitcnt lgkmcnt(0)")
        a("s_mov_b32 s79, s96")
    a("s_cmp_ge_u32 s2, 256")
    a("s_cbranch_scc1 K_END")
    a("s_load_dwordx16 s[8:23], s[0:1], 0")
    a("s_load_dwordx8 s[24:31], s[0:1], 64")
    a("v_lshrrev_b32 v2, 6, v0")
    a("v_and_b32 v1, 63, v0")
    a("s_and_b32 s4, s2, 7")
    a("v_readfirstlane_b32 s3, v2")
    a("s_lshr_b32 s5, s2, 3")
    a("s_waitcnt lgkmcnt(0)")
    role_decode(a)
    if OPT.get("only") == "A":
        a("s_branch K_END")
    b_program(a, T)
    a("s_branch K_FIN")
    a.label("A_ROLE")
    if OPT.get("only") == "B":
        a("s_branch K_END")
    a_program(a, T)
    a.label("K_FIN")
    if OPT.get("dbgt"):
        a("s_waitcnt vmcnt(0)")
        a("s_memrealtime s[96:97]")
        a("s_waitcnt lgkmcnt(0)")
        lab = a.newlabel("DBG")
        a("s_cmp_lg_u32 s3, 0")
        a(f"s_cbranch_scc1 {lab}")
        a("s_and_b32 s6, s2, 0x3f")
        a("s_cmp_lg_u32 s6, 0")
        a(f"s_cbranch_scc1 {lab}")
        srd(a, 92, P_DBG, 256)
        a("s_lshr_b32 s6, s2, 6")
        a("s_lshl_b32 s6, s6, 3")
        a("v_mov_b32 v2, s6")
        a("v_mov_b32 v4, s79")
        a("v_mov_b32 v5, s96")
        a("s_mov_b64 exec, 1")
        a("buffer_store_dwordx2 v[4:5], v2, s[92:95], 0 offen")
        a("s_waitcnt vmcnt(0)")
        a("s_mov_b64 exec, -1")
        a.label(lab)
    if ts:
        a("s_waitcnt vmcnt(0)")
        T.stamp(a, 15)
        T.flush(a)
    a.label("K_END")
    a("s_endpgm")
    out += f".globl {KNAME}\n.p2align 8\n.type {KNAME},@function\n{KNAME}:\n" + a.text()
    out += '.section .rodata,"a"\n.p2align 6\n' + kdesc(KNAME)
    return out


if __name__ == "__main__":
    mode = sys.argv[1] if len(sys.argv) > 1 else "plain"
    dst = sys.argv[2] if len(sys.argv) > 2 else "k4.s"
    for kv in sys.argv[3:]:
        k, v = kv.split("=")
        OPT[k] = v if k != "spin" else int(v)
    if mode == "tc":
        TS.INSTR = "s_memtime"
    open(dst, "w").write(gen(mode in ("ts", "tc")))
    print("wrote", dst)
```

```python
import sys

KNAME = "concat_heads__ssm_conv_h3__sliding_local_dilated__prompt_kernel"
TSZ = 640 * 4096
WS_OW = 0x0
WS_XT = 0x280000
WS_YT = 0x500000
WS_FL = 0x780000
FL_B = 0x0
FL_A1 = 0x6000
FL_A2 = 0x9000
FL_EB = 0xC000
FL_EA = 0xD000
WS_TS = 0x800000
OOB = 0x80000000

OPT = dict(nopf0=1, b2dma=1, psleep=2, sc_oload="sc1", sc_ostore="sc1", nt_pf="", nt_a="", nt_h="", nt_x="", nt_w="", nt_out="", sc="sc1", spin=1 << 20)


class Asm:
    def __init__(self):
        self.l = []
        self.uid = 0

    def __call__(self, s=""):
        for line in s.split("\n"):
            line = line.strip()
            if line:
                self.l.append("    " + line)

    def label(self, name):
        self.l.append(name + ":")

    def newlabel(self, p="L"):
        self.uid += 1
        return f"{p}_{self.uid}"

    def text(self):
        return "\n".join(self.l) + "\n"


P_Q, P_K, P_V, P_SK, P_H, P_SD, P_X, P_W, P_WO, P_OUT, P_DBG, P_WS = [8 + 2 * i for i in range(12)]


def srd(a, dst, ptr, nbytes, off=0):
    if off:
        a(f"s_add_u32 s{dst}, s{ptr}, 0x{off:x}")
        a(f"s_addc_u32 s{dst+1}, s{ptr+1}, 0")
    else:
        a(f"s_mov_b32 s{dst}, s{ptr}")
        a(f"s_mov_b32 s{dst+1}, s{ptr+1}")
    a(f"s_mov_b32 s{dst+2}, 0x{nbytes:x}")
    a(f"s_mov_b32 s{dst+3}, 0x00020000")


class TS:
    INSTR = "s_memrealtime"

    def __init__(self, on):
        self.on = on
        self.n = 0

    def stamp(self, a, idx):
        if not self.on:
            return
        if OPT.get("stagets") and 3 <= idx < 14:
            return
        a(f"{TS.INSTR} s[96:97]")
        a("s_waitcnt lgkmcnt(0)")
        a(f"s_mov_b32 s{80+idx}, s96")

    def init(self, a):
        if not self.on:
            return
        for i in range(16):
            a(f"s_mov_b32 s{80+i}, 0")

    def flush(self, a):
        if not self.on:
            return
        srd(a, 96, P_WS, 0x40000, WS_TS)
        a("s_mov_b64 exec, 1")
        a("s_lshl_b32 s7, s2, 3")
        a("s_add_u32 s7, s7, s3")
        a("s_lshl_b32 s7, s7, 6")
        a("v_mov_b32 v3, s7")
        for i in range(16):
            a(f"v_mov_b32 v2, s{80+i}")
            a(f"buffer_store_dword v2, v3, s[96:99], 0 offen offset:{4*i}")
        a("s_waitcnt vmcnt(0)")
        a("s_mov_b64 exec, -1")


NRT = 13
B1_XSZ = NRT * 16 * 128
B1_STAGE = B1_XSZ + 16384
B1_NB = 3
QKV_RS = 400
O_LDS = 83200
B2_WA = 102400
B2_WB = 0
B2_O = 40960
B2_OST = 30720
ACC = 16
XA, XB, WA, WB = 120, 172, 224, 232


def role_decode(a):
    a("s_cmp_lt_u32 s4, 2")
    a("s_cselect_b32 s70, 16, 24")
    a("s_cmp_ge_u32 s5, s70")
    a("s_cbranch_scc1 A_ROLE")


def b_decode(a):
    a("s_cmp_eq_u32 s4, 1")
    a("s_cselect_b32 s71, 1, 0")
    a("s_cmp_ge_u32 s4, 5")
    a("s_cselect_b32 s71, 1, s71")
    a("s_cselect_b32 s7, 3, 0")
    a("s_sub_u32 s6, s4, 2")
    a("s_sub_u32 s6, s6, s7")
    a("s_mul_i32 s6, s6, 3")
    a("s_add_u32 s6, s6, 2")
    a("s_cmp_lt_u32 s4, 2")
    a("s_cselect_b32 s6, 0, s6")
    a("s_lshr_b32 s7, s5, 3")
    a("s_add_u32 s60, s6, s7")
    a("s_and_b32 s68, s5, 7")
    a("s_lshl_b32 s61, s71, 3")
    a("s_add_u32 s61, s61, s68")
    a("s_lshl_b32 s67, s60, 1")
    a("s_add_u32 s67, s67, s71")


def pf_x_addr(a, dst):
    a("v_and_b32 v10, 31, v1")
    a("s_mul_i32 s6, s68, 26")
    a("s_mul_i32 s7, s60, 192")
    a("s_add_u32 s6, s6, s7")
    a("s_sub_u32 s6, s6, 16")
    a("v_add_u32 v11, s6, v10")
    a("s_movk_i32 s7, 1280")
    a("v_mul_lo_u32 v11, v11, s7")
    a("v_lshrrev_b32 v12, 5, v1")
    a("v_lshlrev_b32 v12, 7, v12")
    a("v_add_u32 v11, v11, v12")
    a("v_cmp_gt_u32 vcc, 26, v10")
    a(f"v_mov_b32 v12, 0x{OOB:x}")
    a("s_nop 0")
    a(f"v_cndmask_b32 v{dst}, v12, v11, vcc")


def pf_w_addr(a, dst):
    a("s_cmp_eq_u32 s70, 16")
    a("s_cselect_b32 s6, 60, 40")
    a("s_mul_i32 s7, s5, s6")
    a("v_add_u32 v10, s7, v1")
    a("v_mul_u32_u24 v11, 4370, v10")
    a("v_lshrrev_b32 v11, 16, v11")
    a("v_mul_u32_u24 v12, 15, v11")
    a("v_sub_u32 v12, v10, v12")
    a("v_mul_u32_u24 v13, 52, v12")
    a("v_lshrrev_b32 v13, 8, v13")
    a("v_mul_u32_u24 v14, 5, v13")
    a("v_sub_u32 v14, v12, v14")
    a("v_mul_u32_u24 v11, 3840, v11")
    a("v_mul_u32_u24 v13, 1280, v13")
    a("v_lshlrev_b32 v14, 7, v14")
    a("v_add3_u32 v11, v11, v13, v14")
    a("s_mul_i32 s7, s71, 640")
    a("v_add_u32 v11, s7, v11")
    a("v_cmp_gt_u32 vcc, s6, v1")
    a(f"v_mov_b32 v12, 0x{OOB:x}")
    a("s_nop 0")
    a(f"v_cndmask_b32 v{dst}, v12, v11, vcc")


def b_initial_prefetch(a):
    npf = OPT["nt_pf"]
    srd(a, 32, P_X, TSZ)
    srd(a, 36, P_W, 640 * 3840)
    l1 = a.newlabel("IP")
    a("s_cmp_eq_u32 s3, 3")
    a(f"s_cbranch_scc1 {l1}")
    pf_w_addr(a, 2)
    a("s_mul_i32 s6, s3, 245760")
    a(f"buffer_load_dword v254, v2, s[36:39], s6 offen {npf}")
    a("s_cmp_eq_u32 s3, 2")
    a(f"s_cbranch_scc1 {l1}")
    pf_x_addr(a, 3)
    a("s_lshl_b32 s6, s3, 8")
    a(f"buffer_load_dword v255, v3, s[32:35], s6 offen {npf}")
    a.label(l1)


def b1_loader_setup(a):
    srd(a, 32, P_X, TSZ)
    srd(a, 36, P_W, 640 * 3840)
    a("s_sub_u32 s62, s3, 4")
    a("v_lshrrev_b32 v10, 3, v1")
    a("s_lshl_b32 s6, s62, 3")
    a("v_add_u32 v10, s6, v10")
    a("v_lshrrev_b32 v11, 1, v10")
    a("v_and_b32 v11, 7, v11")
    a("v_and_b32 v12, 7, v1")
    a("v_xor_b32 v11, v11, v12")
    a("v_lshlrev_b32 v11, 4, v11")
    a("s_mul_i32 s6, s60, 192")
    a("s_sub_u32 s6, s6, 16")
    a("v_add_u32 v10, s6, v10")
    a("s_movk_i32 s7, 1280")
    a("v_mul_lo_u32 v10, v10, s7")
    a("v_add_u32 v2, v10, v11")
    a("v_add_u32 v3, 40960, v2")
    a("v_lshrrev_b32 v10, 4, v1")
    a("v_and_b32 v12, 15, v1")
    a("s_mul_i32 s63, s61, 80")
    for which, dst in ((0, 5), (1, 6)):
        a("v_lshlrev_b32 v11, 1, v10")
        if which:
            a("v_add_u32 v11, 8, v11")
        a("v_xor_b32 v11, v11, v12")
        a("v_mul_u32_u24 v13, 52, v11")
        a("v_lshrrev_b32 v13, 8, v13")
        a("v_mul_u32_u24 v14, 5, v13")
        a("v_sub_u32 v14, v11, v14")
        a("v_mul_u32_u24 v13, 1280, v13")
        a("v_lshlrev_b32 v14, 4, v14")
        a("v_add3_u32 v13, v13, v14, s63")
        if OPT.get("walign"):
            a("v_lshlrev_b32 v13, 4, v11")
            a("s_lshl_b32 s6, s61, 7")
            a("v_add_u32 v13, s6, v13")
        a("s_lshl_b32 s6, s62, 4")
        if which:
            a("s_add_u32 s6, s6, 8")
        a("v_add_u32 v14, s6, v10")
        a("v_mul_u32_u24 v14, 3840, v14")
        a(f"v_add_u32 v{dst}, v14, v13")
        a("v_cmp_eq_u32 vcc, 15, v11")
        a(f"v_mov_b32 v13, 0x{OOB:x}")
        a("s_nop 0")
        a(f"v_cndmask_b32 v{dst}, v{dst}, v13, vcc")
    a("s_mov_b32 s41, 0")
    a("s_mov_b32 s42, 0")
    a("s_mov_b32 s43, 0")


def b1_issue_stage(a):
    nx, nw = OPT["nt_x"], OPT["nt_w"]
    a("s_lshl_b32 s6, s62, 10")
    a("s_add_u32 s6, s6, s43")
    a("s_mov_b32 m0, s6")
    a("s_mov_b32 s7, s41")
    a(f"buffer_load_dwordx4 v2, s[32:35], s41 offen {nx} lds")
    for m in range(1, 6):
        a(f"s_add_u32 m0, s6, {4096*m}")
        if m > 1:
            a("s_add_u32 s7, s7, 40960")
        else:
            a("s_nop 0")
        a(f"buffer_load_dwordx4 v3, s[32:35], s7 offen {nx} lds")
    l1 = a.newlabel("IS")
    a("s_cmp_lt_u32 s62, 2")
    a(f"s_cbranch_scc0 {l1}")
    a(f"s_add_u32 m0, s6, {4096*6}")
    a("s_add_u32 s7, s7, 40960")
    a(f"buffer_load_dwordx4 v3, s[32:35], s7 offen {nx} lds")
    a.label(l1)
    a("s_lshl_b32 s7, s62, 12")
    a("s_add_u32 s7, s7, s43")
    a(f"s_add_u32 s7, s7, {B1_XSZ}")
    a("s_mov_b32 m0, s7")
    a("s_add_u32 s46, s42, 15360")
    a(f"buffer_load_dwordx4 v5, s[36:39], s42 offen {nw} lds")
    a("s_add_u32 m0, s7, 1024")
    a("s_nop 0")
    a(f"buffer_load_dwordx4 v5, s[36:39], s46 offen {nw} lds")
    a("s_add_u32 m0, s7, 2048")
    a("s_nop 0")
    a(f"buffer_load_dwordx4 v6, s[36:39], s42 offen {nw} lds")
    a("s_add_u32 m0, s7, 3072")
    a("s_nop 0")
    a(f"buffer_load_dwordx4 v6, s[36:39], s46 offen {nw} lds")
    a("s_add_u32 s41, s41, 128")
    a("s_add_u32 s42, s42, 245760")
    a(f"s_add_u32 s43, s43, {B1_STAGE}")
    a(f"s_cmp_ge_u32 s43, {B1_STAGE*B1_NB}")
    a("s_cselect_b32 s43, 0, s43")


def lwait(a, nb, extra):
    l1, l2 = a.newlabel("LW"), a.newlabel("LW")
    a("s_cmp_lt_u32 s62, 2")
    a(f"s_cbranch_scc0 {l1}")
    a(f"s_waitcnt vmcnt({11*nb+extra})")
    a(f"s_branch {l2}")
    a.label(l1)
    a(f"s_waitcnt vmcnt({10*nb+extra})")
    a.label(l2)


def wo_dma_addr(a):
    for j in range(5):
        a(f"v_add_u32 v10, {64*j}, v1")
        a("v_mul_u32_u24 v11, 6554, v10")
        a("v_lshrrev_b32 v11, 16, v11")
        a("v_mul_u32_u24 v12, 10, v11")
        a("v_sub_u32 v12, v10, v12")
        a("v_lshrrev_b32 v13, 4, v11")
        a("v_lshlrev_b32 v13, 2, v13")
        a("v_and_b32 v14, 3, v11")
        a("v_add_u32 v13, v13, v14")
        a("v_lshrrev_b32 v14, 2, v11")
        a("v_and_b32 v14, 3, v14")
        a("v_lshlrev_b32 v14, 3, v14")
        a("v_add_u32 v13, v13, v14")
        a("v_mul_u32_u24 v13, 1280, v13")
        a("v_lshlrev_b32 v12, 4, v12")
        a("s_mul_i32 s6, s68, 160")
        a(f"v_add3_u32 v{230+j}, v13, v12, s6")


def wo_dma_blocks(a, first, n, lds_of_first):
    a(f"s_add_u32 s47, s62, {first}")
    loop, done = a.newlabel("WO"), a.newlabel("WO")
    a.label(loop)
    a(f"s_cmp_ge_u32 s47, {first+n}")
    a(f"s_cbranch_scc1 {done}")
    a("s_mul_i32 s7, s47, 40960")
    a("s_mul_i32 s6, s47, 5120")
    a(f"s_add_u32 s6, s6, 0x{(lds_of_first - first*5120) & 0xffffffff:x}")
    for j in range(5):
        a(f"s_add_u32 m0, s6, {1024*j}")
        a("s_nop 0")
        a(f"buffer_load_dwordx4 v{230+j}, s[56:59], s7 offen lds")
    a("s_add_u32 s47, s47, 4")
    a(f"s_branch {loop}")
    a.label(done)


def NPFL():
    return 0 if int(OPT.get('apf', 1)) else 3


def b_later_prefetch(a):
    npf = OPT["nt_pf"]
    a(f"v_mov_b32 v4, 0x{OOB:x}")
    a("s_add_u32 s6, s62, 3")
    a("s_mul_i32 s6, s6, 245760")
    a(f"buffer_load_dword v235, v8, s[36:39], s6 offen {npf}")
    a("s_cmp_lt_u32 s62, 3")
    a("s_cselect_b64 vcc, -1, 0")
    a("v_cndmask_b32 v10, v4, v9, vcc")
    a("s_add_u32 s6, s62, 2")
    a("s_lshl_b32 s6, s6, 8")
    a(f"buffer_load_dword v236, v10, s[32:35], s6 offen {npf}")
    a("v_cndmask_b32 v10, v4, v8, vcc")
    a("s_add_u32 s6, s62, 7")
    a("s_mul_i32 s6, s6, 245760")
    a(f"buffer_load_dword v237, v10, s[36:39], s6 offen {npf}")


def b1_loader(a, T):
    b1_loader_setup(a)
    if NPFL():
        pf_w_addr(a, 8)
        pf_x_addr(a, 9)
    def late_setup():
        srd(a, 56, P_WO, 640 * 1280)
        wo_dma_addr(a)
        att_setup(a)
        o_store_setup(a)
        srd(a, 48, P_WS, TSZ, WS_OW)
    if not int(OPT.get("nopf0", 0)):
        late_setup()
        a("s_barrier")
    a("s_mov_b32 s40, 0")
    l0 = a.newlabel("LP")
    a.label(l0)
    b1_issue_stage(a)
    a("s_add_u32 s40, s40, 1")
    lP = a.newlabel("LP")
    a("s_cmp_eq_u32 s40, 2")
    a(f"s_cbranch_scc0 {lP}")
    T.stamp(a, 1)
    if int(OPT.get("nopf0", 0)):
        late_setup()
    lwait(a, 1, 0)
    a("s_barrier")
    a.label(lP)
    a("s_cmp_lt_u32 s40, 3")
    a(f"s_cbranch_scc1 {l0}")
    if NPFL():
        b_later_prefetch(a)
    a("s_mov_b32 s40, 0")
    loop = a.newlabel("LL")
    lA, lB, lC, lD, lW = [a.newlabel("LLx") for _ in range(5)]
    a.label(loop)
    a("s_cmp_lt_u32 s40, 2")
    a(f"s_cbranch_scc1 {lA}")
    a("s_cmp_lt_u32 s40, 8")
    a(f"s_cbranch_scc1 {lB}")
    a("s_cmp_eq_u32 s40, 8")
    a(f"s_cbranch_scc1 {lC}")
    a(f"s_branch {lW}")
    a.label(lA)
    lwait(a, 1, NPFL())
    a(f"s_branch {lW}")
    a.label(lB)
    lwait(a, 1, 0)
    a(f"s_branch {lW}")
    a.label(lC)
    a("s_waitcnt vmcnt(5)")
    a.label(lW)
    a("s_barrier")
    skip, s7, s8, nxt = a.newlabel("LLS"), a.newlabel("LL7"), a.newlabel("LL8"), a.newlabel("LLN")
    a("s_cmp_ge_u32 s40, 7")
    a(f"s_cbranch_scc1 {skip}")
    b1_issue_stage(a)
    a(f"s_branch {nxt}")
    a.label(skip)
    a("s_cmp_eq_u32 s40, 7")
    a(f"s_cbranch_scc0 {s8}")
    wo_dma_blocks(a, 6, 6, B2_WA + 6 * 5120)
    a(f"s_branch {nxt}")
    a.label(s8)
    s9 = a.newlabel("LL9")
    a("s_cmp_eq_u32 s40, 8")
    a(f"s_cbranch_scc0 {s9}")
    wo_dma_blocks(a, 0, 6, B2_WA)
    a(f"s_branch {nxt}")
    a.label(s9)
    a("s_lshl_b32 s6, s62, 6")
    a("s_add_u32 s6, s6, 384")
    a("v_add_u32 v10, s6, v1")
    a("v_mul_u32_u24 v10, 1280, v10")
    a("s_mul_i32 s6, s68, 160")
    a("s_and_b32 s6, s6, 0xffffff80")
    a("v_add_u32 v10, s6, v10")
    a("buffer_load_dword v235, v10, s[56:59], 0 offen")
    a("buffer_load_dword v236, v10, s[56:59], 0 offen offset:128")
    a.label(nxt)
    a("s_add_u32 s40, s40, 1")
    a("s_cmp_lt_u32 s40, 10")
    a(f"s_cbranch_scc1 {loop}")


def b1_compute(a, T):
    a("v_and_b32 v10, 15, v1")
    a("v_lshrrev_b32 v11, 4, v1")
    a("v_lshrrev_b32 v12, 1, v10")
    a("v_xor_b32 v12, v12, v11")
    a("v_lshlrev_b32 v12, 4, v12")
    a("v_lshlrev_b32 v10, 7, v10")
    a("v_add_u32 v2, v10, v12")
    a("v_xor_b32 v3, 64, v2")
    a("v_lshrrev_b32 v10, 2, v1")
    a("v_and_b32 v10, 3, v10")
    a("v_and_b32 v12, 3, v1")
    a("v_lshlrev_b32 v13, 3, v11")
    a("v_add_u32 v13, v13, v10")
    a("v_lshlrev_b32 v13, 8, v13")
    a("v_and_b32 v14, 1, v11")
    a("v_lshlrev_b32 v14, 3, v14")
    a("v_lshlrev_b32 v10, 1, v10")
    a("v_add_u32 v14, v14, v10")
    a("v_lshrrev_b32 v15, 1, v12")
    a("s_lshl_b32 s6, s3, 2")
    a("v_add_u32 v15, s6, v15")
    a("v_xor_b32 v15, v15, v14")
    a("v_lshlrev_b32 v15, 4, v15")
    a("v_and_b32 v12, 1, v12")
    a("v_lshlrev_b32 v12, 3, v12")
    a("v_add3_u32 v13, v13, v15, v12")
    a(f"v_add_u32 v4, {B1_XSZ}, v13")
    a("v_xor_b32 v5, 32, v4")
    for i in range(NRT * 8):
        a(f"v_mov_b32 v{ACC+i}, 0")
    att_setup(a)
    a("v_and_b32 v10, 15, v1")
    a(f"v_mul_u32_u24 v10, {QKV_RS}, v10")
    a("v_lshrrev_b32 v11, 4, v1")
    a("s_lshl_b32 s6, s3, 3")
    a("v_add_u32 v11, s6, v11")
    for ct in range(2):
        if ct:
            a("v_add_u32 v11, 4, v11")
        a("v_mul_u32_u24 v6, 52, v11")
        a("v_lshrrev_b32 v6, 8, v6")
        a("v_mul_u32_u24 v7, 5, v6")
        a("v_sub_u32 v7, v11, v7")
        a("v_lshlrev_b32 v6, 6, v6")
        a("v_lshlrev_b32 v7, 3, v7")
        a(f"v_add3_u32 v{12+ct}, v10, v6, v7")
        a(f"v_add_u32 v{14+ct}, {8*16*QKV_RS}, v{12+ct}")

    def reads(xaddr, waddr0, waddr1, ks, X, W):
        r = []
        r.append(f"ds_read_b64_tr_b16 v[{W}:{W+1}], v{waddr0} offset:{8192*ks}")
        r.append(f"ds_read_b64_tr_b16 v[{W+2}:{W+3}], v{waddr0} offset:{8192*ks+1024}")
        r.append(f"ds_read_b64_tr_b16 v[{W+4}:{W+5}], v{waddr1} offset:{8192*ks}")
        r.append(f"ds_read_b64_tr_b16 v[{W+6}:{W+7}], v{waddr1} offset:{8192*ks+1024}")
        for t in range(NRT):
            r.append(f"ds_read_b128 v[{X+4*t}:{X+4*t+3}], v{xaddr} offset:{2048*t}")
        return r

    def mfmas(X, W):
        r = []
        for t in range(NRT):
            for ct in range(2):
                ac = ACC + (ct * NRT + t) * 4
                r.append(f"v_mfma_f32_16x16x32_bf16 v[{ac}:{ac+3}], v[{W+4*ct}:{W+4*ct+3}], v[{X+4*t}:{X+4*t+3}], v[{ac}:{ac+3}]")
        return r

    def inter(m, r):
        if OPT.get("nomfma"):
            return
        for i, x in enumerate(m):
            a(x)
            if i < len(r):
                a(r[i])

    a("s_waitcnt vmcnt(0)")
    if not int(OPT.get("nopf0", 0)):
        a("s_barrier")
    T.stamp(a, 1)
    a("s_barrier")
    T.stamp(a, 2)
    if OPT.get("prio"):
        a("s_setprio 1")
    a("v_mov_b32 v6, v2")
    a("v_mov_b32 v7, v3")
    a("v_mov_b32 v8, v4")
    a("v_mov_b32 v9, v5")
    for x in reads(6, 8, 9, 0, XA, WA):
        a(x)
    a("s_mov_b32 s40, 0")
    a("s_mov_b32 s44, 0")
    loop, last = a.newlabel("CL"), a.newlabel("CE")
    a.label(loop)
    a("s_waitcnt lgkmcnt(0)")
    inter(mfmas(XA, WA), reads(7, 8, 9, 1, XB, WB))
    a(f"s_add_u32 s44, s44, {B1_STAGE}")
    a(f"s_cmp_ge_u32 s44, {B1_STAGE*B1_NB}")
    a("s_cselect_b32 s44, 0, s44")
    a("v_add_u32 v6, s44, v2")
    a("v_add_u32 v7, s44, v3")
    a("v_add_u32 v8, s44, v4")
    a("v_add_u32 v9, s44, v5")
    a("s_waitcnt lgkmcnt(0)")
    a("s_barrier")
    if OPT.get("stagets") and T.on:
        a(f"{TS.INSTR} s[96:97]")
        a("s_waitcnt lgkmcnt(0)")
        for i in range(10):
            a(f"s_cmp_eq_u32 s40, {i}")
            a(f"s_cselect_b32 s{83+i}, s96, s{83+i}")
    a("s_cmp_eq_u32 s40, 9")
    a(f"s_cbranch_scc1 {last}")
    inter(mfmas(XB, WB), reads(6, 8, 9, 0, XA, WA))
    a("s_add_u32 s40, s40, 1")
    a(f"s_branch {loop}")
    a.label(last)
    m = mfmas(XB, WB)

    def wr(t, ct, k):
        ac = ACC + (ct * NRT + t) * 4
        d = XA + 2 * (k % 16)
        r = [f"v_cvt_pk_bf16_f32 v{d}, v{ac}, v{ac+1}", f"v_cvt_pk_bf16_f32 v{d+1}, v{ac+2}, v{ac+3}"]
        if t < 8:
            r.append(f"ds_write_b64 v{12+ct}, v[{d}:{d+1}] offset:{16*QKV_RS*t}")
        else:
            r.append(f"ds_write_b64 v{14+ct}, v[{d}:{d+1}] offset:{16*QKV_RS*(t-8)}")
        return r
    k = 0
    pend = []
    LAG = 8
    for i, x in enumerate(m):
        a(x)
        pend.append((i // 2, i % 2))
        if i >= LAG:
            t, ct = pend.pop(0)
            for y in wr(t, ct, k):
                a(y)
            k += 1
    a("s_nop 7")
    for (t, ct) in pend:
        for y in wr(t, ct, k):
            a(y)
        k += 1


def b1_epi_loader(a):
    a("v_and_b32 v10, 255, v0")
    a("v_mov_b32 v16, 0")
    a("v_mov_b32 v17, 0")
    a("v_mov_b32 v18, 0")
    a("v_mov_b32 v19, 0")
    a("v_lshrrev_b32 v11, 2, v10")
    a("v_and_b32 v12, 3, v10")
    a(f"v_mul_u32_u24 v11, {QKV_RS}, v11")
    a("v_lshlrev_b32 v12, 6, v12")
    a("v_add_u32 v11, v11, v12")
    for it in range(4):
        off = it * 64 * QKV_RS
        if it == 3:
            a("v_cmp_gt_u32 vcc, 64, v10")
            a("s_and_saveexec_b64 s[6:7], vcc")
        if it == 2:
            a(f"v_add_u32 v11, {2*64*QKV_RS}, v11")
        o2 = off if it < 2 else off - 2 * 64 * QKV_RS
        a(f"ds_write_b64 v11, v[16:17] offset:{o2+40}")
        a(f"ds_write_b128 v11, v[16:19] offset:{o2+48}")
        if it == 3:
            a("s_mov_b64 exec, s[6:7]")


KP0, KC0, KP1, KC1, NEG, KQB, VB, OB = 240, 241, 242, 243, 248, 249, 252, 253
S_PAR, S_M0, S_M1 = 64, 72, 74
S_D1, S_D2, S_O1, S_O2 = 76, 77, 66, 78


def att_setup(a):
    R16 = 16 * QKV_RS
    a("v_and_b32 v10, 15, v1")
    a("v_lshrrev_b32 v11, 4, v1")
    a(f"v_mov_b32 v{NEG}, 0xf149f2ca")
    a("v_and_b32 v12, 1, v10")
    a(f"v_cmp_eq_u32 s[{S_PAR}:{S_PAR+1}], 1, v12")
    a("v_lshlrev_b32 v13, 2, v11")
    a("v_add_u32 v13, v13, v12")
    a(f"v_cmp_le_u32 s[{S_M0}:{S_M0+1}], v13, v10")
    a("v_add_u32 v13, 2, v13")
    a(f"v_cmp_le_u32 s[{S_M1}:{S_M1+1}], v13, v10")
    a("v_mov_b32 v14, 0xffff")
    a("v_mov_b32 v15, 0xffff0000")
    a(f"v_cndmask_b32 v14, v14, v15, s[{S_PAR}:{S_PAR+1}]")
    a("v_mov_b32 v15, 0")
    a(f"v_cndmask_b32 v{KC0}, v15, v14, s[{S_M0}:{S_M0+1}]")
    a(f"v_cndmask_b32 v{KP0}, v14, v15, s[{S_M0}:{S_M0+1}]")
    a(f"v_cndmask_b32 v{KC1}, v15, v14, s[{S_M1}:{S_M1+1}]")
    a(f"v_cndmask_b32 v{KP1}, v14, v15, s[{S_M1}:{S_M1+1}]")
    a("s_mul_i32 s46, s3, 3")
    a("s_lshr_b32 s6, s46, 1")
    a("s_and_b32 s7, s46, 1")
    a(f"s_mul_i32 s45, s6, {R16}")
    a("s_lshl_b32 s47, s7, 6")
    a("s_add_u32 s45, s45, s47")
    a("s_mul_i32 s47, s6, 1280")
    a("s_mul_i32 s6, s7, 40")
    a("s_add_u32 s47, s47, s6")
    a("s_cmp_eq_u32 s7, 0")
    a(f"s_cselect_b32 s{S_D1}, 64, {R16-64}")
    a(f"s_mov_b32 s{S_D2}, {R16}")
    a(f"s_cselect_b32 s{S_O1}, 40, {1280-40}")
    a(f"s_mov_b32 s{S_O2}, 1280")
    a(f"v_mul_u32_u24 v12, {QKV_RS}, v10")
    a("v_lshlrev_b32 v13, 4, v11")
    a(f"v_add3_u32 v{KQB}, v12, v13, s45")
    a("v_lshrrev_b32 v12, 2, v1")
    a("v_and_b32 v12, 3, v12")
    a("v_lshlrev_b32 v13, 2, v11")
    a("v_add_u32 v12, v12, v13")
    a(f"v_mul_u32_u24 v12, {QKV_RS}, v12")
    a("v_and_b32 v13, 3, v1")
    a("v_lshlrev_b32 v13, 3, v13")
    a(f"v_add3_u32 v{VB}, v12, v13, s45")
    a("v_mul_u32_u24 v12, 80, v10")
    a("v_lshlrev_b32 v13, 3, v11")
    a("v_add3_u32 v12, v12, v13, s47")
    a(f"v_add_u32 v{OB}, {O_LDS}, v12")


def attention(a, T=None):
    R16 = 16 * QKV_RS
    U = [32 + 48 * u for u in range(3)]
    kq = [KQB, U[1] + 36, U[2] + 36]
    vv = [VB, U[1] + 37, U[2] + 37]
    oo = [OB, U[1] + 38, U[2] + 38]
    a(f"v_add_u32 v{kq[1]}, s{S_D1}, v{KQB}")
    a(f"v_add_u32 v{kq[2]}, s{S_D2}, v{KQB}")
    for u in range(3):
        b = U[u]
        a(f"ds_read_b128 v[{b}:{b+3}], v{kq[u]} offset:{R16}")
        a(f"ds_read_b128 v[{b+4}:{b+7}], v{kq[u]} offset:128")
        a(f"ds_read_b128 v[{b+8}:{b+11}], v{kq[u]} offset:{R16+128}")
    a(f"v_add_u32 v{vv[1]}, s{S_D1}, v{VB}")
    a(f"v_add_u32 v{vv[2]}, s{S_D2}, v{VB}")
    for u in range(3):
        b = U[u]
        a(f"ds_read_b64_tr_b16 v[{b+12}:{b+13}], v{vv[u]} offset:256")
        a(f"ds_read_b64_tr_b16 v[{b+14}:{b+15}], v{vv[u]} offset:{R16+256}")
        a(f"ds_read_b64_tr_b16 v[{b+16}:{b+17}], v{vv[u]} offset:{256+32}")
        a(f"ds_read_b64_tr_b16 v[{b+18}:{b+19}], v{vv[u]} offset:{R16+256+32}")
    a(f"v_add_u32 v{oo[1]}, s{S_O1}, v{OB}")
    a(f"v_add_u32 v{oo[2]}, s{S_O2}, v{OB}")
    a("s_mov_b32 s45, 0x3ea52b5c")
    a("s_waitcnt lgkmcnt(12)")
    for u in range(3):
        b = U[u]
        a(f"v_mfma_f32_16x16x32_bf16 v[{b+20}:{b+23}], v[{b+4}:{b+7}], v[{b}:{b+3}], 0")
        a(f"v_mfma_f32_16x16x32_bf16 v[{b+24}:{b+27}], v[{b+8}:{b+11}], v[{b}:{b+3}], 0")
    a("s_nop 7")

    def each(f):
        for step in zip(*[f(U[u]) for u in range(3)]):
            for x in step:
                a(x)
    P_, M0_, M1_ = f"s[{S_PAR}:{S_PAR+1}]", f"s[{S_M0}:{S_M0+1}]", f"s[{S_M1}:{S_M1+1}]"
    each(lambda b: [f"v_cndmask_b32 v{b+20}, v{b+20}, v{b+21}, {P_}",
                    f"v_cndmask_b32 v{b+22}, v{b+22}, v{b+23}, {P_}",
                    f"v_cndmask_b32 v{b+24}, v{b+24}, v{b+25}, {P_}",
                    f"v_cndmask_b32 v{b+26}, v{b+26}, v{b+27}, {P_}"])
    lsp = a.newlabel("ATS")
    a("s_or_b32 s6, s60, s3")
    a("s_cmp_lg_u32 s6, 0")
    a(f"s_cbranch_scc1 {lsp}")
    for u in range(2):
        a(f"v_mov_b32 v{U[u]+20}, v{NEG}")
        a(f"v_mov_b32 v{U[u]+22}, v{NEG}")
    a.label(lsp)
    each(lambda b: [f"v_cndmask_b32 v{b+20}, v{b+20}, v{b+24}, {M0_}",
                    f"v_cndmask_b32 v{b+22}, v{b+22}, v{b+26}, {M1_}",
                    f"v_max_f32 v{b+28}, v{b+20}, v{b+22}",
                    f"v_mov_b32 v{b+29}, v{b+28}",
                    f"v_permlane32_swap_b32 v{b+28}, v{b+29}",
                    f"v_max_f32 v{b+28}, v{b+28}, v{b+29}",
                    f"v_mov_b32 v{b+29}, v{b+28}",
                    f"v_permlane16_swap_b32 v{b+28}, v{b+29}",
                    f"v_max_f32 v{b+28}, v{b+28}, v{b+29}",
                    f"v_mul_f32 v{b+28}, s45, v{b+28}",
                    f"v_fma_f32 v{b+20}, v{b+20}, s45, -v{b+28}",
                    f"v_fma_f32 v{b+22}, v{b+22}, s45, -v{b+28}",
                    f"v_exp_f32 v{b+20}, v{b+20}",
                    f"v_exp_f32 v{b+22}, v{b+22}",
                    f"v_add_f32 v{b+28}, v{b+20}, v{b+22}",
                    f"v_mov_b32 v{b+29}, v{b+28}",
                    f"v_permlane32_swap_b32 v{b+28}, v{b+29}",
                    f"v_add_f32 v{b+28}, v{b+28}, v{b+29}",
                    f"v_mov_b32 v{b+29}, v{b+28}",
                    f"v_permlane16_swap_b32 v{b+28}, v{b+29}",
                    f"v_add_f32 v{b+28}, v{b+28}, v{b+29}",
                    f"v_rcp_f32 v{b+28}, v{b+28}",
                    f"v_mul_f32 v{b+20}, v{b+20}, v{b+28}",
                    f"v_mul_f32 v{b+22}, v{b+22}, v{b+28}",
                    f"v_cvt_pk_bf16_f32 v{b+20}, v{b+20}, v{b+20}",
                    f"v_cvt_pk_bf16_f32 v{b+22}, v{b+22}, v{b+22}",
                    f"v_and_b32 v{b+40}, v{KP0}, v{b+20}",
                    f"v_and_b32 v{b+41}, v{KP1}, v{b+22}",
                    f"v_and_b32 v{b+42}, v{KC0}, v{b+20}",
                    f"v_and_b32 v{b+43}, v{KC1}, v{b+22}"])
    a("s_waitcnt lgkmcnt(0)")
    for u in range(3):
        b = U[u]
        a(f"v_mfma_f32_16x16x32_bf16 v[{b}:{b+3}], v[{b+12}:{b+15}], v[{b+40}:{b+43}], 0")
        a(f"v_mfma_f32_16x16x32_bf16 v[{b+4}:{b+7}], v[{b+16}:{b+19}], v[{b+40}:{b+43}], 0")
    a("s_nop 7")
    for u in range(3):
        b = U[u]
        a(f"v_cvt_pk_bf16_f32 v{b+8}, v{b}, v{b+1}")
        a(f"v_cvt_pk_bf16_f32 v{b+9}, v{b+2}, v{b+3}")
        a(f"v_cvt_pk_bf16_f32 v{b+10}, v{b+4}, v{b+5}")
        a(f"v_cvt_pk_bf16_f32 v{b+11}, v{b+6}, v{b+7}")
        a(f"ds_write_b64 v{oo[u]}, v[{b+8}:{b+9}]")
    a("s_mov_b64 exec, 0xffff")
    for u in range(3):
        b = U[u]
        a(f"ds_write_b64 v{oo[u]}, v[{b+10}:{b+11}] offset:32")
    a("s_mov_b64 exec, -1")


def epoch_issue(a, vdst, vtmp, srdn, off_expr_sgpr):
    srd(a, srdn, P_WS, 0x10000, WS_FL)
    a(f"v_mov_b32 v{vtmp}, s{off_expr_sgpr}")
    a(f"buffer_load_dword v{vdst}, v{vtmp}, s[{srdn}:{srdn+3}], 0 offen sc1")


def poll(a, vaddr, n_lanes, tag_s, srdn):
    l0, l1 = a.newlabel("PF"), a.newlabel("PF")
    a("s_mov_b32 s45, 0")
    if n_lanes < 64:
        a(f"s_mov_b64 exec, 0x{(1 << n_lanes) - 1:x}")
    a.label(l0)
    a(f"buffer_load_dword v4, v{vaddr}, s[{srdn}:{srdn+3}], 0 offen sc1")
    a("s_waitcnt vmcnt(0)")
    a(f"v_cmp_ne_u32 vcc, s{tag_s}, v4")
    a("s_add_u32 s45, s45, 1")
    a("s_nop 3")
    a(f"s_cbranch_vccz {l1}")
    a(f"s_cmp_gt_u32 s45, {OPT['spin']}")
    a(f"s_cbranch_scc1 {l1}")
    a(f"s_sleep {OPT['psleep']}")
    a(f"s_branch {l0}")
    a.label(l1)
    if n_lanes < 64:
        a("s_mov_b64 exec, -1")


def o_store_setup(a):
    a("v_and_b32 v10, 255, v0")
    a("v_lshlrev_b32 v10, 4, v10")
    a(f"v_add_u32 v216, {O_LDS}, v10")
    a("s_mul_i32 s6, s61, 163840")
    a("s_mul_i32 s7, s60, 15360")
    a("s_add_u32 s6, s6, s7")
    a("v_add_u32 v12, s6, v10")
    a("s_movk_i32 s7, 15360")
    a("s_cmp_eq_u32 s60, 10")
    a("s_cselect_b32 s7, 10240, s7")
    a(f"v_mov_b32 v14, 0x{OOB:x}")
    for i in range(4):
        a(f"v_add_u32 v{217+i}, {4096*i}, v12")
        a(f"v_add_u32 v13, {4096*i}, v10")
        a("v_cmp_gt_u32 vcc, s7, v13")
        a("s_nop 1")
        a(f"v_cndmask_b32 v{217+i}, v14, v{217+i}, vcc")


def o_store(a):
    sc = OPT["sc_ostore"]
    for i in range(4):
        a(f"ds_read_b128 v[{16+4*i}:{19+4*i}], v216 offset:{4096*i}")
    a("s_waitcnt lgkmcnt(0)")
    for i in range(4):
        a(f"buffer_store_dwordx4 v[{16+4*i}:{19+4*i}], v{217+i}, s[48:51], 0 offen {sc}")


def b2_o_addr(a, dst):
    a("s_lshl_b32 s6, s47, 10")
    a("v_add_u32 v10, s6, v239")
    a("v_lshrrev_b32 v11, 9, v10")
    a("v_mul_u32_u24 v11, 4370, v11")
    a("v_lshrrev_b32 v11, 16, v11")
    a("v_mul_u32_u24 v11, 156160, v11")
    a(f"v_add_u32 v{dst}, v10, v11")


def b2_loader_setup(a):
    for i in range(8):
        a(f"s_add_u32 s47, s62, {4*i}")
        b2_o_addr(a, 224 + i)
    a("s_cmp_lt_u32 s62, 2")
    a("s_cselect_b64 vcc, -1, 0")
    a(f"v_mov_b32 v10, 0x{OOB:x}")
    a("v_cndmask_b32 v231, v10, v231, vcc")
    a("s_mul_i32 s49, s67, 7680")


def b2_loader(a, T):
    sc = OPT["sc_oload"]

    def soff(st):
        a(f"s_add_u32 s50, s68, {st}")
        a("s_and_b32 s50, s50, 1")
        a(f"s_add_u32 s50, s50, s{75 if st < 2 else 63}")
        a("s_mul_i32 s50, s50, 655360")
        a("s_add_u32 s50, s50, s49")

    def dma(st):
        soff(st)
        a("s_lshl_b32 s6, s62, 10")
        a(f"s_add_u32 s6, s6, {B2_O + (st & 1)*B2_OST}")
        for i in range(8):
            lab = None
            if i == 7:
                lab = a.newlabel("O7")
                a("s_cmp_ge_u32 s62, 2")
                a(f"s_cbranch_scc1 {lab}")
            a(f"s_add_u32 m0, s6, {4096*i}")
            a("s_nop 0")
            a(f"buffer_load_dwordx4 v{224+i}, s[52:55], s50 offen {sc} lds")
            if lab:
                a.label(lab)

    def vload(st):
        soff(st)
        for i in range(8):
            d = 16 + 32 * (st - 2) + 4 * i
            a(f"buffer_load_dwordx4 v[{d}:{d+3}], v{224+i}, s[52:55], s50 offen {sc}")

    def lwrite(st):
        for i in range(8):
            d = 16 + 32 * (st - 2) + 4 * i
            lab = None
            if i == 7:
                lab = a.newlabel("O7")
                a("s_cmp_ge_u32 s62, 2")
                a(f"s_cbranch_scc1 {lab}")
            a(f"ds_write_b128 v10, v[{d}:{d+3}] offset:{(st & 1) * B2_OST + 4096*i}")
            if lab:
                a.label(lab)
        a("s_waitcnt lgkmcnt(0)")

    a("v_lshlrev_b32 v10, 4, v1")
    a("s_lshl_b32 s6, s62, 10")
    a(f"s_add_u32 s6, s6, {B2_O}")
    a("v_add_u32 v10, s6, v10")
    T.stamp(a, 2)
    dma(0)
    T.stamp(a, 4)
    dma(1)
    T.stamp(a, 5)
    a("s_waitcnt vmcnt(7)")
    if not OPT.get('attts'): T.stamp(a, 10)
    a("s_barrier")
    if OPT.get("b2dma"):
        lq = a.newlabel("P2")
        a("s_cmp_lg_u32 s62, 0")
        a(f"s_cbranch_scc1 {lq}")
        a("s_lshl_b32 s6, s60, 11")
        a("s_lshl_b32 s7, s63, 9")
        a("s_add_u32 s6, s6, s7")
        a("v_lshlrev_b32 v12, 7, v1")
        a("v_add_u32 v12, s6, v12")
        poll(a, 12, 8, 44, 36)
        le = a.newlabel("EU")
        a("s_cmp_lg_u32 s61, 0")
        a(f"s_cbranch_scc1 {le}")
        a("v_mov_b32 v11, s44")
        a("s_mov_b64 exec, 1")
        a("buffer_store_dword v11, v251, s[36:39], 0 offen sc1")
        a("s_mov_b64 exec, -1")
        a.label(le)
        a.label(lq)
        a("s_waitcnt vmcnt(0)")
        a("s_barrier")
        dma(2)
        a("s_waitcnt vmcnt(0)")
        a("s_barrier")
        dma(3)
        a("s_waitcnt vmcnt(0)")
        a("s_barrier")
        return
    vload(2)
    a("s_waitcnt vmcnt(8)")
    if not OPT.get('attts'): T.stamp(a, 11)
    a("s_barrier")
    vload(3)
    a("s_waitcnt vmcnt(8)")
    if not OPT.get('attts'): T.stamp(a, 12)
    lwrite(2)
    a("s_barrier")
    a("s_waitcnt vmcnt(0)")
    if not OPT.get('attts'): T.stamp(a, 13)
    lwrite(3)
    a("s_barrier")


def b2_compute_setup(a):
    a("v_and_b32 v10, 15, v1")
    a("v_lshrrev_b32 v11, 4, v1")
    a("s_and_b32 s6, s3, 1")
    a("s_mul_i32 s6, s6, 48")
    a("v_add_u32 v10, s6, v10")
    a("v_mul_u32_u24 v10, 80, v10")
    for ks in range(5):
        a(f"v_add_u32 v12, {4*ks}, v11")
        a("v_mul_u32_u24 v13, 52, v12")
        a("v_lshrrev_b32 v13, 8, v13")
        a("v_mul_u32_u24 v14, 5, v13")
        a("v_sub_u32 v14, v12, v14")
        a("v_mul_u32_u24 v13, 7680, v13")
        a("v_lshlrev_b32 v14, 4, v14")
        a(f"v_add3_u32 v{224+ks}, v10, v13, v14")
    a("v_lshrrev_b32 v12, 2, v1")
    a("v_and_b32 v12, 3, v12")
    a("v_lshlrev_b32 v13, 2, v11")
    a("v_add_u32 v12, v12, v13")
    a("v_mul_u32_u24 v12, 160, v12")
    a("v_and_b32 v13, 3, v1")
    a("v_lshlrev_b32 v13, 3, v13")
    a("s_lshr_b32 s47, s3, 1")
    a("s_mul_i32 s6, s47, 96")
    a("v_add3_u32 v229, v12, v13, s6")
    for i in range(36):
        a(f"v_mov_b32 v{16+i}, 0")
    srd(a, 56, P_OUT, 2048 * 2560)
    a("v_and_b32 v13, 15, v1")
    a("s_and_b32 s6, s3, 1")
    a("s_mul_i32 s6, s6, 48")
    a("s_mul_i32 s7, s67, 96")
    a("s_add_u32 s6, s6, s7")
    a("v_add_u32 v13, s6, v13")
    a("v_mul_u32_u24 v13, 2560, v13")
    a("v_lshrrev_b32 v14, 4, v1")
    a("v_lshlrev_b32 v14, 3, v14")
    a("s_mul_i32 s6, s68, 160")
    a("s_mul_i32 s7, s47, 96")
    a("s_add_u32 s6, s6, s7")
    a("s_add_u32 s6, s6, 1280")
    a("v_add3_u32 v213, v13, v14, s6")
    a("s_mov_b32 s72, 0")
    a("s_mov_b32 s73, 40960")
    a("s_mov_b32 s74, 81920")
    a(f"s_mov_b32 s51, 0x{(B2_WB - 12*5120) & 0xffffffff:x}")


def b2_compute(a, T):
    WF, OF = 56, 120

    def addr(slot, st):
        r = []
        ob, wb = 192 + 5 * slot, 202 + 5 * slot
        r.append(f"s_add_u32 s50, s68, {st}")
        r.append("s_and_b32 s50, s50, 1")
        r.append(f"s_add_u32 s50, s50, s{75 if st < 2 else 63}")
        r.append("s_mul_i32 s50, s50, 5")
        for ks in range(5):
            r.append(f"v_add_u32 v{ob+ks}, {B2_O + (st & 1) * B2_OST}, v{224+ks}")
            r.append(f"s_add_u32 s6, s50, {ks}")
            r.append("s_mul_i32 s7, s6, 5120")
            r.append("s_cmp_lt_u32 s6, 12")
            r.append(f"s_cselect_b32 s6, {B2_WA}, s51")
            r.append("s_add_u32 s6, s6, s7")
            r.append(f"v_add_u32 v{wb+ks}, s6, v229")
        return r

    def rd_w(slot, ks, nct):
        wb = 202 + 5 * slot
        r = []
        for ct in range(nct):
            F = WF + 12 * ks + 4 * ct
            r.append(f"ds_read_b64_tr_b16 v[{F}:{F+1}], v{wb+ks} offset:{32*ct}")
            r.append(f"ds_read_b64_tr_b16 v[{F+2}:{F+3}], v{wb+ks} offset:{32*ct+2560}")
        return r

    def rd_o(slot, ks):
        ob = 192 + 5 * slot
        return [f"ds_read_b128 v[{OF+12*ks+4*t}:{OF+12*ks+4*t+3}], v{ob+ks} offset:{1280*t}" for t in range(3)]

    def mm(ks, nct):
        r = []
        for t in range(3):
            for ct in range(nct):
                ac = 16 + (t * 3 + ct) * 4
                W = WF + 12 * ks + 4 * ct
                O = OF + 12 * ks + 4 * t
                r.append(f"v_mfma_f32_16x16x32_bf16 v[{ac}:{ac+3}], v[{W}:{W+3}], v[{O}:{O+3}], v[{ac}:{ac+3}]")
        return r

    le, ld = a.newlabel("C2E"), a.newlabel("C2D")
    for x in addr(0, 0):
        a(x)
    a("s_cmp_eq_u32 s47, 0")
    a(f"s_cbranch_scc0 {le}")
    for var, nct in enumerate([3, 2]):
        if var == 1:
            a(f"s_branch {ld}")
            a.label(le)
        for ks in range(5):
            for x in rd_w(0, ks, nct):
                a(x)
        for st in range(4):
            slot = st & 1
            a("s_waitcnt lgkmcnt(0)")
            a("s_barrier")
            if T.on and not OPT.get("attts") and var == 0:
                T.stamp(a, 10 + st)
            for ks in range(5):
                for x in rd_o(slot, ks):
                    a(x)
            lg = 12
            nfill = 0
            for ks in range(5):
                fill = []
                if st < 3:
                    fill = addr(slot ^ 1, st + 1) if ks == 0 else rd_w(slot ^ 1, ks - 1, nct)
                a(f"s_waitcnt lgkmcnt({min(15, 3 * (4 - ks) + nfill)})")
                m = mm(ks, nct)
                per = (len(fill) + len(m) - 1) // len(m)
                k = 0
                for x in m:
                    a(x)
                    for _ in range(per):
                        if k < len(fill):
                            a(fill[k])
                            k += 1
                if ks >= 1 and st < 3:
                    nfill += len(fill)
            if st < 3:
                for x in rd_w(slot ^ 1, 4, nct):
                    a(x)
        no = OPT["nt_out"]
        a("s_nop 7")
        for t in range(3):
            for ct in range(nct):
                ac = 16 + (t * 3 + ct) * 4
                p = 56 + 2 * (t * 3 + ct)
                a(f"v_cvt_pk_bf16_f32 v{p}, v{ac}, v{ac+1}")
                a(f"v_cvt_pk_bf16_f32 v{p+1}, v{ac+2}, v{ac+3}")
                a(f"buffer_store_dwordx2 v[{p}:{p+1}], v213, s[56:59], s{72+t} offen offset:{32*ct} {no}")
    a.label(ld)


def read_fh(a):
    a(f"v_mov_b32 v11, {B2_O}")
    a("ds_read_b32 v10, v11")
    a("s_waitcnt lgkmcnt(0)")
    a("v_readfirstlane_b32 s75, v10")
    a("s_barrier")
    a("s_lshl_b32 s75, s75, 1")
    a("s_sub_u32 s63, 2, s75")


def b_program(a, T):
    b_decode(a)
    ld, j1 = a.newlabel("BLD"), a.newlabel("BJ1")
    a("s_cmp_ge_u32 s3, 4")
    a(f"s_cbranch_scc1 {ld}")
    if not int(OPT.get("nopf0", 0)):
        b_initial_prefetch(a)
    a("s_lshl_b32 s6, s60, 7")
    a(f"s_add_u32 s6, s6, {FL_EB}")
    epoch_issue(a, 250, 251, 52, 6)
    b1_compute(a, T)
    T.stamp(a, 3)
    a("s_waitcnt lgkmcnt(0)")
    a(f"s_branch {j1}")
    a.label(ld)
    a("s_lshl_b32 s6, s60, 7")
    a(f"s_add_u32 s6, s6, {FL_EB}")
    epoch_issue(a, 250, 251, 52, 6)
    b1_loader(a, T)
    T.stamp(a, 3)
    b1_epi_loader(a)
    a("s_waitcnt lgkmcnt(0)")
    a.label(j1)
    a("s_barrier")
    T.stamp(a, 4)
    attention(a, T)
    a("s_waitcnt lgkmcnt(0)")
    a("s_barrier")
    T.stamp(a, 5)
    ld2, j2 = a.newlabel("BLD"), a.newlabel("BJ2")
    a("s_cmp_ge_u32 s3, 4")
    a(f"s_cbranch_scc1 {ld2}")
    a("v_readfirstlane_b32 s44, v250")
    a("s_add_u32 s44, s44, 1")
    a("s_barrier")
    b2_compute_setup(a)
    a("s_barrier")
    lp = a.newlabel("NP")
    a("s_cmp_lg_u32 s3, 0")
    a(f"s_cbranch_scc1 {lp}")
    a("s_lshl_b32 s6, s60, 4")
    a("s_add_u32 s6, s6, s61")
    a("s_lshl_b32 s6, s6, 7")
    a("v_mov_b32 v10, s6")
    a("v_mov_b32 v11, s44")
    a("s_mov_b64 exec, 1")
    a("buffer_store_dword v11, v10, s[52:55], 0 offen sc1")
    a("s_mov_b64 exec, -1")
    T.stamp(a, 6)
    a("s_lshl_b32 s6, s60, 11")
    a("v_lshlrev_b32 v10, 7, v1")
    a("v_add_u32 v10, s6, v10")
    l0, l1, l2 = a.newlabel("PH"), a.newlabel("PH"), a.newlabel("PH")
    a("s_mov_b32 s45, 0")
    a("s_mov_b64 exec, 0xffff")
    a.label(l0)
    a("buffer_load_dword v4, v10, s[52:55], 0 offen sc1")
    a("s_waitcnt vmcnt(0)")
    a("v_cmp_ne_u32 vcc, s44, v4")
    a("s_add_u32 s45, s45, 1")
    a("s_nop 3")
    a("s_and_b32 s6, vcc_lo, 0xff")
    a("s_and_b32 s7, vcc_lo, 0xff00")
    a("s_cmp_eq_u32 s6, 0")
    a(f"s_cbranch_scc1 {l1}")
    a("s_cmp_eq_u32 s7, 0")
    a(f"s_cbranch_scc1 {l1}")
    a(f"s_cmp_gt_u32 s45, {OPT['spin']}")
    a(f"s_cbranch_scc1 {l1}")
    a(f"s_sleep {OPT['psleep']}")
    a(f"s_branch {l0}")
    a.label(l1)
    a("s_mov_b64 exec, -1")
    a("s_lshr_b32 s46, s68, 1")
    a("s_and_b32 s46, s46, 1")
    a("s_cmp_lg_u32 s6, 0")
    a("s_cselect_b32 s46, 1, s46")
    a("s_cmp_lg_u32 s7, 0")
    a("s_cselect_b32 s46, 0, s46")
    a("v_mov_b32 v10, s46")
    a(f"v_mov_b32 v11, {B2_O}")
    a("ds_write_b32 v11, v10")
    a("s_waitcnt lgkmcnt(0)")
    a.label(lp)
    T.stamp(a, 7)
    a("s_barrier")
    read_fh(a)
    b2_compute(a, T)
    T.stamp(a, 8)
    a(f"s_branch {j2}")
    a.label(ld2)
    o_store(a)
    a("s_barrier")
    a("s_waitcnt vmcnt(0)")
    a("s_barrier")
    wo_dma_blocks(a, 12, 8, B2_WB)
    srd(a, 52, P_WS, TSZ, WS_OW)
    a("v_lshlrev_b32 v239, 4, v1")
    b2_loader_setup(a)
    a("s_waitcnt vmcnt(0)")
    srd(a, 36, P_WS, 0x10000, WS_FL)
    a("v_readfirstlane_b32 s44, v250")
    a("s_add_u32 s44, s44, 1")
    T.stamp(a, 7)
    a("s_barrier")
    read_fh(a)
    b2_loader(a, T)
    T.stamp(a, 8)
    a.label(j2)
    T.stamp(a, 9)


A2_H0 = 0
A2_H1 = 4640
A2_X0 = 9216
A2_X2 = 13696
A2_CH = 17920
T_RS = 528
Y_RS = 528


def a_program(a, T):
    na, nh, sc = OPT["nt_a"], OPT["nt_h"], OPT["sc"]
    a("s_sub_u32 s5, s5, s70")
    a("s_lshl_b32 s6, s4, 1")
    a("s_add_u32 s7, s4, 2")
    a("s_cmp_lt_u32 s4, 2")
    a("s_cselect_b32 s6, s6, s7")
    a("s_lshr_b32 s7, s5, 3")
    a("s_add_u32 s73, s6, s7")
    a("s_and_b32 s72, s5, 7")
    a("s_lshl_b32 s62, s73, 6")
    a("s_lshl_b32 s6, s72, 3")
    a("s_add_u32 s62, s62, s6")
    a("s_add_u32 s63, s62, s3")
    srd(a, 32, P_K, TSZ)
    srd(a, 36, P_V, TSZ)
    srd(a, 40, P_SK, 640 * 8)
    a("v_and_b32 v8, 7, v1")
    a("v_lshrrev_b32 v9, 3, v1")
    a("s_lshl_b32 s6, s3, 3")
    a("v_add_u32 v9, s6, v9")
    a("v_lshlrev_b32 v2, 2, v9")
    a("s_lshl_b32 s6, s72, 8")
    a("v_add_u32 v2, s6, v2")
    a("v_mul_u32_u24 v2, 1280, v2")
    a("v_lshlrev_b32 v3, 4, v8")
    a("s_lshl_b32 s6, s73, 7")
    a("v_add3_u32 v2, v2, v3, s6")
    a("v_add_u32 v3, -3840, v2")
    a("v_add_u32 v4, -2560, v2")
    a("v_add_u32 v5, -1280, v2")
    for m in range(4):
        a(f"buffer_load_dwordx4 v[{64+4*m}:{67+4*m}], v2, s[32:35], 0 offen offset:{1280*m} {na}".replace("offset:0 ", ""))
    for m in range(4):
        a(f"buffer_load_dwordx4 v[{80+4*m}:{83+4*m}], v2, s[36:39], 0 offen offset:{1280*m} {na}".replace("offset:0 ", ""))
    a(f"buffer_load_dwordx4 v[52:55], v3, s[32:35], 0 offen {na}")
    a(f"buffer_load_dwordx4 v[56:59], v4, s[32:35], 0 offen {na}")
    a(f"buffer_load_dwordx4 v[60:63], v5, s[32:35], 0 offen {na}")
    a("v_lshlrev_b32 v6, 6, v8")
    a("s_lshl_b32 s6, s73, 9")
    a("v_add_u32 v6, s6, v6")
    for i in range(4):
        a(f"buffer_load_dwordx4 v[{32+4*i}:{35+4*i}], v6, s[40:43], 0 offen offset:{16*i}".replace("offset:0", ""))
    a("s_lshl_b32 s6, s73, 7")
    a(f"s_add_u32 s6, s6, {FL_EA}")
    epoch_issue(a, 250, 251, 48, 6)
    a("s_lshl_b32 s6, s62, 1")
    a(f"s_add_u32 s44, s{P_SD}, s6")
    a(f"s_addc_u32 s45, s{P_SD+1}, 0")
    a("s_load_dwordx4 s[64:67], s[44:45], 0")
    if int(OPT.get("apf", 1)):
        npf = OPT["nt_pf"]
        a("s_cmp_eq_u32 s4, 1")
        a("s_cselect_b32 s74, 1, 0")
        a("s_cmp_ge_u32 s4, 5")
        a("s_cselect_b32 s74, 1, s74")
        a("s_cselect_b32 s7, 3, 0")
        a("s_sub_u32 s6, s4, 2")
        a("s_sub_u32 s6, s6, s7")
        a("s_mul_i32 s6, s6, 3")
        a("s_add_u32 s6, s6, 2")
        a("s_cmp_lt_u32 s4, 2")
        a("s_cselect_b32 s75, 0, s6")
        a("s_cselect_b32 s76, 128, 64")
        a("s_cselect_b32 s77, 2400, s76")
        a("s_cselect_b32 s77, 2400, 3552") if False else None
        a("s_movk_i32 s77, 3552")
        a("s_cmp_lt_u32 s4, 2")
        a("s_cselect_b32 s77, 2400, s77")
        a("s_lshl_b32 s78, s5, 3")
        a("s_add_u32 s78, s78, s3")
        srd(a, 52, P_W, 640 * 3840)
        srd(a, 56, P_X, TSZ)
        a(f"v_mov_b32 v20, 0x{OOB:x}")

        def wpf(dst):
            a("s_lshl_b32 s6, s6, 6")
            a("v_add_u32 v21, s6, v1")
            a("v_mul_u32_u24 v22, 34953, v21")
            a("v_lshrrev_b32 v22, 19, v22")
            a("v_mul_u32_u24 v23, 15, v22")
            a("v_sub_u32 v23, v21, v23")
            a("v_mul_u32_u24 v24, 52, v23")
            a("v_lshrrev_b32 v24, 8, v24")
            a("v_mul_u32_u24 v25, 5, v24")
            a("v_sub_u32 v25, v23, v25")
            a("v_add_u32 v22, 192, v22")
            a("v_mul_u32_u24 v22, 3840, v22")
            a("v_mul_u32_u24 v24, 1280, v24")
            a("v_lshlrev_b32 v25, 7, v25")
            a("v_add3_u32 v22, v22, v24, v25")
            a("s_mul_i32 s7, s74, 640")
            a("v_add_u32 v22, s7, v22")
            a("s_movk_i32 s7, 6720")
            a("v_cmp_gt_u32 vcc, s7, v21")
            a("s_nop 1")
            a("v_cndmask_b32 v22, v20, v22, vcc")
            a(f"buffer_load_dword v{dst}, v22, s[52:55], 0 offen {npf}")
        a("s_mov_b32 s6, s78")
        wpf(240)
        a("s_lshl_b32 s6, s78, 6")
        a("v_add_u32 v21, s6, v1")
        a("v_mul_u32_u24 v22, 10923, v21")
        a("v_lshrrev_b32 v22, 16, v22")
        a("v_mul_u32_u24 v23, 6, v22")
        a("v_sub_u32 v23, v21, v23")
        a("s_mul_i32 s6, s75, 192")
        a("s_sub_u32 s6, s6, 16")
        a("v_add_u32 v22, s6, v22")
        a("s_movk_i32 s7, 1280")
        a("v_mul_lo_u32 v22, v22, s7")
        a("v_lshlrev_b32 v23, 7, v23")
        a("v_add_u32 v22, v22, v23")
        a("v_add_u32 v22, 512, v22")
        a("v_cmp_gt_u32 vcc, s77, v21")
        a("s_nop 1")
        a("v_cndmask_b32 v22, v20, v22, vcc")
        a(f"buffer_load_dword v241, v22, s[56:59], 0 offen {npf}")
        a("s_add_u32 s6, s78, s76")
        wpf(242)
    a(f"s_mul_i32 s60, s3, {A2_CH}")
    a("s_lshl_b32 s59, s63, 12")
    a("v_lshlrev_b32 v10, 4, v1")
    a("v_add_u32 v11, -2, v10")
    T.stamp(a, 1)
    a("v_mov_b32 v28, 0")
    a("v_mov_b32 v29, 0")
    a("v_mov_b32 v30, 0")
    a("v_mov_b32 v31, 0")
    a("v_add_u32 v23, s60, v10")
    a("s_mov_b64 exec, 0xfffffff")
    a(f"ds_write_b128 v23, v[28:31] offset:{A2_H0}")
    a(f"ds_write_b128 v23, v[28:31] offset:{A2_H1}")
    a("s_mov_b64 exec, -1")
    a(f"v_mul_u32_u24 v7, {A2_CH+16}, v8")
    a("v_lshlrev_b32 v12, 3, v9")
    a("v_sub_u32 v7, v7, v12")
    a(f"v_add_u32 v7, {A2_X0 + 504}, v7")
    a("s_mov_b32 s57, 0xffff0000")
    a(f"s_waitcnt vmcnt({1 + (3 if int(OPT.get('apf', 1)) else 0)})")
    T.stamp(a, 2)
    for c in range(4):
        for m in range(4):
            for e in range(2):
                src = 32 + 2 * (2 * c + e) + (m >> 1)
                dst = 96 + (c * 4 + m) * 2 + e
                if m & 1:
                    a(f"v_and_b32 v{dst}, s57, v{src}")
                else:
                    a(f"v_lshlrev_b32 v{dst}, 16, v{src}")
    for c in range(4):
        for jj in range(7):
            a(f"v_lshlrev_b32 v{128+2*jj}, 16, v{52+4*jj+c}")
            a(f"v_and_b32 v{129+2*jj}, s57, v{52+4*jj+c}")
        for m in range(4):
            a(f"v_lshlrev_b32 v{142+2*m}, 16, v{80+4*m+c}")
            a(f"v_and_b32 v{143+2*m}, s57, v{80+4*m+c}")
        W = lambda m: f"v[{96+(c*4+m)*2}:{97+(c*4+m)*2}]"
        K = lambda jj: f"v[{128+2*jj}:{129+2*jj}]"
        for rr in range(4):
            o = 150 + 2 * rr
            a(f"v_pk_mul_f32 v[{o}:{o+1}], {W(3)}, {K(rr)}")
        for m in (2, 1, 0):
            for rr in range(4):
                o = 150 + 2 * rr
                a(f"v_pk_fma_f32 v[{o}:{o+1}], {W(m)}, {K(3+rr-m)}, v[{o}:{o+1}]")
        for rr in range(4):
            o = 150 + 2 * rr
            a(f"v_pk_mul_f32 v[{o}:{o+1}], v[{o}:{o+1}], v[{142+2*rr}:{143+2*rr}]")
        for e in range(2):
            ch = 2 * c + e
            d = 160 + 4 * (c & 1) + 2 * e
            a(f"v_cvt_pk_bf16_f32 v{d}, v{156+e}, v{154+e}")
            a(f"v_cvt_pk_bf16_f32 v{d+1}, v{152+e}, v{150+e}")
            a(f"ds_write_b64 v7, v[{d}:{d+1}] offset:{ch*T_RS}")
    a("v_lshrrev_b32 v12, 5, v1")
    a(f"v_mul_u32_u24 v12, {T_RS}, v12")
    a("v_and_b32 v13, 31, v1")
    a("v_lshlrev_b32 v13, 4, v13")
    a("v_add_u32 v12, v12, v13")
    a(f"s_mul_i32 s6, s3, {A2_CH+16}")
    a(f"s_add_u32 s6, s6, {A2_X0}")
    a("v_add_u32 v12, s6, v12")
    srd(a, 36, P_WS, TSZ, WS_XT)
    a("v_lshrrev_b32 v14, 5, v1")
    a("v_lshlrev_b32 v14, 12, v14")
    a("v_add_u32 v14, v14, v13")
    a("s_lshl_b32 s6, s73, 6")
    a("s_lshl_b32 s7, s3, 3")
    a("s_add_u32 s6, s6, s7")
    a("s_lshl_b32 s6, s6, 12")
    a("s_lshl_b32 s7, s72, 9")
    a("s_sub_u32 s7, 3584, s7")
    a("s_add_u32 s6, s6, s7")
    a("v_add_u32 v14, s6, v14")
    a("s_waitcnt lgkmcnt(0)")
    a("s_barrier")
    for m in range(4):
        a(f"ds_read_b128 v[{64+4*m}:{67+4*m}], v12 offset:{2*m*T_RS}")
    a("s_waitcnt lgkmcnt(0)")
    a("s_mov_b32 s6, 0")
    for m in range(4):
        a(f"buffer_store_dwordx4 v[{64+4*m}:{67+4*m}], v14, s[36:39], s6 offen {sc}")
        if m < 3:
            a("s_add_u32 s6, s6, 8192")
    T.stamp(a, 3)
    srd(a, 52, P_H, 640 * 4096)
    for i in range(4):
        a(f"s_add_u32 m0, s60, {A2_H0 + 448 + 1024*i}")
        a(f"s_add_u32 s6, s59, {1024*i}")
        a(f"buffer_load_dwordx4 v10, s[52:55], s6 offen {nh} lds")
    a("v_mov_b32 v13, 0")
    a(f"buffer_load_dwordx4 v[16:19], v13, s[52:55], s59 offen")
    a("s_lshr_b32 s6, s3, 1")
    a("s_cmp_eq_u32 s6, 1")
    a("s_cselect_b32 s58, s65, s64")
    a("s_cmp_eq_u32 s6, 2")
    a("s_cselect_b32 s58, s66, s58")
    a("s_cmp_eq_u32 s6, 3")
    a("s_cselect_b32 s58, s67, s58")
    a("s_and_b32 s6, s3, 1")
    a("s_lshl_b32 s6, s6, 4")
    a("s_lshr_b32 s58, s58, s6")
    a("s_lshl_b32 s58, s58, 16")
    a("s_waitcnt vmcnt(5)")
    a("v_readfirstlane_b32 s44, v250")
    a("s_add_u32 s44, s44, 1")
    a("s_barrier")
    lf = a.newlabel("AF")
    a("s_cmp_lg_u32 s3, 0")
    a(f"s_cbranch_scc1 {lf}")
    a("s_lshl_b32 s6, s73, 3")
    a("s_add_u32 s6, s6, s72")
    a("s_lshl_b32 s6, s6, 7")
    a(f"s_add_u32 s6, s6, {FL_A1}")
    a("v_mov_b32 v12, s6")
    a("v_mov_b32 v13, s44")
    a("s_mov_b64 exec, 1")
    a("buffer_store_dword v13, v12, s[48:51], 0 offen sc1")
    a("s_mov_b64 exec, -1")
    T.stamp(a, 4)
    a.label(lf)
    lp = a.newlabel("AP")
    a("s_cmp_lg_u32 s3, 0")
    a(f"s_cbranch_scc1 {lp}")
    a("s_lshl_b32 s6, s73, 10")
    a(f"s_add_u32 s6, s6, {FL_A1}")
    a("v_lshlrev_b32 v12, 7, v1")
    a("v_add_u32 v12, s6, v12")
    poll(a, 12, 8, 44, 48)
    a.label(lp)
    a("s_waitcnt lgkmcnt(0)")
    a("s_barrier")
    T.stamp(a, 5)
    for i in range(4):
        a(f"s_add_u32 m0, s60, {A2_X0 + 1024*i}")
        a(f"s_add_u32 s6, s59, {1024*i}")
        a(f"buffer_load_dwordx4 v10, s[36:39], s6 offen {sc} lds")
    a("s_mov_b64 exec, 0x1f")
    a(f"ds_write_b128 v23, v[28:31] offset:{A2_X0+4096}")
    a("s_mov_b64 exec, 0xf")
    a(f"ds_write_b128 v23, v[28:31] offset:{A2_X2+4096}")
    a("s_mov_b64 exec, -1")
    srd(a, 32, P_Q, TSZ)
    a("v_and_b32 v13, 15, v1")
    a("s_lshl_b32 s6, s72, 8")
    a("s_lshl_b32 s7, s3, 5")
    a("s_add_u32 s6, s6, s7")
    a("v_add_u32 v9, s6, v13")
    a("v_lshrrev_b32 v13, 4, v1")
    a("v_lshlrev_b32 v13, 4, v13")
    a("s_lshl_b32 s61, s73, 7")
    a("v_add_u32 v8, s61, v13")
    a("v_mul_u32_u24 v14, 1280, v9")
    a("v_add_u32 v14, v14, v8")
    a("s_movk_i32 s6, 20480")
    a(f"buffer_load_dwordx4 v[192:195], v14, s[32:35], 0 offen {na}")
    a(f"buffer_load_dwordx4 v[196:199], v14, s[32:35], 0 offen offset:64 {na}")
    a(f"buffer_load_dwordx4 v[200:203], v14, s[32:35], s6 offen {na}")
    a(f"buffer_load_dwordx4 v[204:207], v14, s[32:35], s6 offen offset:64 {na}")
    a("s_waitcnt vmcnt(8)")
    a("v_lshlrev_b32 v21, 16, v16")
    a("v_add_f32 v21, s58, v21")
    a("v_cvt_pk_bf16_f32 v21, v21, v21")
    a("v_mov_b32 v22, s60")
    a("s_mov_b64 exec, 1")
    a(f"ds_write_b16 v22, v21 offset:{A2_H0+448}")
    a("s_mov_b64 exec, -1")
    a("s_waitcnt lgkmcnt(0)")
    for i in range(4):
        a(f"ds_read_b128 v[{64+8*i}:{67+8*i}], v23 offset:{A2_H0+448+1024*i}")
        a(f"ds_read_b32 v{68+8*i}, v23 offset:{A2_H0+448-4+1024*i}")
    for i in range(4):
        b = 64 + 8 * i
        a(f"s_waitcnt lgkmcnt({2*(3-i)})")
        a(f"v_alignbit_b32 v{b+7}, v{b+3}, v{b+2}, 16")
        a(f"v_alignbit_b32 v{b+6}, v{b+2}, v{b+1}, 16")
        a(f"v_alignbit_b32 v{b+5}, v{b+1}, v{b}, 16")
        a(f"v_alignbit_b32 v{b+4}, v{b}, v{b+4}, 16")
        a(f"ds_write_b128 v23, v[{b+4}:{b+7}] offset:{A2_H1+448+1024*i}")
    a("v_and_b32 v10, 15, v1")
    a("v_lshrrev_b32 v11, 4, v1")
    a("v_lshrrev_b32 v12, 1, v10")
    a("v_lshlrev_b32 v12, 6, v12")
    a("v_lshlrev_b32 v13, 4, v11")
    a("v_add_u32 v12, v12, v13")
    a("v_and_b32 v13, 1, v10")
    a(f"v_mov_b32 v14, {A2_H1}")
    a(f"v_mov_b32 v15, {A2_H0}")
    a("v_cmp_eq_u32 vcc, 1, v13")
    a("v_lshrrev_b32 v13, 1, v10")
    a("v_and_b32 v13, 1, v13")
    a("v_cndmask_b32 v14, v14, v15, vcc")
    a("v_add3_u32 v2, v12, v14, s60")
    a("v_lshlrev_b32 v12, 3, v13")
    a("v_lshrrev_b32 v14, 2, v10")
    a("v_lshlrev_b32 v14, 4, v14")
    a("v_add_u32 v12, v12, v14")
    a("v_lshlrev_b32 v14, 4, v11")
    a("v_sub_u32 v12, v14, v12")
    a(f"v_add_u32 v12, {2*1820 - 512*7}, v12")
    a(f"v_mov_b32 v14, {A2_X2}")
    a(f"v_mov_b32 v15, {A2_X0}")
    a("v_cndmask_b32 v14, v14, v15, vcc")
    a("v_add3_u32 v3, v12, v14, s60")
    for i in range(32):
        a(f"v_mov_b32 v{32+i}, 0")
    a("s_waitcnt vmcnt(4)")
    for i in range(4):
        for d in range(4):
            a(f"ds_read_b32 v{96+4*i+d}, v23 offset:{A2_X0+1024*i+4*(d+1)}")
    for i in range(4):
        a(f"s_waitcnt lgkmcnt({4*(3-i)})")
        a(f"ds_write_b128 v23, v[{96+4*i}:{99+4*i}] offset:{A2_X2+1024*i}")
    a("s_waitcnt lgkmcnt(0)")
    T.stamp(a, 6)

    def reads(A, B):
        r = []
        for aa in range(8):
            r.append(f"ds_read_b128 v[{A+4*aa}:{A+4*aa+3}], v2 offset:{512*aa}")
            r.append(f"ds_read_b64 v[{B+4*aa}:{B+4*aa+1}], v3 offset:{512*(7-aa)}")
            r.append(f"ds_read_b64 v[{B+4*aa+2}:{B+4*aa+3}], v3 offset:{512*(7-aa)+8}")
        r.append("v_add_u32 v2, 64, v2")
        r.append("v_add_u32 v3, 64, v3")
        return r

    def mfmas(A, B):
        r = []
        for t in range(8):
            for aa in range(t + 1):
                u = t - aa
                ac = 32 + 4 * t
                r.append(f"v_mfma_f32_16x16x32_bf16 v[{ac}:{ac+3}], v[{A+4*aa}:{A+4*aa+3}], v[{B+4*u}:{B+4*u+3}], v[{ac}:{ac+3}]")
        return r

    def interleave(m, r):
        for i, x in enumerate(m):
            a(x)
            if i < len(r):
                a(r[i])

    for x in reads(64, 96):
        a(x)
    a("s_mov_b32 s40, 0")
    loop, last = a.newlabel("A2L"), a.newlabel("A2E")
    a.label(loop)
    a("s_waitcnt lgkmcnt(0)")
    interleave(mfmas(64, 96), reads(128, 160))
    a("s_waitcnt lgkmcnt(0)")
    a("s_cmp_eq_u32 s40, 3")
    a(f"s_cbranch_scc1 {last}")
    interleave(mfmas(128, 160), reads(64, 96))
    a("s_add_u32 s40, s40, 1")
    a(f"s_branch {loop}")
    a.label(last)
    for x in mfmas(128, 160):
        a(x)
    T.stamp(a, 7)
    a("v_lshlrev_b32 v12, 5, v11")
    a("v_add_u32 v12, v12, v10")
    a("v_lshlrev_b32 v12, 2, v12")
    a("v_add_u32 v12, s60, v12")
    srd(a, 36, P_WS, TSZ, WS_YT)
    a("v_lshlrev_b32 v15, 4, v1")
    a("v_add_u32 v13, s60, v15")
    for t in range(8):
        ac = 32 + 4 * t
        d = 64 + 2 * t
        a(f"v_cvt_pk_bf16_f32 v{d}, v{ac}, v{ac+1}")
        a(f"v_cvt_pk_bf16_f32 v{d+1}, v{ac+2}, v{ac+3}")
        a(f"ds_write_b32 v12, v{d} offset:{512*t}")
        a(f"ds_write_b32 v12, v{d+1} offset:{512*t+64}")
    a("s_waitcnt lgkmcnt(0)")
    for i in range(4):
        a(f"ds_read_b128 v[{80+4*i}:{83+4*i}], v13 offset:{1024*i}")
    a("s_waitcnt lgkmcnt(0)")
    for i in range(4):
        a(f"s_add_u32 s6, s59, {1024*i}")
        a(f"buffer_store_dwordx4 v[{80+4*i}:{83+4*i}], v15, s[36:39], s6 offen {sc}")
    a("v_lshrrev_b32 v16, 5, v0")
    a("v_and_b32 v17, 31, v0")
    a("v_lshlrev_b32 v17, 4, v17")
    a("s_lshl_b32 s6, s73, 6")
    a("v_add_u32 v18, s6, v16")
    a("v_lshlrev_b32 v18, 12, v18")
    a("s_lshl_b32 s6, s72, 9")
    a("v_add3_u32 v18, v18, v17, s6")
    a(f"v_mul_u32_u24 v16, {Y_RS}, v16")
    a("v_add_u32 v16, v16, v17")
    a("s_waitcnt vmcnt(0)")
    a("s_barrier")
    lp = a.newlabel("AP")
    a("s_cmp_lg_u32 s3, 0")
    a(f"s_cbranch_scc1 {lp}")
    a("s_lshl_b32 s6, s73, 3")
    a("s_add_u32 s6, s6, s72")
    a("s_lshl_b32 s6, s6, 7")
    a(f"s_add_u32 s6, s6, {FL_A2}")
    a("v_mov_b32 v12, s6")
    a("v_mov_b32 v13, s44")
    a("s_mov_b64 exec, 1")
    a("buffer_store_dword v13, v12, s[48:51], 0 offen sc1")
    a("s_mov_b64 exec, -1")
    T.stamp(a, 8)
    a("s_lshl_b32 s6, s73, 10")
    a(f"s_add_u32 s6, s6, {FL_A2}")
    a("v_lshlrev_b32 v12, 7, v1")
    a("v_add_u32 v12, s6, v12")
    poll(a, 12, 8, 44, 48)
    le = a.newlabel("EU")
    a("s_cmp_lg_u32 s72, 0")
    a(f"s_cbranch_scc1 {le}")
    a("v_mov_b32 v11, s44")
    a("s_mov_b64 exec, 1")
    a("buffer_store_dword v11, v251, s[48:51], 0 offen sc1")
    a("s_mov_b64 exec, -1")
    a.label(le)
    a.label(lp)
    a("s_barrier")
    T.stamp(a, 9)
    a("s_mov_b32 s6, 0")
    for m in range(4):
        a(f"buffer_load_dwordx4 v[{64+4*m}:{67+4*m}], v18, s[36:39], s6 offen {sc}")
        if m < 3:
            a("s_add_u32 s6, s6, 65536")
    a("v_lshrrev_b32 v12, 4, v1")
    a("v_lshlrev_b32 v12, 3, v12")
    a("v_lshrrev_b32 v13, 2, v1")
    a("v_and_b32 v13, 3, v13")
    a("v_add_u32 v12, v12, v13")
    a(f"v_mul_u32_u24 v12, {Y_RS}, v12")
    a("v_and_b32 v13, 3, v1")
    a("v_lshlrev_b32 v13, 3, v13")
    a("s_lshl_b32 s6, s3, 6")
    a("v_add3_u32 v12, v12, v13, s6")
    srd(a, 32, P_OUT, 2048 * 2560)
    a("v_mul_u32_u24 v15, 2560, v9")
    a("v_add_u32 v15, v15, v8")
    for m in range(4):
        a(f"s_waitcnt vmcnt({3-m})")
        a(f"ds_write_b128 v16, v[{64+4*m}:{67+4*m}] offset:{16*Y_RS*m}")
    a("s_waitcnt lgkmcnt(0)")
    a("s_barrier")
    for m in range(4):
        off = (m & 1) * 32 * Y_RS + (m >> 1) * 32
        a(f"ds_read_b64_tr_b16 v[{64+4*m}:{65+4*m}], v12 offset:{off}")
        a(f"ds_read_b64_tr_b16 v[{66+4*m}:{67+4*m}], v12 offset:{off + 4*Y_RS}")
    a("s_waitcnt lgkmcnt(0)")
    no = OPT["nt_out"]
    a("s_mov_b32 s7, 40960")
    for m in range(4):
        for i in range(4):
            y = 64 + 4 * m + i
            q = 192 + 4 * m + i
            t = 80 + 4 * (i & 1)
            a(f"v_lshlrev_b32 v{t}, 16, v{y}")
            a(f"v_and_b32 v{t+1}, s57, v{y}")
            a(f"v_lshlrev_b32 v{t+2}, 16, v{q}")
            a(f"v_and_b32 v{t+3}, s57, v{q}")
            a(f"v_pk_mul_f32 v[{t}:{t+1}], v[{t}:{t+1}], v[{t+2}:{t+3}]")
            a(f"v_cvt_pk_bf16_f32 v{y}, v{t}, v{t+1}")
        so = "s7" if m >= 2 else "0"
        of = " offset:64" if (m & 1) else ""
        a(f"buffer_store_dwordx4 v[{64+4*m}:{67+4*m}], v15, s[32:35], {so} offen{of} {no}")
    T.stamp(a, 10)


def kdesc(name, vgpr=256, sgpr=102):
    return f""".amdhsa_kernel {name}
  .amdhsa_next_free_vgpr {vgpr}
  .amdhsa_next_free_sgpr {sgpr}
  .amdhsa_accum_offset {vgpr}
  .amdhsa_group_segment_fixed_size 0
  .amdhsa_kernarg_size 96
  .amdhsa_user_sgpr_count 2
  .amdhsa_user_sgpr_kernarg_segment_ptr 1
  .amdhsa_system_sgpr_workgroup_id_x 1
  .amdhsa_float_denorm_mode_32 3
  .amdhsa_float_denorm_mode_16_64 3
.end_amdhsa_kernel
"""


def gen(ts=False):
    out = "; concat_heads( H3-style ssm conv , sliding local dilated attention ) -- hand-written streams emitted by a python generator\n"
    out += "; @launch grid=(256,1,1) block=(512,1,1) lds=163840\n"
    out += '.amdgcn_target "amdgcn-amd-amdhsa--gfx950"\n.text\n'
    a = Asm()
    T = TS(ts)
    T.init(a)
    T.stamp(a, 0)
    if OPT.get("dbgt"):
        a("s_memrealtime s[96:97]")
        a("s_waitcnt lgkmcnt(0)")
        a("s_mov_b32 s79, s96")
    a("s_cmp_ge_u32 s2, 256")
    a("s_cbranch_scc1 K_END")
    a("s_load_dwordx16 s[8:23], s[0:1], 0")
    a("s_load_dwordx8 s[24:31], s[0:1], 64")
    a("v_lshrrev_b32 v2, 6, v0")
    a("v_and_b32 v1, 63, v0")
    a("s_and_b32 s4, s2, 7")
    a("v_readfirstlane_b32 s3, v2")
    a("s_lshr_b32 s5, s2, 3")
    a("s_waitcnt lgkmcnt(0)")
    role_decode(a)
    if OPT.get("only") == "A":
        a("s_branch K_END")
    b_program(a, T)
    a("s_branch K_FIN")
    a.label("A_ROLE")
    if OPT.get("only") == "B":
        a("s_branch K_END")
    a_program(a, T)
    a.label("K_FIN")
    if OPT.get("dbgt"):
        a("s_waitcnt vmcnt(0)")
        a("s_memrealtime s[96:97]")
        a("s_waitcnt lgkmcnt(0)")
        lab = a.newlabel("DBG")
        a("s_cmp_lg_u32 s3, 0")
        a(f"s_cbranch_scc1 {lab}")
        a("s_and_b32 s6, s2, 0x3f")
        a("s_cmp_lg_u32 s6, 0")
        a(f"s_cbranch_scc1 {lab}")
        srd(a, 92, P_DBG, 256)
        a("s_lshr_b32 s6, s2, 6")
        a("s_lshl_b32 s6, s6, 3")
        a("v_mov_b32 v2, s6")
        a("v_mov_b32 v4, s79")
        a("v_mov_b32 v5, s96")
        a("s_mov_b64 exec, 1")
        a("buffer_store_dwordx2 v[4:5], v2, s[92:95], 0 offen")
        a("s_waitcnt vmcnt(0)")
        a("s_mov_b64 exec, -1")
        a.label(lab)
    if ts:
        a("s_waitcnt vmcnt(0)")
        T.stamp(a, 15)
        T.flush(a)
    a.label("K_END")
    a("s_endpgm")
    out += f".globl {KNAME}\n.p2align 8\n.type {KNAME},@function\n{KNAME}:\n" + a.text()
    out += '.section .rodata,"a"\n.p2align 6\n' + kdesc(KNAME)
    return out


if __name__ == "__main__":
    mode = sys.argv[1] if len(sys.argv) > 1 else "plain"
    dst = sys.argv[2] if len(sys.argv) > 2 else "k4.s"
    for kv in sys.argv[3:]:
        k, v = kv.split("=")
        OPT[k] = v if k != "spin" else int(v)
    if mode == "tc":
        TS.INSTR = "s_memtime"
    open(dst, "w").write(gen(mode in ("ts", "tc")))
    print("wrote", dst)
```

```python
import sys

KNAME = "concat_heads__ssm_conv_h3__sliding_local_dilated__prompt_kernel"
TSZ = 640 * 4096
WS_OW = 0x0
WS_XT = 0x280000
WS_YT = 0x500000
WS_FL = 0x780000
FL_B = 0x0
FL_A1 = 0x6000
FL_A2 = 0x9000
FL_EB = 0xC000
FL_EA = 0xD000
WS_TS = 0x800000
OOB = 0x80000000

OPT = dict(nopf0=1, b2dma=1, psleep=2, sc_oload="sc1", sc_ostore="sc1", nt_pf="", nt_a="", nt_h="", nt_x="", nt_w="", nt_out="", sc="sc1", spin=1 << 20)


class Asm:
    def __init__(self):
        self.l = []
        self.uid = 0

    def __call__(self, s=""):
        for line in s.split("\n"):
            line = line.strip()
            if line:
                self.l.append("    " + line)

    def label(self, name):
        self.l.append(name + ":")

    def newlabel(self, p="L"):
        self.uid += 1
        return f"{p}_{self.uid}"

    def text(self):
        return "\n".join(self.l) + "\n"


P_Q, P_K, P_V, P_SK, P_H, P_SD, P_X, P_W, P_WO, P_OUT, P_DBG, P_WS = [8 + 2 * i for i in range(12)]


def srd(a, dst, ptr, nbytes, off=0):
    if off:
        a(f"s_add_u32 s{dst}, s{ptr}, 0x{off:x}")
        a(f"s_addc_u32 s{dst+1}, s{ptr+1}, 0")
    else:
        a(f"s_mov_b32 s{dst}, s{ptr}")
        a(f"s_mov_b32 s{dst+1}, s{ptr+1}")
    a(f"s_mov_b32 s{dst+2}, 0x{nbytes:x}")
    a(f"s_mov_b32 s{dst+3}, 0x00020000")


class TS:
    INSTR = "s_memrealtime"

    def __init__(self, on):
        self.on = on
        self.n = 0

    def stamp(self, a, idx):
        if not self.on:
            return
        if OPT.get("stagets") and 3 <= idx < 14:
            return
        a(f"{TS.INSTR} s[96:97]")
        a("s_waitcnt lgkmcnt(0)")
        a(f"s_mov_b32 s{80+idx}, s96")

    def init(self, a):
        if not self.on:
            return
        for i in range(16):
            a(f"s_mov_b32 s{80+i}, 0")

    def flush(self, a):
        if not self.on:
            return
        srd(a, 96, P_WS, 0x40000, WS_TS)
        a("s_mov_b64 exec, 1")
        a("s_lshl_b32 s7, s2, 3")
        a("s_add_u32 s7, s7, s3")
        a("s_lshl_b32 s7, s7, 6")
        a("v_mov_b32 v3, s7")
        for i in range(16):
            a(f"v_mov_b32 v2, s{80+i}")
            a(f"buffer_store_dword v2, v3, s[96:99], 0 offen offset:{4*i}")
        a("s_waitcnt vmcnt(0)")
        a("s_mov_b64 exec, -1")


NRT = 13
B1_XSZ = NRT * 16 * 128
B1_STAGE = B1_XSZ + 16384
B1_NB = 3
QKV_RS = 400
O_LDS = 83200
def WSLOT(p):
    if p < 5:
        return 102400 + 5120 * p
    if p < 11:
        return 133120 + 5120 * (p - 5)
    if p < 19:
        return 5120 * (p - 11)
    return 133120


B2_O3 = 102400
B2_O = 40960
B2_OST = 30720
ACC = 16
XA, XB, WA, WB = 120, 172, 224, 232


def role_decode(a):
    a("s_cmp_lt_u32 s4, 2")
    a("s_cselect_b32 s70, 16, 24")
    a("s_cmp_ge_u32 s5, s70")
    a("s_cbranch_scc1 A_ROLE")


def b_decode(a):
    a("s_cmp_eq_u32 s4, 1")
    a("s_cselect_b32 s71, 1, 0")
    a("s_cmp_ge_u32 s4, 5")
    a("s_cselect_b32 s71, 1, s71")
    a("s_cselect_b32 s7, 3, 0")
    a("s_sub_u32 s6, s4, 2")
    a("s_sub_u32 s6, s6, s7")
    a("s_mul_i32 s6, s6, 3")
    a("s_add_u32 s6, s6, 2")
    a("s_cmp_lt_u32 s4, 2")
    a("s_cselect_b32 s6, 0, s6")
    a("s_lshr_b32 s7, s5, 3")
    a("s_add_u32 s60, s6, s7")
    a("s_and_b32 s68, s5, 7")
    a("s_lshl_b32 s61, s71, 3")
    a("s_add_u32 s61, s61, s68")
    a("s_lshl_b32 s67, s60, 1")
    a("s_add_u32 s67, s67, s71")


def pf_x_addr(a, dst):
    a("v_and_b32 v10, 31, v1")
    a("s_mul_i32 s6, s68, 26")
    a("s_mul_i32 s7, s60, 192")
    a("s_add_u32 s6, s6, s7")
    a("s_sub_u32 s6, s6, 16")
    a("v_add_u32 v11, s6, v10")
    a("s_movk_i32 s7, 1280")
    a("v_mul_lo_u32 v11, v11, s7")
    a("v_lshrrev_b32 v12, 5, v1")
    a("v_lshlrev_b32 v12, 7, v12")
    a("v_add_u32 v11, v11, v12")
    a("v_cmp_gt_u32 vcc, 26, v10")
    a(f"v_mov_b32 v12, 0x{OOB:x}")
    a("s_nop 0")
    a(f"v_cndmask_b32 v{dst}, v12, v11, vcc")


def pf_w_addr(a, dst):
    a("s_cmp_eq_u32 s70, 16")
    a("s_cselect_b32 s6, 60, 40")
    a("s_mul_i32 s7, s5, s6")
    a("v_add_u32 v10, s7, v1")
    a("v_mul_u32_u24 v11, 4370, v10")
    a("v_lshrrev_b32 v11, 16, v11")
    a("v_mul_u32_u24 v12, 15, v11")
    a("v_sub_u32 v12, v10, v12")
    a("v_mul_u32_u24 v13, 52, v12")
    a("v_lshrrev_b32 v13, 8, v13")
    a("v_mul_u32_u24 v14, 5, v13")
    a("v_sub_u32 v14, v12, v14")
    a("v_mul_u32_u24 v11, 3840, v11")
    a("v_mul_u32_u24 v13, 1280, v13")
    a("v_lshlrev_b32 v14, 7, v14")
    a("v_add3_u32 v11, v11, v13, v14")
    a("s_mul_i32 s7, s71, 640")
    a("v_add_u32 v11, s7, v11")
    a("v_cmp_gt_u32 vcc, s6, v1")
    a(f"v_mov_b32 v12, 0x{OOB:x}")
    a("s_nop 0")
    a(f"v_cndmask_b32 v{dst}, v12, v11, vcc")


def b_initial_prefetch(a):
    npf = OPT["nt_pf"]
    srd(a, 32, P_X, TSZ)
    srd(a, 36, P_W, 640 * 3840)
    l1 = a.newlabel("IP")
    a("s_cmp_eq_u32 s3, 3")
    a(f"s_cbranch_scc1 {l1}")
    pf_w_addr(a, 2)
    a("s_mul_i32 s6, s3, 245760")
    a(f"buffer_load_dword v254, v2, s[36:39], s6 offen {npf}")
    a("s_cmp_eq_u32 s3, 2")
    a(f"s_cbranch_scc1 {l1}")
    pf_x_addr(a, 3)
    a("s_lshl_b32 s6, s3, 8")
    a(f"buffer_load_dword v255, v3, s[32:35], s6 offen {npf}")
    a.label(l1)


def b1_loader_setup(a):
    srd(a, 32, P_X, TSZ)
    srd(a, 36, P_W, 640 * 3840)
    a("s_sub_u32 s62, s3, 4")
    a("v_lshrrev_b32 v10, 3, v1")
    a("s_lshl_b32 s6, s62, 3")
    a("v_add_u32 v10, s6, v10")
    a("v_lshrrev_b32 v11, 1, v10")
    a("v_and_b32 v11, 7, v11")
    a("v_and_b32 v12, 7, v1")
    a("v_xor_b32 v11, v11, v12")
    a("v_lshlrev_b32 v11, 4, v11")
    a("s_mul_i32 s6, s60, 192")
    a("s_sub_u32 s6, s6, 16")
    a("v_add_u32 v10, s6, v10")
    a("s_movk_i32 s7, 1280")
    a("v_mul_lo_u32 v10, v10, s7")
    a("v_add_u32 v2, v10, v11")
    a("v_add_u32 v3, 40960, v2")
    a("v_lshrrev_b32 v10, 4, v1")
    a("v_and_b32 v12, 15, v1")
    a("s_mul_i32 s63, s61, 80")
    for which, dst in ((0, 5), (1, 6)):
        a("v_lshlrev_b32 v11, 1, v10")
        if which:
            a("v_add_u32 v11, 8, v11")
        a("v_xor_b32 v11, v11, v12")
        a("v_mul_u32_u24 v13, 52, v11")
        a("v_lshrrev_b32 v13, 8, v13")
        a("v_mul_u32_u24 v14, 5, v13")
        a("v_sub_u32 v14, v11, v14")
        a("v_mul_u32_u24 v13, 1280, v13")
        a("v_lshlrev_b32 v14, 4, v14")
        a("v_add3_u32 v13, v13, v14, s63")
        if OPT.get("walign"):
            a("v_lshlrev_b32 v13, 4, v11")
            a("s_lshl_b32 s6, s61, 7")
            a("v_add_u32 v13, s6, v13")
        a("s_lshl_b32 s6, s62, 4")
        if which:
            a("s_add_u32 s6, s6, 8")
        a("v_add_u32 v14, s6, v10")
        a("v_mul_u32_u24 v14, 3840, v14")
        a(f"v_add_u32 v{dst}, v14, v13")
        a("v_cmp_eq_u32 vcc, 15, v11")
        a(f"v_mov_b32 v13, 0x{OOB:x}")
        a("s_nop 0")
        a(f"v_cndmask_b32 v{dst}, v{dst}, v13, vcc")
    a("s_mov_b32 s41, 0")
    a("s_mov_b32 s42, 0")
    a("s_mov_b32 s43, 0")


def b1_issue_stage(a):
    nx, nw = OPT["nt_x"], OPT["nt_w"]
    a("s_lshl_b32 s6, s62, 10")
    a("s_add_u32 s6, s6, s43")
    a("s_mov_b32 m0, s6")
    a("s_mov_b32 s7, s41")
    a(f"buffer_load_dwordx4 v2, s[32:35], s41 offen {nx} lds")
    for m in range(1, 6):
        a(f"s_add_u32 m0, s6, {4096*m}")
        if m > 1:
            a("s_add_u32 s7, s7, 40960")
        else:
            a("s_nop 0")
        a(f"buffer_load_dwordx4 v3, s[32:35], s7 offen {nx} lds")
    l1 = a.newlabel("IS")
    a("s_cmp_lt_u32 s62, 2")
    a(f"s_cbranch_scc0 {l1}")
    a(f"s_add_u32 m0, s6, {4096*6}")
    a("s_add_u32 s7, s7, 40960")
    a(f"buffer_load_dwordx4 v3, s[32:35], s7 offen {nx} lds")
    a.label(l1)
    a("s_lshl_b32 s7, s62, 12")
    a("s_add_u32 s7, s7, s43")
    a(f"s_add_u32 s7, s7, {B1_XSZ}")
    a("s_mov_b32 m0, s7")
    a("s_add_u32 s46, s42, 15360")
    a(f"buffer_load_dwordx4 v5, s[36:39], s42 offen {nw} lds")
    a("s_add_u32 m0, s7, 1024")
    a("s_nop 0")
    a(f"buffer_load_dwordx4 v5, s[36:39], s46 offen {nw} lds")
    a("s_add_u32 m0, s7, 2048")
    a("s_nop 0")
    a(f"buffer_load_dwordx4 v6, s[36:39], s42 offen {nw} lds")
    a("s_add_u32 m0, s7, 3072")
    a("s_nop 0")
    a(f"buffer_load_dwordx4 v6, s[36:39], s46 offen {nw} lds")
    a("s_add_u32 s41, s41, 128")
    a("s_add_u32 s42, s42, 245760")
    a(f"s_add_u32 s43, s43, {B1_STAGE}")
    a(f"s_cmp_ge_u32 s43, {B1_STAGE*B1_NB}")
    a("s_cselect_b32 s43, 0, s43")


def lwait(a, nb, extra):
    l1, l2 = a.newlabel("LW"), a.newlabel("LW")
    a("s_cmp_lt_u32 s62, 2")
    a(f"s_cbranch_scc0 {l1}")
    a(f"s_waitcnt vmcnt({11*nb+extra})")
    a(f"s_branch {l2}")
    a.label(l1)
    a(f"s_waitcnt vmcnt({10*nb+extra})")
    a.label(l2)


def wo_dma_addr(a):
    for j in range(5):
        a(f"v_add_u32 v10, {64*j}, v1")
        a("v_mul_u32_u24 v11, 6554, v10")
        a("v_lshrrev_b32 v11, 16, v11")
        a("v_mul_u32_u24 v12, 10, v11")
        a("v_sub_u32 v12, v10, v12")
        a("v_lshrrev_b32 v13, 4, v11")
        a("v_lshlrev_b32 v13, 2, v13")
        a("v_and_b32 v14, 3, v11")
        a("v_add_u32 v13, v13, v14")
        a("v_lshrrev_b32 v14, 2, v11")
        a("v_and_b32 v14, 3, v14")
        a("v_lshlrev_b32 v14, 3, v14")
        a("v_add_u32 v13, v13, v14")
        a("v_mul_u32_u24 v13, 1280, v13")
        a("v_lshlrev_b32 v12, 4, v12")
        a("s_mul_i32 s6, s68, 160")
        a(f"v_add3_u32 v{230+j}, v13, v12, s6")


def wo_dma_slots(a, first, n):
    base = WSLOT(first) - first * 5120
    for p in range(first, first + n - 1):
        assert WSLOT(p + 1) - WSLOT(p) == 5120
    a(f"s_add_u32 s47, s62, {first}")
    loop, done = a.newlabel("WO"), a.newlabel("WO")
    a.label(loop)
    a(f"s_cmp_ge_u32 s47, {first+n}")
    a(f"s_cbranch_scc1 {done}")
    a("s_mul_i32 s6, s47, 52")
    a("s_lshr_b32 s6, s6, 8")
    a("s_mul_i32 s7, s6, 5")
    a("s_sub_u32 s7, s47, s7")
    a("s_add_u32 s6, s6, s68")
    a("s_and_b32 s6, s6, 3")
    a("s_mul_i32 s6, s6, 5")
    a("s_add_u32 s7, s7, s6")
    a("s_mul_i32 s7, s7, 40960")
    a("s_mul_i32 s6, s47, 5120")
    a(f"s_add_u32 s6, s6, 0x{base & 0xffffffff:x}")
    for j in range(5):
        a(f"s_add_u32 m0, s6, {1024*j}")
        a("s_nop 0")
        a(f"buffer_load_dwordx4 v{230+j}, s[56:59], s7 offen lds")
    a("s_add_u32 s47, s47, 4")
    a(f"s_branch {loop}")
    a.label(done)


def NPFL():
    return 0 if int(OPT.get('apf', 1)) else 3


def b_later_prefetch(a):
    npf = OPT["nt_pf"]
    a(f"v_mov_b32 v4, 0x{OOB:x}")
    a("s_add_u32 s6, s62, 3")
    a("s_mul_i32 s6, s6, 245760")
    a(f"buffer_load_dword v235, v8, s[36:39], s6 offen {npf}")
    a("s_cmp_lt_u32 s62, 3")
    a("s_cselect_b64 vcc, -1, 0")
    a("v_cndmask_b32 v10, v4, v9, vcc")
    a("s_add_u32 s6, s62, 2")
    a("s_lshl_b32 s6, s6, 8")
    a(f"buffer_load_dword v236, v10, s[32:35], s6 offen {npf}")
    a("v_cndmask_b32 v10, v4, v8, vcc")
    a("s_add_u32 s6, s62, 7")
    a("s_mul_i32 s6, s6, 245760")
    a(f"buffer_load_dword v237, v10, s[36:39], s6 offen {npf}")


def b1_loader(a, T):
    if OPT.get("lprio"):
        a("s_setprio 2")
    b1_loader_setup(a)
    if NPFL():
        pf_w_addr(a, 8)
        pf_x_addr(a, 9)
    def late_setup():
        srd(a, 56, P_WO, 640 * 1280)
        wo_dma_addr(a)
        att_setup(a)
        o_store_setup(a)
        srd(a, 48, P_WS, TSZ, WS_OW)
    if not int(OPT.get("nopf0", 0)):
        late_setup()
        a("s_barrier")
    a("s_mov_b32 s40, 0")
    l0 = a.newlabel("LP")
    a.label(l0)
    b1_issue_stage(a)
    a("s_add_u32 s40, s40, 1")
    lP = a.newlabel("LP")
    a("s_cmp_eq_u32 s40, 2")
    a(f"s_cbranch_scc0 {lP}")
    T.stamp(a, 1)
    if int(OPT.get("nopf0", 0)):
        late_setup()
    lwait(a, 1, 0)
    a("s_barrier")
    a.label(lP)
    a("s_cmp_lt_u32 s40, 3")
    a(f"s_cbranch_scc1 {l0}")
    if NPFL():
        b_later_prefetch(a)
    a("s_mov_b32 s40, 0")
    loop = a.newlabel("LL")
    lA, lB, lC, lD, lW = [a.newlabel("LLx") for _ in range(5)]
    a.label(loop)
    a("s_cmp_lt_u32 s40, 2")
    a(f"s_cbranch_scc1 {lA}")
    a("s_cmp_lt_u32 s40, 8")
    a(f"s_cbranch_scc1 {lB}")
    a("s_cmp_eq_u32 s40, 8")
    a(f"s_cbranch_scc1 {lC}")
    a(f"s_branch {lW}")
    a.label(lA)
    lwait(a, 1, NPFL())
    a(f"s_branch {lW}")
    a.label(lB)
    lwait(a, 1, 0)
    a(f"s_branch {lW}")
    a.label(lC)
    a("s_waitcnt vmcnt(5)")
    a.label(lW)
    a("s_barrier")
    skip, s7, s8, nxt = a.newlabel("LLS"), a.newlabel("LL7"), a.newlabel("LL8"), a.newlabel("LLN")
    a("s_cmp_ge_u32 s40, 7")
    a(f"s_cbranch_scc1 {skip}")
    b1_issue_stage(a)
    a(f"s_branch {nxt}")
    a.label(skip)
    a("s_cmp_eq_u32 s40, 7")
    a(f"s_cbranch_scc0 {s8}")
    wo_dma_slots(a, 5, 6)
    a(f"s_branch {nxt}")
    a.label(s8)
    s9 = a.newlabel("LL9")
    a("s_cmp_eq_u32 s40, 8")
    a(f"s_cbranch_scc0 {s9}")
    wo_dma_slots(a, 0, 5)
    a(f"s_branch {nxt}")
    a.label(s9)
    for rep in range(2):
        a(f"s_add_u32 s6, s68, {2+rep}")
        a("s_and_b32 s6, s6, 3")
        a("s_mul_i32 s6, s6, 160")
        a("s_mul_i32 s7, s62, 40")
        a("s_add_u32 s6, s6, s7")
        a("v_add_u32 v10, s6, v1")
        a("v_mul_u32_u24 v10, 1280, v10")
        a("s_mul_i32 s6, s68, 160")
        a("s_and_b32 s6, s6, 0xffffff80")
        a("v_add_u32 v10, s6, v10")
        a(f"v_mov_b32 v11, 0x{OOB:x}")
        a("v_cmp_gt_u32 vcc, 40, v1")
        a("s_nop 1")
        a("v_cndmask_b32 v10, v11, v10, vcc")
        a(f"buffer_load_dword v{235+2*rep}, v10, s[56:59], 0 offen")
        a(f"buffer_load_dword v{236+2*rep}, v10, s[56:59], 0 offen offset:128")
    a.label(nxt)
    a("s_add_u32 s40, s40, 1")
    a("s_cmp_lt_u32 s40, 10")
    a(f"s_cbranch_scc1 {loop}")


def b1_compute(a, T):
    a("v_and_b32 v10, 15, v1")
    a("v_lshrrev_b32 v11, 4, v1")
    a("v_lshrrev_b32 v12, 1, v10")
    a("v_xor_b32 v12, v12, v11")
    a("v_lshlrev_b32 v12, 4, v12")
    a("v_lshlrev_b32 v10, 7, v10")
    a("v_add_u32 v2, v10, v12")
    a("v_xor_b32 v3, 64, v2")
    a("v_lshrrev_b32 v10, 2, v1")
    a("v_and_b32 v10, 3, v10")
    a("v_and_b32 v12, 3, v1")
    a("v_lshlrev_b32 v13, 3, v11")
    a("v_add_u32 v13, v13, v10")
    a("v_lshlrev_b32 v13, 8, v13")
    a("v_and_b32 v14, 1, v11")
    a("v_lshlrev_b32 v14, 3, v14")
    a("v_lshlrev_b32 v10, 1, v10")
    a("v_add_u32 v14, v14, v10")
    a("v_lshrrev_b32 v15, 1, v12")
    a("s_lshl_b32 s6, s3, 2")
    a("v_add_u32 v15, s6, v15")
    a("v_xor_b32 v15, v15, v14")
    a("v_lshlrev_b32 v15, 4, v15")
    a("v_and_b32 v12, 1, v12")
    a("v_lshlrev_b32 v12, 3, v12")
    a("v_add3_u32 v13, v13, v15, v12")
    a(f"v_add_u32 v4, {B1_XSZ}, v13")
    a("v_xor_b32 v5, 32, v4")
    for i in range(NRT * 8):
        a(f"v_mov_b32 v{ACC+i}, 0")
    att_setup(a)
    a("v_and_b32 v10, 15, v1")
    a(f"v_mul_u32_u24 v10, {QKV_RS}, v10")
    a("v_lshrrev_b32 v11, 4, v1")
    a("s_lshl_b32 s6, s3, 3")
    a("v_add_u32 v11, s6, v11")
    for ct in range(2):
        if ct:
            a("v_add_u32 v11, 4, v11")
        a("v_mul_u32_u24 v6, 52, v11")
        a("v_lshrrev_b32 v6, 8, v6")
        a("v_mul_u32_u24 v7, 5, v6")
        a("v_sub_u32 v7, v11, v7")
        a("v_lshlrev_b32 v6, 6, v6")
        a("v_lshlrev_b32 v7, 3, v7")
        a(f"v_add3_u32 v{12+ct}, v10, v6, v7")
        a(f"v_add_u32 v{14+ct}, {8*16*QKV_RS}, v{12+ct}")

    def reads(xaddr, waddr0, waddr1, ks, X, W):
        r = []
        r.append(f"ds_read_b64_tr_b16 v[{W}:{W+1}], v{waddr0} offset:{8192*ks}")
        r.append(f"ds_read_b64_tr_b16 v[{W+2}:{W+3}], v{waddr0} offset:{8192*ks+1024}")
        r.append(f"ds_read_b64_tr_b16 v[{W+4}:{W+5}], v{waddr1} offset:{8192*ks}")
        r.append(f"ds_read_b64_tr_b16 v[{W+6}:{W+7}], v{waddr1} offset:{8192*ks+1024}")
        for t in range(NRT):
            r.append(f"ds_read_b128 v[{X+4*t}:{X+4*t+3}], v{xaddr} offset:{2048*t}")
        return r

    def mfmas(X, W):
        r = []
        for t in range(NRT):
            for ct in range(2):
                ac = ACC + (ct * NRT + t) * 4
                r.append(f"v_mfma_f32_16x16x32_bf16 v[{ac}:{ac+3}], v[{W+4*ct}:{W+4*ct+3}], v[{X+4*t}:{X+4*t+3}], v[{ac}:{ac+3}]")
        return r

    def inter(m, r):
        if OPT.get("nomfma"):
            return
        for i, x in enumerate(m):
            a(x)
            if i < len(r):
                a(r[i])

    a("s_waitcnt vmcnt(0)")
    if not int(OPT.get("nopf0", 0)):
        a("s_barrier")
    T.stamp(a, 1)
    a("s_barrier")
    T.stamp(a, 2)
    if OPT.get("prio"):
        a("s_setprio 1")
    a("v_mov_b32 v6, v2")
    a("v_mov_b32 v7, v3")
    a("v_mov_b32 v8, v4")
    a("v_mov_b32 v9, v5")
    for x in reads(6, 8, 9, 0, XA, WA):
        a(x)
    a("s_mov_b32 s40, 0")
    a("s_mov_b32 s44, 0")
    loop, last = a.newlabel("CL"), a.newlabel("CE")
    a.label(loop)
    a("s_waitcnt lgkmcnt(0)")
    inter(mfmas(XA, WA), reads(7, 8, 9, 1, XB, WB))
    a(f"s_add_u32 s44, s44, {B1_STAGE}")
    a(f"s_cmp_ge_u32 s44, {B1_STAGE*B1_NB}")
    a("s_cselect_b32 s44, 0, s44")
    a("v_add_u32 v6, s44, v2")
    a("v_add_u32 v7, s44, v3")
    a("v_add_u32 v8, s44, v4")
    a("v_add_u32 v9, s44, v5")
    a("s_waitcnt lgkmcnt(0)")
    a("s_barrier")
    if OPT.get("stagets") and T.on:
        a(f"{TS.INSTR} s[96:97]")
        a("s_waitcnt lgkmcnt(0)")
        for i in range(10):
            a(f"s_cmp_eq_u32 s40, {i}")
            a(f"s_cselect_b32 s{83+i}, s96, s{83+i}")
    a("s_cmp_eq_u32 s40, 9")
    a(f"s_cbranch_scc1 {last}")
    inter(mfmas(XB, WB), reads(6, 8, 9, 0, XA, WA))
    a("s_add_u32 s40, s40, 1")
    a(f"s_branch {loop}")
    a.label(last)
    m = mfmas(XB, WB)

    def wr(t, ct, k):
        ac = ACC + (ct * NRT + t) * 4
        d = XA + 2 * (k % 16)
        r = [f"v_cvt_pk_bf16_f32 v{d}, v{ac}, v{ac+1}", f"v_cvt_pk_bf16_f32 v{d+1}, v{ac+2}, v{ac+3}"]
        if t < 8:
            r.append(f"ds_write_b64 v{12+ct}, v[{d}:{d+1}] offset:{16*QKV_RS*t}")
        else:
            r.append(f"ds_write_b64 v{14+ct}, v[{d}:{d+1}] offset:{16*QKV_RS*(t-8)}")
        return r
    k = 0
    pend = []
    LAG = 8
    for i, x in enumerate(m):
        a(x)
        pend.append((i // 2, i % 2))
        if i >= LAG:
            t, ct = pend.pop(0)
            for y in wr(t, ct, k):
                a(y)
            k += 1
    a("s_nop 7")
    for (t, ct) in pend:
        for y in wr(t, ct, k):
            a(y)
        k += 1


def b1_epi_loader(a):
    a("v_and_b32 v10, 255, v0")
    a("v_mov_b32 v16, 0")
    a("v_mov_b32 v17, 0")
    a("v_mov_b32 v18, 0")
    a("v_mov_b32 v19, 0")
    a("v_lshrrev_b32 v11, 2, v10")
    a("v_and_b32 v12, 3, v10")
    a(f"v_mul_u32_u24 v11, {QKV_RS}, v11")
    a("v_lshlrev_b32 v12, 6, v12")
    a("v_add_u32 v11, v11, v12")
    for it in range(4):
        off = it * 64 * QKV_RS
        if it == 3:
            a("v_cmp_gt_u32 vcc, 64, v10")
            a("s_and_saveexec_b64 s[6:7], vcc")
        if it == 2:
            a(f"v_add_u32 v11, {2*64*QKV_RS}, v11")
        o2 = off if it < 2 else off - 2 * 64 * QKV_RS
        a(f"ds_write_b64 v11, v[16:17] offset:{o2+40}")
        a(f"ds_write_b128 v11, v[16:19] offset:{o2+48}")
        if it == 3:
            a("s_mov_b64 exec, s[6:7]")


KP0, KC0, KP1, KC1, NEG, KQB, VB, OB = 240, 241, 242, 243, 248, 249, 252, 253
S_PAR, S_M0, S_M1 = 64, 72, 74
S_D1, S_D2, S_O1, S_O2 = 76, 77, 66, 78


def att_setup(a):
    R16 = 16 * QKV_RS
    a("v_and_b32 v10, 15, v1")
    a("v_lshrrev_b32 v11, 4, v1")
    a(f"v_mov_b32 v{NEG}, 0xf149f2ca")
    a("v_and_b32 v12, 1, v10")
    a(f"v_cmp_eq_u32 s[{S_PAR}:{S_PAR+1}], 1, v12")
    a("v_lshlrev_b32 v13, 2, v11")
    a("v_add_u32 v13, v13, v12")
    a(f"v_cmp_le_u32 s[{S_M0}:{S_M0+1}], v13, v10")
    a("v_add_u32 v13, 2, v13")
    a(f"v_cmp_le_u32 s[{S_M1}:{S_M1+1}], v13, v10")
    a("v_mov_b32 v14, 0xffff")
    a("v_mov_b32 v15, 0xffff0000")
    a(f"v_cndmask_b32 v14, v14, v15, s[{S_PAR}:{S_PAR+1}]")
    a("v_mov_b32 v15, 0")
    a(f"v_cndmask_b32 v{KC0}, v15, v14, s[{S_M0}:{S_M0+1}]")
    a(f"v_cndmask_b32 v{KP0}, v14, v15, s[{S_M0}:{S_M0+1}]")
    a(f"v_cndmask_b32 v{KC1}, v15, v14, s[{S_M1}:{S_M1+1}]")
    a(f"v_cndmask_b32 v{KP1}, v14, v15, s[{S_M1}:{S_M1+1}]")
    a("s_mul_i32 s46, s3, 3")
    a("s_lshr_b32 s6, s46, 1")
    a("s_and_b32 s7, s46, 1")
    a(f"s_mul_i32 s45, s6, {R16}")
    a("s_lshl_b32 s47, s7, 6")
    a("s_add_u32 s45, s45, s47")
    a("s_mul_i32 s47, s6, 1280")
    a("s_mul_i32 s6, s7, 40")
    a("s_add_u32 s47, s47, s6")
    a("s_cmp_eq_u32 s7, 0")
    a(f"s_cselect_b32 s{S_D1}, 64, {R16-64}")
    a(f"s_mov_b32 s{S_D2}, {R16}")
    a(f"s_cselect_b32 s{S_O1}, 40, {1280-40}")
    a(f"s_mov_b32 s{S_O2}, 1280")
    a(f"v_mul_u32_u24 v12, {QKV_RS}, v10")
    a("v_lshlrev_b32 v13, 4, v11")
    a(f"v_add3_u32 v{KQB}, v12, v13, s45")
    a("v_lshrrev_b32 v12, 2, v1")
    a("v_and_b32 v12, 3, v12")
    a("v_lshlrev_b32 v13, 2, v11")
    a("v_add_u32 v12, v12, v13")
    a(f"v_mul_u32_u24 v12, {QKV_RS}, v12")
    a("v_and_b32 v13, 3, v1")
    a("v_lshlrev_b32 v13, 3, v13")
    a(f"v_add3_u32 v{VB}, v12, v13, s45")
    a("v_mul_u32_u24 v12, 80, v10")
    a("v_lshlrev_b32 v13, 3, v11")
    a("v_add3_u32 v12, v12, v13, s47")
    a(f"v_add_u32 v{OB}, {O_LDS}, v12")


def attention(a, T=None):
    R16 = 16 * QKV_RS
    U = [32 + 48 * u for u in range(3)]
    kq = [KQB, U[1] + 36, U[2] + 36]
    vv = [VB, U[1] + 37, U[2] + 37]
    oo = [OB, U[1] + 38, U[2] + 38]
    a(f"v_add_u32 v{kq[1]}, s{S_D1}, v{KQB}")
    a(f"v_add_u32 v{kq[2]}, s{S_D2}, v{KQB}")
    for u in range(3):
        b = U[u]
        a(f"ds_read_b128 v[{b}:{b+3}], v{kq[u]} offset:{R16}")
        a(f"ds_read_b128 v[{b+4}:{b+7}], v{kq[u]} offset:128")
        a(f"ds_read_b128 v[{b+8}:{b+11}], v{kq[u]} offset:{R16+128}")
    a(f"v_add_u32 v{vv[1]}, s{S_D1}, v{VB}")
    a(f"v_add_u32 v{vv[2]}, s{S_D2}, v{VB}")
    for u in range(3):
        b = U[u]
        a(f"ds_read_b64_tr_b16 v[{b+12}:{b+13}], v{vv[u]} offset:256")
        a(f"ds_read_b64_tr_b16 v[{b+14}:{b+15}], v{vv[u]} offset:{R16+256}")
        a(f"ds_read_b64_tr_b16 v[{b+16}:{b+17}], v{vv[u]} offset:{256+32}")
        a(f"ds_read_b64_tr_b16 v[{b+18}:{b+19}], v{vv[u]} offset:{R16+256+32}")
    a(f"v_add_u32 v{oo[1]}, s{S_O1}, v{OB}")
    a(f"v_add_u32 v{oo[2]}, s{S_O2}, v{OB}")
    a("s_mov_b32 s45, 0x3ea52b5c")
    a("s_waitcnt lgkmcnt(12)")
    for u in range(3):
        b = U[u]
        a(f"v_mfma_f32_16x16x32_bf16 v[{b+20}:{b+23}], v[{b+4}:{b+7}], v[{b}:{b+3}], 0")
        a(f"v_mfma_f32_16x16x32_bf16 v[{b+24}:{b+27}], v[{b+8}:{b+11}], v[{b}:{b+3}], 0")
    a("s_nop 7")

    def each(f):
        for step in zip(*[f(U[u]) for u in range(3)]):
            for x in step:
                a(x)
    P_, M0_, M1_ = f"s[{S_PAR}:{S_PAR+1}]", f"s[{S_M0}:{S_M0+1}]", f"s[{S_M1}:{S_M1+1}]"
    each(lambda b: [f"v_cndmask_b32 v{b+20}, v{b+20}, v{b+21}, {P_}",
                    f"v_cndmask_b32 v{b+22}, v{b+22}, v{b+23}, {P_}",
                    f"v_cndmask_b32 v{b+24}, v{b+24}, v{b+25}, {P_}",
                    f"v_cndmask_b32 v{b+26}, v{b+26}, v{b+27}, {P_}"])
    lsp = a.newlabel("ATS")
    a("s_or_b32 s6, s60, s3")
    a("s_cmp_lg_u32 s6, 0")
    a(f"s_cbranch_scc1 {lsp}")
    for u in range(2):
        a(f"v_mov_b32 v{U[u]+20}, v{NEG}")
        a(f"v_mov_b32 v{U[u]+22}, v{NEG}")
    a.label(lsp)
    each(lambda b: [f"v_cndmask_b32 v{b+20}, v{b+20}, v{b+24}, {M0_}",
                    f"v_cndmask_b32 v{b+22}, v{b+22}, v{b+26}, {M1_}",
                    f"v_max_f32 v{b+28}, v{b+20}, v{b+22}",
                    f"v_mov_b32 v{b+29}, v{b+28}",
                    f"v_permlane32_swap_b32 v{b+28}, v{b+29}",
                    f"v_max_f32 v{b+28}, v{b+28}, v{b+29}",
                    f"v_mov_b32 v{b+29}, v{b+28}",
                    f"v_permlane16_swap_b32 v{b+28}, v{b+29}",
                    f"v_max_f32 v{b+28}, v{b+28}, v{b+29}",
                    f"v_mul_f32 v{b+28}, s45, v{b+28}",
                    f"v_fma_f32 v{b+20}, v{b+20}, s45, -v{b+28}",
                    f"v_fma_f32 v{b+22}, v{b+22}, s45, -v{b+28}",
                    f"v_exp_f32 v{b+20}, v{b+20}",
                    f"v_exp_f32 v{b+22}, v{b+22}",
                    f"v_add_f32 v{b+28}, v{b+20}, v{b+22}",
                    f"v_mov_b32 v{b+29}, v{b+28}",
                    f"v_permlane32_swap_b32 v{b+28}, v{b+29}",
                    f"v_add_f32 v{b+28}, v{b+28}, v{b+29}",
                    f"v_mov_b32 v{b+29}, v{b+28}",
                    f"v_permlane16_swap_b32 v{b+28}, v{b+29}",
                    f"v_add_f32 v{b+28}, v{b+28}, v{b+29}",
                    f"v_rcp_f32 v{b+28}, v{b+28}",
                    f"v_mul_f32 v{b+20}, v{b+20}, v{b+28}",
                    f"v_mul_f32 v{b+22}, v{b+22}, v{b+28}",
                    f"v_cvt_pk_bf16_f32 v{b+20}, v{b+20}, v{b+20}",
                    f"v_cvt_pk_bf16_f32 v{b+22}, v{b+22}, v{b+22}",
                    f"v_and_b32 v{b+40}, v{KP0}, v{b+20}",
                    f"v_and_b32 v{b+41}, v{KP1}, v{b+22}",
                    f"v_and_b32 v{b+42}, v{KC0}, v{b+20}",
                    f"v_and_b32 v{b+43}, v{KC1}, v{b+22}"])
    a("s_waitcnt lgkmcnt(0)")
    for u in range(3):
        b = U[u]
        a(f"v_mfma_f32_16x16x32_bf16 v[{b}:{b+3}], v[{b+12}:{b+15}], v[{b+40}:{b+43}], 0")
        a(f"v_mfma_f32_16x16x32_bf16 v[{b+4}:{b+7}], v[{b+16}:{b+19}], v[{b+40}:{b+43}], 0")
    a("s_nop 7")
    for u in range(3):
        b = U[u]
        a(f"v_cvt_pk_bf16_f32 v{b+8}, v{b}, v{b+1}")
        a(f"v_cvt_pk_bf16_f32 v{b+9}, v{b+2}, v{b+3}")
        a(f"v_cvt_pk_bf16_f32 v{b+10}, v{b+4}, v{b+5}")
        a(f"v_cvt_pk_bf16_f32 v{b+11}, v{b+6}, v{b+7}")
        a(f"ds_write_b64 v{oo[u]}, v[{b+8}:{b+9}]")
    a("s_mov_b64 exec, 0xffff")
    for u in range(3):
        b = U[u]
        a(f"ds_write_b64 v{oo[u]}, v[{b+10}:{b+11}] offset:32")
    a("s_mov_b64 exec, -1")


def epoch_issue(a, vdst, vtmp, srdn, off_expr_sgpr):
    srd(a, srdn, P_WS, 0x10000, WS_FL)
    a(f"v_mov_b32 v{vtmp}, s{off_expr_sgpr}")
    a(f"buffer_load_dword v{vdst}, v{vtmp}, s[{srdn}:{srdn+3}], 0 offen sc1")


def poll(a, vaddr, n_lanes, tag_s, srdn):
    l0, l1 = a.newlabel("PF"), a.newlabel("PF")
    a("s_mov_b32 s45, 0")
    if n_lanes < 64:
        a(f"s_mov_b64 exec, 0x{(1 << n_lanes) - 1:x}")
    a.label(l0)
    a(f"buffer_load_dword v4, v{vaddr}, s[{srdn}:{srdn+3}], 0 offen sc1")
    a("s_waitcnt vmcnt(0)")
    a(f"v_cmp_ne_u32 vcc, s{tag_s}, v4")
    a("s_add_u32 s45, s45, 1")
    a("s_nop 3")
    a(f"s_cbranch_vccz {l1}")
    a(f"s_cmp_gt_u32 s45, {OPT['spin']}")
    a(f"s_cbranch_scc1 {l1}")
    a(f"s_sleep {OPT['psleep']}")
    a(f"s_branch {l0}")
    a.label(l1)
    if n_lanes < 64:
        a("s_mov_b64 exec, -1")


def o_store_setup(a):
    a("v_and_b32 v10, 255, v0")
    a("v_lshlrev_b32 v10, 4, v10")
    a(f"v_add_u32 v216, {O_LDS}, v10")
    a("s_mul_i32 s6, s61, 163840")
    a("s_mul_i32 s7, s60, 15360")
    a("s_add_u32 s6, s6, s7")
    a("v_add_u32 v12, s6, v10")
    a("s_movk_i32 s7, 15360")
    a("s_cmp_eq_u32 s60, 10")
    a("s_cselect_b32 s7, 10240, s7")
    a(f"v_mov_b32 v14, 0x{OOB:x}")
    for i in range(4):
        a(f"v_add_u32 v{217+i}, {4096*i}, v12")
        a(f"v_add_u32 v13, {4096*i}, v10")
        a("v_cmp_gt_u32 vcc, s7, v13")
        a("s_nop 1")
        a(f"v_cndmask_b32 v{217+i}, v14, v{217+i}, vcc")


def o_store(a):
    sc = OPT["sc_ostore"]
    for i in range(4):
        a(f"ds_read_b128 v[{16+4*i}:{19+4*i}], v216 offset:{4096*i}")
    a("s_waitcnt lgkmcnt(0)")
    for i in range(4):
        a(f"buffer_store_dwordx4 v[{16+4*i}:{19+4*i}], v{217+i}, s[48:51], 0 offen {sc}")


def b2_o_addr(a, dst):
    a("s_lshl_b32 s6, s47, 10")
    a("v_add_u32 v10, s6, v239")
    a("v_lshrrev_b32 v11, 9, v10")
    a("v_mul_u32_u24 v11, 4370, v11")
    a("v_lshrrev_b32 v11, 16, v11")
    a("v_mul_u32_u24 v11, 156160, v11")
    a(f"v_add_u32 v{dst}, v10, v11")


def b2_loader_setup(a):
    for i in range(8):
        a(f"s_add_u32 s47, s62, {4*i}")
        b2_o_addr(a, 200 + i)
    a("s_cmp_lt_u32 s62, 2")
    a("s_cselect_b64 vcc, -1, 0")
    a(f"v_mov_b32 v10, 0x{OOB:x}")
    a("v_cndmask_b32 v207, v10, v207, vcc")
    a("s_mul_i32 s49, s67, 7680")


OBUF = [B2_O, B2_O + B2_OST, B2_O3, B2_O]


def b2_loader(a, T):
    sc = OPT["sc_oload"]

    def dma(st):
        a(f"s_add_u32 s50, s68, {st}")
        a("s_and_b32 s50, s50, 3")
        a("s_mul_i32 s50, s50, 655360")
        a("s_add_u32 s50, s50, s49")
        a("s_lshl_b32 s6, s62, 10")
        a(f"s_add_u32 s6, s6, {OBUF[st]}")
        for i in range(8):
            lab = None
            if i == 7:
                lab = a.newlabel("O7")
                a("s_cmp_ge_u32 s62, 2")
                a(f"s_cbranch_scc1 {lab}")
            a(f"s_add_u32 m0, s6, {4096*i}")
            a("s_nop 0")
            a(f"buffer_load_dwordx4 v{200+i}, s[52:55], s50 offen {sc} lds")
            if lab:
                a.label(lab)

    dma(0)
    dma(1)
    a("s_waitcnt vmcnt(7)")
    a("s_barrier")
    dma(2)
    a("s_waitcnt vmcnt(7)")
    a("s_barrier")
    dma(3)
    a("s_waitcnt vmcnt(7)")
    a("s_barrier")
    lq = a.newlabel("W19")
    a("s_cmp_lg_u32 s62, 0")
    a(f"s_cbranch_scc1 {lq}")
    a("s_add_u32 s7, s68, 3")
    a("s_and_b32 s7, s7, 3")
    a("s_mul_i32 s7, s7, 5")
    a("s_add_u32 s7, s7, 4")
    a("s_mul_i32 s7, s7, 40960")
    for j in range(5):
        a(f"s_mov_b32 m0, {WSLOT(19) + 1024*j}")
        a("s_nop 0")
        a(f"buffer_load_dwordx4 v{230+j}, s[56:59], s7 offen lds")
    a.label(lq)
    a("s_waitcnt vmcnt(0)")
    a("s_barrier")


def b2_compute_setup(a):
    a("v_and_b32 v10, 15, v1")
    a("v_lshrrev_b32 v11, 4, v1")
    a("s_and_b32 s6, s3, 1")
    a("s_mul_i32 s6, s6, 48")
    a("v_add_u32 v10, s6, v10")
    a("v_mul_u32_u24 v10, 80, v10")
    for ks in range(5):
        a(f"v_add_u32 v12, {4*ks}, v11")
        a("v_mul_u32_u24 v13, 52, v12")
        a("v_lshrrev_b32 v13, 8, v13")
        a("v_mul_u32_u24 v14, 5, v13")
        a("v_sub_u32 v14, v12, v14")
        a("v_mul_u32_u24 v13, 7680, v13")
        a("v_lshlrev_b32 v14, 4, v14")
        a(f"v_add3_u32 v{224+ks}, v10, v13, v14")
    a("v_lshrrev_b32 v12, 2, v1")
    a("v_and_b32 v12, 3, v12")
    a("v_lshlrev_b32 v13, 2, v11")
    a("v_add_u32 v12, v12, v13")
    a("v_mul_u32_u24 v12, 160, v12")
    a("v_and_b32 v13, 3, v1")
    a("v_lshlrev_b32 v13, 3, v13")
    a("s_lshr_b32 s47, s3, 1")
    a("s_mul_i32 s6, s47, 96")
    a("v_add3_u32 v229, v12, v13, s6")
    for i in range(36):
        a(f"v_mov_b32 v{16+i}, 0")
    srd(a, 56, P_OUT, 2048 * 2560)
    a("v_and_b32 v13, 15, v1")
    a("s_and_b32 s6, s3, 1")
    a("s_mul_i32 s6, s6, 48")
    a("s_mul_i32 s7, s67, 96")
    a("s_add_u32 s6, s6, s7")
    a("v_add_u32 v13, s6, v13")
    a("v_mul_u32_u24 v13, 2560, v13")
    a("v_lshrrev_b32 v14, 4, v1")
    a("v_lshlrev_b32 v14, 3, v14")
    a("s_mul_i32 s6, s68, 160")
    a("s_mul_i32 s7, s47, 96")
    a("s_add_u32 s6, s6, s7")
    a("s_add_u32 s6, s6, 1280")
    a("v_add3_u32 v213, v13, v14, s6")
    a("s_mov_b32 s72, 0")
    a("s_mov_b32 s73, 40960")
    a("s_mov_b32 s74, 81920")


def b2_compute(a, T):
    WF, OF = 56, 120

    def addr(slot, st):
        r = []
        ob, wb = 192 + 5 * slot, 202 + 5 * slot
        for ks in range(5):
            r.append(f"v_add_u32 v{ob+ks}, {OBUF[st]}, v{224+ks}")
            r.append(f"v_add_u32 v{wb+ks}, {WSLOT(5*st+ks)}, v229")
        return r

    def rd_w(slot, ks, nct):
        wb = 202 + 5 * slot
        r = []
        for ct in range(nct):
            F = WF + 12 * ks + 4 * ct
            r.append(f"ds_read_b64_tr_b16 v[{F}:{F+1}], v{wb+ks} offset:{32*ct}")
            r.append(f"ds_read_b64_tr_b16 v[{F+2}:{F+3}], v{wb+ks} offset:{32*ct+2560}")
        return r

    def rd_o(slot, ks):
        ob = 192 + 5 * slot
        return [f"ds_read_b128 v[{OF+12*ks+4*t}:{OF+12*ks+4*t+3}], v{ob+ks} offset:{1280*t}" for t in range(3)]

    def mm(ks, nct):
        r = []
        for t in range(3):
            for ct in range(nct):
                ac = 16 + (t * 3 + ct) * 4
                W = WF + 12 * ks + 4 * ct
                O = OF + 12 * ks + 4 * t
                r.append(f"v_mfma_f32_16x16x32_bf16 v[{ac}:{ac+3}], v[{W}:{W+3}], v[{O}:{O+3}], v[{ac}:{ac+3}]")
        return r

    le, ld = a.newlabel("C2E"), a.newlabel("C2D")
    for x in addr(0, 0):
        a(x)
    a("s_cmp_eq_u32 s47, 0")
    a(f"s_cbranch_scc0 {le}")
    for var, nct in enumerate([3, 2]):
        if var == 1:
            a(f"s_branch {ld}")
            a.label(le)
        for ks in range(5):
            for x in rd_w(0, ks, nct):
                a(x)
        nw = 2 * nct

        def emit(m, fill):
            per = (len(fill) + len(m) - 1) // len(m) if fill else 0
            k = 0
            for x in m:
                a(x)
                for _ in range(per):
                    if k < len(fill):
                        a(fill[k])
                        k += 1
        a("s_waitcnt lgkmcnt(0)")
        a("s_barrier")
        if T.on and not OPT.get("attts") and var == 0:
            T.stamp(a, 10)
        for x in rd_o(0, 0):
            a(x)
        for st in range(4):
            slot = st & 1
            nslot = slot ^ 1
            last = st == 3
            f0 = []
            if st > 0:
                f0 += rd_w(slot, 4, nct)
            f0 += [x for ks in range(1, 5) for x in rd_o(slot, ks)]
            if not last:
                f0 += addr(nslot, st + 1)
            a("s_waitcnt lgkmcnt(0)")
            emit(mm(0, nct), f0)
            for ks in (1, 2, 3):
                fill = rd_w(nslot, ks - 1, nct) if not last else []
                y = 3 * (4 - ks) + ((ks - 1) * nw if not last else 0)
                a(f"s_waitcnt lgkmcnt({min(15, y)})")
                emit(mm(ks, nct), fill)
            if not last:
                a(f"s_waitcnt lgkmcnt({min(15, 3 * nw)})")
                a("s_barrier")
                if T.on and not OPT.get("attts") and var == 0:
                    T.stamp(a, 11 + st)
                for x in rd_o(nslot, 0):
                    a(x)
                emit(mm(4, nct), rd_w(nslot, 3, nct))
            else:
                a("s_waitcnt lgkmcnt(0)")
                emit(mm(4, nct), [])
        no = OPT["nt_out"]
        a("s_nop 7")
        for t in range(3):
            for ct in range(nct):
                ac = 16 + (t * 3 + ct) * 4
                p = 56 + 2 * (t * 3 + ct)
                a(f"v_cvt_pk_bf16_f32 v{p}, v{ac}, v{ac+1}")
                a(f"v_cvt_pk_bf16_f32 v{p+1}, v{ac+2}, v{ac+3}")
                a(f"buffer_store_dwordx2 v[{p}:{p+1}], v213, s[56:59], s{72+t} offen offset:{32*ct} {no}")
    a.label(ld)


def b_program(a, T):
    b_decode(a)
    ld, j1 = a.newlabel("BLD"), a.newlabel("BJ1")
    a("s_cmp_ge_u32 s3, 4")
    a(f"s_cbranch_scc1 {ld}")
    if not int(OPT.get("nopf0", 0)):
        b_initial_prefetch(a)
    a("s_lshl_b32 s6, s60, 7")
    a(f"s_add_u32 s6, s6, {FL_EB}")
    epoch_issue(a, 250, 251, 52, 6)
    b1_compute(a, T)
    T.stamp(a, 3)
    a("s_waitcnt lgkmcnt(0)")
    a(f"s_branch {j1}")
    a.label(ld)
    a("s_lshl_b32 s6, s60, 7")
    a(f"s_add_u32 s6, s6, {FL_EB}")
    epoch_issue(a, 250, 251, 52, 6)
    b1_loader(a, T)
    T.stamp(a, 3)
    if OPT.get("lprio"):
        a("s_setprio 0")
    b1_epi_loader(a)
    a("s_waitcnt lgkmcnt(0)")
    a.label(j1)
    a("s_barrier")
    T.stamp(a, 4)
    attention(a, T)
    a("s_waitcnt lgkmcnt(0)")
    a("s_barrier")
    T.stamp(a, 5)
    ld2, j2 = a.newlabel("BLD"), a.newlabel("BJ2")
    a("s_cmp_ge_u32 s3, 4")
    a(f"s_cbranch_scc1 {ld2}")
    a("v_readfirstlane_b32 s44, v250")
    a("s_add_u32 s44, s44, 1")
    a("s_barrier")
    b2_compute_setup(a)
    a("s_barrier")
    lp = a.newlabel("NP")
    a("s_cmp_lg_u32 s3, 0")
    a(f"s_cbranch_scc1 {lp}")
    a("s_lshl_b32 s6, s60, 4")
    a("s_add_u32 s6, s6, s61")
    a("s_lshl_b32 s6, s6, 7")
    a("v_mov_b32 v10, s6")
    a("v_mov_b32 v11, s44")
    a("s_mov_b64 exec, 1")
    a("buffer_store_dword v11, v10, s[52:55], 0 offen sc1")
    a("s_mov_b64 exec, -1")
    T.stamp(a, 6)
    a("s_lshl_b32 s6, s60, 11")
    a("v_lshlrev_b32 v10, 7, v1")
    a("v_add_u32 v10, s6, v10")
    poll(a, 10, 16, 44, 52)
    le = a.newlabel("EU")
    a("s_cmp_lg_u32 s61, 0")
    a(f"s_cbranch_scc1 {le}")
    a("v_mov_b32 v11, s44")
    a("s_mov_b64 exec, 1")
    a("buffer_store_dword v11, v251, s[52:55], 0 offen sc1")
    a("s_mov_b64 exec, -1")
    a.label(le)
    a.label(lp)
    T.stamp(a, 7)
    a("s_barrier")
    b2_compute(a, T)
    T.stamp(a, 8)
    a(f"s_branch {j2}")
    a.label(ld2)
    o_store(a)
    a("s_barrier")
    a("s_waitcnt vmcnt(0)")
    a("s_barrier")
    if OPT.get("opf"):
        lo = a.newlabel("OPF")
        a("s_cmp_lg_u32 s62, 3")
        a(f"s_cbranch_scc1 {lo}")
        a("s_mul_i32 s6, s61, 163840")
        a("s_mul_i32 s7, s67, 7680")
        a("s_add_u32 s6, s6, s7")
        a("v_lshlrev_b32 v10, 7, v1")
        a(f"v_mov_b32 v11, 0x{OOB:x}")
        a("v_cmp_gt_u32 vcc, 60, v1")
        a("s_nop 1")
        a("v_cndmask_b32 v10, v11, v10, vcc")
        a("buffer_load_dword v237, v10, s[48:51], s6 offen sc1")
        a.label(lo)
    wo_dma_slots(a, 11, 8)
    srd(a, 52, P_WS, TSZ, WS_OW)
    a("v_lshlrev_b32 v239, 4, v1")
    b2_loader_setup(a)
    a("s_waitcnt vmcnt(0)")
    T.stamp(a, 7)
    a("s_barrier")
    b2_loader(a, T)
    T.stamp(a, 8)
    a.label(j2)
    T.stamp(a, 9)


A2_H0 = 0
A2_H1 = 4640
A2_X0 = 9216
A2_X2 = 13696
A2_CH = 17920
T_RS = 528
Y_RS = 528


def a_program(a, T):
    na, nh, sc = OPT["nt_a"], OPT["nt_h"], OPT["sc"]
    a("s_sub_u32 s5, s5, s70")
    a("s_lshl_b32 s6, s4, 1")
    a("s_add_u32 s7, s4, 2")
    a("s_cmp_lt_u32 s4, 2")
    a("s_cselect_b32 s6, s6, s7")
    a("s_lshr_b32 s7, s5, 3")
    a("s_add_u32 s73, s6, s7")
    a("s_and_b32 s72, s5, 7")
    a("s_lshl_b32 s62, s73, 6")
    a("s_lshl_b32 s6, s72, 3")
    a("s_add_u32 s62, s62, s6")
    a("s_add_u32 s63, s62, s3")
    srd(a, 32, P_K, TSZ)
    srd(a, 36, P_V, TSZ)
    srd(a, 40, P_SK, 640 * 8)
    a("v_and_b32 v8, 7, v1")
    a("v_lshrrev_b32 v9, 3, v1")
    a("s_lshl_b32 s6, s3, 3")
    a("v_add_u32 v9, s6, v9")
    a("v_lshlrev_b32 v2, 2, v9")
    a("s_lshl_b32 s6, s72, 8")
    a("v_add_u32 v2, s6, v2")
    a("v_mul_u32_u24 v2, 1280, v2")
    a("v_lshlrev_b32 v3, 4, v8")
    a("s_lshl_b32 s6, s73, 7")
    a("v_add3_u32 v2, v2, v3, s6")
    a("v_add_u32 v3, -3840, v2")
    a("v_add_u32 v4, -2560, v2")
    a("v_add_u32 v5, -1280, v2")
    for m in range(4):
        a(f"buffer_load_dwordx4 v[{64+4*m}:{67+4*m}], v2, s[32:35], 0 offen offset:{1280*m} {na}".replace("offset:0 ", ""))
    for m in range(4):
        a(f"buffer_load_dwordx4 v[{80+4*m}:{83+4*m}], v2, s[36:39], 0 offen offset:{1280*m} {na}".replace("offset:0 ", ""))
    a(f"buffer_load_dwordx4 v[52:55], v3, s[32:35], 0 offen {na}")
    a(f"buffer_load_dwordx4 v[56:59], v4, s[32:35], 0 offen {na}")
    a(f"buffer_load_dwordx4 v[60:63], v5, s[32:35], 0 offen {na}")
    a("v_lshlrev_b32 v6, 6, v8")
    a("s_lshl_b32 s6, s73, 9")
    a("v_add_u32 v6, s6, v6")
    for i in range(4):
        a(f"buffer_load_dwordx4 v[{32+4*i}:{35+4*i}], v6, s[40:43], 0 offen offset:{16*i}".replace("offset:0", ""))
    a("s_lshl_b32 s6, s73, 7")
    a(f"s_add_u32 s6, s6, {FL_EA}")
    epoch_issue(a, 250, 251, 48, 6)
    a("s_lshl_b32 s6, s62, 1")
    a(f"s_add_u32 s44, s{P_SD}, s6")
    a(f"s_addc_u32 s45, s{P_SD+1}, 0")
    a("s_load_dwordx4 s[64:67], s[44:45], 0")
    if int(OPT.get("apf", 1)):
        npf = OPT["nt_pf"]
        a("s_cmp_eq_u32 s4, 1")
        a("s_cselect_b32 s74, 1, 0")
        a("s_cmp_ge_u32 s4, 5")
        a("s_cselect_b32 s74, 1, s74")
        a("s_cselect_b32 s7, 3, 0")
        a("s_sub_u32 s6, s4, 2")
        a("s_sub_u32 s6, s6, s7")
        a("s_mul_i32 s6, s6, 3")
        a("s_add_u32 s6, s6, 2")
        a("s_cmp_lt_u32 s4, 2")
        a("s_cselect_b32 s75, 0, s6")
        a("s_cselect_b32 s76, 128, 64")
        a("s_cselect_b32 s77, 2400, s76")
        a("s_cselect_b32 s77, 2400, 3552") if False else None
        a("s_movk_i32 s77, 3552")
        a("s_cmp_lt_u32 s4, 2")
        a("s_cselect_b32 s77, 2400, s77")
        a("s_lshl_b32 s78, s5, 3")
        a("s_add_u32 s78, s78, s3")
        srd(a, 52, P_W, 640 * 3840)
        srd(a, 56, P_X, TSZ)
        a(f"v_mov_b32 v20, 0x{OOB:x}")

        def wpf(dst):
            a("s_lshl_b32 s6, s6, 6")
            a("v_add_u32 v21, s6, v1")
            a("v_mul_u32_u24 v22, 34953, v21")
            a("v_lshrrev_b32 v22, 19, v22")
            a("v_mul_u32_u24 v23, 15, v22")
            a("v_sub_u32 v23, v21, v23")
            a("v_mul_u32_u24 v24, 52, v23")
            a("v_lshrrev_b32 v24, 8, v24")
            a("v_mul_u32_u24 v25, 5, v24")
            a("v_sub_u32 v25, v23, v25")
            a("v_add_u32 v22, 192, v22")
            a("v_mul_u32_u24 v22, 3840, v22")
            a("v_mul_u32_u24 v24, 1280, v24")
            a("v_lshlrev_b32 v25, 7, v25")
            a("v_add3_u32 v22, v22, v24, v25")
            a("s_mul_i32 s7, s74, 640")
            a("v_add_u32 v22, s7, v22")
            a("s_movk_i32 s7, 6720")
            a("v_cmp_gt_u32 vcc, s7, v21")
            a("s_nop 1")
            a("v_cndmask_b32 v22, v20, v22, vcc")
            a(f"buffer_load_dword v{dst}, v22, s[52:55], 0 offen {npf}")
        a("s_mov_b32 s6, s78")
        wpf(240)
        a("s_lshl_b32 s6, s78, 6")
        a("v_add_u32 v21, s6, v1")
        a("v_mul_u32_u24 v22, 10923, v21")
        a("v_lshrrev_b32 v22, 16, v22")
        a("v_mul_u32_u24 v23, 6, v22")
        a("v_sub_u32 v23, v21, v23")
        a("s_mul_i32 s6, s75, 192")
        a("s_sub_u32 s6, s6, 16")
        a("v_add_u32 v22, s6, v22")
        a("s_movk_i32 s7, 1280")
        a("v_mul_lo_u32 v22, v22, s7")
        a("v_lshlrev_b32 v23, 7, v23")
        a("v_add_u32 v22, v22, v23")
        a("v_add_u32 v22, 512, v22")
        a("v_cmp_gt_u32 vcc, s77, v21")
        a("s_nop 1")
        a("v_cndmask_b32 v22, v20, v22, vcc")
        a(f"buffer_load_dword v241, v22, s[56:59], 0 offen {npf}")
        a("s_add_u32 s6, s78, s76")
        wpf(242)
    a(f"s_mul_i32 s60, s3, {A2_CH}")
    a("s_lshl_b32 s59, s63, 12")
    a("v_lshlrev_b32 v10, 4, v1")
    a("v_add_u32 v11, -2, v10")
    T.stamp(a, 1)
    a("v_mov_b32 v28, 0")
    a("v_mov_b32 v29, 0")
    a("v_mov_b32 v30, 0")
    a("v_mov_b32 v31, 0")
    a("v_add_u32 v23, s60, v10")
    a("s_mov_b64 exec, 0xfffffff")
    a(f"ds_write_b128 v23, v[28:31] offset:{A2_H0}")
    a(f"ds_write_b128 v23, v[28:31] offset:{A2_H1}")
    a("s_mov_b64 exec, -1")
    a(f"v_mul_u32_u24 v7, {A2_CH+16}, v8")
    a("v_lshlrev_b32 v12, 3, v9")
    a("v_sub_u32 v7, v7, v12")
    a(f"v_add_u32 v7, {A2_X0 + 504}, v7")
    a("s_mov_b32 s57, 0xffff0000")
    a(f"s_waitcnt vmcnt({1 + (3 if int(OPT.get('apf', 1)) else 0)})")
    T.stamp(a, 2)
    for c in range(4):
        for m in range(4):
            for e in range(2):
                src = 32 + 2 * (2 * c + e) + (m >> 1)
                dst = 96 + (c * 4 + m) * 2 + e
                if m & 1:
                    a(f"v_and_b32 v{dst}, s57, v{src}")
                else:
                    a(f"v_lshlrev_b32 v{dst}, 16, v{src}")
    for c in range(4):
        for jj in range(7):
            a(f"v_lshlrev_b32 v{128+2*jj}, 16, v{52+4*jj+c}")
            a(f"v_and_b32 v{129+2*jj}, s57, v{52+4*jj+c}")
        for m in range(4):
            a(f"v_lshlrev_b32 v{142+2*m}, 16, v{80+4*m+c}")
            a(f"v_and_b32 v{143+2*m}, s57, v{80+4*m+c}")
        W = lambda m: f"v[{96+(c*4+m)*2}:{97+(c*4+m)*2}]"
        K = lambda jj: f"v[{128+2*jj}:{129+2*jj}]"
        for rr in range(4):
            o = 150 + 2 * rr
            a(f"v_pk_mul_f32 v[{o}:{o+1}], {W(3)}, {K(rr)}")
        for m in (2, 1, 0):
            for rr in range(4):
                o = 150 + 2 * rr
                a(f"v_pk_fma_f32 v[{o}:{o+1}], {W(m)}, {K(3+rr-m)}, v[{o}:{o+1}]")
        for rr in range(4):
            o = 150 + 2 * rr
            a(f"v_pk_mul_f32 v[{o}:{o+1}], v[{o}:{o+1}], v[{142+2*rr}:{143+2*rr}]")
        for e in range(2):
            ch = 2 * c + e
            d = 160 + 4 * (c & 1) + 2 * e
            a(f"v_cvt_pk_bf16_f32 v{d}, v{156+e}, v{154+e}")
            a(f"v_cvt_pk_bf16_f32 v{d+1}, v{152+e}, v{150+e}")
            a(f"ds_write_b64 v7, v[{d}:{d+1}] offset:{ch*T_RS}")
    a("v_lshrrev_b32 v12, 5, v1")
    a(f"v_mul_u32_u24 v12, {T_RS}, v12")
    a("v_and_b32 v13, 31, v1")
    a("v_lshlrev_b32 v13, 4, v13")
    a("v_add_u32 v12, v12, v13")
    a(f"s_mul_i32 s6, s3, {A2_CH+16}")
    a(f"s_add_u32 s6, s6, {A2_X0}")
    a("v_add_u32 v12, s6, v12")
    srd(a, 36, P_WS, TSZ, WS_XT)
    a("v_lshrrev_b32 v14, 5, v1")
    a("v_lshlrev_b32 v14, 12, v14")
    a("v_add_u32 v14, v14, v13")
    a("s_lshl_b32 s6, s73, 6")
    a("s_lshl_b32 s7, s3, 3")
    a("s_add_u32 s6, s6, s7")
    a("s_lshl_b32 s6, s6, 12")
    a("s_lshl_b32 s7, s72, 9")
    a("s_sub_u32 s7, 3584, s7")
    a("s_add_u32 s6, s6, s7")
    a("v_add_u32 v14, s6, v14")
    a("s_waitcnt lgkmcnt(0)")
    a("s_barrier")
    for m in range(4):
        a(f"ds_read_b128 v[{64+4*m}:{67+4*m}], v12 offset:{2*m*T_RS}")
    a("s_waitcnt lgkmcnt(0)")
    a("s_mov_b32 s6, 0")
    for m in range(4):
        a(f"buffer_store_dwordx4 v[{64+4*m}:{67+4*m}], v14, s[36:39], s6 offen {sc}")
        if m < 3:
            a("s_add_u32 s6, s6, 8192")
    T.stamp(a, 3)
    srd(a, 52, P_H, 640 * 4096)
    for i in range(4):
        a(f"s_add_u32 m0, s60, {A2_H0 + 448 + 1024*i}")
        a(f"s_add_u32 s6, s59, {1024*i}")
        a(f"buffer_load_dwordx4 v10, s[52:55], s6 offen {nh} lds")
    a("v_mov_b32 v13, 0")
    a(f"buffer_load_dwordx4 v[16:19], v13, s[52:55], s59 offen")
    a("s_lshr_b32 s6, s3, 1")
    a("s_cmp_eq_u32 s6, 1")
    a("s_cselect_b32 s58, s65, s64")
    a("s_cmp_eq_u32 s6, 2")
    a("s_cselect_b32 s58, s66, s58")
    a("s_cmp_eq_u32 s6, 3")
    a("s_cselect_b32 s58, s67, s58")
    a("s_and_b32 s6, s3, 1")
    a("s_lshl_b32 s6, s6, 4")
    a("s_lshr_b32 s58, s58, s6")
    a("s_lshl_b32 s58, s58, 16")
    a("s_waitcnt vmcnt(5)")
    a("v_readfirstlane_b32 s44, v250")
    a("s_add_u32 s44, s44, 1")
    a("s_barrier")
    lf = a.newlabel("AF")
    a("s_cmp_lg_u32 s3, 0")
    a(f"s_cbranch_scc1 {lf}")
    a("s_lshl_b32 s6, s73, 3")
    a("s_add_u32 s6, s6, s72")
    a("s_lshl_b32 s6, s6, 7")
    a(f"s_add_u32 s6, s6, {FL_A1}")
    a("v_mov_b32 v12, s6")
    a("v_mov_b32 v13, s44")
    a("s_mov_b64 exec, 1")
    a("buffer_store_dword v13, v12, s[48:51], 0 offen sc1")
    a("s_mov_b64 exec, -1")
    T.stamp(a, 4)
    a.label(lf)
    lp = a.newlabel("AP")
    a("s_cmp_lg_u32 s3, 0")
    a(f"s_cbranch_scc1 {lp}")
    a("s_lshl_b32 s6, s73, 10")
    a(f"s_add_u32 s6, s6, {FL_A1}")
    a("v_lshlrev_b32 v12, 7, v1")
    a("v_add_u32 v12, s6, v12")
    poll(a, 12, 8, 44, 48)
    a.label(lp)
    a("s_waitcnt lgkmcnt(0)")
    a("s_barrier")
    T.stamp(a, 5)
    for i in range(4):
        a(f"s_add_u32 m0, s60, {A2_X0 + 1024*i}")
        a(f"s_add_u32 s6, s59, {1024*i}")
        a(f"buffer_load_dwordx4 v10, s[36:39], s6 offen {sc} lds")
    a("s_mov_b64 exec, 0x1f")
    a(f"ds_write_b128 v23, v[28:31] offset:{A2_X0+4096}")
    a("s_mov_b64 exec, 0xf")
    a(f"ds_write_b128 v23, v[28:31] offset:{A2_X2+4096}")
    a("s_mov_b64 exec, -1")
    srd(a, 32, P_Q, TSZ)
    a("v_and_b32 v13, 15, v1")
    a("s_lshl_b32 s6, s72, 8")
    a("s_lshl_b32 s7, s3, 5")
    a("s_add_u32 s6, s6, s7")
    a("v_add_u32 v9, s6, v13")
    a("v_lshrrev_b32 v13, 4, v1")
    a("v_lshlrev_b32 v13, 4, v13")
    a("s_lshl_b32 s61, s73, 7")
    a("v_add_u32 v8, s61, v13")
    a("v_mul_u32_u24 v14, 1280, v9")
    a("v_add_u32 v14, v14, v8")
    a("s_movk_i32 s6, 20480")
    a(f"buffer_load_dwordx4 v[192:195], v14, s[32:35], 0 offen {na}")
    a(f"buffer_load_dwordx4 v[196:199], v14, s[32:35], 0 offen offset:64 {na}")
    a(f"buffer_load_dwordx4 v[200:203], v14, s[32:35], s6 offen {na}")
    a(f"buffer_load_dwordx4 v[204:207], v14, s[32:35], s6 offen offset:64 {na}")
    a("s_waitcnt vmcnt(8)")
    a("v_lshlrev_b32 v21, 16, v16")
    a("v_add_f32 v21, s58, v21")
    a("v_cvt_pk_bf16_f32 v21, v21, v21")
    a("v_mov_b32 v22, s60")
    a("s_mov_b64 exec, 1")
    a(f"ds_write_b16 v22, v21 offset:{A2_H0+448}")
    a("s_mov_b64 exec, -1")
    a("s_waitcnt lgkmcnt(0)")
    for i in range(4):
        a(f"ds_read_b128 v[{64+8*i}:{67+8*i}], v23 offset:{A2_H0+448+1024*i}")
        a(f"ds_read_b32 v{68+8*i}, v23 offset:{A2_H0+448-4+1024*i}")
    for i in range(4):
        b = 64 + 8 * i
        a(f"s_waitcnt lgkmcnt({2*(3-i)})")
        a(f"v_alignbit_b32 v{b+7}, v{b+3}, v{b+2}, 16")
        a(f"v_alignbit_b32 v{b+6}, v{b+2}, v{b+1}, 16")
        a(f"v_alignbit_b32 v{b+5}, v{b+1}, v{b}, 16")
        a(f"v_alignbit_b32 v{b+4}, v{b}, v{b+4}, 16")
        a(f"ds_write_b128 v23, v[{b+4}:{b+7}] offset:{A2_H1+448+1024*i}")
    a("v_and_b32 v10, 15, v1")
    a("v_lshrrev_b32 v11, 4, v1")
    a("v_lshrrev_b32 v12, 1, v10")
    a("v_lshlrev_b32 v12, 6, v12")
    a("v_lshlrev_b32 v13, 4, v11")
    a("v_add_u32 v12, v12, v13")
    a("v_and_b32 v13, 1, v10")
    a(f"v_mov_b32 v14, {A2_H1}")
    a(f"v_mov_b32 v15, {A2_H0}")
    a("v_cmp_eq_u32 vcc, 1, v13")
    a("v_lshrrev_b32 v13, 1, v10")
    a("v_and_b32 v13, 1, v13")
    a("v_cndmask_b32 v14, v14, v15, vcc")
    a("v_add3_u32 v2, v12, v14, s60")
    a("v_lshlrev_b32 v12, 3, v13")
    a("v_lshrrev_b32 v14, 2, v10")
    a("v_lshlrev_b32 v14, 4, v14")
    a("v_add_u32 v12, v12, v14")
    a("v_lshlrev_b32 v14, 4, v11")
    a("v_sub_u32 v12, v14, v12")
    a(f"v_add_u32 v12, {2*1820 - 512*7}, v12")
    a(f"v_mov_b32 v14, {A2_X2}")
    a(f"v_mov_b32 v15, {A2_X0}")
    a("v_cndmask_b32 v14, v14, v15, vcc")
    a("v_add3_u32 v3, v12, v14, s60")
    for i in range(32):
        a(f"v_mov_b32 v{32+i}, 0")
    a("s_waitcnt vmcnt(4)")
    for i in range(4):
        for d in range(4):
            a(f"ds_read_b32 v{96+4*i+d}, v23 offset:{A2_X0+1024*i+4*(d+1)}")
    for i in range(4):
        a(f"s_waitcnt lgkmcnt({4*(3-i)})")
        a(f"ds_write_b128 v23, v[{96+4*i}:{99+4*i}] offset:{A2_X2+1024*i}")
    a("s_waitcnt lgkmcnt(0)")
    T.stamp(a, 6)

    def reads(A, B):
        r = []
        for aa in range(8):
            r.append(f"ds_read_b128 v[{A+4*aa}:{A+4*aa+3}], v2 offset:{512*aa}")
            r.append(f"ds_read_b64 v[{B+4*aa}:{B+4*aa+1}], v3 offset:{512*(7-aa)}")
            r.append(f"ds_read_b64 v[{B+4*aa+2}:{B+4*aa+3}], v3 offset:{512*(7-aa)+8}")
        r.append("v_add_u32 v2, 64, v2")
        r.append("v_add_u32 v3, 64, v3")
        return r

    def mfmas(A, B):
        r = []
        for t in range(8):
            for aa in range(t + 1):
                u = t - aa
                ac = 32 + 4 * t
                r.append(f"v_mfma_f32_16x16x32_bf16 v[{ac}:{ac+3}], v[{A+4*aa}:{A+4*aa+3}], v[{B+4*u}:{B+4*u+3}], v[{ac}:{ac+3}]")
        return r

    def interleave(m, r):
        for i, x in enumerate(m):
            a(x)
            if i < len(r):
                a(r[i])

    for x in reads(64, 96):
        a(x)
    a("s_mov_b32 s40, 0")
    loop, last = a.newlabel("A2L"), a.newlabel("A2E")
    a.label(loop)
    a("s_waitcnt lgkmcnt(0)")
    interleave(mfmas(64, 96), reads(128, 160))
    a("s_waitcnt lgkmcnt(0)")
    a("s_cmp_eq_u32 s40, 3")
    a(f"s_cbranch_scc1 {last}")
    interleave(mfmas(128, 160), reads(64, 96))
    a("s_add_u32 s40, s40, 1")
    a(f"s_branch {loop}")
    a.label(last)
    for x in mfmas(128, 160):
        a(x)
    T.stamp(a, 7)
    a("v_lshlrev_b32 v12, 5, v11")
    a("v_add_u32 v12, v12, v10")
    a("v_lshlrev_b32 v12, 2, v12")
    a("v_add_u32 v12, s60, v12")
    srd(a, 36, P_WS, TSZ, WS_YT)
    a("v_lshlrev_b32 v15, 4, v1")
    a("v_add_u32 v13, s60, v15")
    for t in range(8):
        ac = 32 + 4 * t
        d = 64 + 2 * t
        a(f"v_cvt_pk_bf16_f32 v{d}, v{ac}, v{ac+1}")
        a(f"v_cvt_pk_bf16_f32 v{d+1}, v{ac+2}, v{ac+3}")
        a(f"ds_write_b32 v12, v{d} offset:{512*t}")
        a(f"ds_write_b32 v12, v{d+1} offset:{512*t+64}")
    a("s_waitcnt lgkmcnt(0)")
    for i in range(4):
        a(f"ds_read_b128 v[{80+4*i}:{83+4*i}], v13 offset:{1024*i}")
    a("s_waitcnt lgkmcnt(0)")
    for i in range(4):
        a(f"s_add_u32 s6, s59, {1024*i}")
        a(f"buffer_store_dwordx4 v[{80+4*i}:{83+4*i}], v15, s[36:39], s6 offen {sc}")
    a("v_lshrrev_b32 v16, 5, v0")
    a("v_and_b32 v17, 31, v0")
    a("v_lshlrev_b32 v17, 4, v17")
    a("s_lshl_b32 s6, s73, 6")
    a("v_add_u32 v18, s6, v16")
    a("v_lshlrev_b32 v18, 12, v18")
    a("s_lshl_b32 s6, s72, 9")
    a("v_add3_u32 v18, v18, v17, s6")
    a(f"v_mul_u32_u24 v16, {Y_RS}, v16")
    a("v_add_u32 v16, v16, v17")
    a("s_waitcnt vmcnt(0)")
    a("s_barrier")
    lp = a.newlabel("AP")
    a("s_cmp_lg_u32 s3, 0")
    a(f"s_cbranch_scc1 {lp}")
    a("s_lshl_b32 s6, s73, 3")
    a("s_add_u32 s6, s6, s72")
    a("s_lshl_b32 s6, s6, 7")
    a(f"s_add_u32 s6, s6, {FL_A2}")
    a("v_mov_b32 v12, s6")
    a("v_mov_b32 v13, s44")
    a("s_mov_b64 exec, 1")
    a("buffer_store_dword v13, v12, s[48:51], 0 offen sc1")
    a("s_mov_b64 exec, -1")
    T.stamp(a, 8)
    a("s_lshl_b32 s6, s73, 10")
    a(f"s_add_u32 s6, s6, {FL_A2}")
    a("v_lshlrev_b32 v12, 7, v1")
    a("v_add_u32 v12, s6, v12")
    poll(a, 12, 8, 44, 48)
    le = a.newlabel("EU")
    a("s_cmp_lg_u32 s72, 0")
    a(f"s_cbranch_scc1 {le}")
    a("v_mov_b32 v11, s44")
    a("s_mov_b64 exec, 1")
    a("buffer_store_dword v11, v251, s[48:51], 0 offen sc1")
    a("s_mov_b64 exec, -1")
    a.label(le)
    a.label(lp)
    a("s_barrier")
    T.stamp(a, 9)
    a("s_mov_b32 s6, 0")
    for m in range(4):
        a(f"buffer_load_dwordx4 v[{64+4*m}:{67+4*m}], v18, s[36:39], s6 offen {sc}")
        if m < 3:
            a("s_add_u32 s6, s6, 65536")
    a("v_lshrrev_b32 v12, 4, v1")
    a("v_lshlrev_b32 v12, 3, v12")
    a("v_lshrrev_b32 v13, 2, v1")
    a("v_and_b32 v13, 3, v13")
    a("v_add_u32 v12, v12, v13")
    a(f"v_mul_u32_u24 v12, {Y_RS}, v12")
    a("v_and_b32 v13, 3, v1")
    a("v_lshlrev_b32 v13, 3, v13")
    a("s_lshl_b32 s6, s3, 6")
    a("v_add3_u32 v12, v12, v13, s6")
    srd(a, 32, P_OUT, 2048 * 2560)
    a("v_mul_u32_u24 v15, 2560, v9")
    a("v_add_u32 v15, v15, v8")
    for m in range(4):
        a(f"s_waitcnt vmcnt({3-m})")
        a(f"ds_write_b128 v16, v[{64+4*m}:{67+4*m}] offset:{16*Y_RS*m}")
    a("s_waitcnt lgkmcnt(0)")
    a("s_barrier")
    for m in range(4):
        off = (m & 1) * 32 * Y_RS + (m >> 1) * 32
        a(f"ds_read_b64_tr_b16 v[{64+4*m}:{65+4*m}], v12 offset:{off}")
        a(f"ds_read_b64_tr_b16 v[{66+4*m}:{67+4*m}], v12 offset:{off + 4*Y_RS}")
    a("s_waitcnt lgkmcnt(0)")
    no = OPT["nt_out"]
    a("s_mov_b32 s7, 40960")
    for m in range(4):
        for i in range(4):
            y = 64 + 4 * m + i
            q = 192 + 4 * m + i
            t = 80 + 4 * (i & 1)
            a(f"v_lshlrev_b32 v{t}, 16, v{y}")
            a(f"v_and_b32 v{t+1}, s57, v{y}")
            a(f"v_lshlrev_b32 v{t+2}, 16, v{q}")
            a(f"v_and_b32 v{t+3}, s57, v{q}")
            a(f"v_pk_mul_f32 v[{t}:{t+1}], v[{t}:{t+1}], v[{t+2}:{t+3}]")
            a(f"v_cvt_pk_bf16_f32 v{y}, v{t}, v{t+1}")
        so = "s7" if m >= 2 else "0"
        of = " offset:64" if (m & 1) else ""
        a(f"buffer_store_dwordx4 v[{64+4*m}:{67+4*m}], v15, s[32:35], {so} offen{of} {no}")
    T.stamp(a, 10)


def kdesc(name, vgpr=256, sgpr=102):
    return f""".amdhsa_kernel {name}
  .amdhsa_next_free_vgpr {vgpr}
  .amdhsa_next_free_sgpr {sgpr}
  .amdhsa_accum_offset {vgpr}
  .amdhsa_group_segment_fixed_size 0
  .amdhsa_kernarg_size 96
  .amdhsa_user_sgpr_count 2
  .amdhsa_user_sgpr_kernarg_segment_ptr 1
  .amdhsa_system_sgpr_workgroup_id_x 1
  .amdhsa_float_denorm_mode_32 3
  .amdhsa_float_denorm_mode_16_64 3
.end_amdhsa_kernel
"""


def gen(ts=False):
    out = "; concat_heads( H3-style ssm conv , sliding local dilated attention ) -- hand-written streams emitted by a python generator\n"
    out += "; @launch grid=(256,1,1) block=(512,1,1) lds=163840\n"
    out += '.amdgcn_target "amdgcn-amd-amdhsa--gfx950"\n.text\n'
    a = Asm()
    T = TS(ts)
    T.init(a)
    T.stamp(a, 0)
    if OPT.get("dbgt"):
        a("s_memrealtime s[96:97]")
        a("s_waitcnt lgkmcnt(0)")
        a("s_mov_b32 s79, s96")
    a("s_cmp_ge_u32 s2, 256")
    a("s_cbranch_scc1 K_END")
    a("s_load_dwordx16 s[8:23], s[0:1], 0")
    a("s_load_dwordx8 s[24:31], s[0:1], 64")
    a("v_lshrrev_b32 v2, 6, v0")
    a("v_and_b32 v1, 63, v0")
    a("s_and_b32 s4, s2, 7")
    a("v_readfirstlane_b32 s3, v2")
    a("s_lshr_b32 s5, s2, 3")
    a("s_waitcnt lgkmcnt(0)")
    if OPT.get("codepf"):
        lab = a.newlabel("CPF")
        a("s_cmp_lg_u32 s3, 7")
        a(f"s_cbranch_scc1 {lab}")
        a("s_cmp_ge_u32 s5, 4")
        a(f"s_cbranch_scc1 {lab}")
        a("s_getpc_b64 s[32:33]")
        a("CPF_BASE:")
        a("s_and_b32 s32, s32, 0xffffff00")
        a("s_mov_b32 s34, 0x5b00")
        a("s_mov_b32 s35, 0x00020000")
        a("s_lshl_b32 s6, s5, 13")
        a("v_lshlrev_b32 v2, 7, v1")
        a("v_add_u32 v2, s6, v2")
        a("buffer_load_dword v254, v2, s[32:35], 0 offen")
        a.label(lab)
    role_decode(a)
    if OPT.get("only") == "A":
        a("s_branch K_END")
    b_program(a, T)
    a("s_branch K_FIN")
    a.label("A_ROLE")
    if OPT.get("only") == "B":
        a("s_branch K_END")
    a_program(a, T)
    a.label("K_FIN")
    if OPT.get("dbgt"):
        a("s_waitcnt vmcnt(0)")
        a("s_memrealtime s[96:97]")
        a("s_waitcnt lgkmcnt(0)")
        lab = a.newlabel("DBG")
        a("s_cmp_lg_u32 s3, 0")
        a(f"s_cbranch_scc1 {lab}")
        a("s_and_b32 s6, s2, 0x3f")
        a("s_cmp_lg_u32 s6, 0")
        a(f"s_cbranch_scc1 {lab}")
        srd(a, 92, P_DBG, 256)
        a("s_lshr_b32 s6, s2, 6")
        a("s_lshl_b32 s6, s6, 3")
        a("v_mov_b32 v2, s6")
        a("v_mov_b32 v4, s79")
        a("v_mov_b32 v5, s96")
        a("s_mov_b64 exec, 1")
        a("buffer_store_dwordx2 v[4:5], v2, s[92:95], 0 offen")
        a("s_waitcnt vmcnt(0)")
        a("s_mov_b64 exec, -1")
        a.label(lab)
    if ts:
        a("s_waitcnt vmcnt(0)")
        T.stamp(a, 15)
        T.flush(a)
    a.label("K_END")
    a("s_endpgm")
    out += f".globl {KNAME}\n.p2align 8\n.type {KNAME},@function\n{KNAME}:\n" + a.text()
    out += '.section .rodata,"a"\n.p2align 6\n' + kdesc(KNAME)
    return out


if __name__ == "__main__":
    mode = sys.argv[1] if len(sys.argv) > 1 else "plain"
    dst = sys.argv[2] if len(sys.argv) > 2 else "k4.s"
    for kv in sys.argv[3:]:
        k, v = kv.split("=")
        OPT[k] = v if k != "spin" else int(v)
    if mode == "tc":
        TS.INSTR = "s_memtime"
    open(dst, "w").write(gen(mode in ("ts", "tc")))
    print("wrote", dst)
```

```python
import sys

KNAME = "concat_heads__ssm_conv_h3__sliding_local_dilated__prompt_kernel"
TSZ = 640 * 4096
WS_OW = 0x0
WS_XT = 0x280000
WS_YT = 0x500000
WS_FL = 0x780000
FL_B = 0x0
FL_A1 = 0x6000
FL_A2 = 0x9000
FL_EB = 0xC000
FL_EA = 0xD000
WS_TS = 0x800000
OOB = 0x80000000

OPT = dict(nopf0=1, b2dma=1, psleep=2, sc_oload="sc1", sc_ostore="sc1", nt_pf="", nt_a="", nt_h="", nt_x="", nt_w="", nt_out="", sc="sc1", spin=1 << 20)


class Asm:
    def __init__(self):
        self.l = []
        self.uid = 0

    def __call__(self, s=""):
        for line in s.split("\n"):
            line = line.strip()
            if line:
                self.l.append("    " + line)

    def label(self, name):
        self.l.append(name + ":")

    def newlabel(self, p="L"):
        self.uid += 1
        return f"{p}_{self.uid}"

    def text(self):
        return "\n".join(self.l) + "\n"


P_Q, P_K, P_V, P_SK, P_H, P_SD, P_X, P_W, P_WO, P_OUT, P_DBG, P_WS = [8 + 2 * i for i in range(12)]


def srd(a, dst, ptr, nbytes, off=0):
    if off:
        a(f"s_add_u32 s{dst}, s{ptr}, 0x{off:x}")
        a(f"s_addc_u32 s{dst+1}, s{ptr+1}, 0")
    else:
        a(f"s_mov_b32 s{dst}, s{ptr}")
        a(f"s_mov_b32 s{dst+1}, s{ptr+1}")
    a(f"s_mov_b32 s{dst+2}, 0x{nbytes:x}")
    a(f"s_mov_b32 s{dst+3}, 0x00020000")


class TS:
    INSTR = "s_memrealtime"

    def __init__(self, on):
        self.on = on
        self.n = 0

    def stamp(self, a, idx):
        if not self.on:
            return
        if OPT.get("stagets") and 3 <= idx < 14:
            return
        a(f"{TS.INSTR} s[96:97]")
        a("s_waitcnt lgkmcnt(0)")
        a(f"s_mov_b32 s{80+idx}, s96")

    def init(self, a):
        if not self.on:
            return
        for i in range(16):
            a(f"s_mov_b32 s{80+i}, 0")

    def flush(self, a):
        if not self.on:
            return
        srd(a, 96, P_WS, 0x40000, WS_TS)
        a("s_mov_b64 exec, 1")
        a("s_lshl_b32 s7, s2, 3")
        a("s_add_u32 s7, s7, s3")
        a("s_lshl_b32 s7, s7, 6")
        a("v_mov_b32 v3, s7")
        for i in range(16):
            a(f"v_mov_b32 v2, s{80+i}")
            a(f"buffer_store_dword v2, v3, s[96:99], 0 offen offset:{4*i}")
        a("s_waitcnt vmcnt(0)")
        a("s_mov_b64 exec, -1")


NRT = 13
B1_XSZ = NRT * 16 * 128
B1_STAGE = B1_XSZ + 16384
B1_NB = 3
QKV_RS = 400
O_LDS = 83200
def WSLOT(p):
    if p < 5:
        return 102400 + 5120 * p
    if p < 11:
        return 133120 + 5120 * (p - 5)
    if p < 19:
        return 5120 * (p - 11)
    return 133120


B2_O3 = 102400
B2_O = 40960
B2_OST = 30720
ACC = 16
XA, XB, WA, WB = 120, 172, 224, 232


def role_decode(a):
    a("s_cmp_lt_u32 s4, 2")
    a("s_cselect_b32 s70, 16, 24")
    a("s_cmp_ge_u32 s5, s70")
    a("s_cbranch_scc1 A_ROLE")


def b_decode(a):
    a("s_cmp_eq_u32 s4, 1")
    a("s_cselect_b32 s71, 1, 0")
    a("s_cmp_ge_u32 s4, 5")
    a("s_cselect_b32 s71, 1, s71")
    a("s_cselect_b32 s7, 3, 0")
    a("s_sub_u32 s6, s4, 2")
    a("s_sub_u32 s6, s6, s7")
    a("s_mul_i32 s6, s6, 3")
    a("s_add_u32 s6, s6, 2")
    a("s_cmp_lt_u32 s4, 2")
    a("s_cselect_b32 s6, 0, s6")
    a("s_lshr_b32 s7, s5, 3")
    a("s_add_u32 s60, s6, s7")
    a("s_and_b32 s68, s5, 7")
    a("s_lshl_b32 s61, s71, 3")
    a("s_add_u32 s61, s61, s68")
    a("s_lshl_b32 s67, s60, 1")
    a("s_add_u32 s67, s67, s71")


def pf_x_addr(a, dst):
    a("v_and_b32 v10, 31, v1")
    a("s_mul_i32 s6, s68, 26")
    a("s_mul_i32 s7, s60, 192")
    a("s_add_u32 s6, s6, s7")
    a("s_sub_u32 s6, s6, 16")
    a("v_add_u32 v11, s6, v10")
    a("s_movk_i32 s7, 1280")
    a("v_mul_lo_u32 v11, v11, s7")
    a("v_lshrrev_b32 v12, 5, v1")
    a("v_lshlrev_b32 v12, 7, v12")
    a("v_add_u32 v11, v11, v12")
    a("v_cmp_gt_u32 vcc, 26, v10")
    a(f"v_mov_b32 v12, 0x{OOB:x}")
    a("s_nop 0")
    a(f"v_cndmask_b32 v{dst}, v12, v11, vcc")


def pf_w_addr(a, dst):
    a("s_cmp_eq_u32 s70, 16")
    a("s_cselect_b32 s6, 60, 40")
    a("s_mul_i32 s7, s5, s6")
    a("v_add_u32 v10, s7, v1")
    a("v_mul_u32_u24 v11, 4370, v10")
    a("v_lshrrev_b32 v11, 16, v11")
    a("v_mul_u32_u24 v12, 15, v11")
    a("v_sub_u32 v12, v10, v12")
    a("v_mul_u32_u24 v13, 52, v12")
    a("v_lshrrev_b32 v13, 8, v13")
    a("v_mul_u32_u24 v14, 5, v13")
    a("v_sub_u32 v14, v12, v14")
    a("v_mul_u32_u24 v11, 3840, v11")
    a("v_mul_u32_u24 v13, 1280, v13")
    a("v_lshlrev_b32 v14, 7, v14")
    a("v_add3_u32 v11, v11, v13, v14")
    a("s_mul_i32 s7, s71, 640")
    a("v_add_u32 v11, s7, v11")
    a("v_cmp_gt_u32 vcc, s6, v1")
    a(f"v_mov_b32 v12, 0x{OOB:x}")
    a("s_nop 0")
    a(f"v_cndmask_b32 v{dst}, v12, v11, vcc")


def b_initial_prefetch(a):
    npf = OPT["nt_pf"]
    srd(a, 32, P_X, TSZ)
    srd(a, 36, P_W, 640 * 3840)
    l1 = a.newlabel("IP")
    a("s_cmp_eq_u32 s3, 3")
    a(f"s_cbranch_scc1 {l1}")
    pf_w_addr(a, 2)
    a("s_mul_i32 s6, s3, 245760")
    a(f"buffer_load_dword v254, v2, s[36:39], s6 offen {npf}")
    a("s_cmp_eq_u32 s3, 2")
    a(f"s_cbranch_scc1 {l1}")
    pf_x_addr(a, 3)
    a("s_lshl_b32 s6, s3, 8")
    a(f"buffer_load_dword v255, v3, s[32:35], s6 offen {npf}")
    a.label(l1)


def b1_loader_setup(a):
    srd(a, 32, P_X, TSZ)
    srd(a, 36, P_W, 640 * 3840)
    a("s_sub_u32 s62, s3, 4")
    a("v_lshrrev_b32 v10, 3, v1")
    a("s_lshl_b32 s6, s62, 3")
    a("v_add_u32 v10, s6, v10")
    a("v_lshrrev_b32 v11, 1, v10")
    a("v_and_b32 v11, 7, v11")
    a("v_and_b32 v12, 7, v1")
    a("v_xor_b32 v11, v11, v12")
    a("v_lshlrev_b32 v11, 4, v11")
    a("s_mul_i32 s6, s60, 192")
    a("s_sub_u32 s6, s6, 16")
    a("v_add_u32 v10, s6, v10")
    a("s_movk_i32 s7, 1280")
    a("v_mul_lo_u32 v10, v10, s7")
    a("v_add_u32 v2, v10, v11")
    a("v_add_u32 v3, 40960, v2")
    a("v_lshrrev_b32 v10, 4, v1")
    a("v_and_b32 v12, 15, v1")
    a("s_mul_i32 s63, s61, 80")
    for which, dst in ((0, 5), (1, 6)):
        a("v_lshlrev_b32 v11, 1, v10")
        if which:
            a("v_add_u32 v11, 8, v11")
        a("v_xor_b32 v11, v11, v12")
        a("v_mul_u32_u24 v13, 52, v11")
        a("v_lshrrev_b32 v13, 8, v13")
        a("v_mul_u32_u24 v14, 5, v13")
        a("v_sub_u32 v14, v11, v14")
        a("v_mul_u32_u24 v13, 1280, v13")
        a("v_lshlrev_b32 v14, 4, v14")
        a("v_add3_u32 v13, v13, v14, s63")
        if OPT.get("walign"):
            a("v_lshlrev_b32 v13, 4, v11")
            a("s_lshl_b32 s6, s61, 7")
            a("v_add_u32 v13, s6, v13")
        a("s_lshl_b32 s6, s62, 4")
        if which:
            a("s_add_u32 s6, s6, 8")
        a("v_add_u32 v14, s6, v10")
        a("v_mul_u32_u24 v14, 3840, v14")
        a(f"v_add_u32 v{dst}, v14, v13")
        a("v_cmp_eq_u32 vcc, 15, v11")
        a(f"v_mov_b32 v13, 0x{OOB:x}")
        a("s_nop 0")
        a(f"v_cndmask_b32 v{dst}, v{dst}, v13, vcc")
    a("s_mov_b32 s41, 0")
    a("s_mov_b32 s42, 0")
    a("s_mov_b32 s43, 0")


def b1_issue_stage(a):
    nx, nw = OPT["nt_x"], OPT["nt_w"]
    a("s_lshl_b32 s6, s62, 10")
    a("s_add_u32 s6, s6, s43")
    a("s_mov_b32 m0, s6")
    a("s_mov_b32 s7, s41")
    a(f"buffer_load_dwordx4 v2, s[32:35], s41 offen {nx} lds")
    for m in range(1, 6):
        a(f"s_add_u32 m0, s6, {4096*m}")
        if m > 1:
            a("s_add_u32 s7, s7, 40960")
        else:
            a("s_nop 0")
        a(f"buffer_load_dwordx4 v3, s[32:35], s7 offen {nx} lds")
    l1 = a.newlabel("IS")
    a("s_cmp_lt_u32 s62, 2")
    a(f"s_cbranch_scc0 {l1}")
    a(f"s_add_u32 m0, s6, {4096*6}")
    a("s_add_u32 s7, s7, 40960")
    a(f"buffer_load_dwordx4 v3, s[32:35], s7 offen {nx} lds")
    a.label(l1)
    a("s_lshl_b32 s7, s62, 12")
    a("s_add_u32 s7, s7, s43")
    a(f"s_add_u32 s7, s7, {B1_XSZ}")
    a("s_mov_b32 m0, s7")
    a("s_add_u32 s46, s42, 15360")
    a(f"buffer_load_dwordx4 v5, s[36:39], s42 offen {nw} lds")
    a("s_add_u32 m0, s7, 1024")
    a("s_nop 0")
    a(f"buffer_load_dwordx4 v5, s[36:39], s46 offen {nw} lds")
    a("s_add_u32 m0, s7, 2048")
    a("s_nop 0")
    a(f"buffer_load_dwordx4 v6, s[36:39], s42 offen {nw} lds")
    a("s_add_u32 m0, s7, 3072")
    a("s_nop 0")
    a(f"buffer_load_dwordx4 v6, s[36:39], s46 offen {nw} lds")
    a("s_add_u32 s41, s41, 128")
    a("s_add_u32 s42, s42, 245760")
    a(f"s_add_u32 s43, s43, {B1_STAGE}")
    a(f"s_cmp_ge_u32 s43, {B1_STAGE*B1_NB}")
    a("s_cselect_b32 s43, 0, s43")


def lwait(a, nb, extra):
    l1, l2 = a.newlabel("LW"), a.newlabel("LW")
    a("s_cmp_lt_u32 s62, 2")
    a(f"s_cbranch_scc0 {l1}")
    a(f"s_waitcnt vmcnt({11*nb+extra})")
    a(f"s_branch {l2}")
    a.label(l1)
    a(f"s_waitcnt vmcnt({10*nb+extra})")
    a.label(l2)


def wo_dma_addr(a):
    for j in range(5):
        a(f"v_add_u32 v10, {64*j}, v1")
        a("v_mul_u32_u24 v11, 6554, v10")
        a("v_lshrrev_b32 v11, 16, v11")
        a("v_mul_u32_u24 v12, 10, v11")
        a("v_sub_u32 v12, v10, v12")
        a("v_lshrrev_b32 v13, 4, v11")
        a("v_lshlrev_b32 v13, 2, v13")
        a("v_and_b32 v14, 3, v11")
        a("v_add_u32 v13, v13, v14")
        a("v_lshrrev_b32 v14, 2, v11")
        a("v_and_b32 v14, 3, v14")
        a("v_lshlrev_b32 v14, 3, v14")
        a("v_add_u32 v13, v13, v14")
        a("v_mul_u32_u24 v13, 1280, v13")
        a("v_lshlrev_b32 v12, 4, v12")
        a("s_mul_i32 s6, s68, 160")
        a(f"v_add3_u32 v{230+j}, v13, v12, s6")


def wo_dma_slots(a, first, n):
    base = WSLOT(first) - first * 5120
    for p in range(first, first + n - 1):
        assert WSLOT(p + 1) - WSLOT(p) == 5120
    a(f"s_add_u32 s47, s62, {first}")
    loop, done = a.newlabel("WO"), a.newlabel("WO")
    a.label(loop)
    a(f"s_cmp_ge_u32 s47, {first+n}")
    a(f"s_cbranch_scc1 {done}")
    a("s_mul_i32 s6, s47, 52")
    a("s_lshr_b32 s6, s6, 8")
    a("s_mul_i32 s7, s6, 5")
    a("s_sub_u32 s7, s47, s7")
    a("s_add_u32 s6, s6, s68")
    a("s_and_b32 s6, s6, 3")
    a("s_mul_i32 s6, s6, 5")
    a("s_add_u32 s7, s7, s6")
    a("s_mul_i32 s7, s7, 40960")
    a("s_mul_i32 s6, s47, 5120")
    a(f"s_add_u32 s6, s6, 0x{base & 0xffffffff:x}")
    for j in range(5):
        a(f"s_add_u32 m0, s6, {1024*j}")
        a("s_nop 0")
        a(f"buffer_load_dwordx4 v{230+j}, s[56:59], s7 offen lds")
    a("s_add_u32 s47, s47, 4")
    a(f"s_branch {loop}")
    a.label(done)


def NPFL():
    return 0 if int(OPT.get('apf', 1)) else 3


def b_later_prefetch(a):
    npf = OPT["nt_pf"]
    a(f"v_mov_b32 v4, 0x{OOB:x}")
    a("s_add_u32 s6, s62, 3")
    a("s_mul_i32 s6, s6, 245760")
    a(f"buffer_load_dword v235, v8, s[36:39], s6 offen {npf}")
    a("s_cmp_lt_u32 s62, 3")
    a("s_cselect_b64 vcc, -1, 0")
    a("v_cndmask_b32 v10, v4, v9, vcc")
    a("s_add_u32 s6, s62, 2")
    a("s_lshl_b32 s6, s6, 8")
    a(f"buffer_load_dword v236, v10, s[32:35], s6 offen {npf}")
    a("v_cndmask_b32 v10, v4, v8, vcc")
    a("s_add_u32 s6, s62, 7")
    a("s_mul_i32 s6, s6, 245760")
    a(f"buffer_load_dword v237, v10, s[36:39], s6 offen {npf}")


def b1_loader(a, T):
    if OPT.get("lprio"):
        a("s_setprio 2")
    b1_loader_setup(a)
    if NPFL():
        pf_w_addr(a, 8)
        pf_x_addr(a, 9)
    def late_setup():
        srd(a, 56, P_WO, 640 * 1280)
        wo_dma_addr(a)
        att_setup(a)
        o_store_setup(a)
        srd(a, 48, P_WS, TSZ, WS_OW)
    if not int(OPT.get("nopf0", 0)):
        late_setup()
        a("s_barrier")
    a("s_mov_b32 s40, 0")
    l0 = a.newlabel("LP")
    a.label(l0)
    b1_issue_stage(a)
    a("s_add_u32 s40, s40, 1")
    lP = a.newlabel("LP")
    a("s_cmp_eq_u32 s40, 2")
    a(f"s_cbranch_scc0 {lP}")
    T.stamp(a, 1)
    if int(OPT.get("nopf0", 0)):
        late_setup()
    lwait(a, 1, 0)
    a("s_barrier")
    a.label(lP)
    a("s_cmp_lt_u32 s40, 3")
    a(f"s_cbranch_scc1 {l0}")
    if NPFL():
        b_later_prefetch(a)
    a("s_mov_b32 s40, 0")
    loop = a.newlabel("LL")
    lA, lB, lC, lD, lW = [a.newlabel("LLx") for _ in range(5)]
    a.label(loop)
    a("s_cmp_lt_u32 s40, 2")
    a(f"s_cbranch_scc1 {lA}")
    a("s_cmp_lt_u32 s40, 8")
    a(f"s_cbranch_scc1 {lB}")
    a("s_cmp_eq_u32 s40, 8")
    a(f"s_cbranch_scc1 {lC}")
    a(f"s_branch {lW}")
    a.label(lA)
    lwait(a, 1, NPFL())
    a(f"s_branch {lW}")
    a.label(lB)
    lwait(a, 1, 0)
    a(f"s_branch {lW}")
    a.label(lC)
    a("s_waitcnt vmcnt(5)")
    a.label(lW)
    a("s_barrier")
    skip, s7, s8, nxt = a.newlabel("LLS"), a.newlabel("LL7"), a.newlabel("LL8"), a.newlabel("LLN")
    a("s_cmp_ge_u32 s40, 7")
    a(f"s_cbranch_scc1 {skip}")
    b1_issue_stage(a)
    a(f"s_branch {nxt}")
    a.label(skip)
    a("s_cmp_eq_u32 s40, 7")
    a(f"s_cbranch_scc0 {s8}")
    wo_dma_slots(a, 5, 6)
    a(f"s_branch {nxt}")
    a.label(s8)
    s9 = a.newlabel("LL9")
    a("s_cmp_eq_u32 s40, 8")
    a(f"s_cbranch_scc0 {s9}")
    wo_dma_slots(a, 0, 5)
    a(f"s_branch {nxt}")
    a.label(s9)
    for rep in range(2):
        a(f"s_add_u32 s6, s68, {2+rep}")
        a("s_and_b32 s6, s6, 3")
        a("s_mul_i32 s6, s6, 160")
        a("s_mul_i32 s7, s62, 40")
        a("s_add_u32 s6, s6, s7")
        a("v_add_u32 v10, s6, v1")
        a("v_mul_u32_u24 v10, 1280, v10")
        a("s_mul_i32 s6, s68, 160")
        a("s_and_b32 s6, s6, 0xffffff80")
        a("v_add_u32 v10, s6, v10")
        a(f"v_mov_b32 v11, 0x{OOB:x}")
        a("v_cmp_gt_u32 vcc, 40, v1")
        a("s_nop 1")
        a("v_cndmask_b32 v10, v11, v10, vcc")
        a(f"buffer_load_dword v{235+2*rep}, v10, s[56:59], 0 offen")
        a(f"buffer_load_dword v{236+2*rep}, v10, s[56:59], 0 offen offset:128")
    a.label(nxt)
    a("s_add_u32 s40, s40, 1")
    a("s_cmp_lt_u32 s40, 10")
    a(f"s_cbranch_scc1 {loop}")


def b1_compute(a, T):
    a("v_and_b32 v10, 15, v1")
    a("v_lshrrev_b32 v11, 4, v1")
    a("v_lshrrev_b32 v12, 1, v10")
    a("v_xor_b32 v12, v12, v11")
    a("v_lshlrev_b32 v12, 4, v12")
    a("v_lshlrev_b32 v10, 7, v10")
    a("v_add_u32 v2, v10, v12")
    a("v_xor_b32 v3, 64, v2")
    a("v_lshrrev_b32 v10, 2, v1")
    a("v_and_b32 v10, 3, v10")
    a("v_and_b32 v12, 3, v1")
    a("v_lshlrev_b32 v13, 3, v11")
    a("v_add_u32 v13, v13, v10")
    a("v_lshlrev_b32 v13, 8, v13")
    a("v_and_b32 v14, 1, v11")
    a("v_lshlrev_b32 v14, 3, v14")
    a("v_lshlrev_b32 v10, 1, v10")
    a("v_add_u32 v14, v14, v10")
    a("v_lshrrev_b32 v15, 1, v12")
    a("s_lshl_b32 s6, s3, 2")
    a("v_add_u32 v15, s6, v15")
    a("v_xor_b32 v15, v15, v14")
    a("v_lshlrev_b32 v15, 4, v15")
    a("v_and_b32 v12, 1, v12")
    a("v_lshlrev_b32 v12, 3, v12")
    a("v_add3_u32 v13, v13, v15, v12")
    a(f"v_add_u32 v4, {B1_XSZ}, v13")
    a("v_xor_b32 v5, 32, v4")
    for i in range(NRT * 8):
        a(f"v_mov_b32 v{ACC+i}, 0")
    att_setup(a)
    a("v_and_b32 v10, 15, v1")
    a(f"v_mul_u32_u24 v10, {QKV_RS}, v10")
    a("v_lshrrev_b32 v11, 4, v1")
    a("s_lshl_b32 s6, s3, 3")
    a("v_add_u32 v11, s6, v11")
    for ct in range(2):
        if ct:
            a("v_add_u32 v11, 4, v11")
        a("v_mul_u32_u24 v6, 52, v11")
        a("v_lshrrev_b32 v6, 8, v6")
        a("v_mul_u32_u24 v7, 5, v6")
        a("v_sub_u32 v7, v11, v7")
        a("v_lshlrev_b32 v6, 6, v6")
        a("v_lshlrev_b32 v7, 3, v7")
        a(f"v_add3_u32 v{12+ct}, v10, v6, v7")
        a(f"v_add_u32 v{14+ct}, {8*16*QKV_RS}, v{12+ct}")

    def reads(xaddr, waddr0, waddr1, ks, X, W):
        r = []
        r.append(f"ds_read_b64_tr_b16 v[{W}:{W+1}], v{waddr0} offset:{8192*ks}")
        r.append(f"ds_read_b64_tr_b16 v[{W+2}:{W+3}], v{waddr0} offset:{8192*ks+1024}")
        r.append(f"ds_read_b64_tr_b16 v[{W+4}:{W+5}], v{waddr1} offset:{8192*ks}")
        r.append(f"ds_read_b64_tr_b16 v[{W+6}:{W+7}], v{waddr1} offset:{8192*ks+1024}")
        for t in range(NRT):
            r.append(f"ds_read_b128 v[{X+4*t}:{X+4*t+3}], v{xaddr} offset:{2048*t}")
        return r

    def mfmas(X, W):
        r = []
        for t in range(NRT):
            for ct in range(2):
                ac = ACC + (ct * NRT + t) * 4
                r.append(f"v_mfma_f32_16x16x32_bf16 v[{ac}:{ac+3}], v[{W+4*ct}:{W+4*ct+3}], v[{X+4*t}:{X+4*t+3}], v[{ac}:{ac+3}]")
        return r

    def inter(m, r):
        if OPT.get("nomfma"):
            return
        for i, x in enumerate(m):
            a(x)
            if i < len(r):
                a(r[i])

    a("s_waitcnt vmcnt(0)")
    if not int(OPT.get("nopf0", 0)):
        a("s_barrier")
    T.stamp(a, 1)
    a("s_barrier")
    T.stamp(a, 2)
    if OPT.get("prio"):
        a("s_setprio 1")
    a("v_mov_b32 v6, v2")
    a("v_mov_b32 v7, v3")
    a("v_mov_b32 v8, v4")
    a("v_mov_b32 v9, v5")
    for x in reads(6, 8, 9, 0, XA, WA):
        a(x)
    a("s_mov_b32 s40, 0")
    a("s_mov_b32 s44, 0")
    loop, last = a.newlabel("CL"), a.newlabel("CE")
    a.label(loop)
    a("s_waitcnt lgkmcnt(0)")
    inter(mfmas(XA, WA), reads(7, 8, 9, 1, XB, WB))
    a(f"s_add_u32 s44, s44, {B1_STAGE}")
    a(f"s_cmp_ge_u32 s44, {B1_STAGE*B1_NB}")
    a("s_cselect_b32 s44, 0, s44")
    a("v_add_u32 v6, s44, v2")
    a("v_add_u32 v7, s44, v3")
    a("v_add_u32 v8, s44, v4")
    a("v_add_u32 v9, s44, v5")
    a("s_waitcnt lgkmcnt(0)")
    a("s_barrier")
    if OPT.get("stagets") and T.on:
        a(f"{TS.INSTR} s[96:97]")
        a("s_waitcnt lgkmcnt(0)")
        for i in range(10):
            a(f"s_cmp_eq_u32 s40, {i}")
            a(f"s_cselect_b32 s{83+i}, s96, s{83+i}")
    a("s_cmp_eq_u32 s40, 9")
    a(f"s_cbranch_scc1 {last}")
    inter(mfmas(XB, WB), reads(6, 8, 9, 0, XA, WA))
    a("s_add_u32 s40, s40, 1")
    a(f"s_branch {loop}")
    a.label(last)
    m = mfmas(XB, WB)

    def wr(t, ct, k):
        ac = ACC + (ct * NRT + t) * 4
        d = XA + 2 * (k % 16)
        r = [f"v_cvt_pk_bf16_f32 v{d}, v{ac}, v{ac+1}", f"v_cvt_pk_bf16_f32 v{d+1}, v{ac+2}, v{ac+3}"]
        if t < 8:
            r.append(f"ds_write_b64 v{12+ct}, v[{d}:{d+1}] offset:{16*QKV_RS*t}")
        else:
            r.append(f"ds_write_b64 v{14+ct}, v[{d}:{d+1}] offset:{16*QKV_RS*(t-8)}")
        return r
    k = 0
    pend = []
    LAG = 8
    for i, x in enumerate(m):
        a(x)
        pend.append((i // 2, i % 2))
        if i >= LAG:
            t, ct = pend.pop(0)
            for y in wr(t, ct, k):
                a(y)
            k += 1
    a("s_nop 7")
    for (t, ct) in pend:
        for y in wr(t, ct, k):
            a(y)
        k += 1


def b1_epi_loader(a):
    a("v_and_b32 v10, 255, v0")
    a("v_mov_b32 v16, 0")
    a("v_mov_b32 v17, 0")
    a("v_mov_b32 v18, 0")
    a("v_mov_b32 v19, 0")
    a("v_lshrrev_b32 v11, 2, v10")
    a("v_and_b32 v12, 3, v10")
    a(f"v_mul_u32_u24 v11, {QKV_RS}, v11")
    a("v_lshlrev_b32 v12, 6, v12")
    a("v_add_u32 v11, v11, v12")
    for it in range(4):
        off = it * 64 * QKV_RS
        if it == 3:
            a("v_cmp_gt_u32 vcc, 64, v10")
            a("s_and_saveexec_b64 s[6:7], vcc")
        if it == 2:
            a(f"v_add_u32 v11, {2*64*QKV_RS}, v11")
        o2 = off if it < 2 else off - 2 * 64 * QKV_RS
        a(f"ds_write_b64 v11, v[16:17] offset:{o2+40}")
        a(f"ds_write_b128 v11, v[16:19] offset:{o2+48}")
        if it == 3:
            a("s_mov_b64 exec, s[6:7]")


KP0, KC0, KP1, KC1, NEG, KQB, VB, OB = 240, 241, 242, 243, 248, 249, 252, 253
S_PAR, S_M0, S_M1 = 64, 72, 74
S_D1, S_D2, S_O1, S_O2 = 76, 77, 66, 78


def att_setup(a):
    R16 = 16 * QKV_RS
    a("v_and_b32 v10, 15, v1")
    a("v_lshrrev_b32 v11, 4, v1")
    a(f"v_mov_b32 v{NEG}, 0xf149f2ca")
    a("v_and_b32 v12, 1, v10")
    a(f"v_cmp_eq_u32 s[{S_PAR}:{S_PAR+1}], 1, v12")
    a("v_lshlrev_b32 v13, 2, v11")
    a("v_add_u32 v13, v13, v12")
    a(f"v_cmp_le_u32 s[{S_M0}:{S_M0+1}], v13, v10")
    a("v_add_u32 v13, 2, v13")
    a(f"v_cmp_le_u32 s[{S_M1}:{S_M1+1}], v13, v10")
    a("v_mov_b32 v14, 0xffff")
    a("v_mov_b32 v15, 0xffff0000")
    a(f"v_cndmask_b32 v14, v14, v15, s[{S_PAR}:{S_PAR+1}]")
    a("v_mov_b32 v15, 0")
    a(f"v_cndmask_b32 v{KC0}, v15, v14, s[{S_M0}:{S_M0+1}]")
    a(f"v_cndmask_b32 v{KP0}, v14, v15, s[{S_M0}:{S_M0+1}]")
    a(f"v_cndmask_b32 v{KC1}, v15, v14, s[{S_M1}:{S_M1+1}]")
    a(f"v_cndmask_b32 v{KP1}, v14, v15, s[{S_M1}:{S_M1+1}]")
    a("s_mul_i32 s46, s3, 3")
    a("s_lshr_b32 s6, s46, 1")
    a("s_and_b32 s7, s46, 1")
    a(f"s_mul_i32 s45, s6, {R16}")
    a("s_lshl_b32 s47, s7, 6")
    a("s_add_u32 s45, s45, s47")
    a("s_mul_i32 s47, s6, 1280")
    a("s_mul_i32 s6, s7, 40")
    a("s_add_u32 s47, s47, s6")
    a("s_cmp_eq_u32 s7, 0")
    a(f"s_cselect_b32 s{S_D1}, 64, {R16-64}")
    a(f"s_mov_b32 s{S_D2}, {R16}")
    a(f"s_cselect_b32 s{S_O1}, 40, {1280-40}")
    a(f"s_mov_b32 s{S_O2}, 1280")
    a(f"v_mul_u32_u24 v12, {QKV_RS}, v10")
    a("v_lshlrev_b32 v13, 4, v11")
    a(f"v_add3_u32 v{KQB}, v12, v13, s45")
    a("v_lshrrev_b32 v12, 2, v1")
    a("v_and_b32 v12, 3, v12")
    a("v_lshlrev_b32 v13, 2, v11")
    a("v_add_u32 v12, v12, v13")
    a(f"v_mul_u32_u24 v12, {QKV_RS}, v12")
    a("v_and_b32 v13, 3, v1")
    a("v_lshlrev_b32 v13, 3, v13")
    a(f"v_add3_u32 v{VB}, v12, v13, s45")
    a("v_mul_u32_u24 v12, 80, v10")
    a("v_lshlrev_b32 v13, 3, v11")
    a("v_add3_u32 v12, v12, v13, s47")
    a(f"v_add_u32 v{OB}, {O_LDS}, v12")


def attention(a, T=None):
    R16 = 16 * QKV_RS
    U = [32 + 48 * u for u in range(3)]
    kq = [KQB, U[1] + 36, U[2] + 36]
    vv = [VB, U[1] + 37, U[2] + 37]
    oo = [OB, U[1] + 38, U[2] + 38]
    a(f"v_add_u32 v{kq[1]}, s{S_D1}, v{KQB}")
    a(f"v_add_u32 v{kq[2]}, s{S_D2}, v{KQB}")
    for u in range(3):
        b = U[u]
        a(f"ds_read_b128 v[{b}:{b+3}], v{kq[u]} offset:{R16}")
        a(f"ds_read_b128 v[{b+4}:{b+7}], v{kq[u]} offset:128")
        a(f"ds_read_b128 v[{b+8}:{b+11}], v{kq[u]} offset:{R16+128}")
    a(f"v_add_u32 v{vv[1]}, s{S_D1}, v{VB}")
    a(f"v_add_u32 v{vv[2]}, s{S_D2}, v{VB}")
    for u in range(3):
        b = U[u]
        a(f"ds_read_b64_tr_b16 v[{b+12}:{b+13}], v{vv[u]} offset:256")
        a(f"ds_read_b64_tr_b16 v[{b+14}:{b+15}], v{vv[u]} offset:{R16+256}")
        a(f"ds_read_b64_tr_b16 v[{b+16}:{b+17}], v{vv[u]} offset:{256+32}")
        a(f"ds_read_b64_tr_b16 v[{b+18}:{b+19}], v{vv[u]} offset:{R16+256+32}")
    a(f"v_add_u32 v{oo[1]}, s{S_O1}, v{OB}")
    a(f"v_add_u32 v{oo[2]}, s{S_O2}, v{OB}")
    a("s_mov_b32 s45, 0x3ea52b5c")
    a("s_waitcnt lgkmcnt(12)")
    for u in range(3):
        b = U[u]
        a(f"v_mfma_f32_16x16x32_bf16 v[{b+20}:{b+23}], v[{b+4}:{b+7}], v[{b}:{b+3}], 0")
        a(f"v_mfma_f32_16x16x32_bf16 v[{b+24}:{b+27}], v[{b+8}:{b+11}], v[{b}:{b+3}], 0")
    a("s_nop 7")

    def each(f):
        for step in zip(*[f(U[u]) for u in range(3)]):
            for x in step:
                a(x)
    P_, M0_, M1_ = f"s[{S_PAR}:{S_PAR+1}]", f"s[{S_M0}:{S_M0+1}]", f"s[{S_M1}:{S_M1+1}]"
    each(lambda b: [f"v_cndmask_b32 v{b+20}, v{b+20}, v{b+21}, {P_}",
                    f"v_cndmask_b32 v{b+22}, v{b+22}, v{b+23}, {P_}",
                    f"v_cndmask_b32 v{b+24}, v{b+24}, v{b+25}, {P_}",
                    f"v_cndmask_b32 v{b+26}, v{b+26}, v{b+27}, {P_}"])
    lsp = a.newlabel("ATS")
    a("s_or_b32 s6, s60, s3")
    a("s_cmp_lg_u32 s6, 0")
    a(f"s_cbranch_scc1 {lsp}")
    for u in range(2):
        a(f"v_mov_b32 v{U[u]+20}, v{NEG}")
        a(f"v_mov_b32 v{U[u]+22}, v{NEG}")
    a.label(lsp)
    each(lambda b: [f"v_cndmask_b32 v{b+20}, v{b+20}, v{b+24}, {M0_}",
                    f"v_cndmask_b32 v{b+22}, v{b+22}, v{b+26}, {M1_}",
                    f"v_max_f32 v{b+28}, v{b+20}, v{b+22}",
                    f"v_mov_b32 v{b+29}, v{b+28}",
                    f"v_permlane32_swap_b32 v{b+28}, v{b+29}",
                    f"v_max_f32 v{b+28}, v{b+28}, v{b+29}",
                    f"v_mov_b32 v{b+29}, v{b+28}",
                    f"v_permlane16_swap_b32 v{b+28}, v{b+29}",
                    f"v_max_f32 v{b+28}, v{b+28}, v{b+29}",
                    f"v_mul_f32 v{b+28}, s45, v{b+28}",
                    f"v_fma_f32 v{b+20}, v{b+20}, s45, -v{b+28}",
                    f"v_fma_f32 v{b+22}, v{b+22}, s45, -v{b+28}",
                    f"v_exp_f32 v{b+20}, v{b+20}",
                    f"v_exp_f32 v{b+22}, v{b+22}",
                    f"v_add_f32 v{b+28}, v{b+20}, v{b+22}",
                    f"v_mov_b32 v{b+29}, v{b+28}",
                    f"v_permlane32_swap_b32 v{b+28}, v{b+29}",
                    f"v_add_f32 v{b+28}, v{b+28}, v{b+29}",
                    f"v_mov_b32 v{b+29}, v{b+28}",
                    f"v_permlane16_swap_b32 v{b+28}, v{b+29}",
                    f"v_add_f32 v{b+28}, v{b+28}, v{b+29}",
                    f"v_rcp_f32 v{b+28}, v{b+28}",
                    f"v_mul_f32 v{b+20}, v{b+20}, v{b+28}",
                    f"v_mul_f32 v{b+22}, v{b+22}, v{b+28}",
                    f"v_cvt_pk_bf16_f32 v{b+20}, v{b+20}, v{b+20}",
                    f"v_cvt_pk_bf16_f32 v{b+22}, v{b+22}, v{b+22}",
                    f"v_and_b32 v{b+40}, v{KP0}, v{b+20}",
                    f"v_and_b32 v{b+41}, v{KP1}, v{b+22}",
                    f"v_and_b32 v{b+42}, v{KC0}, v{b+20}",
                    f"v_and_b32 v{b+43}, v{KC1}, v{b+22}"])
    a("s_waitcnt lgkmcnt(0)")
    for u in range(3):
        b = U[u]
        a(f"v_mfma_f32_16x16x32_bf16 v[{b}:{b+3}], v[{b+12}:{b+15}], v[{b+40}:{b+43}], 0")
        a(f"v_mfma_f32_16x16x32_bf16 v[{b+4}:{b+7}], v[{b+16}:{b+19}], v[{b+40}:{b+43}], 0")
    a("s_nop 7")
    for u in range(3):
        b = U[u]
        a(f"v_cvt_pk_bf16_f32 v{b+8}, v{b}, v{b+1}")
        a(f"v_cvt_pk_bf16_f32 v{b+9}, v{b+2}, v{b+3}")
        a(f"v_cvt_pk_bf16_f32 v{b+10}, v{b+4}, v{b+5}")
        a(f"v_cvt_pk_bf16_f32 v{b+11}, v{b+6}, v{b+7}")
        a(f"ds_write_b64 v{oo[u]}, v[{b+8}:{b+9}]")
    a("s_mov_b64 exec, 0xffff")
    for u in range(3):
        b = U[u]
        a(f"ds_write_b64 v{oo[u]}, v[{b+10}:{b+11}] offset:32")
    a("s_mov_b64 exec, -1")


def epoch_issue(a, vdst, vtmp, srdn, off_expr_sgpr):
    srd(a, srdn, P_WS, 0x10000, WS_FL)
    a(f"v_mov_b32 v{vtmp}, s{off_expr_sgpr}")
    a(f"buffer_load_dword v{vdst}, v{vtmp}, s[{srdn}:{srdn+3}], 0 offen sc1")


def poll(a, vaddr, n_lanes, tag_s, srdn):
    l0, l1 = a.newlabel("PF"), a.newlabel("PF")
    a("s_mov_b32 s45, 0")
    if n_lanes < 64:
        a(f"s_mov_b64 exec, 0x{(1 << n_lanes) - 1:x}")
    a.label(l0)
    a(f"buffer_load_dword v4, v{vaddr}, s[{srdn}:{srdn+3}], 0 offen sc1")
    a("s_waitcnt vmcnt(0)")
    a(f"v_cmp_ne_u32 vcc, s{tag_s}, v4")
    a("s_add_u32 s45, s45, 1")
    a("s_nop 3")
    a(f"s_cbranch_vccz {l1}")
    a(f"s_cmp_gt_u32 s45, {OPT['spin']}")
    a(f"s_cbranch_scc1 {l1}")
    a(f"s_sleep {OPT['psleep']}")
    a(f"s_branch {l0}")
    a.label(l1)
    if n_lanes < 64:
        a("s_mov_b64 exec, -1")


def o_store_setup(a):
    a("v_and_b32 v10, 255, v0")
    a("v_lshlrev_b32 v10, 4, v10")
    a(f"v_add_u32 v216, {O_LDS}, v10")
    a("s_mul_i32 s6, s61, 163840")
    a("s_mul_i32 s7, s60, 15360")
    a("s_add_u32 s6, s6, s7")
    a("v_add_u32 v12, s6, v10")
    a("s_movk_i32 s7, 15360")
    a("s_cmp_eq_u32 s60, 10")
    a("s_cselect_b32 s7, 10240, s7")
    a(f"v_mov_b32 v14, 0x{OOB:x}")
    for i in range(4):
        a(f"v_add_u32 v{217+i}, {4096*i}, v12")
        a(f"v_add_u32 v13, {4096*i}, v10")
        a("v_cmp_gt_u32 vcc, s7, v13")
        a("s_nop 1")
        a(f"v_cndmask_b32 v{217+i}, v14, v{217+i}, vcc")


def o_store(a):
    sc = OPT["sc_ostore"]
    for i in range(4):
        a(f"ds_read_b128 v[{16+4*i}:{19+4*i}], v216 offset:{4096*i}")
    a("s_waitcnt lgkmcnt(0)")
    for i in range(4):
        a(f"buffer_store_dwordx4 v[{16+4*i}:{19+4*i}], v{217+i}, s[48:51], 0 offen {sc}")


def b2_o_addr(a, dst):
    a("s_lshl_b32 s6, s47, 10")
    a("v_add_u32 v10, s6, v239")
    a("v_lshrrev_b32 v11, 9, v10")
    a("v_mul_u32_u24 v11, 4370, v11")
    a("v_lshrrev_b32 v11, 16, v11")
    a("v_mul_u32_u24 v11, 156160, v11")
    a(f"v_add_u32 v{dst}, v10, v11")


def b2_loader_setup(a):
    for i in range(8):
        a(f"s_add_u32 s47, s62, {4*i}")
        b2_o_addr(a, 200 + i)
    a("s_cmp_lt_u32 s62, 2")
    a("s_cselect_b64 vcc, -1, 0")
    a(f"v_mov_b32 v10, 0x{OOB:x}")
    a("v_cndmask_b32 v207, v10, v207, vcc")
    a("s_mul_i32 s49, s67, 7680")


OBUF = [B2_O, B2_O + B2_OST, B2_O3, B2_O]


def b2_loader(a, T):
    sc = OPT["sc_oload"]

    def dma(st):
        a(f"s_add_u32 s50, s68, {st}")
        a("s_and_b32 s50, s50, 3")
        a("s_mul_i32 s50, s50, 655360")
        a("s_add_u32 s50, s50, s49")
        a("s_lshl_b32 s6, s62, 10")
        a(f"s_add_u32 s6, s6, {OBUF[st]}")
        for i in range(8):
            lab = None
            if i == 7:
                lab = a.newlabel("O7")
                a("s_cmp_ge_u32 s62, 2")
                a(f"s_cbranch_scc1 {lab}")
            a(f"s_add_u32 m0, s6, {4096*i}")
            a("s_nop 0")
            a(f"buffer_load_dwordx4 v{200+i}, s[52:55], s50 offen {sc} lds")
            if lab:
                a.label(lab)

    dma(0)
    dma(1)
    a("s_waitcnt vmcnt(7)")
    a("s_barrier")
    dma(2)
    a("s_waitcnt vmcnt(7)")
    a("s_barrier")
    dma(3)
    a("s_waitcnt vmcnt(7)")
    a("s_barrier")
    lq = a.newlabel("W19")
    a("s_cmp_lg_u32 s62, 0")
    a(f"s_cbranch_scc1 {lq}")
    a("s_add_u32 s7, s68, 3")
    a("s_and_b32 s7, s7, 3")
    a("s_mul_i32 s7, s7, 5")
    a("s_add_u32 s7, s7, 4")
    a("s_mul_i32 s7, s7, 40960")
    for j in range(5):
        a(f"s_mov_b32 m0, {WSLOT(19) + 1024*j}")
        a("s_nop 0")
        a(f"buffer_load_dwordx4 v{230+j}, s[56:59], s7 offen lds")
    a.label(lq)
    a("s_waitcnt vmcnt(0)")
    a("s_barrier")


def b2_compute_setup(a):
    a("v_and_b32 v10, 15, v1")
    a("v_lshrrev_b32 v11, 4, v1")
    a("s_and_b32 s6, s3, 1")
    a("s_mul_i32 s6, s6, 48")
    a("v_add_u32 v10, s6, v10")
    a("v_mul_u32_u24 v10, 80, v10")
    for ks in range(5):
        a(f"v_add_u32 v12, {4*ks}, v11")
        a("v_mul_u32_u24 v13, 52, v12")
        a("v_lshrrev_b32 v13, 8, v13")
        a("v_mul_u32_u24 v14, 5, v13")
        a("v_sub_u32 v14, v12, v14")
        a("v_mul_u32_u24 v13, 7680, v13")
        a("v_lshlrev_b32 v14, 4, v14")
        a(f"v_add3_u32 v{224+ks}, v10, v13, v14")
    a("v_lshrrev_b32 v12, 2, v1")
    a("v_and_b32 v12, 3, v12")
    a("v_lshlrev_b32 v13, 2, v11")
    a("v_add_u32 v12, v12, v13")
    a("v_mul_u32_u24 v12, 160, v12")
    a("v_and_b32 v13, 3, v1")
    a("v_lshlrev_b32 v13, 3, v13")
    a("s_lshr_b32 s47, s3, 1")
    a("s_mul_i32 s6, s47, 96")
    a("v_add3_u32 v229, v12, v13, s6")
    for i in range(36):
        a(f"v_mov_b32 v{16+i}, 0")
    srd(a, 56, P_OUT, 2048 * 2560)
    a("v_and_b32 v13, 15, v1")
    a("s_and_b32 s6, s3, 1")
    a("s_mul_i32 s6, s6, 48")
    a("s_mul_i32 s7, s67, 96")
    a("s_add_u32 s6, s6, s7")
    a("v_add_u32 v13, s6, v13")
    a("v_mul_u32_u24 v13, 2560, v13")
    a("v_lshrrev_b32 v14, 4, v1")
    a("v_lshlrev_b32 v14, 3, v14")
    a("s_mul_i32 s6, s68, 160")
    a("s_mul_i32 s7, s47, 96")
    a("s_add_u32 s6, s6, s7")
    a("s_add_u32 s6, s6, 1280")
    a("v_add3_u32 v213, v13, v14, s6")
    a("s_mov_b32 s72, 0")
    a("s_mov_b32 s73, 40960")
    a("s_mov_b32 s74, 81920")


def b2_compute(a, T):
    WF, OF = 56, 120

    def addr(slot, st):
        r = []
        ob, wb = 192 + 5 * slot, 202 + 5 * slot
        for ks in range(5):
            r.append(f"v_add_u32 v{ob+ks}, {OBUF[st]}, v{224+ks}")
            r.append(f"v_add_u32 v{wb+ks}, {WSLOT(5*st+ks)}, v229")
        return r

    def rd_w(slot, ks, nct):
        wb = 202 + 5 * slot
        r = []
        for ct in range(nct):
            F = WF + 12 * ks + 4 * ct
            r.append(f"ds_read_b64_tr_b16 v[{F}:{F+1}], v{wb+ks} offset:{32*ct}")
            r.append(f"ds_read_b64_tr_b16 v[{F+2}:{F+3}], v{wb+ks} offset:{32*ct+2560}")
        return r

    def rd_o(slot, ks):
        ob = 192 + 5 * slot
        return [f"ds_read_b128 v[{OF+12*ks+4*t}:{OF+12*ks+4*t+3}], v{ob+ks} offset:{1280*t}" for t in range(3)]

    def mm(ks, nct):
        r = []
        for t in range(3):
            for ct in range(nct):
                ac = 16 + (t * 3 + ct) * 4
                W = WF + 12 * ks + 4 * ct
                O = OF + 12 * ks + 4 * t
                r.append(f"v_mfma_f32_16x16x32_bf16 v[{ac}:{ac+3}], v[{W}:{W+3}], v[{O}:{O+3}], v[{ac}:{ac+3}]")
        return r

    le, ld = a.newlabel("C2E"), a.newlabel("C2D")
    for x in addr(0, 0):
        a(x)
    a("s_cmp_eq_u32 s47, 0")
    a(f"s_cbranch_scc0 {le}")
    for var, nct in enumerate([3, 2]):
        if var == 1:
            a(f"s_branch {ld}")
            a.label(le)
        for ks in range(5):
            for x in rd_w(0, ks, nct):
                a(x)
        nw = 2 * nct

        def emit(m, fill):
            per = (len(fill) + len(m) - 1) // len(m) if fill else 0
            k = 0
            for x in m:
                a(x)
                for _ in range(per):
                    if k < len(fill):
                        a(fill[k])
                        k += 1
        a("s_waitcnt lgkmcnt(0)")
        a("s_barrier")
        if T.on and not OPT.get("attts") and var == 0:
            T.stamp(a, 10)
        for x in rd_o(0, 0):
            a(x)
        for st in range(4):
            slot = st & 1
            nslot = slot ^ 1
            last = st == 3
            f0 = []
            if st > 0:
                f0 += rd_w(slot, 4, nct)
            f0 += [x for ks in range(1, 5) for x in rd_o(slot, ks)]
            if not last:
                f0 += addr(nslot, st + 1)
            a("s_waitcnt lgkmcnt(0)")
            emit(mm(0, nct), f0)
            for ks in (1, 2, 3):
                fill = rd_w(nslot, ks - 1, nct) if not last else []
                y = 3 * (4 - ks) + ((ks - 1) * nw if not last else 0)
                a(f"s_waitcnt lgkmcnt({min(15, y)})")
                emit(mm(ks, nct), fill)
            if not last:
                a(f"s_waitcnt lgkmcnt({min(15, 3 * nw)})")
                a("s_barrier")
                if T.on and not OPT.get("attts") and var == 0:
                    T.stamp(a, 11 + st)
                for x in rd_o(nslot, 0):
                    a(x)
                emit(mm(4, nct), rd_w(nslot, 3, nct))
            else:
                a("s_waitcnt lgkmcnt(0)")
                emit(mm(4, nct), [])
        no = OPT["nt_out"]
        a("s_nop 7")
        for t in range(3):
            for ct in range(nct):
                ac = 16 + (t * 3 + ct) * 4
                p = 56 + 2 * (t * 3 + ct)
                a(f"v_cvt_pk_bf16_f32 v{p}, v{ac}, v{ac+1}")
                a(f"v_cvt_pk_bf16_f32 v{p+1}, v{ac+2}, v{ac+3}")
                a(f"buffer_store_dwordx2 v[{p}:{p+1}], v213, s[56:59], s{72+t} offen offset:{32*ct} {no}")
    a.label(ld)


def b_program(a, T):
    b_decode(a)
    ld, j1 = a.newlabel("BLD"), a.newlabel("BJ1")
    a("s_cmp_ge_u32 s3, 4")
    a(f"s_cbranch_scc1 {ld}")
    if not int(OPT.get("nopf0", 0)):
        b_initial_prefetch(a)
    a("s_lshl_b32 s6, s60, 7")
    a(f"s_add_u32 s6, s6, {FL_EB}")
    epoch_issue(a, 250, 251, 52, 6)
    b1_compute(a, T)
    T.stamp(a, 3)
    a("s_waitcnt lgkmcnt(0)")
    a(f"s_branch {j1}")
    a.label(ld)
    a("s_lshl_b32 s6, s60, 7")
    a(f"s_add_u32 s6, s6, {FL_EB}")
    epoch_issue(a, 250, 251, 52, 6)
    b1_loader(a, T)
    T.stamp(a, 3)
    if OPT.get("lprio"):
        a("s_setprio 0")
    b1_epi_loader(a)
    a("s_waitcnt lgkmcnt(0)")
    a.label(j1)
    a("s_barrier")
    T.stamp(a, 4)
    attention(a, T)
    a("s_waitcnt lgkmcnt(0)")
    a("s_barrier")
    T.stamp(a, 5)
    ld2, j2 = a.newlabel("BLD"), a.newlabel("BJ2")
    a("s_cmp_ge_u32 s3, 4")
    a(f"s_cbranch_scc1 {ld2}")
    a("v_readfirstlane_b32 s44, v250")
    a("s_add_u32 s44, s44, 1")
    a("s_barrier")
    b2_compute_setup(a)
    a("s_barrier")
    lp = a.newlabel("NP")
    a("s_cmp_lg_u32 s3, 0")
    a(f"s_cbranch_scc1 {lp}")
    a("s_lshl_b32 s6, s60, 4")
    a("s_add_u32 s6, s6, s61")
    a("s_lshl_b32 s6, s6, 7")
    a("v_mov_b32 v10, s6")
    a("v_mov_b32 v11, s44")
    a("s_mov_b64 exec, 1")
    a("buffer_store_dword v11, v10, s[52:55], 0 offen sc1")
    a("s_mov_b64 exec, -1")
    T.stamp(a, 6)
    a("s_lshl_b32 s6, s60, 11")
    a("v_lshlrev_b32 v10, 7, v1")
    a("v_add_u32 v10, s6, v10")
    poll(a, 10, 16, 44, 52)
    le = a.newlabel("EU")
    a("s_cmp_lg_u32 s61, 0")
    a(f"s_cbranch_scc1 {le}")
    a("v_mov_b32 v11, s44")
    a("s_mov_b64 exec, 1")
    a("buffer_store_dword v11, v251, s[52:55], 0 offen sc1")
    a("s_mov_b64 exec, -1")
    a.label(le)
    a.label(lp)
    T.stamp(a, 7)
    a("s_barrier")
    b2_compute(a, T)
    T.stamp(a, 8)
    a(f"s_branch {j2}")
    a.label(ld2)
    o_store(a)
    a("s_barrier")
    a("s_waitcnt vmcnt(0)")
    a("s_barrier")
    if OPT.get("opf"):
        lo = a.newlabel("OPF")
        a("s_cmp_lg_u32 s62, 3")
        a(f"s_cbranch_scc1 {lo}")
        a("s_mul_i32 s6, s61, 163840")
        a("s_mul_i32 s7, s67, 7680")
        a("s_add_u32 s6, s6, s7")
        a("v_lshlrev_b32 v10, 7, v1")
        a(f"v_mov_b32 v11, 0x{OOB:x}")
        a("v_cmp_gt_u32 vcc, 60, v1")
        a("s_nop 1")
        a("v_cndmask_b32 v10, v11, v10, vcc")
        a("buffer_load_dword v237, v10, s[48:51], s6 offen sc1")
        a.label(lo)
    wo_dma_slots(a, 11, 8)
    srd(a, 52, P_WS, TSZ, WS_OW)
    a("v_lshlrev_b32 v239, 4, v1")
    b2_loader_setup(a)
    a("s_waitcnt vmcnt(0)")
    T.stamp(a, 7)
    a("s_barrier")
    b2_loader(a, T)
    T.stamp(a, 8)
    a.label(j2)
    T.stamp(a, 9)


A2_H0 = 0
A2_H1 = 4640
A2_X0 = 9216
A2_X2 = 13696
A2_CH = 17920
T_RS = 528
Y_RS = 528


def a_program(a, T):
    na, nh, sc = OPT["nt_a"], OPT["nt_h"], OPT["sc"]
    a("s_sub_u32 s5, s5, s70")
    a("s_lshl_b32 s6, s4, 1")
    a("s_add_u32 s7, s4, 2")
    a("s_cmp_lt_u32 s4, 2")
    a("s_cselect_b32 s6, s6, s7")
    a("s_lshr_b32 s7, s5, 3")
    a("s_add_u32 s73, s6, s7")
    a("s_and_b32 s72, s5, 7")
    a("s_lshl_b32 s62, s73, 6")
    a("s_lshl_b32 s6, s72, 3")
    a("s_add_u32 s62, s62, s6")
    a("s_add_u32 s63, s62, s3")
    srd(a, 32, P_K, TSZ)
    srd(a, 36, P_V, TSZ)
    srd(a, 40, P_SK, 640 * 8)
    a("v_and_b32 v8, 7, v1")
    a("v_lshrrev_b32 v9, 3, v1")
    a("s_lshl_b32 s6, s3, 3")
    a("v_add_u32 v9, s6, v9")
    a("v_lshlrev_b32 v2, 2, v9")
    a("s_lshl_b32 s6, s72, 8")
    a("v_add_u32 v2, s6, v2")
    a("v_mul_u32_u24 v2, 1280, v2")
    a("v_lshlrev_b32 v3, 4, v8")
    a("s_lshl_b32 s6, s73, 7")
    a("v_add3_u32 v2, v2, v3, s6")
    a("v_add_u32 v3, -3840, v2")
    a("v_add_u32 v4, -2560, v2")
    a("v_add_u32 v5, -1280, v2")
    for m in range(4):
        a(f"buffer_load_dwordx4 v[{64+4*m}:{67+4*m}], v2, s[32:35], 0 offen offset:{1280*m} {na}".replace("offset:0 ", ""))
    for m in range(4):
        a(f"buffer_load_dwordx4 v[{80+4*m}:{83+4*m}], v2, s[36:39], 0 offen offset:{1280*m} {na}".replace("offset:0 ", ""))
    a(f"buffer_load_dwordx4 v[52:55], v3, s[32:35], 0 offen {na}")
    a(f"buffer_load_dwordx4 v[56:59], v4, s[32:35], 0 offen {na}")
    a(f"buffer_load_dwordx4 v[60:63], v5, s[32:35], 0 offen {na}")
    a("v_lshlrev_b32 v6, 6, v8")
    a("s_lshl_b32 s6, s73, 9")
    a("v_add_u32 v6, s6, v6")
    for i in range(4):
        a(f"buffer_load_dwordx4 v[{32+4*i}:{35+4*i}], v6, s[40:43], 0 offen offset:{16*i}".replace("offset:0", ""))
    a("s_lshl_b32 s6, s73, 7")
    a(f"s_add_u32 s6, s6, {FL_EA}")
    epoch_issue(a, 250, 251, 48, 6)
    a("s_lshl_b32 s6, s62, 1")
    a(f"s_add_u32 s44, s{P_SD}, s6")
    a(f"s_addc_u32 s45, s{P_SD+1}, 0")
    a("s_load_dwordx4 s[64:67], s[44:45], 0")
    if int(OPT.get("apf", 1)):
        npf = OPT["nt_pf"]
        a("s_cmp_eq_u32 s4, 1")
        a("s_cselect_b32 s74, 1, 0")
        a("s_cmp_ge_u32 s4, 5")
        a("s_cselect_b32 s74, 1, s74")
        a("s_cselect_b32 s7, 3, 0")
        a("s_sub_u32 s6, s4, 2")
        a("s_sub_u32 s6, s6, s7")
        a("s_mul_i32 s6, s6, 3")
        a("s_add_u32 s6, s6, 2")
        a("s_cmp_lt_u32 s4, 2")
        a("s_cselect_b32 s75, 0, s6")
        a("s_cselect_b32 s76, 128, 64")
        a("s_cselect_b32 s77, 2400, s76")
        a("s_cselect_b32 s77, 2400, 3552") if False else None
        a("s_movk_i32 s77, 3552")
        a("s_cmp_lt_u32 s4, 2")
        a("s_cselect_b32 s77, 2400, s77")
        a("s_lshl_b32 s78, s5, 3")
        a("s_add_u32 s78, s78, s3")
        srd(a, 52, P_W, 640 * 3840)
        srd(a, 56, P_X, TSZ)
        a(f"v_mov_b32 v20, 0x{OOB:x}")

        def wpf(dst):
            a("s_lshl_b32 s6, s6, 6")
            a("v_add_u32 v21, s6, v1")
            a("v_mul_u32_u24 v22, 34953, v21")
            a("v_lshrrev_b32 v22, 19, v22")
            a("v_mul_u32_u24 v23, 15, v22")
            a("v_sub_u32 v23, v21, v23")
            a("v_mul_u32_u24 v24, 52, v23")
            a("v_lshrrev_b32 v24, 8, v24")
            a("v_mul_u32_u24 v25, 5, v24")
            a("v_sub_u32 v25, v23, v25")
            a("v_add_u32 v22, 192, v22")
            a("v_mul_u32_u24 v22, 3840, v22")
            a("v_mul_u32_u24 v24, 1280, v24")
            a("v_lshlrev_b32 v25, 7, v25")
            a("v_add3_u32 v22, v22, v24, v25")
            a("s_mul_i32 s7, s74, 640")
            a("v_add_u32 v22, s7, v22")
            a("s_movk_i32 s7, 6720")
            a("v_cmp_gt_u32 vcc, s7, v21")
            a("s_nop 1")
            a("v_cndmask_b32 v22, v20, v22, vcc")
            a(f"buffer_load_dword v{dst}, v22, s[52:55], 0 offen {npf}")
        a("s_mov_b32 s6, s78")
        wpf(240)
        a("s_lshl_b32 s6, s78, 6")
        a("v_add_u32 v21, s6, v1")
        a("v_mul_u32_u24 v22, 10923, v21")
        a("v_lshrrev_b32 v22, 16, v22")
        a("v_mul_u32_u24 v23, 6, v22")
        a("v_sub_u32 v23, v21, v23")
        a("s_mul_i32 s6, s75, 192")
        a("s_sub_u32 s6, s6, 16")
        a("v_add_u32 v22, s6, v22")
        a("s_movk_i32 s7, 1280")
        a("v_mul_lo_u32 v22, v22, s7")
        a("v_lshlrev_b32 v23, 7, v23")
        a("v_add_u32 v22, v22, v23")
        a("v_add_u32 v22, 512, v22")
        a("v_cmp_gt_u32 vcc, s77, v21")
        a("s_nop 1")
        a("v_cndmask_b32 v22, v20, v22, vcc")
        a(f"buffer_load_dword v241, v22, s[56:59], 0 offen {npf}")
        a("s_add_u32 s6, s78, s76")
        wpf(242)
    a(f"s_mul_i32 s60, s3, {A2_CH}")
    a("s_lshl_b32 s59, s63, 12")
    a("v_lshlrev_b32 v10, 4, v1")
    a("v_add_u32 v11, -2, v10")
    T.stamp(a, 1)
    a("v_mov_b32 v28, 0")
    a("v_mov_b32 v29, 0")
    a("v_mov_b32 v30, 0")
    a("v_mov_b32 v31, 0")
    a("v_add_u32 v23, s60, v10")
    a("s_mov_b64 exec, 0xfffffff")
    a(f"ds_write_b128 v23, v[28:31] offset:{A2_H0}")
    a(f"ds_write_b128 v23, v[28:31] offset:{A2_H1}")
    a("s_mov_b64 exec, -1")
    a(f"v_mul_u32_u24 v7, {A2_CH+16}, v8")
    a("v_lshlrev_b32 v12, 3, v9")
    a("v_sub_u32 v7, v7, v12")
    a(f"v_add_u32 v7, {A2_X0 + 504}, v7")
    a("s_mov_b32 s57, 0xffff0000")
    a(f"s_waitcnt vmcnt({1 + (3 if int(OPT.get('apf', 1)) else 0)})")
    T.stamp(a, 2)
    for c in range(4):
        for m in range(4):
            for e in range(2):
                src = 32 + 2 * (2 * c + e) + (m >> 1)
                dst = 96 + (c * 4 + m) * 2 + e
                if m & 1:
                    a(f"v_and_b32 v{dst}, s57, v{src}")
                else:
                    a(f"v_lshlrev_b32 v{dst}, 16, v{src}")
    for c in range(4):
        for jj in range(7):
            a(f"v_lshlrev_b32 v{128+2*jj}, 16, v{52+4*jj+c}")
            a(f"v_and_b32 v{129+2*jj}, s57, v{52+4*jj+c}")
        for m in range(4):
            a(f"v_lshlrev_b32 v{142+2*m}, 16, v{80+4*m+c}")
            a(f"v_and_b32 v{143+2*m}, s57, v{80+4*m+c}")
        W = lambda m: f"v[{96+(c*4+m)*2}:{97+(c*4+m)*2}]"
        K = lambda jj: f"v[{128+2*jj}:{129+2*jj}]"
        for rr in range(4):
            o = 150 + 2 * rr
            a(f"v_pk_mul_f32 v[{o}:{o+1}], {W(3)}, {K(rr)}")
        for m in (2, 1, 0):
            for rr in range(4):
                o = 150 + 2 * rr
                a(f"v_pk_fma_f32 v[{o}:{o+1}], {W(m)}, {K(3+rr-m)}, v[{o}:{o+1}]")
        for rr in range(4):
            o = 150 + 2 * rr
            a(f"v_pk_mul_f32 v[{o}:{o+1}], v[{o}:{o+1}], v[{142+2*rr}:{143+2*rr}]")
        for e in range(2):
            ch = 2 * c + e
            d = 160 + 4 * (c & 1) + 2 * e
            a(f"v_cvt_pk_bf16_f32 v{d}, v{156+e}, v{154+e}")
            a(f"v_cvt_pk_bf16_f32 v{d+1}, v{152+e}, v{150+e}")
            a(f"ds_write_b64 v7, v[{d}:{d+1}] offset:{ch*T_RS}")
    a("v_lshrrev_b32 v12, 5, v1")
    a(f"v_mul_u32_u24 v12, {T_RS}, v12")
    a("v_and_b32 v13, 31, v1")
    a("v_lshlrev_b32 v13, 4, v13")
    a("v_add_u32 v12, v12, v13")
    a(f"s_mul_i32 s6, s3, {A2_CH+16}")
    a(f"s_add_u32 s6, s6, {A2_X0}")
    a("v_add_u32 v12, s6, v12")
    srd(a, 36, P_WS, TSZ, WS_XT)
    a("v_lshrrev_b32 v14, 5, v1")
    a("v_lshlrev_b32 v14, 12, v14")
    a("v_add_u32 v14, v14, v13")
    a("s_lshl_b32 s6, s73, 6")
    a("s_lshl_b32 s7, s3, 3")
    a("s_add_u32 s6, s6, s7")
    a("s_lshl_b32 s6, s6, 12")
    a("s_lshl_b32 s7, s72, 9")
    a("s_sub_u32 s7, 3584, s7")
    a("s_add_u32 s6, s6, s7")
    a("v_add_u32 v14, s6, v14")
    a("s_waitcnt lgkmcnt(0)")
    a("s_barrier")
    for m in range(4):
        a(f"ds_read_b128 v[{64+4*m}:{67+4*m}], v12 offset:{2*m*T_RS}")
    a("s_waitcnt lgkmcnt(0)")
    a("s_mov_b32 s6, 0")
    for m in range(4):
        a(f"buffer_store_dwordx4 v[{64+4*m}:{67+4*m}], v14, s[36:39], s6 offen {sc}")
        if m < 3:
            a("s_add_u32 s6, s6, 8192")
    T.stamp(a, 3)
    srd(a, 52, P_H, 640 * 4096)
    for i in range(4):
        a(f"s_add_u32 m0, s60, {A2_H0 + 448 + 1024*i}")
        a(f"s_add_u32 s6, s59, {1024*i}")
        a(f"buffer_load_dwordx4 v10, s[52:55], s6 offen {nh} lds")
    a("v_mov_b32 v13, 0")
    a(f"buffer_load_dwordx4 v[16:19], v13, s[52:55], s59 offen")
    a("s_lshr_b32 s6, s3, 1")
    a("s_cmp_eq_u32 s6, 1")
    a("s_cselect_b32 s58, s65, s64")
    a("s_cmp_eq_u32 s6, 2")
    a("s_cselect_b32 s58, s66, s58")
    a("s_cmp_eq_u32 s6, 3")
    a("s_cselect_b32 s58, s67, s58")
    a("s_and_b32 s6, s3, 1")
    a("s_lshl_b32 s6, s6, 4")
    a("s_lshr_b32 s58, s58, s6")
    a("s_lshl_b32 s58, s58, 16")
    a("s_waitcnt vmcnt(5)")
    a("v_readfirstlane_b32 s44, v250")
    a("s_add_u32 s44, s44, 1")
    a("s_barrier")
    lf = a.newlabel("AF")
    a("s_cmp_lg_u32 s3, 0")
    a(f"s_cbranch_scc1 {lf}")
    a("s_lshl_b32 s6, s73, 3")
    a("s_add_u32 s6, s6, s72")
    a("s_lshl_b32 s6, s6, 7")
    a(f"s_add_u32 s6, s6, {FL_A1}")
    a("v_mov_b32 v12, s6")
    a("v_mov_b32 v13, s44")
    a("s_mov_b64 exec, 1")
    a("buffer_store_dword v13, v12, s[48:51], 0 offen sc1")
    a("s_mov_b64 exec, -1")
    T.stamp(a, 4)
    a.label(lf)
    lp = a.newlabel("AP")
    a("s_cmp_lg_u32 s3, 0")
    a(f"s_cbranch_scc1 {lp}")
    a("s_lshl_b32 s6, s73, 10")
    a(f"s_add_u32 s6, s6, {FL_A1}")
    a("v_lshlrev_b32 v12, 7, v1")
    a("v_add_u32 v12, s6, v12")
    poll(a, 12, 8, 44, 48)
    le = a.newlabel("EU")
    a("s_cmp_lg_u32 s72, 0")
    a(f"s_cbranch_scc1 {le}")
    a("v_mov_b32 v13, s44")
    a("s_mov_b64 exec, 1")
    a("buffer_store_dword v13, v251, s[48:51], 0 offen sc1")
    a("s_mov_b64 exec, -1")
    a.label(le)
    a.label(lp)
    a("s_waitcnt lgkmcnt(0)")
    a("s_barrier")
    T.stamp(a, 5)
    for i in range(4):
        a(f"s_add_u32 m0, s60, {A2_X0 + 1024*i}")
        a(f"s_add_u32 s6, s59, {1024*i}")
        a(f"buffer_load_dwordx4 v10, s[36:39], s6 offen {sc} lds")
    a("s_mov_b64 exec, 0x1f")
    a(f"ds_write_b128 v23, v[28:31] offset:{A2_X0+4096}")
    a("s_mov_b64 exec, 0xf")
    a(f"ds_write_b128 v23, v[28:31] offset:{A2_X2+4096}")
    a("s_mov_b64 exec, -1")
    srd(a, 32, P_Q, TSZ)
    a("s_and_b32 s6, s3, 3")
    a("s_lshl_b32 s6, s6, 6")
    a("s_lshl_b32 s7, s72, 8")
    a("s_add_u32 s6, s6, s7")
    a("v_add_u32 v14, s6, v1")
    a("v_mul_u32_u24 v14, 1280, v14")
    a("s_lshl_b32 s61, s73, 7")
    a("v_add_u32 v14, s61, v14")
    a(f"v_mov_b32 v13, 0x{OOB:x}")
    a("s_cmp_lt_u32 s3, 4")
    a("s_cselect_b64 vcc, -1, 0")
    a("v_cndmask_b32 v14, v13, v14, vcc")
    a("buffer_load_dword v243, v14, s[32:35], 0 offen")
    a("s_lshl_b32 s6, s3, 8")
    a("v_add_u32 v9, s6, v1")
    a("s_lshl_b32 s61, s62, 1")
    a("v_mul_u32_u24 v8, 1280, v9")
    a("v_add_u32 v8, s61, v8")
    a("s_waitcnt vmcnt(5)")
    a("v_lshlrev_b32 v21, 16, v16")
    a("v_add_f32 v21, s58, v21")
    a("v_cvt_pk_bf16_f32 v21, v21, v21")
    a("v_mov_b32 v22, s60")
    a("s_mov_b64 exec, 1")
    a(f"ds_write_b16 v22, v21 offset:{A2_H0+448}")
    a("s_mov_b64 exec, -1")
    a("s_waitcnt lgkmcnt(0)")
    for i in range(4):
        a(f"ds_read_b128 v[{64+8*i}:{67+8*i}], v23 offset:{A2_H0+448+1024*i}")
        a(f"ds_read_b32 v{68+8*i}, v23 offset:{A2_H0+448-4+1024*i}")
    for i in range(4):
        b = 64 + 8 * i
        a(f"s_waitcnt lgkmcnt({2*(3-i)})")
        a(f"v_alignbit_b32 v{b+7}, v{b+3}, v{b+2}, 16")
        a(f"v_alignbit_b32 v{b+6}, v{b+2}, v{b+1}, 16")
        a(f"v_alignbit_b32 v{b+5}, v{b+1}, v{b}, 16")
        a(f"v_alignbit_b32 v{b+4}, v{b}, v{b+4}, 16")
        a(f"ds_write_b128 v23, v[{b+4}:{b+7}] offset:{A2_H1+448+1024*i}")
    a("v_and_b32 v10, 15, v1")
    a("v_lshrrev_b32 v11, 4, v1")
    a("v_lshrrev_b32 v12, 1, v10")
    a("v_lshlrev_b32 v12, 6, v12")
    a("v_lshlrev_b32 v13, 4, v11")
    a("v_add_u32 v12, v12, v13")
    a("v_and_b32 v13, 1, v10")
    a(f"v_mov_b32 v14, {A2_H1}")
    a(f"v_mov_b32 v15, {A2_H0}")
    a("v_cmp_eq_u32 vcc, 1, v13")
    a("v_lshrrev_b32 v13, 1, v10")
    a("v_and_b32 v13, 1, v13")
    a("v_cndmask_b32 v14, v14, v15, vcc")
    a("v_add3_u32 v2, v12, v14, s60")
    a("v_lshlrev_b32 v12, 3, v13")
    a("v_lshrrev_b32 v14, 2, v10")
    a("v_lshlrev_b32 v14, 4, v14")
    a("v_add_u32 v12, v12, v14")
    a("v_lshlrev_b32 v14, 4, v11")
    a("v_sub_u32 v12, v14, v12")
    a(f"v_add_u32 v12, {2*1820 - 512*7}, v12")
    a(f"v_mov_b32 v14, {A2_X2}")
    a(f"v_mov_b32 v15, {A2_X0}")
    a("v_cndmask_b32 v14, v14, v15, vcc")
    a("v_add3_u32 v3, v12, v14, s60")
    for i in range(32):
        a(f"v_mov_b32 v{32+i}, 0")
    a("s_waitcnt vmcnt(1)")
    for i in range(4):
        for d in range(4):
            a(f"ds_read_b32 v{96+4*i+d}, v23 offset:{A2_X0+1024*i+4*(d+1)}")
    for i in range(4):
        a(f"s_waitcnt lgkmcnt({4*(3-i)})")
        a(f"ds_write_b128 v23, v[{96+4*i}:{99+4*i}] offset:{A2_X2+1024*i}")
    a("s_waitcnt lgkmcnt(0)")
    T.stamp(a, 6)

    def reads(A, B):
        r = []
        for aa in range(8):
            r.append(f"ds_read_b128 v[{A+4*aa}:{A+4*aa+3}], v2 offset:{512*aa}")
            r.append(f"ds_read_b64 v[{B+4*aa}:{B+4*aa+1}], v3 offset:{512*(7-aa)}")
            r.append(f"ds_read_b64 v[{B+4*aa+2}:{B+4*aa+3}], v3 offset:{512*(7-aa)+8}")
        r.append("v_add_u32 v2, 64, v2")
        r.append("v_add_u32 v3, 64, v3")
        return r

    def mfmas(A, B):
        r = []
        for t in range(8):
            for aa in range(t + 1):
                u = t - aa
                ac = 32 + 4 * t
                r.append(f"v_mfma_f32_16x16x32_bf16 v[{ac}:{ac+3}], v[{A+4*aa}:{A+4*aa+3}], v[{B+4*u}:{B+4*u+3}], v[{ac}:{ac+3}]")
        return r

    def interleave(m, r):
        for i, x in enumerate(m):
            a(x)
            if i < len(r):
                a(r[i])

    for x in reads(64, 96):
        a(x)
    a("s_mov_b32 s40, 0")
    loop, last = a.newlabel("A2L"), a.newlabel("A2E")
    a.label(loop)
    a("s_waitcnt lgkmcnt(0)")
    interleave(mfmas(64, 96), reads(128, 160))
    a("s_waitcnt lgkmcnt(0)")
    a("s_mul_i32 s6, s40, 81920")
    for m in range(4):
        lq = a.newlabel("QL")
        a(f"s_cmp_lg_u32 s40, {m}")
        a(f"s_cbranch_scc1 {lq}")
        a(f"buffer_load_dwordx4 v[{192+4*m}:{195+4*m}], v8, s[32:35], s6 offen")
        a.label(lq)
    a("s_cmp_eq_u32 s40, 3")
    a(f"s_cbranch_scc1 {last}")
    interleave(mfmas(128, 160), reads(64, 96))
    a("s_add_u32 s40, s40, 1")
    a(f"s_branch {loop}")
    a.label(last)
    for x in mfmas(128, 160):
        a(x)
    T.stamp(a, 7)
    a("v_lshlrev_b32 v12, 5, v11")
    a("v_add_u32 v12, v12, v10")
    a("v_lshlrev_b32 v12, 2, v12")
    a("v_add_u32 v12, s60, v12")
    for tt in range(8):
        ac = 32 + 4 * tt
        d = 64 + 2 * tt
        a(f"v_cvt_pk_bf16_f32 v{d}, v{ac}, v{ac+1}")
        a(f"v_cvt_pk_bf16_f32 v{d+1}, v{ac+2}, v{ac+3}")
        a(f"ds_write_b32 v12, v{d} offset:{512*tt}")
        a(f"ds_write_b32 v12, v{d+1} offset:{512*tt+64}")
    a("v_lshrrev_b32 v13, 2, v1")
    a("v_and_b32 v13, 3, v13")
    a(f"v_mul_u32_u24 v13, {A2_CH}, v13")
    a("v_lshrrev_b32 v14, 4, v1")
    a("v_lshlrev_b32 v14, 5, v14")
    a("v_and_b32 v15, 3, v1")
    a("v_lshlrev_b32 v15, 3, v15")
    a("v_add3_u32 v13, v13, v14, v15")
    a("s_lshl_b32 s6, s3, 9")
    a("v_add_u32 v13, s6, v13")
    a(f"v_add_u32 v14, {4*A2_CH}, v13")
    srd(a, 36, P_OUT, 2048 * 2560)
    a("v_mul_u32_u24 v15, 2560, v9")
    a("v_add_u32 v15, s61, v15")
    a("s_waitcnt lgkmcnt(0)")
    a("s_barrier")
    T.stamp(a, 9)
    for m in range(4):
        a(f"ds_read_b64_tr_b16 v[{64+4*m}:{65+4*m}], v13 offset:{128*m}")
        a(f"ds_read_b64_tr_b16 v[{66+4*m}:{67+4*m}], v14 offset:{128*m}")
    a("s_waitcnt vmcnt(0)")
    a("s_mov_b32 s6, 0")
    no = OPT["nt_out"]
    for m in range(4):
        a(f"s_waitcnt lgkmcnt({2*(3-m)})")
        for i in range(4):
            y = 64 + 4 * m + i
            q = 192 + 4 * m + i
            tt = 80 + 4 * (i & 1)
            a(f"v_lshlrev_b32 v{tt}, 16, v{y}")
            a(f"v_and_b32 v{tt+1}, s57, v{y}")
            a(f"v_lshlrev_b32 v{tt+2}, 16, v{q}")
            a(f"v_and_b32 v{tt+3}, s57, v{q}")
            a(f"v_pk_mul_f32 v[{tt}:{tt+1}], v[{tt}:{tt+1}], v[{tt+2}:{tt+3}]")
            a(f"v_cvt_pk_bf16_f32 v{y}, v{tt}, v{tt+1}")
        a(f"buffer_store_dwordx4 v[{64+4*m}:{67+4*m}], v15, s[36:39], s6 offen {no}")
        if m < 3:
            a("s_add_u32 s6, s6, 163840")
    T.stamp(a, 10)


def kdesc(name, vgpr=256, sgpr=102):
    return f""".amdhsa_kernel {name}
  .amdhsa_next_free_vgpr {vgpr}
  .amdhsa_next_free_sgpr {sgpr}
  .amdhsa_accum_offset {vgpr}
  .amdhsa_group_segment_fixed_size 0
  .amdhsa_kernarg_size 96
  .amdhsa_user_sgpr_count 2
  .amdhsa_user_sgpr_kernarg_segment_ptr 1
  .amdhsa_system_sgpr_workgroup_id_x 1
  .amdhsa_float_denorm_mode_32 3
  .amdhsa_float_denorm_mode_16_64 3
.end_amdhsa_kernel
"""


def gen(ts=False):
    out = "; concat_heads( H3-style ssm conv , sliding local dilated attention ) -- hand-written streams emitted by a python generator\n"
    out += "; @launch grid=(256,1,1) block=(512,1,1) lds=163840\n"
    out += '.amdgcn_target "amdgcn-amd-amdhsa--gfx950"\n.text\n'
    a = Asm()
    T = TS(ts)
    T.init(a)
    T.stamp(a, 0)
    if OPT.get("dbgt"):
        a("s_memrealtime s[96:97]")
        a("s_waitcnt lgkmcnt(0)")
        a("s_mov_b32 s79, s96")
    a("s_cmp_ge_u32 s2, 256")
    a("s_cbranch_scc1 K_END")
    a("s_load_dwordx16 s[8:23], s[0:1], 0")
    a("s_load_dwordx8 s[24:31], s[0:1], 64")
    a("v_lshrrev_b32 v2, 6, v0")
    a("v_and_b32 v1, 63, v0")
    a("s_and_b32 s4, s2, 7")
    a("v_readfirstlane_b32 s3, v2")
    a("s_lshr_b32 s5, s2, 3")
    a("s_waitcnt lgkmcnt(0)")
    if OPT.get("codepf"):
        lab = a.newlabel("CPF")
        a("s_cmp_lg_u32 s3, 7")
        a(f"s_cbranch_scc1 {lab}")
        a("s_cmp_ge_u32 s5, 4")
        a(f"s_cbranch_scc1 {lab}")
        a("s_getpc_b64 s[32:33]")
        a("CPF_BASE:")
        a("s_and_b32 s32, s32, 0xffffff00")
        a("s_mov_b32 s34, 0x5b00")
        a("s_mov_b32 s35, 0x00020000")
        a("s_lshl_b32 s6, s5, 13")
        a("v_lshlrev_b32 v2, 7, v1")
        a("v_add_u32 v2, s6, v2")
        a("buffer_load_dword v254, v2, s[32:35], 0 offen")
        a.label(lab)
    role_decode(a)
    if OPT.get("only") == "A":
        a("s_branch K_END")
    b_program(a, T)
    a("s_branch K_FIN")
    a.label("A_ROLE")
    if OPT.get("only") == "B":
        a("s_branch K_END")
    a_program(a, T)
    a.label("K_FIN")
    if OPT.get("dbgt"):
        a("s_waitcnt vmcnt(0)")
        a("s_memrealtime s[96:97]")
        a("s_waitcnt lgkmcnt(0)")
        lab = a.newlabel("DBG")
        a("s_cmp_lg_u32 s3, 0")
        a(f"s_cbranch_scc1 {lab}")
        a("s_and_b32 s6, s2, 0x3f")
        a("s_cmp_lg_u32 s6, 0")
        a(f"s_cbranch_scc1 {lab}")
        srd(a, 92, P_DBG, 256)
        a("s_lshr_b32 s6, s2, 6")
        a("s_lshl_b32 s6, s6, 3")
        a("v_mov_b32 v2, s6")
        a("v_mov_b32 v4, s79")
        a("v_mov_b32 v5, s96")
        a("s_mov_b64 exec, 1")
        a("buffer_store_dwordx2 v[4:5], v2, s[92:95], 0 offen")
        a("s_waitcnt vmcnt(0)")
        a("s_mov_b64 exec, -1")
        a.label(lab)
    if ts:
        a("s_waitcnt vmcnt(0)")
        T.stamp(a, 15)
        T.flush(a)
    a.label("K_END")
    a("s_endpgm")
    out += f".globl {KNAME}\n.p2align 8\n.type {KNAME},@function\n{KNAME}:\n" + a.text()
    out += '.section .rodata,"a"\n.p2align 6\n' + kdesc(KNAME)
    return out


if __name__ == "__main__":
    mode = sys.argv[1] if len(sys.argv) > 1 else "plain"
    dst = sys.argv[2] if len(sys.argv) > 2 else "k4.s"
    for kv in sys.argv[3:]:
        k, v = kv.split("=")
        OPT[k] = v if k != "spin" else int(v)
    if mode == "tc":
        TS.INSTR = "s_memtime"
    open(dst, "w").write(gen(mode in ("ts", "tc")))
    print("wrote", dst)
```

```python
import sys

KNAME = "concat_heads__ssm_conv_h3__sliding_local_dilated__prompt_kernel"
TSZ = 640 * 4096
WS_OW = 0x0
WS_XT = 0x280000
WS_YT = 0x500000
WS_FL = 0x780000
FL_B = 0x0
FL_A1 = 0x6000
FL_A2 = 0x9000
FL_EB = 0xC000
FL_EA = 0xD000
WS_TS = 0x800000
OOB = 0x80000000

OPT = dict(nopf0=1, b2dma=1, psleep=2, sc_oload="sc1", sc_ostore="sc1", nt_pf="", nt_a="", nt_h="", nt_x="", nt_w="", nt_out="", sc="sc1", spin=1 << 20)


class Asm:
    def __init__(self):
        self.l = []
        self.uid = 0

    def __call__(self, s=""):
        for line in s.split("\n"):
            line = line.strip()
            if line:
                self.l.append("    " + line)

    def label(self, name):
        self.l.append(name + ":")

    def newlabel(self, p="L"):
        self.uid += 1
        return f"{p}_{self.uid}"

    def text(self):
        return "\n".join(self.l) + "\n"


P_Q, P_K, P_V, P_SK, P_H, P_SD, P_X, P_W, P_WO, P_OUT, P_DBG, P_WS = [8 + 2 * i for i in range(12)]


def srd(a, dst, ptr, nbytes, off=0):
    if off:
        a(f"s_add_u32 s{dst}, s{ptr}, 0x{off:x}")
        a(f"s_addc_u32 s{dst+1}, s{ptr+1}, 0")
    else:
        a(f"s_mov_b32 s{dst}, s{ptr}")
        a(f"s_mov_b32 s{dst+1}, s{ptr+1}")
    a(f"s_mov_b32 s{dst+2}, 0x{nbytes:x}")
    a(f"s_mov_b32 s{dst+3}, 0x00020000")


class TS:
    INSTR = "s_memrealtime"

    def __init__(self, on):
        self.on = on
        self.n = 0

    def stamp(self, a, idx):
        if not self.on:
            return
        if OPT.get("stagets") and 3 <= idx < 14:
            return
        a(f"{TS.INSTR} s[96:97]")
        a("s_waitcnt lgkmcnt(0)")
        a(f"s_mov_b32 s{80+idx}, s96")

    def init(self, a):
        if not self.on:
            return
        for i in range(16):
            a(f"s_mov_b32 s{80+i}, 0")

    def flush(self, a):
        if not self.on:
            return
        srd(a, 96, P_WS, 0x40000, WS_TS)
        a("s_mov_b64 exec, 1")
        a("s_lshl_b32 s7, s2, 3")
        a("s_add_u32 s7, s7, s3")
        a("s_lshl_b32 s7, s7, 6")
        a("v_mov_b32 v3, s7")
        for i in range(16):
            a(f"v_mov_b32 v2, s{80+i}")
            a(f"buffer_store_dword v2, v3, s[96:99], 0 offen offset:{4*i}")
        a("s_waitcnt vmcnt(0)")
        a("s_mov_b64 exec, -1")


NRT = 13
B1_XSZ = NRT * 16 * 128
B1_STAGE = B1_XSZ + 16384
B1_NB = 3
QKV_RS = 400
O_LDS = 83200
def WSLOT(p):
    if p < 5:
        return 102400 + 5120 * p
    if p < 11:
        return 133120 + 5120 * (p - 5)
    if p < 19:
        return 5120 * (p - 11)
    return 133120


B2_O3 = 102400
B2_O = 40960
B2_OST = 30720
ACC = 16
XA, XB, WA, WB = 120, 172, 224, 232


def role_decode(a):
    a("s_cmp_lt_u32 s4, 2")
    a("s_cselect_b32 s70, 16, 24")
    a("s_cmp_ge_u32 s5, s70")
    a("s_cbranch_scc1 A_ROLE")


def b_decode(a):
    a("s_cmp_eq_u32 s4, 1")
    a("s_cselect_b32 s71, 1, 0")
    a("s_cmp_ge_u32 s4, 5")
    a("s_cselect_b32 s71, 1, s71")
    a("s_cselect_b32 s7, 3, 0")
    a("s_sub_u32 s6, s4, 2")
    a("s_sub_u32 s6, s6, s7")
    a("s_mul_i32 s6, s6, 3")
    a("s_add_u32 s6, s6, 2")
    a("s_cmp_lt_u32 s4, 2")
    a("s_cselect_b32 s6, 0, s6")
    a("s_lshr_b32 s7, s5, 3")
    a("s_add_u32 s60, s6, s7")
    a("s_and_b32 s68, s5, 7")
    a("s_lshl_b32 s61, s71, 3")
    a("s_add_u32 s61, s61, s68")
    a("s_lshl_b32 s67, s60, 1")
    a("s_add_u32 s67, s67, s71")


def pf_x_addr(a, dst):
    a("v_and_b32 v10, 31, v1")
    a("s_mul_i32 s6, s68, 26")
    a("s_mul_i32 s7, s60, 192")
    a("s_add_u32 s6, s6, s7")
    a("s_sub_u32 s6, s6, 16")
    a("v_add_u32 v11, s6, v10")
    a("s_movk_i32 s7, 1280")
    a("v_mul_lo_u32 v11, v11, s7")
    a("v_lshrrev_b32 v12, 5, v1")
    a("v_lshlrev_b32 v12, 7, v12")
    a("v_add_u32 v11, v11, v12")
    a("v_cmp_gt_u32 vcc, 26, v10")
    a(f"v_mov_b32 v12, 0x{OOB:x}")
    a("s_nop 0")
    a(f"v_cndmask_b32 v{dst}, v12, v11, vcc")


def pf_w_addr(a, dst):
    a("s_cmp_eq_u32 s70, 16")
    a("s_cselect_b32 s6, 60, 40")
    a("s_mul_i32 s7, s5, s6")
    a("v_add_u32 v10, s7, v1")
    a("v_mul_u32_u24 v11, 4370, v10")
    a("v_lshrrev_b32 v11, 16, v11")
    a("v_mul_u32_u24 v12, 15, v11")
    a("v_sub_u32 v12, v10, v12")
    a("v_mul_u32_u24 v13, 52, v12")
    a("v_lshrrev_b32 v13, 8, v13")
    a("v_mul_u32_u24 v14, 5, v13")
    a("v_sub_u32 v14, v12, v14")
    a("v_mul_u32_u24 v11, 3840, v11")
    a("v_mul_u32_u24 v13, 1280, v13")
    a("v_lshlrev_b32 v14, 7, v14")
    a("v_add3_u32 v11, v11, v13, v14")
    a("s_mul_i32 s7, s71, 640")
    a("v_add_u32 v11, s7, v11")
    a("v_cmp_gt_u32 vcc, s6, v1")
    a(f"v_mov_b32 v12, 0x{OOB:x}")
    a("s_nop 0")
    a(f"v_cndmask_b32 v{dst}, v12, v11, vcc")


def b_initial_prefetch(a):
    npf = OPT["nt_pf"]
    srd(a, 32, P_X, TSZ)
    srd(a, 36, P_W, 640 * 3840)
    l1 = a.newlabel("IP")
    a("s_cmp_eq_u32 s3, 3")
    a(f"s_cbranch_scc1 {l1}")
    pf_w_addr(a, 2)
    a("s_mul_i32 s6, s3, 245760")
    a(f"buffer_load_dword v254, v2, s[36:39], s6 offen {npf}")
    a("s_cmp_eq_u32 s3, 2")
    a(f"s_cbranch_scc1 {l1}")
    pf_x_addr(a, 3)
    a("s_lshl_b32 s6, s3, 8")
    a(f"buffer_load_dword v255, v3, s[32:35], s6 offen {npf}")
    a.label(l1)


def b1_loader_setup(a):
    srd(a, 32, P_X, TSZ)
    srd(a, 36, P_W, 640 * 3840)
    a("s_sub_u32 s62, s3, 4")
    a("v_lshrrev_b32 v10, 3, v1")
    a("s_lshl_b32 s6, s62, 3")
    a("v_add_u32 v10, s6, v10")
    a("v_lshrrev_b32 v11, 1, v10")
    a("v_and_b32 v11, 7, v11")
    a("v_and_b32 v12, 7, v1")
    a("v_xor_b32 v11, v11, v12")
    a("v_lshlrev_b32 v11, 4, v11")
    a("s_mul_i32 s6, s60, 192")
    a("s_sub_u32 s6, s6, 16")
    a("v_add_u32 v10, s6, v10")
    a("s_movk_i32 s7, 1280")
    a("v_mul_lo_u32 v10, v10, s7")
    a("v_add_u32 v2, v10, v11")
    a("v_add_u32 v3, 40960, v2")
    a("v_lshrrev_b32 v10, 4, v1")
    a("v_and_b32 v12, 15, v1")
    a("s_mul_i32 s63, s61, 80")
    for which, dst in ((0, 5), (1, 6)):
        a("v_lshlrev_b32 v11, 1, v10")
        if which:
            a("v_add_u32 v11, 8, v11")
        a("v_xor_b32 v11, v11, v12")
        a("v_mul_u32_u24 v13, 52, v11")
        a("v_lshrrev_b32 v13, 8, v13")
        a("v_mul_u32_u24 v14, 5, v13")
        a("v_sub_u32 v14, v11, v14")
        a("v_mul_u32_u24 v13, 1280, v13")
        a("v_lshlrev_b32 v14, 4, v14")
        a("v_add3_u32 v13, v13, v14, s63")
        if OPT.get("walign"):
            a("v_lshlrev_b32 v13, 4, v11")
            a("s_lshl_b32 s6, s61, 7")
            a("v_add_u32 v13, s6, v13")
        a("s_lshl_b32 s6, s62, 4")
        if which:
            a("s_add_u32 s6, s6, 8")
        a("v_add_u32 v14, s6, v10")
        a("v_mul_u32_u24 v14, 3840, v14")
        a(f"v_add_u32 v{dst}, v14, v13")
        a("v_cmp_eq_u32 vcc, 15, v11")
        a(f"v_mov_b32 v13, 0x{OOB:x}")
        a("s_nop 0")
        a(f"v_cndmask_b32 v{dst}, v{dst}, v13, vcc")
    a("s_mov_b32 s41, 0")
    a("s_mov_b32 s42, 0")
    a("s_mov_b32 s43, 0")


def b1_issue_stage(a):
    nx, nw = OPT["nt_x"], OPT["nt_w"]
    a("s_lshl_b32 s6, s62, 10")
    a("s_add_u32 s6, s6, s43")
    a("s_mov_b32 m0, s6")
    a("s_mov_b32 s7, s41")
    a(f"buffer_load_dwordx4 v2, s[32:35], s41 offen {nx} lds")
    for m in range(1, 6):
        a(f"s_add_u32 m0, s6, {4096*m}")
        if m > 1:
            a("s_add_u32 s7, s7, 40960")
        else:
            a("s_nop 0")
        a(f"buffer_load_dwordx4 v3, s[32:35], s7 offen {nx} lds")
    l1 = a.newlabel("IS")
    a("s_cmp_lt_u32 s62, 2")
    a(f"s_cbranch_scc0 {l1}")
    a(f"s_add_u32 m0, s6, {4096*6}")
    a("s_add_u32 s7, s7, 40960")
    a(f"buffer_load_dwordx4 v3, s[32:35], s7 offen {nx} lds")
    a.label(l1)
    a("s_lshl_b32 s7, s62, 12")
    a("s_add_u32 s7, s7, s43")
    a(f"s_add_u32 s7, s7, {B1_XSZ}")
    a("s_mov_b32 m0, s7")
    a("s_add_u32 s46, s42, 15360")
    a(f"buffer_load_dwordx4 v5, s[36:39], s42 offen {nw} lds")
    a("s_add_u32 m0, s7, 1024")
    a("s_nop 0")
    a(f"buffer_load_dwordx4 v5, s[36:39], s46 offen {nw} lds")
    a("s_add_u32 m0, s7, 2048")
    a("s_nop 0")
    a(f"buffer_load_dwordx4 v6, s[36:39], s42 offen {nw} lds")
    a("s_add_u32 m0, s7, 3072")
    a("s_nop 0")
    a(f"buffer_load_dwordx4 v6, s[36:39], s46 offen {nw} lds")
    a("s_add_u32 s41, s41, 128")
    a("s_add_u32 s42, s42, 245760")
    a(f"s_add_u32 s43, s43, {B1_STAGE}")
    a(f"s_cmp_ge_u32 s43, {B1_STAGE*B1_NB}")
    a("s_cselect_b32 s43, 0, s43")


def lwait(a, nb, extra):
    l1, l2 = a.newlabel("LW"), a.newlabel("LW")
    a("s_cmp_lt_u32 s62, 2")
    a(f"s_cbranch_scc0 {l1}")
    a(f"s_waitcnt vmcnt({11*nb+extra})")
    a(f"s_branch {l2}")
    a.label(l1)
    a(f"s_waitcnt vmcnt({10*nb+extra})")
    a.label(l2)


def wo_dma_addr(a):
    for j in range(5):
        a(f"v_add_u32 v10, {64*j}, v1")
        a("v_mul_u32_u24 v11, 6554, v10")
        a("v_lshrrev_b32 v11, 16, v11")
        a("v_mul_u32_u24 v12, 10, v11")
        a("v_sub_u32 v12, v10, v12")
        a("v_lshrrev_b32 v13, 4, v11")
        a("v_lshlrev_b32 v13, 2, v13")
        a("v_and_b32 v14, 3, v11")
        a("v_add_u32 v13, v13, v14")
        a("v_lshrrev_b32 v14, 2, v11")
        a("v_and_b32 v14, 3, v14")
        a("v_lshlrev_b32 v14, 3, v14")
        a("v_add_u32 v13, v13, v14")
        a("v_mul_u32_u24 v13, 1280, v13")
        a("v_lshlrev_b32 v12, 4, v12")
        a("s_mul_i32 s6, s68, 160")
        a(f"v_add3_u32 v{230+j}, v13, v12, s6")


def wo_dma_slots(a, first, n):
    base = WSLOT(first) - first * 5120
    for p in range(first, first + n - 1):
        assert WSLOT(p + 1) - WSLOT(p) == 5120
    a(f"s_add_u32 s47, s62, {first}")
    loop, done = a.newlabel("WO"), a.newlabel("WO")
    a.label(loop)
    a(f"s_cmp_ge_u32 s47, {first+n}")
    a(f"s_cbranch_scc1 {done}")
    a("s_mul_i32 s6, s47, 52")
    a("s_lshr_b32 s6, s6, 8")
    a("s_mul_i32 s7, s6, 5")
    a("s_sub_u32 s7, s47, s7")
    a("s_add_u32 s6, s6, s68")
    a("s_and_b32 s6, s6, 3")
    a("s_mul_i32 s6, s6, 5")
    a("s_add_u32 s7, s7, s6")
    a("s_mul_i32 s7, s7, 40960")
    a("s_mul_i32 s6, s47, 5120")
    a(f"s_add_u32 s6, s6, 0x{base & 0xffffffff:x}")
    for j in range(5):
        a(f"s_add_u32 m0, s6, {1024*j}")
        a("s_nop 0")
        a(f"buffer_load_dwordx4 v{230+j}, s[56:59], s7 offen lds")
    a("s_add_u32 s47, s47, 4")
    a(f"s_branch {loop}")
    a.label(done)


def NPFL():
    return 0 if int(OPT.get('apf', 1)) else 3


def b_later_prefetch(a):
    npf = OPT["nt_pf"]
    a(f"v_mov_b32 v4, 0x{OOB:x}")
    a("s_add_u32 s6, s62, 3")
    a("s_mul_i32 s6, s6, 245760")
    a(f"buffer_load_dword v235, v8, s[36:39], s6 offen {npf}")
    a("s_cmp_lt_u32 s62, 3")
    a("s_cselect_b64 vcc, -1, 0")
    a("v_cndmask_b32 v10, v4, v9, vcc")
    a("s_add_u32 s6, s62, 2")
    a("s_lshl_b32 s6, s6, 8")
    a(f"buffer_load_dword v236, v10, s[32:35], s6 offen {npf}")
    a("v_cndmask_b32 v10, v4, v8, vcc")
    a("s_add_u32 s6, s62, 7")
    a("s_mul_i32 s6, s6, 245760")
    a(f"buffer_load_dword v237, v10, s[36:39], s6 offen {npf}")


def b1_loader(a, T):
    if OPT.get("lprio"):
        a("s_setprio 2")
    b1_loader_setup(a)
    if NPFL():
        pf_w_addr(a, 8)
        pf_x_addr(a, 9)
    def late_setup():
        srd(a, 56, P_WO, 640 * 1280)
        wo_dma_addr(a)
        att_setup(a)
        o_store_setup(a)
        srd(a, 48, P_WS, TSZ, WS_OW)
    if not int(OPT.get("nopf0", 0)):
        late_setup()
        a("s_barrier")
    a("s_mov_b32 s40, 0")
    l0 = a.newlabel("LP")
    a.label(l0)
    b1_issue_stage(a)
    a("s_add_u32 s40, s40, 1")
    lP = a.newlabel("LP")
    a("s_cmp_eq_u32 s40, 2")
    a(f"s_cbranch_scc0 {lP}")
    T.stamp(a, 1)
    if int(OPT.get("nopf0", 0)):
        late_setup()
    lwait(a, 1, 0)
    a("s_barrier")
    a.label(lP)
    a("s_cmp_lt_u32 s40, 3")
    a(f"s_cbranch_scc1 {l0}")
    if NPFL():
        b_later_prefetch(a)
    a("s_mov_b32 s40, 0")
    loop = a.newlabel("LL")
    lA, lB, lC, lD, lW = [a.newlabel("LLx") for _ in range(5)]
    a.label(loop)
    a("s_cmp_lt_u32 s40, 2")
    a(f"s_cbranch_scc1 {lA}")
    a("s_cmp_lt_u32 s40, 8")
    a(f"s_cbranch_scc1 {lB}")
    a("s_cmp_eq_u32 s40, 8")
    a(f"s_cbranch_scc1 {lC}")
    a(f"s_branch {lW}")
    a.label(lA)
    lwait(a, 1, NPFL())
    a(f"s_branch {lW}")
    a.label(lB)
    lwait(a, 1, 0)
    a(f"s_branch {lW}")
    a.label(lC)
    a("s_waitcnt vmcnt(5)")
    a.label(lW)
    a("s_barrier")
    skip, s7, s8, nxt = a.newlabel("LLS"), a.newlabel("LL7"), a.newlabel("LL8"), a.newlabel("LLN")
    a("s_cmp_ge_u32 s40, 7")
    a(f"s_cbranch_scc1 {skip}")
    b1_issue_stage(a)
    a(f"s_branch {nxt}")
    a.label(skip)
    a("s_cmp_eq_u32 s40, 7")
    a(f"s_cbranch_scc0 {s8}")
    wo_dma_slots(a, 5, 6)
    a(f"s_branch {nxt}")
    a.label(s8)
    s9 = a.newlabel("LL9")
    a("s_cmp_eq_u32 s40, 8")
    a(f"s_cbranch_scc0 {s9}")
    wo_dma_slots(a, 0, 5)
    a(f"s_branch {nxt}")
    a.label(s9)
    for rep in range(2):
        a(f"s_add_u32 s6, s68, {2+rep}")
        a("s_and_b32 s6, s6, 3")
        a("s_mul_i32 s6, s6, 160")
        a("s_mul_i32 s7, s62, 40")
        a("s_add_u32 s6, s6, s7")
        a("v_add_u32 v10, s6, v1")
        a("v_mul_u32_u24 v10, 1280, v10")
        a("s_mul_i32 s6, s68, 160")
        a("s_and_b32 s6, s6, 0xffffff80")
        a("v_add_u32 v10, s6, v10")
        a(f"v_mov_b32 v11, 0x{OOB:x}")
        a("v_cmp_gt_u32 vcc, 40, v1")
        a("s_nop 1")
        a("v_cndmask_b32 v10, v11, v10, vcc")
        a(f"buffer_load_dword v{235+2*rep}, v10, s[56:59], 0 offen")
        a(f"buffer_load_dword v{236+2*rep}, v10, s[56:59], 0 offen offset:128")
    a.label(nxt)
    a("s_add_u32 s40, s40, 1")
    a("s_cmp_lt_u32 s40, 10")
    a(f"s_cbranch_scc1 {loop}")


def b1_compute(a, T):
    a("v_and_b32 v10, 15, v1")
    a("v_lshrrev_b32 v11, 4, v1")
    a("v_lshrrev_b32 v12, 1, v10")
    a("v_xor_b32 v12, v12, v11")
    a("v_lshlrev_b32 v12, 4, v12")
    a("v_lshlrev_b32 v10, 7, v10")
    a("v_add_u32 v2, v10, v12")
    a("v_xor_b32 v3, 64, v2")
    a("v_lshrrev_b32 v10, 2, v1")
    a("v_and_b32 v10, 3, v10")
    a("v_and_b32 v12, 3, v1")
    a("v_lshlrev_b32 v13, 3, v11")
    a("v_add_u32 v13, v13, v10")
    a("v_lshlrev_b32 v13, 8, v13")
    a("v_and_b32 v14, 1, v11")
    a("v_lshlrev_b32 v14, 3, v14")
    a("v_lshlrev_b32 v10, 1, v10")
    a("v_add_u32 v14, v14, v10")
    a("v_lshrrev_b32 v15, 1, v12")
    a("s_lshl_b32 s6, s3, 2")
    a("v_add_u32 v15, s6, v15")
    a("v_xor_b32 v15, v15, v14")
    a("v_lshlrev_b32 v15, 4, v15")
    a("v_and_b32 v12, 1, v12")
    a("v_lshlrev_b32 v12, 3, v12")
    a("v_add3_u32 v13, v13, v15, v12")
    a(f"v_add_u32 v4, {B1_XSZ}, v13")
    a("v_xor_b32 v5, 32, v4")
    for i in range(NRT * 8):
        a(f"v_mov_b32 v{ACC+i}, 0")
    att_setup(a)
    a("v_and_b32 v10, 15, v1")
    a(f"v_mul_u32_u24 v10, {QKV_RS}, v10")
    a("v_lshrrev_b32 v11, 4, v1")
    a("s_lshl_b32 s6, s3, 3")
    a("v_add_u32 v11, s6, v11")
    for ct in range(2):
        if ct:
            a("v_add_u32 v11, 4, v11")
        a("v_mul_u32_u24 v6, 52, v11")
        a("v_lshrrev_b32 v6, 8, v6")
        a("v_mul_u32_u24 v7, 5, v6")
        a("v_sub_u32 v7, v11, v7")
        a("v_lshlrev_b32 v6, 6, v6")
        a("v_lshlrev_b32 v7, 3, v7")
        a(f"v_add3_u32 v{12+ct}, v10, v6, v7")
        a(f"v_add_u32 v{14+ct}, {8*16*QKV_RS}, v{12+ct}")

    def reads(xaddr, waddr0, waddr1, ks, X, W):
        r = []
        r.append(f"ds_read_b64_tr_b16 v[{W}:{W+1}], v{waddr0} offset:{8192*ks}")
        r.append(f"ds_read_b64_tr_b16 v[{W+2}:{W+3}], v{waddr0} offset:{8192*ks+1024}")
        r.append(f"ds_read_b64_tr_b16 v[{W+4}:{W+5}], v{waddr1} offset:{8192*ks}")
        r.append(f"ds_read_b64_tr_b16 v[{W+6}:{W+7}], v{waddr1} offset:{8192*ks+1024}")
        for t in range(NRT):
            r.append(f"ds_read_b128 v[{X+4*t}:{X+4*t+3}], v{xaddr} offset:{2048*t}")
        return r

    def mfmas(X, W):
        r = []
        for t in range(NRT):
            for ct in range(2):
                ac = ACC + (ct * NRT + t) * 4
                r.append(f"v_mfma_f32_16x16x32_bf16 v[{ac}:{ac+3}], v[{W+4*ct}:{W+4*ct+3}], v[{X+4*t}:{X+4*t+3}], v[{ac}:{ac+3}]")
        return r

    def inter(m, r):
        if OPT.get("nomfma"):
            return
        for i, x in enumerate(m):
            a(x)
            if i < len(r):
                a(r[i])

    a("s_waitcnt vmcnt(0)")
    if not int(OPT.get("nopf0", 0)):
        a("s_barrier")
    T.stamp(a, 1)
    a("s_barrier")
    T.stamp(a, 2)
    if OPT.get("prio"):
        a("s_setprio 1")
    a("v_mov_b32 v6, v2")
    a("v_mov_b32 v7, v3")
    a("v_mov_b32 v8, v4")
    a("v_mov_b32 v9, v5")
    for x in reads(6, 8, 9, 0, XA, WA):
        a(x)
    a("s_mov_b32 s40, 0")
    a("s_mov_b32 s44, 0")
    loop, last = a.newlabel("CL"), a.newlabel("CE")
    a.label(loop)
    a("s_waitcnt lgkmcnt(0)")
    inter(mfmas(XA, WA), reads(7, 8, 9, 1, XB, WB))
    a(f"s_add_u32 s44, s44, {B1_STAGE}")
    a(f"s_cmp_ge_u32 s44, {B1_STAGE*B1_NB}")
    a("s_cselect_b32 s44, 0, s44")
    a("v_add_u32 v6, s44, v2")
    a("v_add_u32 v7, s44, v3")
    a("v_add_u32 v8, s44, v4")
    a("v_add_u32 v9, s44, v5")
    a("s_waitcnt lgkmcnt(0)")
    a("s_barrier")
    if OPT.get("stagets") and T.on:
        a(f"{TS.INSTR} s[96:97]")
        a("s_waitcnt lgkmcnt(0)")
        for i in range(10):
            a(f"s_cmp_eq_u32 s40, {i}")
            a(f"s_cselect_b32 s{83+i}, s96, s{83+i}")
    a("s_cmp_eq_u32 s40, 9")
    a(f"s_cbranch_scc1 {last}")
    inter(mfmas(XB, WB), reads(6, 8, 9, 0, XA, WA))
    a("s_add_u32 s40, s40, 1")
    a(f"s_branch {loop}")
    a.label(last)
    m = mfmas(XB, WB)

    def wr(t, ct, k):
        ac = ACC + (ct * NRT + t) * 4
        d = XA + 2 * (k % 16)
        r = [f"v_cvt_pk_bf16_f32 v{d}, v{ac}, v{ac+1}", f"v_cvt_pk_bf16_f32 v{d+1}, v{ac+2}, v{ac+3}"]
        if t < 8:
            r.append(f"ds_write_b64 v{12+ct}, v[{d}:{d+1}] offset:{16*QKV_RS*t}")
        else:
            r.append(f"ds_write_b64 v{14+ct}, v[{d}:{d+1}] offset:{16*QKV_RS*(t-8)}")
        return r
    k = 0
    pend = []
    LAG = 8
    for i, x in enumerate(m):
        a(x)
        pend.append((i // 2, i % 2))
        if i >= LAG:
            t, ct = pend.pop(0)
            for y in wr(t, ct, k):
                a(y)
            k += 1
    a("s_nop 7")
    for (t, ct) in pend:
        for y in wr(t, ct, k):
            a(y)
        k += 1


def b1_epi_loader(a):
    a("v_and_b32 v10, 255, v0")
    a("v_mov_b32 v16, 0")
    a("v_mov_b32 v17, 0")
    a("v_mov_b32 v18, 0")
    a("v_mov_b32 v19, 0")
    a("v_lshrrev_b32 v11, 2, v10")
    a("v_and_b32 v12, 3, v10")
    a(f"v_mul_u32_u24 v11, {QKV_RS}, v11")
    a("v_lshlrev_b32 v12, 6, v12")
    a("v_add_u32 v11, v11, v12")
    for it in range(4):
        off = it * 64 * QKV_RS
        if it == 3:
            a("v_cmp_gt_u32 vcc, 64, v10")
            a("s_and_saveexec_b64 s[6:7], vcc")
        if it == 2:
            a(f"v_add_u32 v11, {2*64*QKV_RS}, v11")
        o2 = off if it < 2 else off - 2 * 64 * QKV_RS
        a(f"ds_write_b64 v11, v[16:17] offset:{o2+40}")
        a(f"ds_write_b128 v11, v[16:19] offset:{o2+48}")
        if it == 3:
            a("s_mov_b64 exec, s[6:7]")


KP0, KC0, KP1, KC1, NEG, KQB, VB, OB = 240, 241, 242, 243, 248, 249, 252, 253
S_PAR, S_M0, S_M1 = 64, 72, 74
S_D1, S_D2, S_O1, S_O2 = 76, 77, 66, 78


def att_setup(a):
    R16 = 16 * QKV_RS
    a("v_and_b32 v10, 15, v1")
    a("v_lshrrev_b32 v11, 4, v1")
    a(f"v_mov_b32 v{NEG}, 0xf149f2ca")
    a("v_and_b32 v12, 1, v10")
    a(f"v_cmp_eq_u32 s[{S_PAR}:{S_PAR+1}], 1, v12")
    a("v_lshlrev_b32 v13, 2, v11")
    a("v_add_u32 v13, v13, v12")
    a(f"v_cmp_le_u32 s[{S_M0}:{S_M0+1}], v13, v10")
    a("v_add_u32 v13, 2, v13")
    a(f"v_cmp_le_u32 s[{S_M1}:{S_M1+1}], v13, v10")
    a("v_mov_b32 v14, 0xffff")
    a("v_mov_b32 v15, 0xffff0000")
    a(f"v_cndmask_b32 v14, v14, v15, s[{S_PAR}:{S_PAR+1}]")
    a("v_mov_b32 v15, 0")
    a(f"v_cndmask_b32 v{KC0}, v15, v14, s[{S_M0}:{S_M0+1}]")
    a(f"v_cndmask_b32 v{KP0}, v14, v15, s[{S_M0}:{S_M0+1}]")
    a(f"v_cndmask_b32 v{KC1}, v15, v14, s[{S_M1}:{S_M1+1}]")
    a(f"v_cndmask_b32 v{KP1}, v14, v15, s[{S_M1}:{S_M1+1}]")
    a("s_mul_i32 s46, s3, 3")
    a("s_lshr_b32 s6, s46, 1")
    a("s_and_b32 s7, s46, 1")
    a(f"s_mul_i32 s45, s6, {R16}")
    a("s_lshl_b32 s47, s7, 6")
    a("s_add_u32 s45, s45, s47")
    a("s_mul_i32 s47, s6, 1280")
    a("s_mul_i32 s6, s7, 40")
    a("s_add_u32 s47, s47, s6")
    a("s_cmp_eq_u32 s7, 0")
    a(f"s_cselect_b32 s{S_D1}, 64, {R16-64}")
    a(f"s_mov_b32 s{S_D2}, {R16}")
    a(f"s_cselect_b32 s{S_O1}, 40, {1280-40}")
    a(f"s_mov_b32 s{S_O2}, 1280")
    a(f"v_mul_u32_u24 v12, {QKV_RS}, v10")
    a("v_lshlrev_b32 v13, 4, v11")
    a(f"v_add3_u32 v{KQB}, v12, v13, s45")
    a("v_lshrrev_b32 v12, 2, v1")
    a("v_and_b32 v12, 3, v12")
    a("v_lshlrev_b32 v13, 2, v11")
    a("v_add_u32 v12, v12, v13")
    a(f"v_mul_u32_u24 v12, {QKV_RS}, v12")
    a("v_and_b32 v13, 3, v1")
    a("v_lshlrev_b32 v13, 3, v13")
    a(f"v_add3_u32 v{VB}, v12, v13, s45")
    a("v_mul_u32_u24 v12, 80, v10")
    a("v_lshlrev_b32 v13, 3, v11")
    a("v_add3_u32 v12, v12, v13, s47")
    a(f"v_add_u32 v{OB}, {O_LDS}, v12")


def attention(a, T=None):
    R16 = 16 * QKV_RS
    U = [32 + 48 * u for u in range(3)]
    kq = [KQB, U[1] + 36, U[2] + 36]
    vv = [VB, U[1] + 37, U[2] + 37]
    oo = [OB, U[1] + 38, U[2] + 38]
    a(f"v_add_u32 v{kq[1]}, s{S_D1}, v{KQB}")
    a(f"v_add_u32 v{kq[2]}, s{S_D2}, v{KQB}")
    for u in range(3):
        b = U[u]
        a(f"ds_read_b128 v[{b}:{b+3}], v{kq[u]} offset:{R16}")
        a(f"ds_read_b128 v[{b+4}:{b+7}], v{kq[u]} offset:128")
        a(f"ds_read_b128 v[{b+8}:{b+11}], v{kq[u]} offset:{R16+128}")
    a(f"v_add_u32 v{vv[1]}, s{S_D1}, v{VB}")
    a(f"v_add_u32 v{vv[2]}, s{S_D2}, v{VB}")
    for u in range(3):
        b = U[u]
        a(f"ds_read_b64_tr_b16 v[{b+12}:{b+13}], v{vv[u]} offset:256")
        a(f"ds_read_b64_tr_b16 v[{b+14}:{b+15}], v{vv[u]} offset:{R16+256}")
        a(f"ds_read_b64_tr_b16 v[{b+16}:{b+17}], v{vv[u]} offset:{256+32}")
        a(f"ds_read_b64_tr_b16 v[{b+18}:{b+19}], v{vv[u]} offset:{R16+256+32}")
    a(f"v_add_u32 v{oo[1]}, s{S_O1}, v{OB}")
    a(f"v_add_u32 v{oo[2]}, s{S_O2}, v{OB}")
    a("s_mov_b32 s45, 0x3ea52b5c")
    a("s_waitcnt lgkmcnt(12)")
    for u in range(3):
        b = U[u]
        a(f"v_mfma_f32_16x16x32_bf16 v[{b+20}:{b+23}], v[{b+4}:{b+7}], v[{b}:{b+3}], 0")
        a(f"v_mfma_f32_16x16x32_bf16 v[{b+24}:{b+27}], v[{b+8}:{b+11}], v[{b}:{b+3}], 0")
    a("s_nop 7")

    def each(f):
        for step in zip(*[f(U[u]) for u in range(3)]):
            for x in step:
                a(x)
    P_, M0_, M1_ = f"s[{S_PAR}:{S_PAR+1}]", f"s[{S_M0}:{S_M0+1}]", f"s[{S_M1}:{S_M1+1}]"
    each(lambda b: [f"v_cndmask_b32 v{b+20}, v{b+20}, v{b+21}, {P_}",
                    f"v_cndmask_b32 v{b+22}, v{b+22}, v{b+23}, {P_}",
                    f"v_cndmask_b32 v{b+24}, v{b+24}, v{b+25}, {P_}",
                    f"v_cndmask_b32 v{b+26}, v{b+26}, v{b+27}, {P_}"])
    lsp = a.newlabel("ATS")
    a("s_or_b32 s6, s60, s3")
    a("s_cmp_lg_u32 s6, 0")
    a(f"s_cbranch_scc1 {lsp}")
    for u in range(2):
        a(f"v_mov_b32 v{U[u]+20}, v{NEG}")
        a(f"v_mov_b32 v{U[u]+22}, v{NEG}")
    a.label(lsp)
    each(lambda b: [f"v_cndmask_b32 v{b+20}, v{b+20}, v{b+24}, {M0_}",
                    f"v_cndmask_b32 v{b+22}, v{b+22}, v{b+26}, {M1_}",
                    f"v_max_f32 v{b+28}, v{b+20}, v{b+22}",
                    f"v_mov_b32 v{b+29}, v{b+28}",
                    f"v_permlane32_swap_b32 v{b+28}, v{b+29}",
                    f"v_max_f32 v{b+28}, v{b+28}, v{b+29}",
                    f"v_mov_b32 v{b+29}, v{b+28}",
                    f"v_permlane16_swap_b32 v{b+28}, v{b+29}",
                    f"v_max_f32 v{b+28}, v{b+28}, v{b+29}",
                    f"v_mul_f32 v{b+28}, s45, v{b+28}",
                    f"v_fma_f32 v{b+20}, v{b+20}, s45, -v{b+28}",
                    f"v_fma_f32 v{b+22}, v{b+22}, s45, -v{b+28}",
                    f"v_exp_f32 v{b+20}, v{b+20}",
                    f"v_exp_f32 v{b+22}, v{b+22}",
                    f"v_add_f32 v{b+28}, v{b+20}, v{b+22}",
                    f"v_mov_b32 v{b+29}, v{b+28}",
                    f"v_permlane32_swap_b32 v{b+28}, v{b+29}",
                    f"v_add_f32 v{b+28}, v{b+28}, v{b+29}",
                    f"v_mov_b32 v{b+29}, v{b+28}",
                    f"v_permlane16_swap_b32 v{b+28}, v{b+29}",
                    f"v_add_f32 v{b+28}, v{b+28}, v{b+29}",
                    f"v_rcp_f32 v{b+28}, v{b+28}",
                    f"v_mul_f32 v{b+20}, v{b+20}, v{b+28}",
                    f"v_mul_f32 v{b+22}, v{b+22}, v{b+28}",
                    f"v_cvt_pk_bf16_f32 v{b+20}, v{b+20}, v{b+20}",
                    f"v_cvt_pk_bf16_f32 v{b+22}, v{b+22}, v{b+22}",
                    f"v_and_b32 v{b+40}, v{KP0}, v{b+20}",
                    f"v_and_b32 v{b+41}, v{KP1}, v{b+22}",
                    f"v_and_b32 v{b+42}, v{KC0}, v{b+20}",
                    f"v_and_b32 v{b+43}, v{KC1}, v{b+22}"])
    a("s_waitcnt lgkmcnt(0)")
    for u in range(3):
        b = U[u]
        a(f"v_mfma_f32_16x16x32_bf16 v[{b}:{b+3}], v[{b+12}:{b+15}], v[{b+40}:{b+43}], 0")
        a(f"v_mfma_f32_16x16x32_bf16 v[{b+4}:{b+7}], v[{b+16}:{b+19}], v[{b+40}:{b+43}], 0")
    a("s_nop 7")
    for u in range(3):
        b = U[u]
        a(f"v_cvt_pk_bf16_f32 v{b+8}, v{b}, v{b+1}")
        a(f"v_cvt_pk_bf16_f32 v{b+9}, v{b+2}, v{b+3}")
        a(f"v_cvt_pk_bf16_f32 v{b+10}, v{b+4}, v{b+5}")
        a(f"v_cvt_pk_bf16_f32 v{b+11}, v{b+6}, v{b+7}")
        a(f"ds_write_b64 v{oo[u]}, v[{b+8}:{b+9}]")
    a("s_mov_b64 exec, 0xffff")
    for u in range(3):
        b = U[u]
        a(f"ds_write_b64 v{oo[u]}, v[{b+10}:{b+11}] offset:32")
    a("s_mov_b64 exec, -1")


def epoch_issue(a, vdst, vtmp, srdn, off_expr_sgpr):
    srd(a, srdn, P_WS, 0x10000, WS_FL)
    a(f"v_mov_b32 v{vtmp}, s{off_expr_sgpr}")
    a(f"buffer_load_dword v{vdst}, v{vtmp}, s[{srdn}:{srdn+3}], 0 offen sc1")


def poll(a, vaddr, n_lanes, tag_s, srdn):
    l0, l1 = a.newlabel("PF"), a.newlabel("PF")
    a("s_mov_b32 s45, 0")
    if n_lanes < 64:
        a(f"s_mov_b64 exec, 0x{(1 << n_lanes) - 1:x}")
    a.label(l0)
    a(f"buffer_load_dword v4, v{vaddr}, s[{srdn}:{srdn+3}], 0 offen sc1")
    a("s_waitcnt vmcnt(0)")
    a(f"v_cmp_ne_u32 vcc, s{tag_s}, v4")
    a("s_add_u32 s45, s45, 1")
    a("s_nop 3")
    a(f"s_cbranch_vccz {l1}")
    a(f"s_cmp_gt_u32 s45, {OPT['spin']}")
    a(f"s_cbranch_scc1 {l1}")
    a(f"s_sleep {OPT['psleep']}")
    a(f"s_branch {l0}")
    a.label(l1)
    if n_lanes < 64:
        a("s_mov_b64 exec, -1")


def o_store_setup(a):
    a("v_and_b32 v10, 255, v0")
    a("v_lshlrev_b32 v10, 4, v10")
    a(f"v_add_u32 v216, {O_LDS}, v10")
    a("s_mul_i32 s6, s61, 163840")
    a("s_mul_i32 s7, s60, 15360")
    a("s_add_u32 s6, s6, s7")
    a("v_add_u32 v12, s6, v10")
    a("s_movk_i32 s7, 15360")
    a("s_cmp_eq_u32 s60, 10")
    a("s_cselect_b32 s7, 10240, s7")
    a(f"v_mov_b32 v14, 0x{OOB:x}")
    for i in range(4):
        a(f"v_add_u32 v{217+i}, {4096*i}, v12")
        a(f"v_add_u32 v13, {4096*i}, v10")
        a("v_cmp_gt_u32 vcc, s7, v13")
        a("s_nop 1")
        a(f"v_cndmask_b32 v{217+i}, v14, v{217+i}, vcc")


def o_store(a):
    sc = OPT["sc_ostore"]
    for i in range(4):
        a(f"ds_read_b128 v[{16+4*i}:{19+4*i}], v216 offset:{4096*i}")
    a("s_waitcnt lgkmcnt(0)")
    for i in range(4):
        a(f"buffer_store_dwordx4 v[{16+4*i}:{19+4*i}], v{217+i}, s[48:51], 0 offen {sc}")


def b2_o_addr(a, dst):
    a("s_lshl_b32 s6, s47, 10")
    a("v_add_u32 v10, s6, v239")
    a("v_lshrrev_b32 v11, 9, v10")
    a("v_mul_u32_u24 v11, 4370, v11")
    a("v_lshrrev_b32 v11, 16, v11")
    a("v_mul_u32_u24 v11, 156160, v11")
    a(f"v_add_u32 v{dst}, v10, v11")


def b2_loader_setup(a):
    for i in range(8):
        a(f"s_add_u32 s47, s62, {4*i}")
        b2_o_addr(a, 200 + i)
    a("s_cmp_lt_u32 s62, 2")
    a("s_cselect_b64 vcc, -1, 0")
    a(f"v_mov_b32 v10, 0x{OOB:x}")
    a("v_cndmask_b32 v207, v10, v207, vcc")
    a("s_mul_i32 s49, s67, 7680")


OBUF = [B2_O, B2_O + B2_OST, B2_O3, B2_O]


def b2_loader(a, T):
    sc = OPT["sc_oload"]

    def dma(st):
        a(f"s_add_u32 s50, s68, {st}")
        a("s_and_b32 s50, s50, 3")
        a("s_mul_i32 s50, s50, 655360")
        a("s_add_u32 s50, s50, s49")
        a("s_lshl_b32 s6, s62, 10")
        a(f"s_add_u32 s6, s6, {OBUF[st]}")
        for i in range(8):
            lab = None
            if i == 7:
                lab = a.newlabel("O7")
                a("s_cmp_ge_u32 s62, 2")
                a(f"s_cbranch_scc1 {lab}")
            a(f"s_add_u32 m0, s6, {4096*i}")
            a("s_nop 0")
            a(f"buffer_load_dwordx4 v{200+i}, s[52:55], s50 offen {sc} lds")
            if lab:
                a.label(lab)

    dma(0)
    dma(1)
    a("s_waitcnt vmcnt(7)")
    a("s_barrier")
    dma(2)
    a("s_waitcnt vmcnt(7)")
    a("s_barrier")
    dma(3)
    a("s_waitcnt vmcnt(7)")
    a("s_barrier")
    lq = a.newlabel("W19")
    a("s_cmp_lg_u32 s62, 0")
    a(f"s_cbranch_scc1 {lq}")
    a("s_add_u32 s7, s68, 3")
    a("s_and_b32 s7, s7, 3")
    a("s_mul_i32 s7, s7, 5")
    a("s_add_u32 s7, s7, 4")
    a("s_mul_i32 s7, s7, 40960")
    for j in range(5):
        a(f"s_mov_b32 m0, {WSLOT(19) + 1024*j}")
        a("s_nop 0")
        a(f"buffer_load_dwordx4 v{230+j}, s[56:59], s7 offen lds")
    a.label(lq)
    a("s_waitcnt vmcnt(0)")
    a("s_barrier")


def b2_compute_setup(a):
    a("v_and_b32 v10, 15, v1")
    a("v_lshrrev_b32 v11, 4, v1")
    a("s_and_b32 s6, s3, 1")
    a("s_mul_i32 s6, s6, 48")
    a("v_add_u32 v10, s6, v10")
    a("v_mul_u32_u24 v10, 80, v10")
    for ks in range(5):
        a(f"v_add_u32 v12, {4*ks}, v11")
        a("v_mul_u32_u24 v13, 52, v12")
        a("v_lshrrev_b32 v13, 8, v13")
        a("v_mul_u32_u24 v14, 5, v13")
        a("v_sub_u32 v14, v12, v14")
        a("v_mul_u32_u24 v13, 7680, v13")
        a("v_lshlrev_b32 v14, 4, v14")
        a(f"v_add3_u32 v{224+ks}, v10, v13, v14")
    a("v_lshrrev_b32 v12, 2, v1")
    a("v_and_b32 v12, 3, v12")
    a("v_lshlrev_b32 v13, 2, v11")
    a("v_add_u32 v12, v12, v13")
    a("v_mul_u32_u24 v12, 160, v12")
    a("v_and_b32 v13, 3, v1")
    a("v_lshlrev_b32 v13, 3, v13")
    a("s_lshr_b32 s47, s3, 1")
    a("s_mul_i32 s6, s47, 96")
    a("v_add3_u32 v229, v12, v13, s6")
    for i in range(36):
        a(f"v_mov_b32 v{16+i}, 0")
    srd(a, 56, P_OUT, 2048 * 2560)
    a("v_and_b32 v13, 15, v1")
    a("s_and_b32 s6, s3, 1")
    a("s_mul_i32 s6, s6, 48")
    a("s_mul_i32 s7, s67, 96")
    a("s_add_u32 s6, s6, s7")
    a("v_add_u32 v13, s6, v13")
    a("v_mul_u32_u24 v13, 2560, v13")
    a("v_lshrrev_b32 v14, 4, v1")
    a("v_lshlrev_b32 v14, 3, v14")
    a("s_mul_i32 s6, s68, 160")
    a("s_mul_i32 s7, s47, 96")
    a("s_add_u32 s6, s6, s7")
    a("s_add_u32 s6, s6, 1280")
    a("v_add3_u32 v213, v13, v14, s6")
    a("s_mov_b32 s72, 0")
    a("s_mov_b32 s73, 40960")
    a("s_mov_b32 s74, 81920")


def b2_compute(a, T):
    WF, OF = 56, 120

    def addr(slot, st):
        r = []
        ob, wb = 192 + 5 * slot, 202 + 5 * slot
        for ks in range(5):
            r.append(f"v_add_u32 v{ob+ks}, {OBUF[st]}, v{224+ks}")
            r.append(f"v_add_u32 v{wb+ks}, {WSLOT(5*st+ks)}, v229")
        return r

    def rd_w(slot, ks, nct):
        wb = 202 + 5 * slot
        r = []
        for ct in range(nct):
            F = WF + 12 * ks + 4 * ct
            r.append(f"ds_read_b64_tr_b16 v[{F}:{F+1}], v{wb+ks} offset:{32*ct}")
            r.append(f"ds_read_b64_tr_b16 v[{F+2}:{F+3}], v{wb+ks} offset:{32*ct+2560}")
        return r

    def rd_o(slot, ks):
        ob = 192 + 5 * slot
        return [f"ds_read_b128 v[{OF+12*ks+4*t}:{OF+12*ks+4*t+3}], v{ob+ks} offset:{1280*t}" for t in range(3)]

    def mm(ks, nct):
        r = []
        for t in range(3):
            for ct in range(nct):
                ac = 16 + (t * 3 + ct) * 4
                W = WF + 12 * ks + 4 * ct
                O = OF + 12 * ks + 4 * t
                r.append(f"v_mfma_f32_16x16x32_bf16 v[{ac}:{ac+3}], v[{W}:{W+3}], v[{O}:{O+3}], v[{ac}:{ac+3}]")
        return r

    le, ld = a.newlabel("C2E"), a.newlabel("C2D")
    for x in addr(0, 0):
        a(x)
    a("s_cmp_eq_u32 s47, 0")
    a(f"s_cbranch_scc0 {le}")
    for var, nct in enumerate([3, 2]):
        if var == 1:
            a(f"s_branch {ld}")
            a.label(le)
        for ks in range(5):
            for x in rd_w(0, ks, nct):
                a(x)
        nw = 2 * nct

        def emit(m, fill):
            per = (len(fill) + len(m) - 1) // len(m) if fill else 0
            k = 0
            for x in m:
                a(x)
                for _ in range(per):
                    if k < len(fill):
                        a(fill[k])
                        k += 1
        a("s_waitcnt lgkmcnt(0)")
        a("s_barrier")
        if T.on and not OPT.get("attts") and var == 0:
            T.stamp(a, 10)
        for x in rd_o(0, 0):
            a(x)
        for st in range(4):
            slot = st & 1
            nslot = slot ^ 1
            last = st == 3
            f0 = []
            if st > 0:
                f0 += rd_w(slot, 4, nct)
            f0 += [x for ks in range(1, 5) for x in rd_o(slot, ks)]
            if not last:
                f0 += addr(nslot, st + 1)
            a("s_waitcnt lgkmcnt(0)")
            emit(mm(0, nct), f0)
            for ks in (1, 2, 3):
                fill = rd_w(nslot, ks - 1, nct) if not last else []
                y = 3 * (4 - ks) + ((ks - 1) * nw if not last else 0)
                a(f"s_waitcnt lgkmcnt({min(15, y)})")
                emit(mm(ks, nct), fill)
            if not last:
                a(f"s_waitcnt lgkmcnt({min(15, 3 * nw)})")
                a("s_barrier")
                if T.on and not OPT.get("attts") and var == 0:
                    T.stamp(a, 11 + st)
                for x in rd_o(nslot, 0):
                    a(x)
                emit(mm(4, nct), rd_w(nslot, 3, nct))
            else:
                a("s_waitcnt lgkmcnt(0)")
                emit(mm(4, nct), [])
        no = OPT["nt_out"]
        a("s_nop 7")
        for t in range(3):
            for ct in range(nct):
                ac = 16 + (t * 3 + ct) * 4
                p = 56 + 2 * (t * 3 + ct)
                a(f"v_cvt_pk_bf16_f32 v{p}, v{ac}, v{ac+1}")
                a(f"v_cvt_pk_bf16_f32 v{p+1}, v{ac+2}, v{ac+3}")
                a(f"buffer_store_dwordx2 v[{p}:{p+1}], v213, s[56:59], s{72+t} offen offset:{32*ct} {no}")
    a.label(ld)


def b_program(a, T):
    b_decode(a)
    ld, j1 = a.newlabel("BLD"), a.newlabel("BJ1")
    a("s_cmp_ge_u32 s3, 4")
    a(f"s_cbranch_scc1 {ld}")
    if not int(OPT.get("nopf0", 0)):
        b_initial_prefetch(a)
    a("s_lshl_b32 s6, s60, 7")
    a(f"s_add_u32 s6, s6, {FL_EB}")
    epoch_issue(a, 250, 251, 52, 6)
    b1_compute(a, T)
    T.stamp(a, 3)
    a("s_waitcnt lgkmcnt(0)")
    a(f"s_branch {j1}")
    a.label(ld)
    a("s_lshl_b32 s6, s60, 7")
    a(f"s_add_u32 s6, s6, {FL_EB}")
    epoch_issue(a, 250, 251, 52, 6)
    b1_loader(a, T)
    T.stamp(a, 3)
    if OPT.get("lprio"):
        a("s_setprio 0")
    b1_epi_loader(a)
    a("s_waitcnt lgkmcnt(0)")
    a.label(j1)
    a("s_barrier")
    T.stamp(a, 4)
    attention(a, T)
    a("s_waitcnt lgkmcnt(0)")
    a("s_barrier")
    T.stamp(a, 5)
    ld2, j2 = a.newlabel("BLD"), a.newlabel("BJ2")
    a("s_cmp_ge_u32 s3, 4")
    a(f"s_cbranch_scc1 {ld2}")
    a("v_readfirstlane_b32 s44, v250")
    a("s_add_u32 s44, s44, 1")
    a("s_barrier")
    b2_compute_setup(a)
    a("s_barrier")
    lp = a.newlabel("NP")
    a("s_cmp_lg_u32 s3, 0")
    a(f"s_cbranch_scc1 {lp}")
    a("s_lshl_b32 s6, s60, 4")
    a("s_add_u32 s6, s6, s61")
    a("s_lshl_b32 s6, s6, 7")
    a("v_mov_b32 v10, s6")
    a("v_mov_b32 v11, s44")
    a("s_mov_b64 exec, 1")
    a("buffer_store_dword v11, v10, s[52:55], 0 offen sc1")
    a("s_mov_b64 exec, -1")
    T.stamp(a, 6)
    a("s_lshl_b32 s6, s60, 11")
    a("v_lshlrev_b32 v10, 7, v1")
    a("v_add_u32 v10, s6, v10")
    poll(a, 10, 16, 44, 52)
    le = a.newlabel("EU")
    a("s_cmp_lg_u32 s61, 0")
    a(f"s_cbranch_scc1 {le}")
    a("v_mov_b32 v11, s44")
    a("s_mov_b64 exec, 1")
    a("buffer_store_dword v11, v251, s[52:55], 0 offen sc1")
    a("s_mov_b64 exec, -1")
    a.label(le)
    a.label(lp)
    T.stamp(a, 7)
    a("s_barrier")
    b2_compute(a, T)
    T.stamp(a, 8)
    a(f"s_branch {j2}")
    a.label(ld2)
    o_store(a)
    a("s_barrier")
    a("s_waitcnt vmcnt(0)")
    a("s_barrier")
    if OPT.get("opf"):
        lo = a.newlabel("OPF")
        a("s_cmp_lg_u32 s62, 3")
        a(f"s_cbranch_scc1 {lo}")
        a("s_mul_i32 s6, s61, 163840")
        a("s_mul_i32 s7, s67, 7680")
        a("s_add_u32 s6, s6, s7")
        a("v_lshlrev_b32 v10, 7, v1")
        a(f"v_mov_b32 v11, 0x{OOB:x}")
        a("v_cmp_gt_u32 vcc, 60, v1")
        a("s_nop 1")
        a("v_cndmask_b32 v10, v11, v10, vcc")
        a("buffer_load_dword v237, v10, s[48:51], s6 offen sc1")
        a.label(lo)
    wo_dma_slots(a, 11, 8)
    srd(a, 52, P_WS, TSZ, WS_OW)
    a("v_lshlrev_b32 v239, 4, v1")
    b2_loader_setup(a)
    a("s_waitcnt vmcnt(0)")
    T.stamp(a, 7)
    a("s_barrier")
    b2_loader(a, T)
    T.stamp(a, 8)
    a.label(j2)
    T.stamp(a, 9)


A2_H0 = 0
A2_H1 = 4640
A2_X0 = 9216
A2_X2 = 13696
A2_CH = 17920
T_RS = 528
Y_RS = 528


def a_program(a, T):
    na, nh, sc = OPT["nt_a"], OPT["nt_h"], OPT["sc"]
    a("s_sub_u32 s5, s5, s70")
    a("s_lshl_b32 s6, s4, 1")
    a("s_add_u32 s7, s4, 2")
    a("s_cmp_lt_u32 s4, 2")
    a("s_cselect_b32 s6, s6, s7")
    a("s_lshr_b32 s7, s5, 3")
    a("s_add_u32 s73, s6, s7")
    a("s_and_b32 s72, s5, 7")
    a("s_lshl_b32 s62, s73, 6")
    a("s_lshl_b32 s6, s72, 3")
    a("s_add_u32 s62, s62, s6")
    a("s_add_u32 s63, s62, s3")
    srd(a, 32, P_K, TSZ)
    srd(a, 36, P_V, TSZ)
    srd(a, 40, P_SK, 640 * 8)
    a("v_and_b32 v8, 7, v1")
    a("v_lshrrev_b32 v9, 3, v1")
    a("s_lshl_b32 s6, s3, 3")
    a("v_add_u32 v9, s6, v9")
    a("v_lshlrev_b32 v2, 2, v9")
    a("s_lshl_b32 s6, s72, 8")
    a("v_add_u32 v2, s6, v2")
    a("v_mul_u32_u24 v2, 1280, v2")
    a("v_lshlrev_b32 v3, 4, v8")
    a("s_lshl_b32 s6, s73, 7")
    a("v_add3_u32 v2, v2, v3, s6")
    a("v_add_u32 v3, -3840, v2")
    a("v_add_u32 v4, -2560, v2")
    a("v_add_u32 v5, -1280, v2")
    for m in range(4):
        a(f"buffer_load_dwordx4 v[{64+4*m}:{67+4*m}], v2, s[32:35], 0 offen offset:{1280*m} {na}".replace("offset:0 ", ""))
    for m in range(4):
        a(f"buffer_load_dwordx4 v[{80+4*m}:{83+4*m}], v2, s[36:39], 0 offen offset:{1280*m} {na}".replace("offset:0 ", ""))
    a(f"buffer_load_dwordx4 v[52:55], v3, s[32:35], 0 offen {na}")
    a(f"buffer_load_dwordx4 v[56:59], v4, s[32:35], 0 offen {na}")
    a(f"buffer_load_dwordx4 v[60:63], v5, s[32:35], 0 offen {na}")
    a("v_lshlrev_b32 v6, 6, v8")
    a("s_lshl_b32 s6, s73, 9")
    a("v_add_u32 v6, s6, v6")
    for i in range(4):
        a(f"buffer_load_dwordx4 v[{32+4*i}:{35+4*i}], v6, s[40:43], 0 offen offset:{16*i}".replace("offset:0", ""))
    a("s_lshl_b32 s6, s73, 7")
    a(f"s_add_u32 s6, s6, {FL_EA}")
    epoch_issue(a, 250, 251, 48, 6)
    a("s_lshl_b32 s6, s62, 1")
    a(f"s_add_u32 s44, s{P_SD}, s6")
    a(f"s_addc_u32 s45, s{P_SD+1}, 0")
    a("s_load_dwordx4 s[64:67], s[44:45], 0")
    if int(OPT.get("apf", 1)):
        npf = OPT["nt_pf"]
        a("s_cmp_eq_u32 s4, 1")
        a("s_cselect_b32 s74, 1, 0")
        a("s_cmp_ge_u32 s4, 5")
        a("s_cselect_b32 s74, 1, s74")
        a("s_cselect_b32 s7, 3, 0")
        a("s_sub_u32 s6, s4, 2")
        a("s_sub_u32 s6, s6, s7")
        a("s_mul_i32 s6, s6, 3")
        a("s_add_u32 s6, s6, 2")
        a("s_cmp_lt_u32 s4, 2")
        a("s_cselect_b32 s75, 0, s6")
        a("s_cselect_b32 s76, 128, 64")
        a("s_cselect_b32 s77, 2400, s76")
        a("s_cselect_b32 s77, 2400, 3552") if False else None
        a("s_movk_i32 s77, 3552")
        a("s_cmp_lt_u32 s4, 2")
        a("s_cselect_b32 s77, 2400, s77")
        a("s_lshl_b32 s78, s5, 3")
        a("s_add_u32 s78, s78, s3")
        srd(a, 52, P_W, 640 * 3840)
        srd(a, 56, P_X, TSZ)
        a(f"v_mov_b32 v20, 0x{OOB:x}")

        def wpf(dst):
            a("s_lshl_b32 s6, s6, 6")
            a("v_add_u32 v21, s6, v1")
            a("v_mul_u32_u24 v22, 34953, v21")
            a("v_lshrrev_b32 v22, 19, v22")
            a("v_mul_u32_u24 v23, 15, v22")
            a("v_sub_u32 v23, v21, v23")
            a("v_mul_u32_u24 v24, 52, v23")
            a("v_lshrrev_b32 v24, 8, v24")
            a("v_mul_u32_u24 v25, 5, v24")
            a("v_sub_u32 v25, v23, v25")
            a("v_add_u32 v22, 192, v22")
            a("v_mul_u32_u24 v22, 3840, v22")
            a("v_mul_u32_u24 v24, 1280, v24")
            a("v_lshlrev_b32 v25, 7, v25")
            a("v_add3_u32 v22, v22, v24, v25")
            a("s_mul_i32 s7, s74, 640")
            a("v_add_u32 v22, s7, v22")
            a("s_movk_i32 s7, 6720")
            a("v_cmp_gt_u32 vcc, s7, v21")
            a("s_nop 1")
            a("v_cndmask_b32 v22, v20, v22, vcc")
            a(f"buffer_load_dword v{dst}, v22, s[52:55], 0 offen {npf}")
        a("s_mov_b32 s6, s78")
        wpf(240)
        a("s_lshl_b32 s6, s78, 6")
        a("v_add_u32 v21, s6, v1")
        a("v_mul_u32_u24 v22, 10923, v21")
        a("v_lshrrev_b32 v22, 16, v22")
        a("v_mul_u32_u24 v23, 6, v22")
        a("v_sub_u32 v23, v21, v23")
        a("s_mul_i32 s6, s75, 192")
        a("s_sub_u32 s6, s6, 16")
        a("v_add_u32 v22, s6, v22")
        a("s_movk_i32 s7, 1280")
        a("v_mul_lo_u32 v22, v22, s7")
        a("v_lshlrev_b32 v23, 7, v23")
        a("v_add_u32 v22, v22, v23")
        a("v_add_u32 v22, 512, v22")
        a("v_cmp_gt_u32 vcc, s77, v21")
        a("s_nop 1")
        a("v_cndmask_b32 v22, v20, v22, vcc")
        a(f"buffer_load_dword v241, v22, s[56:59], 0 offen {npf}")
        a("s_add_u32 s6, s78, s76")
        wpf(242)
    a(f"s_mul_i32 s60, s3, {A2_CH}")
    a("s_lshl_b32 s59, s63, 12")
    a("v_lshlrev_b32 v10, 4, v1")
    a("v_add_u32 v11, -2, v10")
    T.stamp(a, 1)
    a("v_mov_b32 v28, 0")
    a("v_mov_b32 v29, 0")
    a("v_mov_b32 v30, 0")
    a("v_mov_b32 v31, 0")
    a("v_add_u32 v23, s60, v10")
    a("s_mov_b64 exec, 0xfffffff")
    a(f"ds_write_b128 v23, v[28:31] offset:{A2_H0}")
    a(f"ds_write_b128 v23, v[28:31] offset:{A2_H1}")
    a("s_mov_b64 exec, -1")
    a(f"v_mul_u32_u24 v7, {A2_CH+16}, v8")
    a("v_lshlrev_b32 v12, 3, v9")
    a("v_sub_u32 v7, v7, v12")
    a(f"v_add_u32 v7, {A2_X0 + 504}, v7")
    a("s_mov_b32 s57, 0xffff0000")
    a(f"s_waitcnt vmcnt({1 + (3 if int(OPT.get('apf', 1)) else 0)})")
    T.stamp(a, 2)
    for c in range(4):
        for m in range(4):
            for e in range(2):
                src = 32 + 2 * (2 * c + e) + (m >> 1)
                dst = 96 + (c * 4 + m) * 2 + e
                if m & 1:
                    a(f"v_and_b32 v{dst}, s57, v{src}")
                else:
                    a(f"v_lshlrev_b32 v{dst}, 16, v{src}")
    for c in range(4):
        for jj in range(7):
            a(f"v_lshlrev_b32 v{128+2*jj}, 16, v{52+4*jj+c}")
            a(f"v_and_b32 v{129+2*jj}, s57, v{52+4*jj+c}")
        for m in range(4):
            a(f"v_lshlrev_b32 v{142+2*m}, 16, v{80+4*m+c}")
            a(f"v_and_b32 v{143+2*m}, s57, v{80+4*m+c}")
        W = lambda m: f"v[{96+(c*4+m)*2}:{97+(c*4+m)*2}]"
        K = lambda jj: f"v[{128+2*jj}:{129+2*jj}]"
        for rr in range(4):
            o = 150 + 2 * rr
            a(f"v_pk_mul_f32 v[{o}:{o+1}], {W(3)}, {K(rr)}")
        for m in (2, 1, 0):
            for rr in range(4):
                o = 150 + 2 * rr
                a(f"v_pk_fma_f32 v[{o}:{o+1}], {W(m)}, {K(3+rr-m)}, v[{o}:{o+1}]")
        for rr in range(4):
            o = 150 + 2 * rr
            a(f"v_pk_mul_f32 v[{o}:{o+1}], v[{o}:{o+1}], v[{142+2*rr}:{143+2*rr}]")
        for e in range(2):
            ch = 2 * c + e
            d = 160 + 4 * (c & 1) + 2 * e
            a(f"v_cvt_pk_bf16_f32 v{d}, v{156+e}, v{154+e}")
            a(f"v_cvt_pk_bf16_f32 v{d+1}, v{152+e}, v{150+e}")
            a(f"ds_write_b64 v7, v[{d}:{d+1}] offset:{ch*T_RS}")
    a("v_lshrrev_b32 v12, 5, v1")
    a(f"v_mul_u32_u24 v12, {T_RS}, v12")
    a("v_and_b32 v13, 31, v1")
    a("v_lshlrev_b32 v13, 4, v13")
    a("v_add_u32 v12, v12, v13")
    a(f"s_mul_i32 s6, s3, {A2_CH+16}")
    a(f"s_add_u32 s6, s6, {A2_X0}")
    a("v_add_u32 v12, s6, v12")
    srd(a, 36, P_WS, TSZ, WS_XT)
    a("v_lshrrev_b32 v14, 5, v1")
    a("v_lshlrev_b32 v14, 12, v14")
    a("v_add_u32 v14, v14, v13")
    a("s_lshl_b32 s6, s73, 6")
    a("s_lshl_b32 s7, s3, 3")
    a("s_add_u32 s6, s6, s7")
    a("s_lshl_b32 s6, s6, 12")
    a("s_lshl_b32 s7, s72, 9")
    a("s_sub_u32 s7, 3584, s7")
    a("s_add_u32 s6, s6, s7")
    a("v_add_u32 v14, s6, v14")
    a("s_waitcnt lgkmcnt(0)")
    a("s_barrier")
    for m in range(4):
        a(f"ds_read_b128 v[{64+4*m}:{67+4*m}], v12 offset:{2*m*T_RS}")
    a("s_waitcnt lgkmcnt(0)")
    a("s_mov_b32 s6, 0")
    for m in range(4):
        a(f"buffer_store_dwordx4 v[{64+4*m}:{67+4*m}], v14, s[36:39], s6 offen {sc}")
        if m < 3:
            a("s_add_u32 s6, s6, 8192")
    T.stamp(a, 3)
    srd(a, 52, P_H, 640 * 4096)
    for i in range(4):
        a(f"s_add_u32 m0, s60, {A2_H0 + 448 + 1024*i}")
        a(f"s_add_u32 s6, s59, {1024*i}")
        a(f"buffer_load_dwordx4 v10, s[52:55], s6 offen {nh} lds")
    a("v_mov_b32 v13, 0")
    a(f"buffer_load_dwordx4 v[16:19], v13, s[52:55], s59 offen")
    a("s_lshr_b32 s6, s3, 1")
    a("s_cmp_eq_u32 s6, 1")
    a("s_cselect_b32 s58, s65, s64")
    a("s_cmp_eq_u32 s6, 2")
    a("s_cselect_b32 s58, s66, s58")
    a("s_cmp_eq_u32 s6, 3")
    a("s_cselect_b32 s58, s67, s58")
    a("s_and_b32 s6, s3, 1")
    a("s_lshl_b32 s6, s6, 4")
    a("s_lshr_b32 s58, s58, s6")
    a("s_lshl_b32 s58, s58, 16")
    a("s_waitcnt vmcnt(5)")
    a("v_readfirstlane_b32 s44, v250")
    a("s_add_u32 s44, s44, 1")
    a("s_barrier")
    lf = a.newlabel("AF")
    a("s_cmp_lg_u32 s3, 0")
    a(f"s_cbranch_scc1 {lf}")
    a("s_lshl_b32 s6, s73, 3")
    a("s_add_u32 s6, s6, s72")
    a("s_lshl_b32 s6, s6, 7")
    a(f"s_add_u32 s6, s6, {FL_A1}")
    a("v_mov_b32 v12, s6")
    a("v_mov_b32 v13, s44")
    a("s_mov_b64 exec, 1")
    a("buffer_store_dword v13, v12, s[48:51], 0 offen sc1")
    a("s_mov_b64 exec, -1")
    T.stamp(a, 4)
    a.label(lf)
    a("s_waitcnt vmcnt(0)")
    a("v_lshlrev_b32 v21, 16, v16")
    a("v_add_f32 v21, s58, v21")
    a("v_cvt_pk_bf16_f32 v21, v21, v21")
    a("v_mov_b32 v22, s60")
    a("s_mov_b64 exec, 1")
    a(f"ds_write_b16 v22, v21 offset:{A2_H0+448}")
    a("s_mov_b64 exec, -1")
    a("s_waitcnt lgkmcnt(0)")
    for i in range(4):
        a(f"ds_read_b128 v[{64+8*i}:{67+8*i}], v23 offset:{A2_H0+448+1024*i}")
        a(f"ds_read_b32 v{68+8*i}, v23 offset:{A2_H0+448-4+1024*i}")
    for i in range(4):
        b = 64 + 8 * i
        a(f"s_waitcnt lgkmcnt({2*(3-i)})")
        a(f"v_alignbit_b32 v{b+7}, v{b+3}, v{b+2}, 16")
        a(f"v_alignbit_b32 v{b+6}, v{b+2}, v{b+1}, 16")
        a(f"v_alignbit_b32 v{b+5}, v{b+1}, v{b}, 16")
        a(f"v_alignbit_b32 v{b+4}, v{b}, v{b+4}, 16")
        a(f"ds_write_b128 v23, v[{b+4}:{b+7}] offset:{A2_H1+448+1024*i}")
    a("v_and_b32 v10, 15, v1")
    a("v_lshrrev_b32 v11, 4, v1")
    a("v_lshrrev_b32 v12, 1, v10")
    a("v_lshlrev_b32 v12, 6, v12")
    a("v_lshlrev_b32 v13, 4, v11")
    a("v_add_u32 v12, v12, v13")
    a("v_and_b32 v13, 1, v10")
    a(f"v_mov_b32 v14, {A2_H1}")
    a(f"v_mov_b32 v15, {A2_H0}")
    a("v_cmp_eq_u32 vcc, 1, v13")
    a("v_lshrrev_b32 v13, 1, v10")
    a("v_and_b32 v13, 1, v13")
    a("v_cndmask_b32 v14, v14, v15, vcc")
    a("v_add3_u32 v2, v12, v14, s60")
    a("v_lshlrev_b32 v12, 3, v13")
    a("v_lshrrev_b32 v14, 2, v10")
    a("v_lshlrev_b32 v14, 4, v14")
    a("v_add_u32 v12, v12, v14")
    a("v_lshlrev_b32 v14, 4, v11")
    a("v_sub_u32 v12, v14, v12")
    a(f"v_add_u32 v12, {2*1820 - 512*7}, v12")
    a(f"v_mov_b32 v14, {A2_X2}")
    a(f"v_mov_b32 v15, {A2_X0}")
    a("v_cndmask_b32 v14, v14, v15, vcc")
    a("v_add3_u32 v3, v12, v14, s60")
    for i in range(32):
        a(f"v_mov_b32 v{32+i}, 0")
    lp = a.newlabel("AP")
    a("s_cmp_lg_u32 s3, 0")
    a(f"s_cbranch_scc1 {lp}")
    a("s_lshl_b32 s6, s73, 10")
    a(f"s_add_u32 s6, s6, {FL_A1}")
    a("v_lshlrev_b32 v12, 7, v1")
    a("v_add_u32 v12, s6, v12")
    poll(a, 12, 8, 44, 48)
    le = a.newlabel("EU")
    a("s_cmp_lg_u32 s72, 0")
    a(f"s_cbranch_scc1 {le}")
    a("v_mov_b32 v13, s44")
    a("s_mov_b64 exec, 1")
    a("buffer_store_dword v13, v251, s[48:51], 0 offen sc1")
    a("s_mov_b64 exec, -1")
    a.label(le)
    a.label(lp)
    a("s_waitcnt lgkmcnt(0)")
    a("s_barrier")
    T.stamp(a, 5)
    a("v_lshlrev_b32 v24, 4, v1")
    for i in range(4):
        a(f"s_add_u32 m0, s60, {A2_X0 + 1024*i}")
        a(f"s_add_u32 s6, s59, {1024*i}")
        a(f"buffer_load_dwordx4 v24, s[36:39], s6 offen {sc} lds")
    a("s_mov_b64 exec, 0x1f")
    a(f"ds_write_b128 v23, v[28:31] offset:{A2_X0+4096}")
    a("s_mov_b64 exec, 0xf")
    a(f"ds_write_b128 v23, v[28:31] offset:{A2_X2+4096}")
    a("s_mov_b64 exec, -1")
    srd(a, 32, P_Q, TSZ)
    a("s_and_b32 s6, s3, 3")
    a("s_lshl_b32 s6, s6, 6")
    a("s_lshl_b32 s7, s72, 8")
    a("s_add_u32 s6, s6, s7")
    a("v_add_u32 v14, s6, v1")
    a("v_mul_u32_u24 v14, 1280, v14")
    a("s_lshl_b32 s61, s73, 7")
    a("v_add_u32 v14, s61, v14")
    a(f"v_mov_b32 v13, 0x{OOB:x}")
    a("s_cmp_lt_u32 s3, 4")
    a("s_cselect_b64 vcc, -1, 0")
    a("v_cndmask_b32 v14, v13, v14, vcc")
    a("buffer_load_dword v243, v14, s[32:35], 0 offen")
    a("s_lshl_b32 s6, s3, 8")
    a("v_add_u32 v9, s6, v1")
    a("s_lshl_b32 s61, s62, 1")
    a("v_mul_u32_u24 v8, 1280, v9")
    a("v_add_u32 v8, s61, v8")
    a("s_waitcnt vmcnt(1)")
    for i in range(4):
        for d in range(4):
            a(f"ds_read_b32 v{96+4*i+d}, v23 offset:{A2_X0+1024*i+4*(d+1)}")
    for i in range(4):
        a(f"s_waitcnt lgkmcnt({4*(3-i)})")
        a(f"ds_write_b128 v23, v[{96+4*i}:{99+4*i}] offset:{A2_X2+1024*i}")
    a("s_waitcnt lgkmcnt(0)")
    T.stamp(a, 6)

    def reads(A, B):
        r = []
        for aa in range(8):
            r.append(f"ds_read_b128 v[{A+4*aa}:{A+4*aa+3}], v2 offset:{512*aa}")
            r.append(f"ds_read_b64 v[{B+4*aa}:{B+4*aa+1}], v3 offset:{512*(7-aa)}")
            r.append(f"ds_read_b64 v[{B+4*aa+2}:{B+4*aa+3}], v3 offset:{512*(7-aa)+8}")
        r.append("v_add_u32 v2, 64, v2")
        r.append("v_add_u32 v3, 64, v3")
        return r

    def mfmas(A, B):
        r = []
        for t in range(8):
            for aa in range(t + 1):
                u = t - aa
                ac = 32 + 4 * t
                r.append(f"v_mfma_f32_16x16x32_bf16 v[{ac}:{ac+3}], v[{A+4*aa}:{A+4*aa+3}], v[{B+4*u}:{B+4*u+3}], v[{ac}:{ac+3}]")
        return r

    def interleave(m, r):
        for i, x in enumerate(m):
            a(x)
            if i < len(r):
                a(r[i])

    for x in reads(64, 96):
        a(x)
    a("s_mov_b32 s40, 0")
    loop, last = a.newlabel("A2L"), a.newlabel("A2E")
    a.label(loop)
    a("s_waitcnt lgkmcnt(0)")
    interleave(mfmas(64, 96), reads(128, 160))
    a("s_waitcnt lgkmcnt(0)")
    a("s_mul_i32 s6, s40, 81920")
    for m in range(4):
        lq = a.newlabel("QL")
        a(f"s_cmp_lg_u32 s40, {m}")
        a(f"s_cbranch_scc1 {lq}")
        a(f"buffer_load_dwordx4 v[{192+4*m}:{195+4*m}], v8, s[32:35], s6 offen")
        a.label(lq)
    a("s_cmp_eq_u32 s40, 3")
    a(f"s_cbranch_scc1 {last}")
    interleave(mfmas(128, 160), reads(64, 96))
    a("s_add_u32 s40, s40, 1")
    a(f"s_branch {loop}")
    a.label(last)
    for x in mfmas(128, 160):
        a(x)
    T.stamp(a, 7)
    a("v_lshlrev_b32 v12, 5, v11")
    a("v_add_u32 v12, v12, v10")
    a("v_lshlrev_b32 v12, 2, v12")
    a("v_add_u32 v12, s60, v12")
    for tt in range(8):
        ac = 32 + 4 * tt
        d = 64 + 2 * tt
        a(f"v_cvt_pk_bf16_f32 v{d}, v{ac}, v{ac+1}")
        a(f"v_cvt_pk_bf16_f32 v{d+1}, v{ac+2}, v{ac+3}")
        a(f"ds_write_b32 v12, v{d} offset:{512*tt}")
        a(f"ds_write_b32 v12, v{d+1} offset:{512*tt+64}")
    a("v_lshrrev_b32 v13, 2, v1")
    a("v_and_b32 v13, 3, v13")
    a(f"v_mul_u32_u24 v13, {A2_CH}, v13")
    a("v_lshrrev_b32 v14, 4, v1")
    a("v_lshlrev_b32 v14, 5, v14")
    a("v_and_b32 v15, 3, v1")
    a("v_lshlrev_b32 v15, 3, v15")
    a("v_add3_u32 v13, v13, v14, v15")
    a("s_lshl_b32 s6, s3, 9")
    a("v_add_u32 v13, s6, v13")
    a(f"v_add_u32 v14, {4*A2_CH}, v13")
    srd(a, 36, P_OUT, 2048 * 2560)
    a("v_mul_u32_u24 v15, 2560, v9")
    a("v_add_u32 v15, s61, v15")
    a("s_waitcnt lgkmcnt(0)")
    a("s_barrier")
    T.stamp(a, 9)
    for m in range(4):
        a(f"ds_read_b64_tr_b16 v[{64+4*m}:{65+4*m}], v13 offset:{128*m}")
        a(f"ds_read_b64_tr_b16 v[{66+4*m}:{67+4*m}], v14 offset:{128*m}")
    a("s_waitcnt vmcnt(0)")
    a("s_mov_b32 s6, 0")
    no = OPT["nt_out"]
    for m in range(4):
        a(f"s_waitcnt lgkmcnt({2*(3-m)})")
        for i in range(4):
            y = 64 + 4 * m + i
            q = 192 + 4 * m + i
            tt = 80 + 4 * (i & 1)
            a(f"v_lshlrev_b32 v{tt}, 16, v{y}")
            a(f"v_and_b32 v{tt+1}, s57, v{y}")
            a(f"v_lshlrev_b32 v{tt+2}, 16, v{q}")
            a(f"v_and_b32 v{tt+3}, s57, v{q}")
            a(f"v_pk_mul_f32 v[{tt}:{tt+1}], v[{tt}:{tt+1}], v[{tt+2}:{tt+3}]")
            a(f"v_cvt_pk_bf16_f32 v{y}, v{tt}, v{tt+1}")
        a(f"buffer_store_dwordx4 v[{64+4*m}:{67+4*m}], v15, s[36:39], s6 offen {no}")
        if m < 3:
            a("s_add_u32 s6, s6, 163840")
    T.stamp(a, 10)


def kdesc(name, vgpr=256, sgpr=102):
    return f""".amdhsa_kernel {name}
  .amdhsa_next_free_vgpr {vgpr}
  .amdhsa_next_free_sgpr {sgpr}
  .amdhsa_accum_offset {vgpr}
  .amdhsa_group_segment_fixed_size 0
  .amdhsa_kernarg_size 96
  .amdhsa_user_sgpr_count 2
  .amdhsa_user_sgpr_kernarg_segment_ptr 1
  .amdhsa_system_sgpr_workgroup_id_x 1
  .amdhsa_float_denorm_mode_32 3
  .amdhsa_float_denorm_mode_16_64 3
.end_amdhsa_kernel
"""


def gen(ts=False):
    out = "; concat_heads( H3-style ssm conv , sliding local dilated attention ) -- hand-written streams emitted by a python generator\n"
    out += "; @launch grid=(256,1,1) block=(512,1,1) lds=163840\n"
    out += '.amdgcn_target "amdgcn-amd-amdhsa--gfx950"\n.text\n'
    a = Asm()
    T = TS(ts)
    T.init(a)
    T.stamp(a, 0)
    if OPT.get("dbgt"):
        a("s_memrealtime s[96:97]")
        a("s_waitcnt lgkmcnt(0)")
        a("s_mov_b32 s79, s96")
    a("s_cmp_ge_u32 s2, 256")
    a("s_cbranch_scc1 K_END")
    a("s_load_dwordx16 s[8:23], s[0:1], 0")
    a("s_load_dwordx8 s[24:31], s[0:1], 64")
    a("v_lshrrev_b32 v2, 6, v0")
    a("v_and_b32 v1, 63, v0")
    a("s_and_b32 s4, s2, 7")
    a("v_readfirstlane_b32 s3, v2")
    a("s_lshr_b32 s5, s2, 3")
    a("s_waitcnt lgkmcnt(0)")
    if OPT.get("codepf"):
        lab = a.newlabel("CPF")
        a("s_cmp_lg_u32 s3, 7")
        a(f"s_cbranch_scc1 {lab}")
        a("s_cmp_ge_u32 s5, 4")
        a(f"s_cbranch_scc1 {lab}")
        a("s_getpc_b64 s[32:33]")
        a("CPF_BASE:")
        a("s_and_b32 s32, s32, 0xffffff00")
        a("s_mov_b32 s34, 0x5b00")
        a("s_mov_b32 s35, 0x00020000")
        a("s_lshl_b32 s6, s5, 13")
        a("v_lshlrev_b32 v2, 7, v1")
        a("v_add_u32 v2, s6, v2")
        a("buffer_load_dword v254, v2, s[32:35], 0 offen")
        a.label(lab)
    role_decode(a)
    if OPT.get("only") == "A":
        a("s_branch K_END")
    b_program(a, T)
    a("s_branch K_FIN")
    a.label("A_ROLE")
    if OPT.get("only") == "B":
        a("s_branch K_END")
    a_program(a, T)
    a.label("K_FIN")
    if OPT.get("dbgt"):
        a("s_waitcnt vmcnt(0)")
        a("s_memrealtime s[96:97]")
        a("s_waitcnt lgkmcnt(0)")
        lab = a.newlabel("DBG")
        a("s_cmp_lg_u32 s3, 0")
        a(f"s_cbranch_scc1 {lab}")
        a("s_and_b32 s6, s2, 0x3f")
        a("s_cmp_lg_u32 s6, 0")
        a(f"s_cbranch_scc1 {lab}")
        srd(a, 92, P_DBG, 256)
        a("s_lshr_b32 s6, s2, 6")
        a("s_lshl_b32 s6, s6, 3")
        a("v_mov_b32 v2, s6")
        a("v_mov_b32 v4, s79")
        a("v_mov_b32 v5, s96")
        a("s_mov_b64 exec, 1")
        a("buffer_store_dwordx2 v[4:5], v2, s[92:95], 0 offen")
        a("s_waitcnt vmcnt(0)")
        a("s_mov_b64 exec, -1")
        a.label(lab)
    if ts:
        a("s_waitcnt vmcnt(0)")
        T.stamp(a, 15)
        T.flush(a)
    a.label("K_END")
    a("s_endpgm")
    out += f".globl {KNAME}\n.p2align 8\n.type {KNAME},@function\n{KNAME}:\n" + a.text()
    out += '.section .rodata,"a"\n.p2align 6\n' + kdesc(KNAME)
    return out


if __name__ == "__main__":
    mode = sys.argv[1] if len(sys.argv) > 1 else "plain"
    dst = sys.argv[2] if len(sys.argv) > 2 else "k4.s"
    for kv in sys.argv[3:]:
        k, v = kv.split("=")
        OPT[k] = v if k != "spin" else int(v)
    if mode == "tc":
        TS.INSTR = "s_memtime"
    open(dst, "w").write(gen(mode in ("ts", "tc")))
    print("wrote", dst)
```

```python
import sys

KNAME = "concat_heads__ssm_conv_h3__sliding_local_dilated__prompt_kernel"
TSZ = 640 * 4096
WS_OW = 0x0
WS_XT = 0x280000
WS_YT = 0x500000
WS_FL = 0x780000
FL_B = 0x0
FL_A1 = 0x6000
FL_A2 = 0x9000
FL_EB = 0xC000
FL_EA = 0xD000
WS_TS = 0x800000
OOB = 0x80000000

OPT = dict(nopf0=1, b2dma=1, psleep=2, sc_oload="sc1", sc_ostore="sc1", nt_pf="", nt_a="", nt_h="", nt_x="", nt_w="", nt_out="", sc="sc1", spin=1 << 20)


class Asm:
    def __init__(self):
        self.l = []
        self.uid = 0

    def __call__(self, s=""):
        for line in s.split("\n"):
            line = line.strip()
            if line:
                self.l.append("    " + line)

    def label(self, name):
        self.l.append(name + ":")

    def newlabel(self, p="L"):
        self.uid += 1
        return f"{p}_{self.uid}"

    def text(self):
        return "\n".join(self.l) + "\n"


P_Q, P_K, P_V, P_SK, P_H, P_SD, P_X, P_W, P_WO, P_OUT, P_DBG, P_WS = [8 + 2 * i for i in range(12)]


def srd(a, dst, ptr, nbytes, off=0):
    if off:
        a(f"s_add_u32 s{dst}, s{ptr}, 0x{off:x}")
        a(f"s_addc_u32 s{dst+1}, s{ptr+1}, 0")
    else:
        a(f"s_mov_b32 s{dst}, s{ptr}")
        a(f"s_mov_b32 s{dst+1}, s{ptr+1}")
    a(f"s_mov_b32 s{dst+2}, 0x{nbytes:x}")
    a(f"s_mov_b32 s{dst+3}, 0x00020000")


class TS:
    INSTR = "s_memrealtime"

    def __init__(self, on):
        self.on = on
        self.n = 0

    def stamp(self, a, idx):
        if not self.on:
            return
        if OPT.get("stagets") and 3 <= idx < 14:
            return
        a(f"{TS.INSTR} s[96:97]")
        a("s_waitcnt lgkmcnt(0)")
        a(f"s_mov_b32 s{80+idx}, s96")

    def init(self, a):
        if not self.on:
            return
        for i in range(16):
            a(f"s_mov_b32 s{80+i}, 0")

    def flush(self, a):
        if not self.on:
            return
        srd(a, 96, P_WS, 0x40000, WS_TS)
        a("s_mov_b64 exec, 1")
        a("s_lshl_b32 s7, s2, 3")
        a("s_add_u32 s7, s7, s3")
        a("s_lshl_b32 s7, s7, 6")
        a("v_mov_b32 v3, s7")
        for i in range(16):
            a(f"v_mov_b32 v2, s{80+i}")
            a(f"buffer_store_dword v2, v3, s[96:99], 0 offen offset:{4*i}")
        a("s_waitcnt vmcnt(0)")
        a("s_mov_b64 exec, -1")


NRT = 13
B1_XSZ = NRT * 16 * 128
B1_STAGE = B1_XSZ + 16384
B1_NB = 3
QKV_RS = 400
O_LDS = 83200
def WSLOT(p):
    if p < 5:
        return 102400 + 5120 * p
    if p < 11:
        return 133120 + 5120 * (p - 5)
    if p < 19:
        return 5120 * (p - 11)
    return 133120


B2_O3 = 102400
B2_O = 40960
B2_OST = 30720
ACC = 16
XA, XB, WA, WB = 120, 172, 224, 232


def role_decode(a):
    a("s_cmp_lt_u32 s4, 2")
    a("s_cselect_b32 s70, 16, 24")
    a("s_cmp_ge_u32 s5, s70")
    a("s_cbranch_scc1 A_ROLE")


def b_decode(a):
    a("s_cmp_eq_u32 s4, 1")
    a("s_cselect_b32 s71, 1, 0")
    a("s_cmp_ge_u32 s4, 5")
    a("s_cselect_b32 s71, 1, s71")
    a("s_cselect_b32 s7, 3, 0")
    a("s_sub_u32 s6, s4, 2")
    a("s_sub_u32 s6, s6, s7")
    a("s_mul_i32 s6, s6, 3")
    a("s_add_u32 s6, s6, 2")
    a("s_cmp_lt_u32 s4, 2")
    a("s_cselect_b32 s6, 0, s6")
    a("s_lshr_b32 s7, s5, 3")
    a("s_add_u32 s60, s6, s7")
    a("s_and_b32 s68, s5, 7")
    a("s_lshl_b32 s61, s71, 3")
    a("s_add_u32 s61, s61, s68")
    a("s_lshl_b32 s67, s60, 1")
    a("s_add_u32 s67, s67, s71")


def pf_x_addr(a, dst):
    a("v_and_b32 v10, 31, v1")
    a("s_mul_i32 s6, s68, 26")
    a("s_mul_i32 s7, s60, 192")
    a("s_add_u32 s6, s6, s7")
    a("s_sub_u32 s6, s6, 16")
    a("v_add_u32 v11, s6, v10")
    a("s_movk_i32 s7, 1280")
    a("v_mul_lo_u32 v11, v11, s7")
    a("v_lshrrev_b32 v12, 5, v1")
    a("v_lshlrev_b32 v12, 7, v12")
    a("v_add_u32 v11, v11, v12")
    a("v_cmp_gt_u32 vcc, 26, v10")
    a(f"v_mov_b32 v12, 0x{OOB:x}")
    a("s_nop 0")
    a(f"v_cndmask_b32 v{dst}, v12, v11, vcc")


def pf_w_addr(a, dst):
    a("s_cmp_eq_u32 s70, 16")
    a("s_cselect_b32 s6, 60, 40")
    a("s_mul_i32 s7, s5, s6")
    a("v_add_u32 v10, s7, v1")
    a("v_mul_u32_u24 v11, 4370, v10")
    a("v_lshrrev_b32 v11, 16, v11")
    a("v_mul_u32_u24 v12, 15, v11")
    a("v_sub_u32 v12, v10, v12")
    a("v_mul_u32_u24 v13, 52, v12")
    a("v_lshrrev_b32 v13, 8, v13")
    a("v_mul_u32_u24 v14, 5, v13")
    a("v_sub_u32 v14, v12, v14")
    a("v_mul_u32_u24 v11, 3840, v11")
    a("v_mul_u32_u24 v13, 1280, v13")
    a("v_lshlrev_b32 v14, 7, v14")
    a("v_add3_u32 v11, v11, v13, v14")
    a("s_mul_i32 s7, s71, 640")
    a("v_add_u32 v11, s7, v11")
    a("v_cmp_gt_u32 vcc, s6, v1")
    a(f"v_mov_b32 v12, 0x{OOB:x}")
    a("s_nop 0")
    a(f"v_cndmask_b32 v{dst}, v12, v11, vcc")


def b_initial_prefetch(a):
    npf = OPT["nt_pf"]
    srd(a, 32, P_X, TSZ)
    srd(a, 36, P_W, 640 * 3840)
    l1 = a.newlabel("IP")
    a("s_cmp_eq_u32 s3, 3")
    a(f"s_cbranch_scc1 {l1}")
    pf_w_addr(a, 2)
    a("s_mul_i32 s6, s3, 245760")
    a(f"buffer_load_dword v254, v2, s[36:39], s6 offen {npf}")
    a("s_cmp_eq_u32 s3, 2")
    a(f"s_cbranch_scc1 {l1}")
    pf_x_addr(a, 3)
    a("s_lshl_b32 s6, s3, 8")
    a(f"buffer_load_dword v255, v3, s[32:35], s6 offen {npf}")
    a.label(l1)


def b1_loader_setup(a):
    srd(a, 32, P_X, TSZ)
    srd(a, 36, P_W, 640 * 3840)
    a("s_sub_u32 s62, s3, 4")
    a("v_lshrrev_b32 v10, 3, v1")
    a("s_lshl_b32 s6, s62, 3")
    a("v_add_u32 v10, s6, v10")
    a("v_lshrrev_b32 v11, 1, v10")
    a("v_and_b32 v11, 7, v11")
    a("v_and_b32 v12, 7, v1")
    a("v_xor_b32 v11, v11, v12")
    a("v_lshlrev_b32 v11, 4, v11")
    a("s_mul_i32 s6, s60, 192")
    a("s_sub_u32 s6, s6, 16")
    a("v_add_u32 v10, s6, v10")
    a("s_movk_i32 s7, 1280")
    a("v_mul_lo_u32 v10, v10, s7")
    a("v_add_u32 v2, v10, v11")
    a("v_add_u32 v3, 40960, v2")
    a("v_lshrrev_b32 v10, 4, v1")
    a("v_and_b32 v12, 15, v1")
    a("s_mul_i32 s63, s61, 80")
    for which, dst in ((0, 5), (1, 6)):
        a("v_lshlrev_b32 v11, 1, v10")
        if which:
            a("v_add_u32 v11, 8, v11")
        a("v_xor_b32 v11, v11, v12")
        a("v_mul_u32_u24 v13, 52, v11")
        a("v_lshrrev_b32 v13, 8, v13")
        a("v_mul_u32_u24 v14, 5, v13")
        a("v_sub_u32 v14, v11, v14")
        a("v_mul_u32_u24 v13, 1280, v13")
        a("v_lshlrev_b32 v14, 4, v14")
        a("v_add3_u32 v13, v13, v14, s63")
        if OPT.get("walign"):
            a("v_lshlrev_b32 v13, 4, v11")
            a("s_lshl_b32 s6, s61, 7")
            a("v_add_u32 v13, s6, v13")
        a("s_lshl_b32 s6, s62, 4")
        if which:
            a("s_add_u32 s6, s6, 8")
        a("v_add_u32 v14, s6, v10")
        a("v_mul_u32_u24 v14, 3840, v14")
        a(f"v_add_u32 v{dst}, v14, v13")
        a("v_cmp_eq_u32 vcc, 15, v11")
        a(f"v_mov_b32 v13, 0x{OOB:x}")
        a("s_nop 0")
        a(f"v_cndmask_b32 v{dst}, v{dst}, v13, vcc")
    a("s_mov_b32 s41, 0")
    a("s_mov_b32 s42, 0")
    a("s_mov_b32 s43, 0")


def b1_issue_stage(a):
    nx, nw = OPT["nt_x"], OPT["nt_w"]
    a("s_lshl_b32 s6, s62, 10")
    a("s_add_u32 s6, s6, s43")
    a("s_mov_b32 m0, s6")
    a("s_mov_b32 s7, s41")
    a(f"buffer_load_dwordx4 v2, s[32:35], s41 offen {nx} lds")
    for m in range(1, 6):
        a(f"s_add_u32 m0, s6, {4096*m}")
        if m > 1:
            a("s_add_u32 s7, s7, 40960")
        else:
            a("s_nop 0")
        a(f"buffer_load_dwordx4 v3, s[32:35], s7 offen {nx} lds")
    l1 = a.newlabel("IS")
    a("s_cmp_lt_u32 s62, 2")
    a(f"s_cbranch_scc0 {l1}")
    a(f"s_add_u32 m0, s6, {4096*6}")
    a("s_add_u32 s7, s7, 40960")
    a(f"buffer_load_dwordx4 v3, s[32:35], s7 offen {nx} lds")
    a.label(l1)
    a("s_lshl_b32 s7, s62, 12")
    a("s_add_u32 s7, s7, s43")
    a(f"s_add_u32 s7, s7, {B1_XSZ}")
    a("s_mov_b32 m0, s7")
    a("s_add_u32 s46, s42, 15360")
    a(f"buffer_load_dwordx4 v5, s[36:39], s42 offen {nw} lds")
    a("s_add_u32 m0, s7, 1024")
    a("s_nop 0")
    a(f"buffer_load_dwordx4 v5, s[36:39], s46 offen {nw} lds")
    a("s_add_u32 m0, s7, 2048")
    a("s_nop 0")
    a(f"buffer_load_dwordx4 v6, s[36:39], s42 offen {nw} lds")
    a("s_add_u32 m0, s7, 3072")
    a("s_nop 0")
    a(f"buffer_load_dwordx4 v6, s[36:39], s46 offen {nw} lds")
    a("s_add_u32 s41, s41, 128")
    a("s_add_u32 s42, s42, 245760")
    a(f"s_add_u32 s43, s43, {B1_STAGE}")
    a(f"s_cmp_ge_u32 s43, {B1_STAGE*B1_NB}")
    a("s_cselect_b32 s43, 0, s43")


def lwait(a, nb, extra):
    l1, l2 = a.newlabel("LW"), a.newlabel("LW")
    a("s_cmp_lt_u32 s62, 2")
    a(f"s_cbranch_scc0 {l1}")
    a(f"s_waitcnt vmcnt({11*nb+extra})")
    a(f"s_branch {l2}")
    a.label(l1)
    a(f"s_waitcnt vmcnt({10*nb+extra})")
    a.label(l2)


def wo_dma_addr(a):
    for j in range(5):
        a(f"v_add_u32 v10, {64*j}, v1")
        a("v_mul_u32_u24 v11, 6554, v10")
        a("v_lshrrev_b32 v11, 16, v11")
        a("v_mul_u32_u24 v12, 10, v11")
        a("v_sub_u32 v12, v10, v12")
        a("v_lshrrev_b32 v13, 4, v11")
        a("v_lshlrev_b32 v13, 2, v13")
        a("v_and_b32 v14, 3, v11")
        a("v_add_u32 v13, v13, v14")
        a("v_lshrrev_b32 v14, 2, v11")
        a("v_and_b32 v14, 3, v14")
        a("v_lshlrev_b32 v14, 3, v14")
        a("v_add_u32 v13, v13, v14")
        a("v_mul_u32_u24 v13, 1280, v13")
        a("v_lshlrev_b32 v12, 4, v12")
        a("s_mul_i32 s6, s68, 160")
        a(f"v_add3_u32 v{230+j}, v13, v12, s6")


def wo_dma_slots(a, first, n):
    base = WSLOT(first) - first * 5120
    for p in range(first, first + n - 1):
        assert WSLOT(p + 1) - WSLOT(p) == 5120
    a(f"s_add_u32 s47, s62, {first}")
    loop, done = a.newlabel("WO"), a.newlabel("WO")
    a.label(loop)
    a(f"s_cmp_ge_u32 s47, {first+n}")
    a(f"s_cbranch_scc1 {done}")
    a("s_mul_i32 s6, s47, 52")
    a("s_lshr_b32 s6, s6, 8")
    a("s_mul_i32 s7, s6, 5")
    a("s_sub_u32 s7, s47, s7")
    a("s_add_u32 s6, s6, s68")
    a("s_and_b32 s6, s6, 3")
    a("s_mul_i32 s6, s6, 5")
    a("s_add_u32 s7, s7, s6")
    a("s_mul_i32 s7, s7, 40960")
    a("s_mul_i32 s6, s47, 5120")
    a(f"s_add_u32 s6, s6, 0x{base & 0xffffffff:x}")
    for j in range(5):
        a(f"s_add_u32 m0, s6, {1024*j}")
        a("s_nop 0")
        a(f"buffer_load_dwordx4 v{230+j}, s[56:59], s7 offen lds")
    a("s_add_u32 s47, s47, 4")
    a(f"s_branch {loop}")
    a.label(done)


def NPFL():
    return 0 if int(OPT.get('apf', 1)) else 3


def b_later_prefetch(a):
    npf = OPT["nt_pf"]
    a(f"v_mov_b32 v4, 0x{OOB:x}")
    a("s_add_u32 s6, s62, 3")
    a("s_mul_i32 s6, s6, 245760")
    a(f"buffer_load_dword v235, v8, s[36:39], s6 offen {npf}")
    a("s_cmp_lt_u32 s62, 3")
    a("s_cselect_b64 vcc, -1, 0")
    a("v_cndmask_b32 v10, v4, v9, vcc")
    a("s_add_u32 s6, s62, 2")
    a("s_lshl_b32 s6, s6, 8")
    a(f"buffer_load_dword v236, v10, s[32:35], s6 offen {npf}")
    a("v_cndmask_b32 v10, v4, v8, vcc")
    a("s_add_u32 s6, s62, 7")
    a("s_mul_i32 s6, s6, 245760")
    a(f"buffer_load_dword v237, v10, s[36:39], s6 offen {npf}")


def b1_loader(a, T):
    if OPT.get("lprio"):
        a("s_setprio 2")
    b1_loader_setup(a)
    if NPFL():
        pf_w_addr(a, 8)
        pf_x_addr(a, 9)
    def late_setup():
        srd(a, 56, P_WO, 640 * 1280)
        wo_dma_addr(a)
        att_setup(a)
        o_store_setup(a)
        srd(a, 48, P_WS, TSZ, WS_OW)
    if not int(OPT.get("nopf0", 0)):
        late_setup()
        a("s_barrier")
    a("s_mov_b32 s40, 0")
    l0 = a.newlabel("LP")
    a.label(l0)
    b1_issue_stage(a)
    a("s_add_u32 s40, s40, 1")
    lP = a.newlabel("LP")
    a("s_cmp_eq_u32 s40, 2")
    a(f"s_cbranch_scc0 {lP}")
    T.stamp(a, 1)
    if int(OPT.get("nopf0", 0)):
        late_setup()
    lwait(a, 1, 0)
    a("s_barrier")
    a.label(lP)
    a("s_cmp_lt_u32 s40, 3")
    a(f"s_cbranch_scc1 {l0}")
    if NPFL():
        b_later_prefetch(a)
    a("s_mov_b32 s40, 0")
    loop = a.newlabel("LL")
    lA, lB, lC, lD, lW = [a.newlabel("LLx") for _ in range(5)]
    a.label(loop)
    a("s_cmp_lt_u32 s40, 2")
    a(f"s_cbranch_scc1 {lA}")
    a("s_cmp_lt_u32 s40, 8")
    a(f"s_cbranch_scc1 {lB}")
    a("s_cmp_eq_u32 s40, 8")
    a(f"s_cbranch_scc1 {lC}")
    a(f"s_branch {lW}")
    a.label(lA)
    lwait(a, 1, NPFL())
    a(f"s_branch {lW}")
    a.label(lB)
    lwait(a, 1, 0)
    a(f"s_branch {lW}")
    a.label(lC)
    a("s_waitcnt vmcnt(5)")
    a.label(lW)
    a("s_barrier")
    skip, s7, s8, nxt = a.newlabel("LLS"), a.newlabel("LL7"), a.newlabel("LL8"), a.newlabel("LLN")
    a("s_cmp_ge_u32 s40, 7")
    a(f"s_cbranch_scc1 {skip}")
    b1_issue_stage(a)
    a(f"s_branch {nxt}")
    a.label(skip)
    a("s_cmp_eq_u32 s40, 7")
    a(f"s_cbranch_scc0 {s8}")
    wo_dma_slots(a, 5, 6)
    a(f"s_branch {nxt}")
    a.label(s8)
    s9 = a.newlabel("LL9")
    a("s_cmp_eq_u32 s40, 8")
    a(f"s_cbranch_scc0 {s9}")
    wo_dma_slots(a, 0, 5)
    a(f"s_branch {nxt}")
    a.label(s9)
    for rep in range(2):
        a(f"s_add_u32 s6, s68, {2+rep}")
        a("s_and_b32 s6, s6, 3")
        a("s_mul_i32 s6, s6, 160")
        a("s_mul_i32 s7, s62, 40")
        a("s_add_u32 s6, s6, s7")
        a("v_add_u32 v10, s6, v1")
        a("v_mul_u32_u24 v10, 1280, v10")
        a("s_mul_i32 s6, s68, 160")
        a("s_and_b32 s6, s6, 0xffffff80")
        a("v_add_u32 v10, s6, v10")
        a(f"v_mov_b32 v11, 0x{OOB:x}")
        a("v_cmp_gt_u32 vcc, 40, v1")
        a("s_nop 1")
        a("v_cndmask_b32 v10, v11, v10, vcc")
        a(f"buffer_load_dword v{235+2*rep}, v10, s[56:59], 0 offen")
        a(f"buffer_load_dword v{236+2*rep}, v10, s[56:59], 0 offen offset:128")
    a.label(nxt)
    a("s_add_u32 s40, s40, 1")
    a("s_cmp_lt_u32 s40, 10")
    a(f"s_cbranch_scc1 {loop}")


def b1_compute(a, T):
    a("v_and_b32 v10, 15, v1")
    a("v_lshrrev_b32 v11, 4, v1")
    a("v_lshrrev_b32 v12, 1, v10")
    a("v_xor_b32 v12, v12, v11")
    a("v_lshlrev_b32 v12, 4, v12")
    a("v_lshlrev_b32 v10, 7, v10")
    a("v_add_u32 v2, v10, v12")
    a("v_xor_b32 v3, 64, v2")
    a("v_lshrrev_b32 v10, 2, v1")
    a("v_and_b32 v10, 3, v10")
    a("v_and_b32 v12, 3, v1")
    a("v_lshlrev_b32 v13, 3, v11")
    a("v_add_u32 v13, v13, v10")
    a("v_lshlrev_b32 v13, 8, v13")
    a("v_and_b32 v14, 1, v11")
    a("v_lshlrev_b32 v14, 3, v14")
    a("v_lshlrev_b32 v10, 1, v10")
    a("v_add_u32 v14, v14, v10")
    a("v_lshrrev_b32 v15, 1, v12")
    a("s_lshl_b32 s6, s3, 2")
    a("v_add_u32 v15, s6, v15")
    a("v_xor_b32 v15, v15, v14")
    a("v_lshlrev_b32 v15, 4, v15")
    a("v_and_b32 v12, 1, v12")
    a("v_lshlrev_b32 v12, 3, v12")
    a("v_add3_u32 v13, v13, v15, v12")
    a(f"v_add_u32 v4, {B1_XSZ}, v13")
    a("v_xor_b32 v5, 32, v4")
    for i in range(NRT * 8):
        a(f"v_mov_b32 v{ACC+i}, 0")
    att_setup(a)
    a("v_and_b32 v10, 15, v1")
    a(f"v_mul_u32_u24 v10, {QKV_RS}, v10")
    a("v_lshrrev_b32 v11, 4, v1")
    a("s_lshl_b32 s6, s3, 3")
    a("v_add_u32 v11, s6, v11")
    for ct in range(2):
        if ct:
            a("v_add_u32 v11, 4, v11")
        a("v_mul_u32_u24 v6, 52, v11")
        a("v_lshrrev_b32 v6, 8, v6")
        a("v_mul_u32_u24 v7, 5, v6")
        a("v_sub_u32 v7, v11, v7")
        a("v_lshlrev_b32 v6, 6, v6")
        a("v_lshlrev_b32 v7, 3, v7")
        a(f"v_add3_u32 v{12+ct}, v10, v6, v7")
        a(f"v_add_u32 v{14+ct}, {8*16*QKV_RS}, v{12+ct}")

    def reads(xaddr, waddr0, waddr1, ks, X, W):
        r = []
        r.append(f"ds_read_b64_tr_b16 v[{W}:{W+1}], v{waddr0} offset:{8192*ks}")
        r.append(f"ds_read_b64_tr_b16 v[{W+2}:{W+3}], v{waddr0} offset:{8192*ks+1024}")
        r.append(f"ds_read_b64_tr_b16 v[{W+4}:{W+5}], v{waddr1} offset:{8192*ks}")
        r.append(f"ds_read_b64_tr_b16 v[{W+6}:{W+7}], v{waddr1} offset:{8192*ks+1024}")
        for t in range(NRT):
            r.append(f"ds_read_b128 v[{X+4*t}:{X+4*t+3}], v{xaddr} offset:{2048*t}")
        return r

    def mfmas(X, W):
        r = []
        for t in range(NRT):
            for ct in range(2):
                ac = ACC + (ct * NRT + t) * 4
                r.append(f"v_mfma_f32_16x16x32_bf16 v[{ac}:{ac+3}], v[{W+4*ct}:{W+4*ct+3}], v[{X+4*t}:{X+4*t+3}], v[{ac}:{ac+3}]")
        return r

    def inter(m, r):
        if OPT.get("nomfma"):
            return
        for i, x in enumerate(m):
            a(x)
            if i < len(r):
                a(r[i])

    a("s_waitcnt vmcnt(0)")
    if not int(OPT.get("nopf0", 0)):
        a("s_barrier")
    T.stamp(a, 1)
    a("s_barrier")
    T.stamp(a, 2)
    if OPT.get("prio"):
        a("s_setprio 1")
    a("v_mov_b32 v6, v2")
    a("v_mov_b32 v7, v3")
    a("v_mov_b32 v8, v4")
    a("v_mov_b32 v9, v5")
    for x in reads(6, 8, 9, 0, XA, WA):
        a(x)
    a("s_mov_b32 s40, 0")
    a("s_mov_b32 s44, 0")
    loop, last = a.newlabel("CL"), a.newlabel("CE")
    a.label(loop)
    a("s_waitcnt lgkmcnt(0)")
    inter(mfmas(XA, WA), reads(7, 8, 9, 1, XB, WB))
    a(f"s_add_u32 s44, s44, {B1_STAGE}")
    a(f"s_cmp_ge_u32 s44, {B1_STAGE*B1_NB}")
    a("s_cselect_b32 s44, 0, s44")
    a("v_add_u32 v6, s44, v2")
    a("v_add_u32 v7, s44, v3")
    a("v_add_u32 v8, s44, v4")
    a("v_add_u32 v9, s44, v5")
    a("s_waitcnt lgkmcnt(0)")
    a("s_barrier")
    if OPT.get("stagets") and T.on:
        a(f"{TS.INSTR} s[96:97]")
        a("s_waitcnt lgkmcnt(0)")
        for i in range(10):
            a(f"s_cmp_eq_u32 s40, {i}")
            a(f"s_cselect_b32 s{83+i}, s96, s{83+i}")
    a("s_cmp_eq_u32 s40, 9")
    a(f"s_cbranch_scc1 {last}")
    inter(mfmas(XB, WB), reads(6, 8, 9, 0, XA, WA))
    a("s_add_u32 s40, s40, 1")
    a(f"s_branch {loop}")
    a.label(last)
    m = mfmas(XB, WB)

    def wr(t, ct, k):
        ac = ACC + (ct * NRT + t) * 4
        d = XA + 2 * (k % 16)
        r = [f"v_cvt_pk_bf16_f32 v{d}, v{ac}, v{ac+1}", f"v_cvt_pk_bf16_f32 v{d+1}, v{ac+2}, v{ac+3}"]
        if t < 8:
            r.append(f"ds_write_b64 v{12+ct}, v[{d}:{d+1}] offset:{16*QKV_RS*t}")
        else:
            r.append(f"ds_write_b64 v{14+ct}, v[{d}:{d+1}] offset:{16*QKV_RS*(t-8)}")
        return r
    k = 0
    pend = []
    LAG = 8
    for i, x in enumerate(m):
        a(x)
        pend.append((i // 2, i % 2))
        if i >= LAG:
            t, ct = pend.pop(0)
            for y in wr(t, ct, k):
                a(y)
            k += 1
    a("s_nop 7")
    for (t, ct) in pend:
        for y in wr(t, ct, k):
            a(y)
        k += 1


def b1_epi_loader(a):
    a("v_and_b32 v10, 255, v0")
    a("v_mov_b32 v16, 0")
    a("v_mov_b32 v17, 0")
    a("v_mov_b32 v18, 0")
    a("v_mov_b32 v19, 0")
    a("v_lshrrev_b32 v11, 2, v10")
    a("v_and_b32 v12, 3, v10")
    a(f"v_mul_u32_u24 v11, {QKV_RS}, v11")
    a("v_lshlrev_b32 v12, 6, v12")
    a("v_add_u32 v11, v11, v12")
    for it in range(4):
        off = it * 64 * QKV_RS
        if it == 3:
            a("v_cmp_gt_u32 vcc, 64, v10")
            a("s_and_saveexec_b64 s[6:7], vcc")
        if it == 2:
            a(f"v_add_u32 v11, {2*64*QKV_RS}, v11")
        o2 = off if it < 2 else off - 2 * 64 * QKV_RS
        a(f"ds_write_b64 v11, v[16:17] offset:{o2+40}")
        a(f"ds_write_b128 v11, v[16:19] offset:{o2+48}")
        if it == 3:
            a("s_mov_b64 exec, s[6:7]")


KP0, KC0, KP1, KC1, NEG, KQB, VB, OB = 240, 241, 242, 243, 248, 249, 252, 253
S_PAR, S_M0, S_M1 = 64, 72, 74
S_D1, S_D2, S_O1, S_O2 = 76, 77, 66, 78


def att_setup(a):
    R16 = 16 * QKV_RS
    a("v_and_b32 v10, 15, v1")
    a("v_lshrrev_b32 v11, 4, v1")
    a(f"v_mov_b32 v{NEG}, 0xf149f2ca")
    a("v_and_b32 v12, 1, v10")
    a(f"v_cmp_eq_u32 s[{S_PAR}:{S_PAR+1}], 1, v12")
    a("v_lshlrev_b32 v13, 2, v11")
    a("v_add_u32 v13, v13, v12")
    a(f"v_cmp_le_u32 s[{S_M0}:{S_M0+1}], v13, v10")
    a("v_add_u32 v13, 2, v13")
    a(f"v_cmp_le_u32 s[{S_M1}:{S_M1+1}], v13, v10")
    a("v_mov_b32 v14, 0xffff")
    a("v_mov_b32 v15, 0xffff0000")
    a(f"v_cndmask_b32 v14, v14, v15, s[{S_PAR}:{S_PAR+1}]")
    a("v_mov_b32 v15, 0")
    a(f"v_cndmask_b32 v{KC0}, v15, v14, s[{S_M0}:{S_M0+1}]")
    a(f"v_cndmask_b32 v{KP0}, v14, v15, s[{S_M0}:{S_M0+1}]")
    a(f"v_cndmask_b32 v{KC1}, v15, v14, s[{S_M1}:{S_M1+1}]")
    a(f"v_cndmask_b32 v{KP1}, v14, v15, s[{S_M1}:{S_M1+1}]")
    a("s_mul_i32 s46, s3, 3")
    a("s_lshr_b32 s6, s46, 1")
    a("s_and_b32 s7, s46, 1")
    a(f"s_mul_i32 s45, s6, {R16}")
    a("s_lshl_b32 s47, s7, 6")
    a("s_add_u32 s45, s45, s47")
    a("s_mul_i32 s47, s6, 1280")
    a("s_mul_i32 s6, s7, 40")
    a("s_add_u32 s47, s47, s6")
    a("s_cmp_eq_u32 s7, 0")
    a(f"s_cselect_b32 s{S_D1}, 64, {R16-64}")
    a(f"s_mov_b32 s{S_D2}, {R16}")
    a(f"s_cselect_b32 s{S_O1}, 40, {1280-40}")
    a(f"s_mov_b32 s{S_O2}, 1280")
    a(f"v_mul_u32_u24 v12, {QKV_RS}, v10")
    a("v_lshlrev_b32 v13, 4, v11")
    a(f"v_add3_u32 v{KQB}, v12, v13, s45")
    a("v_lshrrev_b32 v12, 2, v1")
    a("v_and_b32 v12, 3, v12")
    a("v_lshlrev_b32 v13, 2, v11")
    a("v_add_u32 v12, v12, v13")
    a(f"v_mul_u32_u24 v12, {QKV_RS}, v12")
    a("v_and_b32 v13, 3, v1")
    a("v_lshlrev_b32 v13, 3, v13")
    a(f"v_add3_u32 v{VB}, v12, v13, s45")
    a("v_mul_u32_u24 v12, 80, v10")
    a("v_lshlrev_b32 v13, 3, v11")
    a("v_add3_u32 v12, v12, v13, s47")
    a(f"v_add_u32 v{OB}, {O_LDS}, v12")


def attention(a, T=None):
    R16 = 16 * QKV_RS
    U = [32 + 48 * u for u in range(3)]
    kq = [KQB, U[1] + 36, U[2] + 36]
    vv = [VB, U[1] + 37, U[2] + 37]
    oo = [OB, U[1] + 38, U[2] + 38]
    a(f"v_add_u32 v{kq[1]}, s{S_D1}, v{KQB}")
    a(f"v_add_u32 v{kq[2]}, s{S_D2}, v{KQB}")
    for u in range(3):
        b = U[u]
        a(f"ds_read_b128 v[{b}:{b+3}], v{kq[u]} offset:{R16}")
        a(f"ds_read_b128 v[{b+4}:{b+7}], v{kq[u]} offset:128")
        a(f"ds_read_b128 v[{b+8}:{b+11}], v{kq[u]} offset:{R16+128}")
    a(f"v_add_u32 v{vv[1]}, s{S_D1}, v{VB}")
    a(f"v_add_u32 v{vv[2]}, s{S_D2}, v{VB}")
    for u in range(3):
        b = U[u]
        a(f"ds_read_b64_tr_b16 v[{b+12}:{b+13}], v{vv[u]} offset:256")
        a(f"ds_read_b64_tr_b16 v[{b+14}:{b+15}], v{vv[u]} offset:{R16+256}")
        a(f"ds_read_b64_tr_b16 v[{b+16}:{b+17}], v{vv[u]} offset:{256+32}")
        a(f"ds_read_b64_tr_b16 v[{b+18}:{b+19}], v{vv[u]} offset:{R16+256+32}")
    a(f"v_add_u32 v{oo[1]}, s{S_O1}, v{OB}")
    a(f"v_add_u32 v{oo[2]}, s{S_O2}, v{OB}")
    a("s_mov_b32 s45, 0x3ea52b5c")
    a("s_waitcnt lgkmcnt(12)")
    for u in range(3):
        b = U[u]
        a(f"v_mfma_f32_16x16x32_bf16 v[{b+20}:{b+23}], v[{b+4}:{b+7}], v[{b}:{b+3}], 0")
        a(f"v_mfma_f32_16x16x32_bf16 v[{b+24}:{b+27}], v[{b+8}:{b+11}], v[{b}:{b+3}], 0")
    a("s_nop 7")

    def each(f):
        for step in zip(*[f(U[u]) for u in range(3)]):
            for x in step:
                a(x)
    P_, M0_, M1_ = f"s[{S_PAR}:{S_PAR+1}]", f"s[{S_M0}:{S_M0+1}]", f"s[{S_M1}:{S_M1+1}]"
    each(lambda b: [f"v_cndmask_b32 v{b+20}, v{b+20}, v{b+21}, {P_}",
                    f"v_cndmask_b32 v{b+22}, v{b+22}, v{b+23}, {P_}",
                    f"v_cndmask_b32 v{b+24}, v{b+24}, v{b+25}, {P_}",
                    f"v_cndmask_b32 v{b+26}, v{b+26}, v{b+27}, {P_}"])
    lsp = a.newlabel("ATS")
    a("s_or_b32 s6, s60, s3")
    a("s_cmp_lg_u32 s6, 0")
    a(f"s_cbranch_scc1 {lsp}")
    for u in range(2):
        a(f"v_mov_b32 v{U[u]+20}, v{NEG}")
        a(f"v_mov_b32 v{U[u]+22}, v{NEG}")
    a.label(lsp)
    each(lambda b: [f"v_cndmask_b32 v{b+20}, v{b+20}, v{b+24}, {M0_}",
                    f"v_cndmask_b32 v{b+22}, v{b+22}, v{b+26}, {M1_}",
                    f"v_max_f32 v{b+28}, v{b+20}, v{b+22}",
                    f"v_mov_b32 v{b+29}, v{b+28}",
                    f"v_permlane32_swap_b32 v{b+28}, v{b+29}",
                    f"v_max_f32 v{b+28}, v{b+28}, v{b+29}",
                    f"v_mov_b32 v{b+29}, v{b+28}",
                    f"v_permlane16_swap_b32 v{b+28}, v{b+29}",
                    f"v_max_f32 v{b+28}, v{b+28}, v{b+29}",
                    f"v_mul_f32 v{b+28}, s45, v{b+28}",
                    f"v_fma_f32 v{b+20}, v{b+20}, s45, -v{b+28}",
                    f"v_fma_f32 v{b+22}, v{b+22}, s45, -v{b+28}",
                    f"v_exp_f32 v{b+20}, v{b+20}",
                    f"v_exp_f32 v{b+22}, v{b+22}",
                    f"v_add_f32 v{b+28}, v{b+20}, v{b+22}",
                    f"v_mov_b32 v{b+29}, v{b+28}",
                    f"v_permlane32_swap_b32 v{b+28}, v{b+29}",
                    f"v_add_f32 v{b+28}, v{b+28}, v{b+29}",
                    f"v_mov_b32 v{b+29}, v{b+28}",
                    f"v_permlane16_swap_b32 v{b+28}, v{b+29}",
                    f"v_add_f32 v{b+28}, v{b+28}, v{b+29}",
                    f"v_rcp_f32 v{b+28}, v{b+28}",
                    f"v_mul_f32 v{b+20}, v{b+20}, v{b+28}",
                    f"v_mul_f32 v{b+22}, v{b+22}, v{b+28}",
                    f"v_cvt_pk_bf16_f32 v{b+20}, v{b+20}, v{b+20}",
                    f"v_cvt_pk_bf16_f32 v{b+22}, v{b+22}, v{b+22}",
                    f"v_and_b32 v{b+40}, v{KP0}, v{b+20}",
                    f"v_and_b32 v{b+41}, v{KP1}, v{b+22}",
                    f"v_and_b32 v{b+42}, v{KC0}, v{b+20}",
                    f"v_and_b32 v{b+43}, v{KC1}, v{b+22}"])
    a("s_waitcnt lgkmcnt(0)")
    for u in range(3):
        b = U[u]
        a(f"v_mfma_f32_16x16x32_bf16 v[{b}:{b+3}], v[{b+12}:{b+15}], v[{b+40}:{b+43}], 0")
        a(f"v_mfma_f32_16x16x32_bf16 v[{b+4}:{b+7}], v[{b+16}:{b+19}], v[{b+40}:{b+43}], 0")
    a("s_nop 7")
    for u in range(3):
        b = U[u]
        a(f"v_cvt_pk_bf16_f32 v{b+8}, v{b}, v{b+1}")
        a(f"v_cvt_pk_bf16_f32 v{b+9}, v{b+2}, v{b+3}")
        a(f"v_cvt_pk_bf16_f32 v{b+10}, v{b+4}, v{b+5}")
        a(f"v_cvt_pk_bf16_f32 v{b+11}, v{b+6}, v{b+7}")
        a(f"ds_write_b64 v{oo[u]}, v[{b+8}:{b+9}]")
    a("s_mov_b64 exec, 0xffff")
    for u in range(3):
        b = U[u]
        a(f"ds_write_b64 v{oo[u]}, v[{b+10}:{b+11}] offset:32")
    a("s_mov_b64 exec, -1")


def epoch_issue(a, vdst, vtmp, srdn, off_expr_sgpr):
    srd(a, srdn, P_WS, 0x10000, WS_FL)
    a(f"v_mov_b32 v{vtmp}, s{off_expr_sgpr}")
    a(f"buffer_load_dword v{vdst}, v{vtmp}, s[{srdn}:{srdn+3}], 0 offen sc1")


def poll(a, vaddr, n_lanes, tag_s, srdn):
    l0, l1 = a.newlabel("PF"), a.newlabel("PF")
    a("s_mov_b32 s45, 0")
    if n_lanes < 64:
        a(f"s_mov_b64 exec, 0x{(1 << n_lanes) - 1:x}")
    a.label(l0)
    a(f"buffer_load_dword v4, v{vaddr}, s[{srdn}:{srdn+3}], 0 offen sc1")
    a("s_waitcnt vmcnt(0)")
    a(f"v_cmp_ne_u32 vcc, s{tag_s}, v4")
    a("s_add_u32 s45, s45, 1")
    a("s_nop 3")
    a(f"s_cbranch_vccz {l1}")
    a(f"s_cmp_gt_u32 s45, {OPT['spin']}")
    a(f"s_cbranch_scc1 {l1}")
    a(f"s_sleep {OPT['psleep']}")
    a(f"s_branch {l0}")
    a.label(l1)
    if n_lanes < 64:
        a("s_mov_b64 exec, -1")


def o_store_setup(a):
    a("v_and_b32 v10, 255, v0")
    a("v_lshlrev_b32 v10, 4, v10")
    a(f"v_add_u32 v216, {O_LDS}, v10")
    a("s_mul_i32 s6, s61, 163840")
    a("s_mul_i32 s7, s60, 15360")
    a("s_add_u32 s6, s6, s7")
    a("v_add_u32 v12, s6, v10")
    a("s_movk_i32 s7, 15360")
    a("s_cmp_eq_u32 s60, 10")
    a("s_cselect_b32 s7, 10240, s7")
    a(f"v_mov_b32 v14, 0x{OOB:x}")
    for i in range(4):
        a(f"v_add_u32 v{217+i}, {4096*i}, v12")
        a(f"v_add_u32 v13, {4096*i}, v10")
        a("v_cmp_gt_u32 vcc, s7, v13")
        a("s_nop 1")
        a(f"v_cndmask_b32 v{217+i}, v14, v{217+i}, vcc")


def o_store(a):
    sc = OPT["sc_ostore"]
    for i in range(4):
        a(f"ds_read_b128 v[{16+4*i}:{19+4*i}], v216 offset:{4096*i}")
    a("s_waitcnt lgkmcnt(0)")
    for i in range(4):
        a(f"buffer_store_dwordx4 v[{16+4*i}:{19+4*i}], v{217+i}, s[48:51], 0 offen {sc}")


def b2_o_addr(a, dst):
    a("s_lshl_b32 s6, s47, 10")
    a("v_add_u32 v10, s6, v239")
    a("v_lshrrev_b32 v11, 9, v10")
    a("v_mul_u32_u24 v11, 4370, v11")
    a("v_lshrrev_b32 v11, 16, v11")
    a("v_mul_u32_u24 v11, 156160, v11")
    a(f"v_add_u32 v{dst}, v10, v11")


def b2_loader_setup(a):
    for i in range(8):
        a(f"s_add_u32 s47, s62, {4*i}")
        b2_o_addr(a, 200 + i)
    a("s_cmp_lt_u32 s62, 2")
    a("s_cselect_b64 vcc, -1, 0")
    a(f"v_mov_b32 v10, 0x{OOB:x}")
    a("v_cndmask_b32 v207, v10, v207, vcc")
    a("s_mul_i32 s49, s67, 7680")


OBUF = [B2_O, B2_O + B2_OST, B2_O3, B2_O]


def b2_loader(a, T):
    sc = OPT["sc_oload"]

    def dma(st):
        a(f"s_add_u32 s50, s68, {st}")
        a("s_and_b32 s50, s50, 3")
        a("s_mul_i32 s50, s50, 655360")
        a("s_add_u32 s50, s50, s49")
        a("s_lshl_b32 s6, s62, 10")
        a(f"s_add_u32 s6, s6, {OBUF[st]}")
        for i in range(8):
            lab = None
            if i == 7:
                lab = a.newlabel("O7")
                a("s_cmp_ge_u32 s62, 2")
                a(f"s_cbranch_scc1 {lab}")
            a(f"s_add_u32 m0, s6, {4096*i}")
            a("s_nop 0")
            a(f"buffer_load_dwordx4 v{200+i}, s[52:55], s50 offen {sc} lds")
            if lab:
                a.label(lab)

    dma(0)
    dma(1)
    a("s_waitcnt vmcnt(7)")
    a("s_barrier")
    dma(2)
    a("s_waitcnt vmcnt(7)")
    a("s_barrier")
    dma(3)
    a("s_waitcnt vmcnt(7)")
    a("s_barrier")
    lq = a.newlabel("W19")
    a("s_cmp_lg_u32 s62, 0")
    a(f"s_cbranch_scc1 {lq}")
    a("s_add_u32 s7, s68, 3")
    a("s_and_b32 s7, s7, 3")
    a("s_mul_i32 s7, s7, 5")
    a("s_add_u32 s7, s7, 4")
    a("s_mul_i32 s7, s7, 40960")
    for j in range(5):
        a(f"s_mov_b32 m0, {WSLOT(19) + 1024*j}")
        a("s_nop 0")
        a(f"buffer_load_dwordx4 v{230+j}, s[56:59], s7 offen lds")
    a.label(lq)
    a("s_waitcnt vmcnt(0)")
    a("s_barrier")


def b2_compute_setup(a):
    a("v_and_b32 v10, 15, v1")
    a("v_lshrrev_b32 v11, 4, v1")
    a("s_and_b32 s6, s3, 1")
    a("s_mul_i32 s6, s6, 48")
    a("v_add_u32 v10, s6, v10")
    a("v_mul_u32_u24 v10, 80, v10")
    for ks in range(5):
        a(f"v_add_u32 v12, {4*ks}, v11")
        a("v_mul_u32_u24 v13, 52, v12")
        a("v_lshrrev_b32 v13, 8, v13")
        a("v_mul_u32_u24 v14, 5, v13")
        a("v_sub_u32 v14, v12, v14")
        a("v_mul_u32_u24 v13, 7680, v13")
        a("v_lshlrev_b32 v14, 4, v14")
        a(f"v_add3_u32 v{224+ks}, v10, v13, v14")
    a("v_lshrrev_b32 v12, 2, v1")
    a("v_and_b32 v12, 3, v12")
    a("v_lshlrev_b32 v13, 2, v11")
    a("v_add_u32 v12, v12, v13")
    a("v_mul_u32_u24 v12, 160, v12")
    a("v_and_b32 v13, 3, v1")
    a("v_lshlrev_b32 v13, 3, v13")
    a("s_lshr_b32 s47, s3, 1")
    a("s_mul_i32 s6, s47, 96")
    a("v_add3_u32 v229, v12, v13, s6")
    for i in range(36):
        a(f"v_mov_b32 v{16+i}, 0")
    srd(a, 56, P_OUT, 2048 * 2560)
    a("v_and_b32 v13, 15, v1")
    a("s_and_b32 s6, s3, 1")
    a("s_mul_i32 s6, s6, 48")
    a("s_mul_i32 s7, s67, 96")
    a("s_add_u32 s6, s6, s7")
    a("v_add_u32 v13, s6, v13")
    a("v_mul_u32_u24 v13, 2560, v13")
    a("v_lshrrev_b32 v14, 4, v1")
    a("v_lshlrev_b32 v14, 3, v14")
    a("s_mul_i32 s6, s68, 160")
    a("s_mul_i32 s7, s47, 96")
    a("s_add_u32 s6, s6, s7")
    a("s_add_u32 s6, s6, 1280")
    a("v_add3_u32 v213, v13, v14, s6")
    a("s_mov_b32 s72, 0")
    a("s_mov_b32 s73, 40960")
    a("s_mov_b32 s74, 81920")


def b2_compute(a, T):
    WF, OF = 56, 120

    def addr(slot, st):
        r = []
        ob, wb = 192 + 5 * slot, 202 + 5 * slot
        for ks in range(5):
            r.append(f"v_add_u32 v{ob+ks}, {OBUF[st]}, v{224+ks}")
            r.append(f"v_add_u32 v{wb+ks}, {WSLOT(5*st+ks)}, v229")
        return r

    def rd_w(slot, ks, nct):
        wb = 202 + 5 * slot
        r = []
        for ct in range(nct):
            F = WF + 12 * ks + 4 * ct
            r.append(f"ds_read_b64_tr_b16 v[{F}:{F+1}], v{wb+ks} offset:{32*ct}")
            r.append(f"ds_read_b64_tr_b16 v[{F+2}:{F+3}], v{wb+ks} offset:{32*ct+2560}")
        return r

    def rd_o(slot, ks):
        ob = 192 + 5 * slot
        return [f"ds_read_b128 v[{OF+12*ks+4*t}:{OF+12*ks+4*t+3}], v{ob+ks} offset:{1280*t}" for t in range(3)]

    def mm(ks, nct):
        r = []
        for t in range(3):
            for ct in range(nct):
                ac = 16 + (t * 3 + ct) * 4
                W = WF + 12 * ks + 4 * ct
                O = OF + 12 * ks + 4 * t
                r.append(f"v_mfma_f32_16x16x32_bf16 v[{ac}:{ac+3}], v[{W}:{W+3}], v[{O}:{O+3}], v[{ac}:{ac+3}]")
        return r

    le, ld = a.newlabel("C2E"), a.newlabel("C2D")
    for x in addr(0, 0):
        a(x)
    a("s_cmp_eq_u32 s47, 0")
    a(f"s_cbranch_scc0 {le}")
    for var, nct in enumerate([3, 2]):
        if var == 1:
            a(f"s_branch {ld}")
            a.label(le)
        for ks in range(5):
            for x in rd_w(0, ks, nct):
                a(x)
        nw = 2 * nct

        def emit(m, fill):
            per = (len(fill) + len(m) - 1) // len(m) if fill else 0
            k = 0
            for x in m:
                a(x)
                for _ in range(per):
                    if k < len(fill):
                        a(fill[k])
                        k += 1
        a("s_waitcnt lgkmcnt(0)")
        a("s_barrier")
        if T.on and not OPT.get("attts") and var == 0:
            T.stamp(a, 10)
        for x in rd_o(0, 0):
            a(x)
        for st in range(4):
            slot = st & 1
            nslot = slot ^ 1
            last = st == 3
            f0 = []
            if st > 0:
                f0 += rd_w(slot, 4, nct)
            f0 += [x for ks in range(1, 5) for x in rd_o(slot, ks)]
            if not last:
                f0 += addr(nslot, st + 1)
            a("s_waitcnt lgkmcnt(0)")
            emit(mm(0, nct), f0)
            for ks in (1, 2, 3):
                fill = rd_w(nslot, ks - 1, nct) if not last else []
                y = 3 * (4 - ks) + ((ks - 1) * nw if not last else 0)
                a(f"s_waitcnt lgkmcnt({min(15, y)})")
                emit(mm(ks, nct), fill)
            if not last:
                a(f"s_waitcnt lgkmcnt({min(15, 3 * nw)})")
                a("s_barrier")
                if T.on and not OPT.get("attts") and var == 0:
                    T.stamp(a, 11 + st)
                for x in rd_o(nslot, 0):
                    a(x)
                emit(mm(4, nct), rd_w(nslot, 3, nct))
            else:
                a("s_waitcnt lgkmcnt(0)")
                emit(mm(4, nct), [])
        no = OPT["nt_out"]
        a("s_nop 7")
        for t in range(3):
            for ct in range(nct):
                ac = 16 + (t * 3 + ct) * 4
                p = 56 + 2 * (t * 3 + ct)
                a(f"v_cvt_pk_bf16_f32 v{p}, v{ac}, v{ac+1}")
                a(f"v_cvt_pk_bf16_f32 v{p+1}, v{ac+2}, v{ac+3}")
                a(f"buffer_store_dwordx2 v[{p}:{p+1}], v213, s[56:59], s{72+t} offen offset:{32*ct} {no}")
    a.label(ld)


def b_program(a, T):
    b_decode(a)
    ld, j1 = a.newlabel("BLD"), a.newlabel("BJ1")
    a("s_cmp_ge_u32 s3, 4")
    a(f"s_cbranch_scc1 {ld}")
    if not int(OPT.get("nopf0", 0)):
        b_initial_prefetch(a)
    a("s_lshl_b32 s6, s60, 7")
    a(f"s_add_u32 s6, s6, {FL_EB}")
    epoch_issue(a, 250, 251, 52, 6)
    b1_compute(a, T)
    T.stamp(a, 3)
    a("s_waitcnt lgkmcnt(0)")
    a(f"s_branch {j1}")
    a.label(ld)
    a("s_lshl_b32 s6, s60, 7")
    a(f"s_add_u32 s6, s6, {FL_EB}")
    epoch_issue(a, 250, 251, 52, 6)
    b1_loader(a, T)
    T.stamp(a, 3)
    if OPT.get("lprio"):
        a("s_setprio 0")
    b1_epi_loader(a)
    a("s_waitcnt lgkmcnt(0)")
    a.label(j1)
    a("s_barrier")
    T.stamp(a, 4)
    attention(a, T)
    a("s_waitcnt lgkmcnt(0)")
    a("s_barrier")
    T.stamp(a, 5)
    ld2, j2 = a.newlabel("BLD"), a.newlabel("BJ2")
    a("s_cmp_ge_u32 s3, 4")
    a(f"s_cbranch_scc1 {ld2}")
    a("v_readfirstlane_b32 s44, v250")
    a("s_add_u32 s44, s44, 1")
    a("s_barrier")
    b2_compute_setup(a)
    a("s_barrier")
    lp = a.newlabel("NP")
    a("s_cmp_lg_u32 s3, 0")
    a(f"s_cbranch_scc1 {lp}")
    a("s_lshl_b32 s6, s60, 4")
    a("s_add_u32 s6, s6, s61")
    a("s_lshl_b32 s6, s6, 7")
    a("v_mov_b32 v10, s6")
    a("v_mov_b32 v11, s44")
    a("s_mov_b64 exec, 1")
    a("buffer_store_dword v11, v10, s[52:55], 0 offen sc1")
    a("s_mov_b64 exec, -1")
    T.stamp(a, 6)
    a("s_lshl_b32 s6, s60, 11")
    a("v_lshlrev_b32 v10, 7, v1")
    a("v_add_u32 v10, s6, v10")
    poll(a, 10, 16, 44, 52)
    le = a.newlabel("EU")
    a("s_cmp_lg_u32 s61, 0")
    a(f"s_cbranch_scc1 {le}")
    a("v_mov_b32 v11, s44")
    a("s_mov_b64 exec, 1")
    a("buffer_store_dword v11, v251, s[52:55], 0 offen sc1")
    a("s_mov_b64 exec, -1")
    a.label(le)
    a.label(lp)
    T.stamp(a, 7)
    a("s_barrier")
    b2_compute(a, T)
    T.stamp(a, 8)
    a(f"s_branch {j2}")
    a.label(ld2)
    o_store(a)
    a("s_barrier")
    a("s_waitcnt vmcnt(0)")
    a("s_barrier")
    if OPT.get("opf"):
        lo = a.newlabel("OPF")
        a("s_cmp_lg_u32 s62, 3")
        a(f"s_cbranch_scc1 {lo}")
        a("s_mul_i32 s6, s61, 163840")
        a("s_mul_i32 s7, s67, 7680")
        a("s_add_u32 s6, s6, s7")
        a("v_lshlrev_b32 v10, 7, v1")
        a(f"v_mov_b32 v11, 0x{OOB:x}")
        a("v_cmp_gt_u32 vcc, 60, v1")
        a("s_nop 1")
        a("v_cndmask_b32 v10, v11, v10, vcc")
        a("buffer_load_dword v237, v10, s[48:51], s6 offen sc1")
        a.label(lo)
    wo_dma_slots(a, 11, 8)
    srd(a, 52, P_WS, TSZ, WS_OW)
    a("v_lshlrev_b32 v239, 4, v1")
    b2_loader_setup(a)
    a("s_waitcnt vmcnt(0)")
    T.stamp(a, 7)
    a("s_barrier")
    b2_loader(a, T)
    T.stamp(a, 8)
    a.label(j2)
    T.stamp(a, 9)


A2_H0 = 0
A2_H1 = 4640
A2_X0 = 9216
A2_X2 = 13696
A2_CH = 17920
T_RS = 528
Y_RS = 528


def a_program(a, T):
    na, nh, sc = OPT["nt_a"], OPT["nt_h"], OPT["sc"]
    a("s_sub_u32 s5, s5, s70")
    a("s_lshl_b32 s6, s4, 1")
    a("s_add_u32 s7, s4, 2")
    a("s_cmp_lt_u32 s4, 2")
    a("s_cselect_b32 s6, s6, s7")
    a("s_lshr_b32 s7, s5, 3")
    a("s_add_u32 s73, s6, s7")
    a("s_and_b32 s72, s5, 7")
    a("s_lshl_b32 s62, s73, 6")
    a("s_lshl_b32 s6, s72, 3")
    a("s_add_u32 s62, s62, s6")
    a("s_add_u32 s63, s62, s3")
    srd(a, 32, P_K, TSZ)
    srd(a, 36, P_V, TSZ)
    srd(a, 40, P_SK, 640 * 8)
    a("v_and_b32 v8, 7, v1")
    a("v_lshrrev_b32 v9, 3, v1")
    a("s_lshl_b32 s6, s3, 3")
    a("v_add_u32 v9, s6, v9")
    a("v_lshlrev_b32 v2, 2, v9")
    a("s_lshl_b32 s6, s72, 8")
    a("v_add_u32 v2, s6, v2")
    a("v_mul_u32_u24 v2, 1280, v2")
    a("v_lshlrev_b32 v3, 4, v8")
    a("s_lshl_b32 s6, s73, 7")
    a("v_add3_u32 v2, v2, v3, s6")
    a("v_add_u32 v3, -3840, v2")
    a("v_add_u32 v4, -2560, v2")
    a("v_add_u32 v5, -1280, v2")
    for m in range(4):
        a(f"buffer_load_dwordx4 v[{64+4*m}:{67+4*m}], v2, s[32:35], 0 offen offset:{1280*m} {na}".replace("offset:0 ", ""))
    for m in range(4):
        a(f"buffer_load_dwordx4 v[{80+4*m}:{83+4*m}], v2, s[36:39], 0 offen offset:{1280*m} {na}".replace("offset:0 ", ""))
    a(f"buffer_load_dwordx4 v[52:55], v3, s[32:35], 0 offen {na}")
    a(f"buffer_load_dwordx4 v[56:59], v4, s[32:35], 0 offen {na}")
    a(f"buffer_load_dwordx4 v[60:63], v5, s[32:35], 0 offen {na}")
    a("v_lshlrev_b32 v6, 6, v8")
    a("s_lshl_b32 s6, s73, 9")
    a("v_add_u32 v6, s6, v6")
    for i in range(4):
        a(f"buffer_load_dwordx4 v[{32+4*i}:{35+4*i}], v6, s[40:43], 0 offen offset:{16*i}".replace("offset:0", ""))
    a("s_lshl_b32 s6, s73, 7")
    a(f"s_add_u32 s6, s6, {FL_EA}")
    epoch_issue(a, 250, 251, 48, 6)
    a("s_lshl_b32 s6, s62, 1")
    a(f"s_add_u32 s44, s{P_SD}, s6")
    a(f"s_addc_u32 s45, s{P_SD+1}, 0")
    a("s_load_dwordx4 s[64:67], s[44:45], 0")
    if int(OPT.get("apf", 1)):
        npf = OPT["nt_pf"]
        a("s_cmp_eq_u32 s4, 1")
        a("s_cselect_b32 s74, 1, 0")
        a("s_cmp_ge_u32 s4, 5")
        a("s_cselect_b32 s74, 1, s74")
        a("s_cselect_b32 s7, 3, 0")
        a("s_sub_u32 s6, s4, 2")
        a("s_sub_u32 s6, s6, s7")
        a("s_mul_i32 s6, s6, 3")
        a("s_add_u32 s6, s6, 2")
        a("s_cmp_lt_u32 s4, 2")
        a("s_cselect_b32 s75, 0, s6")
        a("s_cselect_b32 s76, 128, 64")
        a("s_cselect_b32 s77, 2400, s76")
        a("s_cselect_b32 s77, 2400, 3552") if False else None
        a("s_movk_i32 s77, 3552")
        a("s_cmp_lt_u32 s4, 2")
        a("s_cselect_b32 s77, 2400, s77")
        a("s_lshl_b32 s78, s5, 3")
        a("s_add_u32 s78, s78, s3")
        srd(a, 52, P_W, 640 * 3840)
        srd(a, 56, P_X, TSZ)
        a(f"v_mov_b32 v20, 0x{OOB:x}")

        def wpf(dst):
            a("s_lshl_b32 s6, s6, 6")
            a("v_add_u32 v21, s6, v1")
            a("v_mul_u32_u24 v22, 34953, v21")
            a("v_lshrrev_b32 v22, 19, v22")
            a("v_mul_u32_u24 v23, 15, v22")
            a("v_sub_u32 v23, v21, v23")
            a("v_mul_u32_u24 v24, 52, v23")
            a("v_lshrrev_b32 v24, 8, v24")
            a("v_mul_u32_u24 v25, 5, v24")
            a("v_sub_u32 v25, v23, v25")
            a("v_add_u32 v22, 192, v22")
            a("v_mul_u32_u24 v22, 3840, v22")
            a("v_mul_u32_u24 v24, 1280, v24")
            a("v_lshlrev_b32 v25, 7, v25")
            a("v_add3_u32 v22, v22, v24, v25")
            a("s_mul_i32 s7, s74, 640")
            a("v_add_u32 v22, s7, v22")
            a("s_movk_i32 s7, 6720")
            a("v_cmp_gt_u32 vcc, s7, v21")
            a("s_nop 1")
            a("v_cndmask_b32 v22, v20, v22, vcc")
            a(f"buffer_load_dword v{dst}, v22, s[52:55], 0 offen {npf}")
        a("s_mov_b32 s6, s78")
        wpf(240)
        if int(OPT.get("apfx", 1)):
            a("s_lshl_b32 s6, s78, 6")
            a("v_add_u32 v21, s6, v1")
            a("v_mul_u32_u24 v22, 10923, v21")
            a("v_lshrrev_b32 v22, 16, v22")
            a("v_mul_u32_u24 v23, 6, v22")
            a("v_sub_u32 v23, v21, v23")
            a("s_mul_i32 s6, s75, 192")
            a("s_sub_u32 s6, s6, 16")
            a("v_add_u32 v22, s6, v22")
            a("s_movk_i32 s7, 1280")
            a("v_mul_lo_u32 v22, v22, s7")
            a("v_lshlrev_b32 v23, 7, v23")
            a("v_add_u32 v22, v22, v23")
            a("v_add_u32 v22, 512, v22")
            a("v_cmp_gt_u32 vcc, s77, v21")
            a("s_nop 1")
            a("v_cndmask_b32 v22, v20, v22, vcc")
            a(f"buffer_load_dword v241, v22, s[56:59], 0 offen {npf}")
        else:
            a(f"buffer_load_dword v241, v20, s[56:59], 0 offen")
        a("s_add_u32 s6, s78, s76")
        wpf(242)
    a(f"s_mul_i32 s60, s3, {A2_CH}")
    a("s_lshl_b32 s59, s63, 12")
    a("v_lshlrev_b32 v10, 4, v1")
    a("v_add_u32 v11, -2, v10")
    T.stamp(a, 1)
    a("v_mov_b32 v28, 0")
    a("v_mov_b32 v29, 0")
    a("v_mov_b32 v30, 0")
    a("v_mov_b32 v31, 0")
    a("v_add_u32 v23, s60, v10")
    a("s_mov_b64 exec, 0xfffffff")
    a(f"ds_write_b128 v23, v[28:31] offset:{A2_H0}")
    a(f"ds_write_b128 v23, v[28:31] offset:{A2_H1}")
    a("s_mov_b64 exec, -1")
    a(f"v_mul_u32_u24 v7, {A2_CH+16}, v8")
    a("v_lshlrev_b32 v12, 3, v9")
    a("v_sub_u32 v7, v7, v12")
    a(f"v_add_u32 v7, {A2_X0 + 504}, v7")
    a("s_mov_b32 s57, 0xffff0000")
    a(f"s_waitcnt vmcnt({1 + (3 if int(OPT.get('apf', 1)) else 0)})")
    T.stamp(a, 2)
    for c in range(4):
        for m in range(4):
            for e in range(2):
                src = 32 + 2 * (2 * c + e) + (m >> 1)
                dst = 96 + (c * 4 + m) * 2 + e
                if m & 1:
                    a(f"v_and_b32 v{dst}, s57, v{src}")
                else:
                    a(f"v_lshlrev_b32 v{dst}, 16, v{src}")
    for c in range(4):
        for jj in range(7):
            a(f"v_lshlrev_b32 v{128+2*jj}, 16, v{52+4*jj+c}")
            a(f"v_and_b32 v{129+2*jj}, s57, v{52+4*jj+c}")
        for m in range(4):
            a(f"v_lshlrev_b32 v{142+2*m}, 16, v{80+4*m+c}")
            a(f"v_and_b32 v{143+2*m}, s57, v{80+4*m+c}")
        W = lambda m: f"v[{96+(c*4+m)*2}:{97+(c*4+m)*2}]"
        K = lambda jj: f"v[{128+2*jj}:{129+2*jj}]"
        for rr in range(4):
            o = 150 + 2 * rr
            a(f"v_pk_mul_f32 v[{o}:{o+1}], {W(3)}, {K(rr)}")
        for m in (2, 1, 0):
            for rr in range(4):
                o = 150 + 2 * rr
                a(f"v_pk_fma_f32 v[{o}:{o+1}], {W(m)}, {K(3+rr-m)}, v[{o}:{o+1}]")
        for rr in range(4):
            o = 150 + 2 * rr
            a(f"v_pk_mul_f32 v[{o}:{o+1}], v[{o}:{o+1}], v[{142+2*rr}:{143+2*rr}]")
        for e in range(2):
            ch = 2 * c + e
            d = 160 + 4 * (c & 1) + 2 * e
            a(f"v_cvt_pk_bf16_f32 v{d}, v{156+e}, v{154+e}")
            a(f"v_cvt_pk_bf16_f32 v{d+1}, v{152+e}, v{150+e}")
            a(f"ds_write_b64 v7, v[{d}:{d+1}] offset:{ch*T_RS}")
    a("v_lshrrev_b32 v12, 5, v1")
    a(f"v_mul_u32_u24 v12, {T_RS}, v12")
    a("v_and_b32 v13, 31, v1")
    a("v_lshlrev_b32 v13, 4, v13")
    a("v_add_u32 v12, v12, v13")
    a(f"s_mul_i32 s6, s3, {A2_CH+16}")
    a(f"s_add_u32 s6, s6, {A2_X0}")
    a("v_add_u32 v12, s6, v12")
    srd(a, 36, P_WS, TSZ, WS_XT)
    a("v_lshrrev_b32 v14, 5, v1")
    a("v_lshlrev_b32 v14, 12, v14")
    a("v_add_u32 v14, v14, v13")
    a("s_lshl_b32 s6, s73, 6")
    a("s_lshl_b32 s7, s3, 3")
    a("s_add_u32 s6, s6, s7")
    a("s_lshl_b32 s6, s6, 12")
    a("s_lshl_b32 s7, s72, 9")
    a("s_sub_u32 s7, 3584, s7")
    a("s_add_u32 s6, s6, s7")
    a("v_add_u32 v14, s6, v14")
    a("s_waitcnt lgkmcnt(0)")
    a("s_barrier")
    for m in range(4):
        a(f"ds_read_b128 v[{64+4*m}:{67+4*m}], v12 offset:{2*m*T_RS}")
    a("s_waitcnt lgkmcnt(0)")
    a("s_mov_b32 s6, 0")
    for m in range(4):
        a(f"buffer_store_dwordx4 v[{64+4*m}:{67+4*m}], v14, s[36:39], s6 offen {sc}")
        if m < 3:
            a("s_add_u32 s6, s6, 8192")
    T.stamp(a, 3)
    srd(a, 52, P_H, 640 * 4096)
    for i in range(4):
        a(f"s_add_u32 m0, s60, {A2_H0 + 448 + 1024*i}")
        a(f"s_add_u32 s6, s59, {1024*i}")
        a(f"buffer_load_dwordx4 v10, s[52:55], s6 offen {nh} lds")
    a("v_mov_b32 v13, 0")
    a(f"buffer_load_dwordx4 v[16:19], v13, s[52:55], s59 offen")
    a("s_lshr_b32 s6, s3, 1")
    a("s_cmp_eq_u32 s6, 1")
    a("s_cselect_b32 s58, s65, s64")
    a("s_cmp_eq_u32 s6, 2")
    a("s_cselect_b32 s58, s66, s58")
    a("s_cmp_eq_u32 s6, 3")
    a("s_cselect_b32 s58, s67, s58")
    a("s_and_b32 s6, s3, 1")
    a("s_lshl_b32 s6, s6, 4")
    a("s_lshr_b32 s58, s58, s6")
    a("s_lshl_b32 s58, s58, 16")
    a("s_waitcnt vmcnt(5)")
    a("v_readfirstlane_b32 s44, v250")
    a("s_add_u32 s44, s44, 1")
    a("s_barrier")
    lf = a.newlabel("AF")
    a("s_cmp_lg_u32 s3, 0")
    a(f"s_cbranch_scc1 {lf}")
    a("s_lshl_b32 s6, s73, 3")
    a("s_add_u32 s6, s6, s72")
    a("s_lshl_b32 s6, s6, 7")
    a(f"s_add_u32 s6, s6, {FL_A1}")
    a("v_mov_b32 v12, s6")
    a("v_mov_b32 v13, s44")
    a("s_mov_b64 exec, 1")
    a("buffer_store_dword v13, v12, s[48:51], 0 offen sc1")
    a("s_mov_b64 exec, -1")
    T.stamp(a, 4)
    a.label(lf)
    lp = a.newlabel("AP")
    a("s_cmp_lg_u32 s3, 0")
    a(f"s_cbranch_scc1 {lp}")
    a("s_lshl_b32 s6, s73, 10")
    a(f"s_add_u32 s6, s6, {FL_A1}")
    a("v_lshlrev_b32 v12, 7, v1")
    a("v_add_u32 v12, s6, v12")
    poll(a, 12, 8, 44, 48)
    le = a.newlabel("EU")
    a("s_cmp_lg_u32 s72, 0")
    a(f"s_cbranch_scc1 {le}")
    a("v_mov_b32 v13, s44")
    a("s_mov_b64 exec, 1")
    a("buffer_store_dword v13, v251, s[48:51], 0 offen sc1")
    a("s_mov_b64 exec, -1")
    a.label(le)
    a.label(lp)
    a("s_waitcnt lgkmcnt(0)")
    a("s_barrier")
    T.stamp(a, 5)
    for i in range(4):
        a(f"s_add_u32 m0, s60, {A2_X0 + 1024*i}")
        a(f"s_add_u32 s6, s59, {1024*i}")
        a(f"buffer_load_dwordx4 v10, s[36:39], s6 offen {sc} lds")
    a("s_mov_b64 exec, 0x1f")
    a(f"ds_write_b128 v23, v[28:31] offset:{A2_X0+4096}")
    a("s_mov_b64 exec, 0xf")
    a(f"ds_write_b128 v23, v[28:31] offset:{A2_X2+4096}")
    a("s_mov_b64 exec, -1")
    srd(a, 32, P_Q, TSZ)
    a("s_and_b32 s6, s3, 3")
    a("s_lshl_b32 s6, s6, 6")
    a("s_lshl_b32 s7, s72, 8")
    a("s_add_u32 s6, s6, s7")
    a("v_add_u32 v14, s6, v1")
    a("v_mul_u32_u24 v14, 1280, v14")
    a("s_lshl_b32 s61, s73, 7")
    a("v_add_u32 v14, s61, v14")
    a(f"v_mov_b32 v13, 0x{OOB:x}")
    a("s_cmp_lt_u32 s3, 4")
    a("s_cselect_b64 vcc, -1, 0")
    a("v_cndmask_b32 v14, v13, v14, vcc")
    a("buffer_load_dword v243, v14, s[32:35], 0 offen")
    a("s_lshl_b32 s6, s3, 8")
    a("v_add_u32 v9, s6, v1")
    a("s_lshl_b32 s61, s62, 1")
    a("v_mul_u32_u24 v8, 1280, v9")
    a("v_add_u32 v8, s61, v8")
    a("s_waitcnt vmcnt(5)")
    a("v_lshlrev_b32 v21, 16, v16")
    a("v_add_f32 v21, s58, v21")
    a("v_cvt_pk_bf16_f32 v21, v21, v21")
    a("v_mov_b32 v22, s60")
    a("s_mov_b64 exec, 1")
    a(f"ds_write_b16 v22, v21 offset:{A2_H0+448}")
    a("s_mov_b64 exec, -1")
    a("s_waitcnt lgkmcnt(0)")
    for i in range(4):
        a(f"ds_read_b128 v[{64+8*i}:{67+8*i}], v23 offset:{A2_H0+448+1024*i}")
        a(f"ds_read_b32 v{68+8*i}, v23 offset:{A2_H0+448-4+1024*i}")
    for i in range(4):
        b = 64 + 8 * i
        a(f"s_waitcnt lgkmcnt({2*(3-i)})")
        a(f"v_alignbit_b32 v{b+7}, v{b+3}, v{b+2}, 16")
        a(f"v_alignbit_b32 v{b+6}, v{b+2}, v{b+1}, 16")
        a(f"v_alignbit_b32 v{b+5}, v{b+1}, v{b}, 16")
        a(f"v_alignbit_b32 v{b+4}, v{b}, v{b+4}, 16")
        a(f"ds_write_b128 v23, v[{b+4}:{b+7}] offset:{A2_H1+448+1024*i}")
    a("v_and_b32 v10, 15, v1")
    a("v_lshrrev_b32 v11, 4, v1")
    a("v_lshrrev_b32 v12, 1, v10")
    a("v_lshlrev_b32 v12, 6, v12")
    a("v_lshlrev_b32 v13, 4, v11")
    a("v_add_u32 v12, v12, v13")
    a("v_and_b32 v13, 1, v10")
    a(f"v_mov_b32 v14, {A2_H1}")
    a(f"v_mov_b32 v15, {A2_H0}")
    a("v_cmp_eq_u32 vcc, 1, v13")
    a("v_lshrrev_b32 v13, 1, v10")
    a("v_and_b32 v13, 1, v13")
    a("v_cndmask_b32 v14, v14, v15, vcc")
    a("v_add3_u32 v2, v12, v14, s60")
    a("v_lshlrev_b32 v12, 3, v13")
    a("v_lshrrev_b32 v14, 2, v10")
    a("v_lshlrev_b32 v14, 4, v14")
    a("v_add_u32 v12, v12, v14")
    a("v_lshlrev_b32 v14, 4, v11")
    a("v_sub_u32 v12, v14, v12")
    a(f"v_add_u32 v12, {2*1820 - 512*7}, v12")
    a(f"v_mov_b32 v14, {A2_X2}")
    a(f"v_mov_b32 v15, {A2_X0}")
    a("v_cndmask_b32 v14, v14, v15, vcc")
    a("v_add3_u32 v3, v12, v14, s60")
    for i in range(32):
        a(f"v_mov_b32 v{32+i}, 0")
    a("s_waitcnt vmcnt(1)")
    for i in range(4):
        for d in range(4):
            a(f"ds_read_b32 v{96+4*i+d}, v23 offset:{A2_X0+1024*i+4*(d+1)}")
    for i in range(4):
        a(f"s_waitcnt lgkmcnt({4*(3-i)})")
        a(f"ds_write_b128 v23, v[{96+4*i}:{99+4*i}] offset:{A2_X2+1024*i}")
    a("s_waitcnt lgkmcnt(0)")
    T.stamp(a, 6)

    def reads(A, B):
        r = []
        for aa in range(8):
            r.append(f"ds_read_b128 v[{A+4*aa}:{A+4*aa+3}], v2 offset:{512*aa}")
            r.append(f"ds_read_b64 v[{B+4*aa}:{B+4*aa+1}], v3 offset:{512*(7-aa)}")
            r.append(f"ds_read_b64 v[{B+4*aa+2}:{B+4*aa+3}], v3 offset:{512*(7-aa)+8}")
        r.append("v_add_u32 v2, 64, v2")
        r.append("v_add_u32 v3, 64, v3")
        return r

    def mfmas(A, B):
        r = []
        for t in range(8):
            for aa in range(t + 1):
                u = t - aa
                ac = 32 + 4 * t
                r.append(f"v_mfma_f32_16x16x32_bf16 v[{ac}:{ac+3}], v[{A+4*aa}:{A+4*aa+3}], v[{B+4*u}:{B+4*u+3}], v[{ac}:{ac+3}]")
        return r

    def interleave(m, r):
        for i, x in enumerate(m):
            a(x)
            if i < len(r):
                a(r[i])

    for x in reads(64, 96):
        a(x)
    a("s_mov_b32 s40, 0")
    loop, last = a.newlabel("A2L"), a.newlabel("A2E")
    a.label(loop)
    a("s_waitcnt lgkmcnt(0)")
    interleave(mfmas(64, 96), reads(128, 160))
    a("s_waitcnt lgkmcnt(0)")
    a("s_mul_i32 s6, s40, 81920")
    for m in range(4):
        lq = a.newlabel("QL")
        a(f"s_cmp_lg_u32 s40, {m}")
        a(f"s_cbranch_scc1 {lq}")
        a(f"buffer_load_dwordx4 v[{192+4*m}:{195+4*m}], v8, s[32:35], s6 offen")
        a.label(lq)
    a("s_cmp_eq_u32 s40, 3")
    a(f"s_cbranch_scc1 {last}")
    interleave(mfmas(128, 160), reads(64, 96))
    a("s_add_u32 s40, s40, 1")
    a(f"s_branch {loop}")
    a.label(last)
    for x in mfmas(128, 160):
        a(x)
    T.stamp(a, 7)
    a("v_lshlrev_b32 v12, 5, v11")
    a("v_add_u32 v12, v12, v10")
    a("v_lshlrev_b32 v12, 2, v12")
    a("v_add_u32 v12, s60, v12")
    for tt in range(8):
        ac = 32 + 4 * tt
        d = 64 + 2 * tt
        a(f"v_cvt_pk_bf16_f32 v{d}, v{ac}, v{ac+1}")
        a(f"v_cvt_pk_bf16_f32 v{d+1}, v{ac+2}, v{ac+3}")
        a(f"ds_write_b32 v12, v{d} offset:{512*tt}")
        a(f"ds_write_b32 v12, v{d+1} offset:{512*tt+64}")
    a("v_lshrrev_b32 v13, 2, v1")
    a("v_and_b32 v13, 3, v13")
    a(f"v_mul_u32_u24 v13, {A2_CH}, v13")
    a("v_lshrrev_b32 v14, 4, v1")
    a("v_lshlrev_b32 v14, 5, v14")
    a("v_and_b32 v15, 3, v1")
    a("v_lshlrev_b32 v15, 3, v15")
    a("v_add3_u32 v13, v13, v14, v15")
    a("s_lshl_b32 s6, s3, 9")
    a("v_add_u32 v13, s6, v13")
    a(f"v_add_u32 v14, {4*A2_CH}, v13")
    srd(a, 36, P_OUT, 2048 * 2560)
    a("v_mul_u32_u24 v15, 2560, v9")
    a("v_add_u32 v15, s61, v15")
    a("s_waitcnt lgkmcnt(0)")
    a("s_barrier")
    T.stamp(a, 9)
    for m in range(4):
        a(f"ds_read_b64_tr_b16 v[{64+4*m}:{65+4*m}], v13 offset:{128*m}")
        a(f"ds_read_b64_tr_b16 v[{66+4*m}:{67+4*m}], v14 offset:{128*m}")
    a("s_waitcnt vmcnt(0)")
    a("s_mov_b32 s6, 0")
    no = OPT["nt_out"]
    for m in range(4):
        a(f"s_waitcnt lgkmcnt({2*(3-m)})")
        for i in range(4):
            y = 64 + 4 * m + i
            q = 192 + 4 * m + i
            tt = 80 + 4 * (i & 1)
            a(f"v_lshlrev_b32 v{tt}, 16, v{y}")
            a(f"v_and_b32 v{tt+1}, s57, v{y}")
            a(f"v_lshlrev_b32 v{tt+2}, 16, v{q}")
            a(f"v_and_b32 v{tt+3}, s57, v{q}")
            a(f"v_pk_mul_f32 v[{tt}:{tt+1}], v[{tt}:{tt+1}], v[{tt+2}:{tt+3}]")
            a(f"v_cvt_pk_bf16_f32 v{y}, v{tt}, v{tt+1}")
        a(f"buffer_store_dwordx4 v[{64+4*m}:{67+4*m}], v15, s[36:39], s6 offen {no}")
        if m < 3:
            a("s_add_u32 s6, s6, 163840")
    T.stamp(a, 10)


def kdesc(name, vgpr=256, sgpr=102):
    return f""".amdhsa_kernel {name}
  .amdhsa_next_free_vgpr {vgpr}
  .amdhsa_next_free_sgpr {sgpr}
  .amdhsa_accum_offset {vgpr}
  .amdhsa_group_segment_fixed_size 0
  .amdhsa_kernarg_size 96
  .amdhsa_user_sgpr_count 2
  .amdhsa_user_sgpr_kernarg_segment_ptr 1
  .amdhsa_system_sgpr_workgroup_id_x 1
  .amdhsa_float_denorm_mode_32 3
  .amdhsa_float_denorm_mode_16_64 3
.end_amdhsa_kernel
"""


def gen(ts=False):
    out = "; concat_heads( H3-style ssm conv , sliding local dilated attention ) -- hand-written streams emitted by a python generator\n"
    out += "; @launch grid=(256,1,1) block=(512,1,1) lds=163840\n"
    out += '.amdgcn_target "amdgcn-amd-amdhsa--gfx950"\n.text\n'
    a = Asm()
    T = TS(ts)
    T.init(a)
    T.stamp(a, 0)
    if OPT.get("dbgt"):
        a("s_memrealtime s[96:97]")
        a("s_waitcnt lgkmcnt(0)")
        a("s_mov_b32 s79, s96")
    a("s_cmp_ge_u32 s2, 256")
    a("s_cbranch_scc1 K_END")
    a("s_load_dwordx16 s[8:23], s[0:1], 0")
    a("s_load_dwordx8 s[24:31], s[0:1], 64")
    a("v_lshrrev_b32 v2, 6, v0")
    a("v_and_b32 v1, 63, v0")
    a("s_and_b32 s4, s2, 7")
    a("v_readfirstlane_b32 s3, v2")
    a("s_lshr_b32 s5, s2, 3")
    a("s_waitcnt lgkmcnt(0)")
    if OPT.get("codepf"):
        lab = a.newlabel("CPF")
        a("s_cmp_lg_u32 s3, 7")
        a(f"s_cbranch_scc1 {lab}")
        a("s_cmp_ge_u32 s5, 4")
        a(f"s_cbranch_scc1 {lab}")
        a("s_getpc_b64 s[32:33]")
        a("CPF_BASE:")
        a("s_and_b32 s32, s32, 0xffffff00")
        a("s_mov_b32 s34, 0x5b00")
        a("s_mov_b32 s35, 0x00020000")
        a("s_lshl_b32 s6, s5, 13")
        a("v_lshlrev_b32 v2, 7, v1")
        a("v_add_u32 v2, s6, v2")
        a("buffer_load_dword v254, v2, s[32:35], 0 offen")
        a.label(lab)
    role_decode(a)
    if OPT.get("only") == "A":
        a("s_branch K_END")
    b_program(a, T)
    a("s_branch K_FIN")
    a.label("A_ROLE")
    if OPT.get("only") == "B":
        a("s_branch K_END")
    a_program(a, T)
    a.label("K_FIN")
    if OPT.get("dbgt"):
        a("s_waitcnt vmcnt(0)")
        a("s_memrealtime s[96:97]")
        a("s_waitcnt lgkmcnt(0)")
        lab = a.newlabel("DBG")
        a("s_cmp_lg_u32 s3, 0")
        a(f"s_cbranch_scc1 {lab}")
        a("s_and_b32 s6, s2, 0x3f")
        a("s_cmp_lg_u32 s6, 0")
        a(f"s_cbranch_scc1 {lab}")
        srd(a, 92, P_DBG, 256)
        a("s_lshr_b32 s6, s2, 6")
        a("s_lshl_b32 s6, s6, 3")
        a("v_mov_b32 v2, s6")
        a("v_mov_b32 v4, s79")
        a("v_mov_b32 v5, s96")
        a("s_mov_b64 exec, 1")
        a("buffer_store_dwordx2 v[4:5], v2, s[92:95], 0 offen")
        a("s_waitcnt vmcnt(0)")
        a("s_mov_b64 exec, -1")
        a.label(lab)
    if ts:
        a("s_waitcnt vmcnt(0)")
        T.stamp(a, 15)
        T.flush(a)
    a.label("K_END")
    a("s_endpgm")
    out += f".globl {KNAME}\n.p2align 8\n.type {KNAME},@function\n{KNAME}:\n" + a.text()
    out += '.section .rodata,"a"\n.p2align 6\n' + kdesc(KNAME)
    return out


if __name__ == "__main__":
    mode = sys.argv[1] if len(sys.argv) > 1 else "plain"
    dst = sys.argv[2] if len(sys.argv) > 2 else "k4.s"
    for kv in sys.argv[3:]:
        k, v = kv.split("=")
        OPT[k] = v if k != "spin" else int(v)
    if mode == "tc":
        TS.INSTR = "s_memtime"
    open(dst, "w").write(gen(mode in ("ts", "tc")))
    print("wrote", dst)
```

```python
import sys

KNAME = "concat_heads__ssm_conv_h3__sliding_local_dilated__prompt_kernel"
TSZ = 640 * 4096
WS_OW = 0x0
WS_XT = 0x280000
WS_YT = 0x500000
WS_FL = 0x780000
FL_B = 0x0
FL_A1 = 0x6000
FL_A2 = 0x9000
FL_EB = 0xC000
FL_EA = 0xD000
WS_TS = 0x800000
OOB = 0x80000000

OPT = dict(nopf0=1, b2dma=1, psleep=2, sc_oload="sc1", sc_ostore="sc1", nt_pf="", nt_a="", nt_h="", nt_x="", nt_w="", nt_out="", sc="sc1", spin=1 << 20)


class Asm:
    def __init__(self):
        self.l = []
        self.uid = 0

    def __call__(self, s=""):
        for line in s.split("\n"):
            line = line.strip()
            if line:
                self.l.append("    " + line)

    def label(self, name):
        self.l.append(name + ":")

    def newlabel(self, p="L"):
        self.uid += 1
        return f"{p}_{self.uid}"

    def text(self):
        return "\n".join(self.l) + "\n"


P_Q, P_K, P_V, P_SK, P_H, P_SD, P_X, P_W, P_WO, P_OUT, P_DBG, P_WS = [8 + 2 * i for i in range(12)]


def srd(a, dst, ptr, nbytes, off=0):
    if off:
        a(f"s_add_u32 s{dst}, s{ptr}, 0x{off:x}")
        a(f"s_addc_u32 s{dst+1}, s{ptr+1}, 0")
    else:
        a(f"s_mov_b32 s{dst}, s{ptr}")
        a(f"s_mov_b32 s{dst+1}, s{ptr+1}")
    a(f"s_mov_b32 s{dst+2}, 0x{nbytes:x}")
    a(f"s_mov_b32 s{dst+3}, 0x00020000")


class TS:
    INSTR = "s_memrealtime"

    def __init__(self, on):
        self.on = on
        self.n = 0

    def stamp(self, a, idx):
        if not self.on:
            return
        if OPT.get("stagets") and 3 <= idx < 14:
            return
        a(f"{TS.INSTR} s[96:97]")
        a("s_waitcnt lgkmcnt(0)")
        a(f"s_mov_b32 s{80+idx}, s96")

    def init(self, a):
        if not self.on:
            return
        for i in range(16):
            a(f"s_mov_b32 s{80+i}, 0")

    def flush(self, a):
        if not self.on:
            return
        srd(a, 96, P_WS, 0x40000, WS_TS)
        a("s_mov_b64 exec, 1")
        a("s_lshl_b32 s7, s2, 3")
        a("s_add_u32 s7, s7, s3")
        a("s_lshl_b32 s7, s7, 6")
        a("v_mov_b32 v3, s7")
        for i in range(16):
            a(f"v_mov_b32 v2, s{80+i}")
            a(f"buffer_store_dword v2, v3, s[96:99], 0 offen offset:{4*i}")
        a("s_waitcnt vmcnt(0)")
        a("s_mov_b64 exec, -1")


NRT = 13
B1_XSZ = NRT * 16 * 128
B1_STAGE = B1_XSZ + 16384
B1_NB = 3
QKV_RS = 400
O_LDS = 83200
def WSLOT(p):
    if p < 5:
        return 102400 + 5120 * p
    if p < 11:
        return 133120 + 5120 * (p - 5)
    if p < 19:
        return 5120 * (p - 11)
    return 133120


B2_O3 = 102400
B2_O = 40960
B2_OST = 30720
ACC = 16
XA, XB, WA, WB = 120, 172, 224, 232


def role_decode(a):
    a("s_cmp_lt_u32 s4, 2")
    a("s_cselect_b32 s70, 16, 24")
    a("s_cmp_ge_u32 s5, s70")
    a("s_cbranch_scc1 A_ROLE")


def b_decode(a):
    a("s_cmp_eq_u32 s4, 1")
    a("s_cselect_b32 s71, 1, 0")
    a("s_cmp_ge_u32 s4, 5")
    a("s_cselect_b32 s71, 1, s71")
    a("s_cselect_b32 s7, 3, 0")
    a("s_sub_u32 s6, s4, 2")
    a("s_sub_u32 s6, s6, s7")
    a("s_mul_i32 s6, s6, 3")
    a("s_add_u32 s6, s6, 2")
    a("s_cmp_lt_u32 s4, 2")
    a("s_cselect_b32 s6, 0, s6")
    a("s_lshr_b32 s7, s5, 3")
    a("s_add_u32 s60, s6, s7")
    a("s_and_b32 s68, s5, 7")
    a("s_lshl_b32 s61, s71, 3")
    a("s_add_u32 s61, s61, s68")
    a("s_lshl_b32 s67, s60, 1")
    a("s_add_u32 s67, s67, s71")


def pf_x_addr(a, dst):
    a("v_and_b32 v10, 31, v1")
    a("s_mul_i32 s6, s68, 26")
    a("s_mul_i32 s7, s60, 192")
    a("s_add_u32 s6, s6, s7")
    a("s_sub_u32 s6, s6, 16")
    a("v_add_u32 v11, s6, v10")
    a("s_movk_i32 s7, 1280")
    a("v_mul_lo_u32 v11, v11, s7")
    a("v_lshrrev_b32 v12, 5, v1")
    a("v_lshlrev_b32 v12, 7, v12")
    a("v_add_u32 v11, v11, v12")
    a("v_cmp_gt_u32 vcc, 26, v10")
    a(f"v_mov_b32 v12, 0x{OOB:x}")
    a("s_nop 0")
    a(f"v_cndmask_b32 v{dst}, v12, v11, vcc")


def pf_w_addr(a, dst):
    a("s_cmp_eq_u32 s70, 16")
    a("s_cselect_b32 s6, 60, 40")
    a("s_mul_i32 s7, s5, s6")
    a("v_add_u32 v10, s7, v1")
    a("v_mul_u32_u24 v11, 4370, v10")
    a("v_lshrrev_b32 v11, 16, v11")
    a("v_mul_u32_u24 v12, 15, v11")
    a("v_sub_u32 v12, v10, v12")
    a("v_mul_u32_u24 v13, 52, v12")
    a("v_lshrrev_b32 v13, 8, v13")
    a("v_mul_u32_u24 v14, 5, v13")
    a("v_sub_u32 v14, v12, v14")
    a("v_mul_u32_u24 v11, 3840, v11")
    a("v_mul_u32_u24 v13, 1280, v13")
    a("v_lshlrev_b32 v14, 7, v14")
    a("v_add3_u32 v11, v11, v13, v14")
    a("s_mul_i32 s7, s71, 640")
    a("v_add_u32 v11, s7, v11")
    a("v_cmp_gt_u32 vcc, s6, v1")
    a(f"v_mov_b32 v12, 0x{OOB:x}")
    a("s_nop 0")
    a(f"v_cndmask_b32 v{dst}, v12, v11, vcc")


def b_initial_prefetch(a):
    npf = OPT["nt_pf"]
    srd(a, 32, P_X, TSZ)
    srd(a, 36, P_W, 640 * 3840)
    l1 = a.newlabel("IP")
    a("s_cmp_eq_u32 s3, 3")
    a(f"s_cbranch_scc1 {l1}")
    pf_w_addr(a, 2)
    a("s_mul_i32 s6, s3, 245760")
    a(f"buffer_load_dword v254, v2, s[36:39], s6 offen {npf}")
    a("s_cmp_eq_u32 s3, 2")
    a(f"s_cbranch_scc1 {l1}")
    pf_x_addr(a, 3)
    a("s_lshl_b32 s6, s3, 8")
    a(f"buffer_load_dword v255, v3, s[32:35], s6 offen {npf}")
    a.label(l1)


def b1_loader_setup(a):
    srd(a, 32, P_X, TSZ)
    srd(a, 36, P_W, 640 * 3840)
    a("s_sub_u32 s62, s3, 4")
    a("v_lshrrev_b32 v10, 3, v1")
    a("s_lshl_b32 s6, s62, 3")
    a("v_add_u32 v10, s6, v10")
    a("v_lshrrev_b32 v11, 1, v10")
    a("v_and_b32 v11, 7, v11")
    a("v_and_b32 v12, 7, v1")
    a("v_xor_b32 v11, v11, v12")
    a("v_lshlrev_b32 v11, 4, v11")
    a("s_mul_i32 s6, s60, 192")
    a("s_sub_u32 s6, s6, 16")
    a("v_add_u32 v10, s6, v10")
    a("s_movk_i32 s7, 1280")
    a("v_mul_lo_u32 v10, v10, s7")
    a("v_add_u32 v2, v10, v11")
    a("v_add_u32 v3, 40960, v2")
    a("v_lshrrev_b32 v10, 4, v1")
    a("v_and_b32 v12, 15, v1")
    a("s_mul_i32 s63, s61, 80")
    for which, dst in ((0, 5), (1, 6)):
        a("v_lshlrev_b32 v11, 1, v10")
        if which:
            a("v_add_u32 v11, 8, v11")
        a("v_xor_b32 v11, v11, v12")
        a("v_mul_u32_u24 v13, 52, v11")
        a("v_lshrrev_b32 v13, 8, v13")
        a("v_mul_u32_u24 v14, 5, v13")
        a("v_sub_u32 v14, v11, v14")
        a("v_mul_u32_u24 v13, 1280, v13")
        a("v_lshlrev_b32 v14, 4, v14")
        a("v_add3_u32 v13, v13, v14, s63")
        if OPT.get("walign"):
            a("v_lshlrev_b32 v13, 4, v11")
            a("s_lshl_b32 s6, s61, 7")
            a("v_add_u32 v13, s6, v13")
        a("s_lshl_b32 s6, s62, 4")
        if which:
            a("s_add_u32 s6, s6, 8")
        a("v_add_u32 v14, s6, v10")
        a("v_mul_u32_u24 v14, 3840, v14")
        a(f"v_add_u32 v{dst}, v14, v13")
        a("v_cmp_eq_u32 vcc, 15, v11")
        a(f"v_mov_b32 v13, 0x{OOB:x}")
        a("s_nop 0")
        a(f"v_cndmask_b32 v{dst}, v{dst}, v13, vcc")
    a("s_mov_b32 s41, 0")
    a("s_mov_b32 s42, 0")
    a("s_mov_b32 s43, 0")


def b1_issue_stage(a):
    nx, nw = OPT["nt_x"], OPT["nt_w"]
    a("s_lshl_b32 s6, s62, 10")
    a("s_add_u32 s6, s6, s43")
    a("s_mov_b32 m0, s6")
    a("s_mov_b32 s7, s41")
    a(f"buffer_load_dwordx4 v2, s[32:35], s41 offen {nx} lds")
    for m in range(1, 6):
        a(f"s_add_u32 m0, s6, {4096*m}")
        if m > 1:
            a("s_add_u32 s7, s7, 40960")
        else:
            a("s_nop 0")
        a(f"buffer_load_dwordx4 v3, s[32:35], s7 offen {nx} lds")
    l1 = a.newlabel("IS")
    a("s_cmp_lt_u32 s62, 2")
    a(f"s_cbranch_scc0 {l1}")
    a(f"s_add_u32 m0, s6, {4096*6}")
    a("s_add_u32 s7, s7, 40960")
    a(f"buffer_load_dwordx4 v3, s[32:35], s7 offen {nx} lds")
    a.label(l1)
    a("s_lshl_b32 s7, s62, 12")
    a("s_add_u32 s7, s7, s43")
    a(f"s_add_u32 s7, s7, {B1_XSZ}")
    a("s_mov_b32 m0, s7")
    a("s_add_u32 s46, s42, 15360")
    a(f"buffer_load_dwordx4 v5, s[36:39], s42 offen {nw} lds")
    a("s_add_u32 m0, s7, 1024")
    a("s_nop 0")
    a(f"buffer_load_dwordx4 v5, s[36:39], s46 offen {nw} lds")
    a("s_add_u32 m0, s7, 2048")
    a("s_nop 0")
    a(f"buffer_load_dwordx4 v6, s[36:39], s42 offen {nw} lds")
    a("s_add_u32 m0, s7, 3072")
    a("s_nop 0")
    a(f"buffer_load_dwordx4 v6, s[36:39], s46 offen {nw} lds")
    a("s_add_u32 s41, s41, 128")
    a("s_add_u32 s42, s42, 245760")
    a(f"s_add_u32 s43, s43, {B1_STAGE}")
    a(f"s_cmp_ge_u32 s43, {B1_STAGE*B1_NB}")
    a("s_cselect_b32 s43, 0, s43")


def lwait(a, nb, extra):
    l1, l2 = a.newlabel("LW"), a.newlabel("LW")
    a("s_cmp_lt_u32 s62, 2")
    a(f"s_cbranch_scc0 {l1}")
    a(f"s_waitcnt vmcnt({11*nb+extra})")
    a(f"s_branch {l2}")
    a.label(l1)
    a(f"s_waitcnt vmcnt({10*nb+extra})")
    a.label(l2)


def wo_dma_addr(a):
    for j in range(5):
        a(f"v_add_u32 v10, {64*j}, v1")
        a("v_mul_u32_u24 v11, 6554, v10")
        a("v_lshrrev_b32 v11, 16, v11")
        a("v_mul_u32_u24 v12, 10, v11")
        a("v_sub_u32 v12, v10, v12")
        a("v_lshrrev_b32 v13, 4, v11")
        a("v_lshlrev_b32 v13, 2, v13")
        a("v_and_b32 v14, 3, v11")
        a("v_add_u32 v13, v13, v14")
        a("v_lshrrev_b32 v14, 2, v11")
        a("v_and_b32 v14, 3, v14")
        a("v_lshlrev_b32 v14, 3, v14")
        a("v_add_u32 v13, v13, v14")
        a("v_mul_u32_u24 v13, 1280, v13")
        a("v_lshlrev_b32 v12, 4, v12")
        a("s_mul_i32 s6, s68, 160")
        a(f"v_add3_u32 v{230+j}, v13, v12, s6")


def wo_dma_slots(a, first, n):
    base = WSLOT(first) - first * 5120
    for p in range(first, first + n - 1):
        assert WSLOT(p + 1) - WSLOT(p) == 5120
    a(f"s_add_u32 s47, s62, {first}")
    loop, done = a.newlabel("WO"), a.newlabel("WO")
    a.label(loop)
    a(f"s_cmp_ge_u32 s47, {first+n}")
    a(f"s_cbranch_scc1 {done}")
    a("s_mul_i32 s6, s47, 52")
    a("s_lshr_b32 s6, s6, 8")
    a("s_mul_i32 s7, s6, 5")
    a("s_sub_u32 s7, s47, s7")
    a("s_add_u32 s6, s6, s68")
    a("s_and_b32 s6, s6, 3")
    a("s_mul_i32 s6, s6, 5")
    a("s_add_u32 s7, s7, s6")
    a("s_mul_i32 s7, s7, 40960")
    a("s_mul_i32 s6, s47, 5120")
    a(f"s_add_u32 s6, s6, 0x{base & 0xffffffff:x}")
    for j in range(5):
        a(f"s_add_u32 m0, s6, {1024*j}")
        a("s_nop 0")
        a(f"buffer_load_dwordx4 v{230+j}, s[56:59], s7 offen lds")
    a("s_add_u32 s47, s47, 4")
    a(f"s_branch {loop}")
    a.label(done)


def NPFL():
    return 0 if int(OPT.get('apf', 1)) else 3


def b_later_prefetch(a):
    npf = OPT["nt_pf"]
    a(f"v_mov_b32 v4, 0x{OOB:x}")
    a("s_add_u32 s6, s62, 3")
    a("s_mul_i32 s6, s6, 245760")
    a(f"buffer_load_dword v235, v8, s[36:39], s6 offen {npf}")
    a("s_cmp_lt_u32 s62, 3")
    a("s_cselect_b64 vcc, -1, 0")
    a("v_cndmask_b32 v10, v4, v9, vcc")
    a("s_add_u32 s6, s62, 2")
    a("s_lshl_b32 s6, s6, 8")
    a(f"buffer_load_dword v236, v10, s[32:35], s6 offen {npf}")
    a("v_cndmask_b32 v10, v4, v8, vcc")
    a("s_add_u32 s6, s62, 7")
    a("s_mul_i32 s6, s6, 245760")
    a(f"buffer_load_dword v237, v10, s[36:39], s6 offen {npf}")


def b1_loader(a, T):
    if OPT.get("lprio"):
        a("s_setprio 2")
    b1_loader_setup(a)
    if NPFL():
        pf_w_addr(a, 8)
        pf_x_addr(a, 9)
    def late_setup():
        srd(a, 56, P_WO, 640 * 1280)
        wo_dma_addr(a)
        att_setup(a)
        o_store_setup(a)
        srd(a, 48, P_WS, TSZ, WS_OW)
    if not int(OPT.get("nopf0", 0)):
        late_setup()
        a("s_barrier")
    a("s_mov_b32 s40, 0")
    l0 = a.newlabel("LP")
    a.label(l0)
    b1_issue_stage(a)
    a("s_add_u32 s40, s40, 1")
    lP = a.newlabel("LP")
    a("s_cmp_eq_u32 s40, 2")
    a(f"s_cbranch_scc0 {lP}")
    T.stamp(a, 1)
    if int(OPT.get("nopf0", 0)):
        late_setup()
    lwait(a, 1, 0)
    a("s_barrier")
    a.label(lP)
    a("s_cmp_lt_u32 s40, 3")
    a(f"s_cbranch_scc1 {l0}")
    if NPFL():
        b_later_prefetch(a)
    a("s_mov_b32 s40, 0")
    loop = a.newlabel("LL")
    lA, lB, lC, lD, lW = [a.newlabel("LLx") for _ in range(5)]
    a.label(loop)
    a("s_cmp_lt_u32 s40, 2")
    a(f"s_cbranch_scc1 {lA}")
    a("s_cmp_lt_u32 s40, 8")
    a(f"s_cbranch_scc1 {lB}")
    a("s_cmp_eq_u32 s40, 8")
    a(f"s_cbranch_scc1 {lC}")
    a(f"s_branch {lW}")
    a.label(lA)
    lwait(a, 1, NPFL())
    a(f"s_branch {lW}")
    a.label(lB)
    lwait(a, 1, 0)
    a(f"s_branch {lW}")
    a.label(lC)
    a("s_waitcnt vmcnt(5)")
    a.label(lW)
    a("s_barrier")
    skip, s7, s8, nxt = a.newlabel("LLS"), a.newlabel("LL7"), a.newlabel("LL8"), a.newlabel("LLN")
    a("s_cmp_ge_u32 s40, 7")
    a(f"s_cbranch_scc1 {skip}")
    b1_issue_stage(a)
    a(f"s_branch {nxt}")
    a.label(skip)
    a("s_cmp_eq_u32 s40, 7")
    a(f"s_cbranch_scc0 {s8}")
    wo_dma_slots(a, 5, 6)
    a(f"s_branch {nxt}")
    a.label(s8)
    s9 = a.newlabel("LL9")
    a("s_cmp_eq_u32 s40, 8")
    a(f"s_cbranch_scc0 {s9}")
    wo_dma_slots(a, 0, 5)
    a(f"s_branch {nxt}")
    a.label(s9)
    for rep in range(2):
        a(f"s_add_u32 s6, s68, {2+rep}")
        a("s_and_b32 s6, s6, 3")
        a("s_mul_i32 s6, s6, 160")
        a("s_mul_i32 s7, s62, 40")
        a("s_add_u32 s6, s6, s7")
        a("v_add_u32 v10, s6, v1")
        a("v_mul_u32_u24 v10, 1280, v10")
        a("s_mul_i32 s6, s68, 160")
        a("s_and_b32 s6, s6, 0xffffff80")
        a("v_add_u32 v10, s6, v10")
        a(f"v_mov_b32 v11, 0x{OOB:x}")
        a("v_cmp_gt_u32 vcc, 40, v1")
        a("s_nop 1")
        a("v_cndmask_b32 v10, v11, v10, vcc")
        a(f"buffer_load_dword v{235+2*rep}, v10, s[56:59], 0 offen")
        a(f"buffer_load_dword v{236+2*rep}, v10, s[56:59], 0 offen offset:128")
    a.label(nxt)
    a("s_add_u32 s40, s40, 1")
    a("s_cmp_lt_u32 s40, 10")
    a(f"s_cbranch_scc1 {loop}")


def b1_compute(a, T):
    a("v_and_b32 v10, 15, v1")
    a("v_lshrrev_b32 v11, 4, v1")
    a("v_lshrrev_b32 v12, 1, v10")
    a("v_xor_b32 v12, v12, v11")
    a("v_lshlrev_b32 v12, 4, v12")
    a("v_lshlrev_b32 v10, 7, v10")
    a("v_add_u32 v2, v10, v12")
    a("v_xor_b32 v3, 64, v2")
    a("v_lshrrev_b32 v10, 2, v1")
    a("v_and_b32 v10, 3, v10")
    a("v_and_b32 v12, 3, v1")
    a("v_lshlrev_b32 v13, 3, v11")
    a("v_add_u32 v13, v13, v10")
    a("v_lshlrev_b32 v13, 8, v13")
    a("v_and_b32 v14, 1, v11")
    a("v_lshlrev_b32 v14, 3, v14")
    a("v_lshlrev_b32 v10, 1, v10")
    a("v_add_u32 v14, v14, v10")
    a("v_lshrrev_b32 v15, 1, v12")
    a("s_lshl_b32 s6, s3, 2")
    a("v_add_u32 v15, s6, v15")
    a("v_xor_b32 v15, v15, v14")
    a("v_lshlrev_b32 v15, 4, v15")
    a("v_and_b32 v12, 1, v12")
    a("v_lshlrev_b32 v12, 3, v12")
    a("v_add3_u32 v13, v13, v15, v12")
    a(f"v_add_u32 v4, {B1_XSZ}, v13")
    a("v_xor_b32 v5, 32, v4")
    for i in range(NRT * 8):
        a(f"v_mov_b32 v{ACC+i}, 0")
    att_setup(a)
    a("v_and_b32 v10, 15, v1")
    a(f"v_mul_u32_u24 v10, {QKV_RS}, v10")
    a("v_lshrrev_b32 v11, 4, v1")
    a("s_lshl_b32 s6, s3, 3")
    a("v_add_u32 v11, s6, v11")
    for ct in range(2):
        if ct:
            a("v_add_u32 v11, 4, v11")
        a("v_mul_u32_u24 v6, 52, v11")
        a("v_lshrrev_b32 v6, 8, v6")
        a("v_mul_u32_u24 v7, 5, v6")
        a("v_sub_u32 v7, v11, v7")
        a("v_lshlrev_b32 v6, 6, v6")
        a("v_lshlrev_b32 v7, 3, v7")
        a(f"v_add3_u32 v{12+ct}, v10, v6, v7")
        a(f"v_add_u32 v{14+ct}, {8*16*QKV_RS}, v{12+ct}")

    def reads(xaddr, waddr0, waddr1, ks, X, W):
        r = []
        r.append(f"ds_read_b64_tr_b16 v[{W}:{W+1}], v{waddr0} offset:{8192*ks}")
        r.append(f"ds_read_b64_tr_b16 v[{W+2}:{W+3}], v{waddr0} offset:{8192*ks+1024}")
        r.append(f"ds_read_b64_tr_b16 v[{W+4}:{W+5}], v{waddr1} offset:{8192*ks}")
        r.append(f"ds_read_b64_tr_b16 v[{W+6}:{W+7}], v{waddr1} offset:{8192*ks+1024}")
        for t in range(NRT):
            r.append(f"ds_read_b128 v[{X+4*t}:{X+4*t+3}], v{xaddr} offset:{2048*t}")
        return r

    def mfmas(X, W):
        r = []
        for t in range(NRT):
            for ct in range(2):
                ac = ACC + (ct * NRT + t) * 4
                r.append(f"v_mfma_f32_16x16x32_bf16 v[{ac}:{ac+3}], v[{W+4*ct}:{W+4*ct+3}], v[{X+4*t}:{X+4*t+3}], v[{ac}:{ac+3}]")
        return r

    def inter(m, r):
        if OPT.get("nomfma"):
            return
        for i, x in enumerate(m):
            a(x)
            if i < len(r):
                a(r[i])

    a("s_waitcnt vmcnt(0)")
    if not int(OPT.get("nopf0", 0)):
        a("s_barrier")
    T.stamp(a, 1)
    a("s_barrier")
    T.stamp(a, 2)
    if OPT.get("prio"):
        a("s_setprio 1")
    a("v_mov_b32 v6, v2")
    a("v_mov_b32 v7, v3")
    a("v_mov_b32 v8, v4")
    a("v_mov_b32 v9, v5")
    for x in reads(6, 8, 9, 0, XA, WA):
        a(x)
    a("s_mov_b32 s40, 0")
    a("s_mov_b32 s44, 0")
    loop, last = a.newlabel("CL"), a.newlabel("CE")
    a.label(loop)
    a("s_waitcnt lgkmcnt(0)")
    inter(mfmas(XA, WA), reads(7, 8, 9, 1, XB, WB))
    a(f"s_add_u32 s44, s44, {B1_STAGE}")
    a(f"s_cmp_ge_u32 s44, {B1_STAGE*B1_NB}")
    a("s_cselect_b32 s44, 0, s44")
    a("v_add_u32 v6, s44, v2")
    a("v_add_u32 v7, s44, v3")
    a("v_add_u32 v8, s44, v4")
    a("v_add_u32 v9, s44, v5")
    a("s_waitcnt lgkmcnt(0)")
    a("s_barrier")
    if OPT.get("stagets") and T.on:
        a(f"{TS.INSTR} s[96:97]")
        a("s_waitcnt lgkmcnt(0)")
        for i in range(10):
            a(f"s_cmp_eq_u32 s40, {i}")
            a(f"s_cselect_b32 s{83+i}, s96, s{83+i}")
    a("s_cmp_eq_u32 s40, 9")
    a(f"s_cbranch_scc1 {last}")
    inter(mfmas(XB, WB), reads(6, 8, 9, 0, XA, WA))
    a("s_add_u32 s40, s40, 1")
    a(f"s_branch {loop}")
    a.label(last)
    m = mfmas(XB, WB)

    def wr(t, ct, k):
        ac = ACC + (ct * NRT + t) * 4
        d = XA + 2 * (k % 16)
        r = [f"v_cvt_pk_bf16_f32 v{d}, v{ac}, v{ac+1}", f"v_cvt_pk_bf16_f32 v{d+1}, v{ac+2}, v{ac+3}"]
        if t < 8:
            r.append(f"ds_write_b64 v{12+ct}, v[{d}:{d+1}] offset:{16*QKV_RS*t}")
        else:
            r.append(f"ds_write_b64 v{14+ct}, v[{d}:{d+1}] offset:{16*QKV_RS*(t-8)}")
        return r
    k = 0
    pend = []
    LAG = 8
    for i, x in enumerate(m):
        a(x)
        pend.append((i // 2, i % 2))
        if i >= LAG:
            t, ct = pend.pop(0)
            for y in wr(t, ct, k):
                a(y)
            k += 1
    a("s_nop 7")
    for (t, ct) in pend:
        for y in wr(t, ct, k):
            a(y)
        k += 1


def b1_epi_loader(a):
    a("v_and_b32 v10, 255, v0")
    a("v_mov_b32 v16, 0")
    a("v_mov_b32 v17, 0")
    a("v_mov_b32 v18, 0")
    a("v_mov_b32 v19, 0")
    a("v_lshrrev_b32 v11, 2, v10")
    a("v_and_b32 v12, 3, v10")
    a(f"v_mul_u32_u24 v11, {QKV_RS}, v11")
    a("v_lshlrev_b32 v12, 6, v12")
    a("v_add_u32 v11, v11, v12")
    for it in range(4):
        off = it * 64 * QKV_RS
        if it == 3:
            a("v_cmp_gt_u32 vcc, 64, v10")
            a("s_and_saveexec_b64 s[6:7], vcc")
        if it == 2:
            a(f"v_add_u32 v11, {2*64*QKV_RS}, v11")
        o2 = off if it < 2 else off - 2 * 64 * QKV_RS
        a(f"ds_write_b64 v11, v[16:17] offset:{o2+40}")
        a(f"ds_write_b128 v11, v[16:19] offset:{o2+48}")
        if it == 3:
            a("s_mov_b64 exec, s[6:7]")


KP0, KC0, KP1, KC1, NEG, KQB, VB, OB = 240, 241, 242, 243, 248, 249, 252, 253
S_PAR, S_M0, S_M1 = 64, 72, 74
S_D1, S_D2, S_O1, S_O2 = 76, 77, 66, 78


def att_setup(a):
    R16 = 16 * QKV_RS
    a("v_and_b32 v10, 15, v1")
    a("v_lshrrev_b32 v11, 4, v1")
    a(f"v_mov_b32 v{NEG}, 0xf149f2ca")
    a("v_and_b32 v12, 1, v10")
    a(f"v_cmp_eq_u32 s[{S_PAR}:{S_PAR+1}], 1, v12")
    a("v_lshlrev_b32 v13, 2, v11")
    a("v_add_u32 v13, v13, v12")
    a(f"v_cmp_le_u32 s[{S_M0}:{S_M0+1}], v13, v10")
    a("v_add_u32 v13, 2, v13")
    a(f"v_cmp_le_u32 s[{S_M1}:{S_M1+1}], v13, v10")
    a("v_mov_b32 v14, 0xffff")
    a("v_mov_b32 v15, 0xffff0000")
    a(f"v_cndmask_b32 v14, v14, v15, s[{S_PAR}:{S_PAR+1}]")
    a("v_mov_b32 v15, 0")
    a(f"v_cndmask_b32 v{KC0}, v15, v14, s[{S_M0}:{S_M0+1}]")
    a(f"v_cndmask_b32 v{KP0}, v14, v15, s[{S_M0}:{S_M0+1}]")
    a(f"v_cndmask_b32 v{KC1}, v15, v14, s[{S_M1}:{S_M1+1}]")
    a(f"v_cndmask_b32 v{KP1}, v14, v15, s[{S_M1}:{S_M1+1}]")
    a("s_mul_i32 s46, s3, 3")
    a("s_lshr_b32 s6, s46, 1")
    a("s_and_b32 s7, s46, 1")
    a(f"s_mul_i32 s45, s6, {R16}")
    a("s_lshl_b32 s47, s7, 6")
    a("s_add_u32 s45, s45, s47")
    a("s_mul_i32 s47, s6, 1280")
    a("s_mul_i32 s6, s7, 40")
    a("s_add_u32 s47, s47, s6")
    a("s_cmp_eq_u32 s7, 0")
    a(f"s_cselect_b32 s{S_D1}, 64, {R16-64}")
    a(f"s_mov_b32 s{S_D2}, {R16}")
    a(f"s_cselect_b32 s{S_O1}, 40, {1280-40}")
    a(f"s_mov_b32 s{S_O2}, 1280")
    a(f"v_mul_u32_u24 v12, {QKV_RS}, v10")
    a("v_lshlrev_b32 v13, 4, v11")
    a(f"v_add3_u32 v{KQB}, v12, v13, s45")
    a("v_lshrrev_b32 v12, 2, v1")
    a("v_and_b32 v12, 3, v12")
    a("v_lshlrev_b32 v13, 2, v11")
    a("v_add_u32 v12, v12, v13")
    a(f"v_mul_u32_u24 v12, {QKV_RS}, v12")
    a("v_and_b32 v13, 3, v1")
    a("v_lshlrev_b32 v13, 3, v13")
    a(f"v_add3_u32 v{VB}, v12, v13, s45")
    a("v_mul_u32_u24 v12, 80, v10")
    a("v_lshlrev_b32 v13, 3, v11")
    a("v_add3_u32 v12, v12, v13, s47")
    a(f"v_add_u32 v{OB}, {O_LDS}, v12")


def attention(a, T=None):
    R16 = 16 * QKV_RS
    U = [32 + 48 * u for u in range(3)]
    kq = [KQB, U[1] + 36, U[2] + 36]
    vv = [VB, U[1] + 37, U[2] + 37]
    oo = [OB, U[1] + 38, U[2] + 38]
    a(f"v_add_u32 v{kq[1]}, s{S_D1}, v{KQB}")
    a(f"v_add_u32 v{kq[2]}, s{S_D2}, v{KQB}")
    for u in range(3):
        b = U[u]
        a(f"ds_read_b128 v[{b}:{b+3}], v{kq[u]} offset:{R16}")
        a(f"ds_read_b128 v[{b+4}:{b+7}], v{kq[u]} offset:128")
        a(f"ds_read_b128 v[{b+8}:{b+11}], v{kq[u]} offset:{R16+128}")
    a(f"v_add_u32 v{vv[1]}, s{S_D1}, v{VB}")
    a(f"v_add_u32 v{vv[2]}, s{S_D2}, v{VB}")
    for u in range(3):
        b = U[u]
        a(f"ds_read_b64_tr_b16 v[{b+12}:{b+13}], v{vv[u]} offset:256")
        a(f"ds_read_b64_tr_b16 v[{b+14}:{b+15}], v{vv[u]} offset:{R16+256}")
        a(f"ds_read_b64_tr_b16 v[{b+16}:{b+17}], v{vv[u]} offset:{256+32}")
        a(f"ds_read_b64_tr_b16 v[{b+18}:{b+19}], v{vv[u]} offset:{R16+256+32}")
    a(f"v_add_u32 v{oo[1]}, s{S_O1}, v{OB}")
    a(f"v_add_u32 v{oo[2]}, s{S_O2}, v{OB}")
    a("s_mov_b32 s45, 0x3ea52b5c")
    a("s_waitcnt lgkmcnt(12)")
    for u in range(3):
        b = U[u]
        a(f"v_mfma_f32_16x16x32_bf16 v[{b+20}:{b+23}], v[{b+4}:{b+7}], v[{b}:{b+3}], 0")
        a(f"v_mfma_f32_16x16x32_bf16 v[{b+24}:{b+27}], v[{b+8}:{b+11}], v[{b}:{b+3}], 0")
    a("s_nop 7")

    def each(f):
        for step in zip(*[f(U[u]) for u in range(3)]):
            for x in step:
                a(x)
    P_, M0_, M1_ = f"s[{S_PAR}:{S_PAR+1}]", f"s[{S_M0}:{S_M0+1}]", f"s[{S_M1}:{S_M1+1}]"
    each(lambda b: [f"v_cndmask_b32 v{b+20}, v{b+20}, v{b+21}, {P_}",
                    f"v_cndmask_b32 v{b+22}, v{b+22}, v{b+23}, {P_}",
                    f"v_cndmask_b32 v{b+24}, v{b+24}, v{b+25}, {P_}",
                    f"v_cndmask_b32 v{b+26}, v{b+26}, v{b+27}, {P_}"])
    lsp = a.newlabel("ATS")
    a("s_or_b32 s6, s60, s3")
    a("s_cmp_lg_u32 s6, 0")
    a(f"s_cbranch_scc1 {lsp}")
    for u in range(2):
        a(f"v_mov_b32 v{U[u]+20}, v{NEG}")
        a(f"v_mov_b32 v{U[u]+22}, v{NEG}")
    a.label(lsp)
    each(lambda b: [f"v_cndmask_b32 v{b+20}, v{b+20}, v{b+24}, {M0_}",
                    f"v_cndmask_b32 v{b+22}, v{b+22}, v{b+26}, {M1_}",
                    f"v_max_f32 v{b+28}, v{b+20}, v{b+22}",
                    f"v_mov_b32 v{b+29}, v{b+28}",
                    f"v_permlane32_swap_b32 v{b+28}, v{b+29}",
                    f"v_max_f32 v{b+28}, v{b+28}, v{b+29}",
                    f"v_mov_b32 v{b+29}, v{b+28}",
                    f"v_permlane16_swap_b32 v{b+28}, v{b+29}",
                    f"v_max_f32 v{b+28}, v{b+28}, v{b+29}",
                    f"v_mul_f32 v{b+28}, s45, v{b+28}",
                    f"v_fma_f32 v{b+20}, v{b+20}, s45, -v{b+28}",
                    f"v_fma_f32 v{b+22}, v{b+22}, s45, -v{b+28}",
                    f"v_exp_f32 v{b+20}, v{b+20}",
                    f"v_exp_f32 v{b+22}, v{b+22}",
                    f"v_add_f32 v{b+28}, v{b+20}, v{b+22}",
                    f"v_mov_b32 v{b+29}, v{b+28}",
                    f"v_permlane32_swap_b32 v{b+28}, v{b+29}",
                    f"v_add_f32 v{b+28}, v{b+28}, v{b+29}",
                    f"v_mov_b32 v{b+29}, v{b+28}",
                    f"v_permlane16_swap_b32 v{b+28}, v{b+29}",
                    f"v_add_f32 v{b+28}, v{b+28}, v{b+29}",
                    f"v_rcp_f32 v{b+28}, v{b+28}",
                    f"v_mul_f32 v{b+20}, v{b+20}, v{b+28}",
                    f"v_mul_f32 v{b+22}, v{b+22}, v{b+28}",
                    f"v_cvt_pk_bf16_f32 v{b+20}, v{b+20}, v{b+20}",
                    f"v_cvt_pk_bf16_f32 v{b+22}, v{b+22}, v{b+22}",
                    f"v_and_b32 v{b+40}, v{KP0}, v{b+20}",
                    f"v_and_b32 v{b+41}, v{KP1}, v{b+22}",
                    f"v_and_b32 v{b+42}, v{KC0}, v{b+20}",
                    f"v_and_b32 v{b+43}, v{KC1}, v{b+22}"])
    a("s_waitcnt lgkmcnt(0)")
    for u in range(3):
        b = U[u]
        a(f"v_mfma_f32_16x16x32_bf16 v[{b}:{b+3}], v[{b+12}:{b+15}], v[{b+40}:{b+43}], 0")
        a(f"v_mfma_f32_16x16x32_bf16 v[{b+4}:{b+7}], v[{b+16}:{b+19}], v[{b+40}:{b+43}], 0")
    a("s_nop 7")
    for u in range(3):
        b = U[u]
        a(f"v_cvt_pk_bf16_f32 v{b+8}, v{b}, v{b+1}")
        a(f"v_cvt_pk_bf16_f32 v{b+9}, v{b+2}, v{b+3}")
        a(f"v_cvt_pk_bf16_f32 v{b+10}, v{b+4}, v{b+5}")
        a(f"v_cvt_pk_bf16_f32 v{b+11}, v{b+6}, v{b+7}")
        a(f"ds_write_b64 v{oo[u]}, v[{b+8}:{b+9}]")
    a("s_mov_b64 exec, 0xffff")
    for u in range(3):
        b = U[u]
        a(f"ds_write_b64 v{oo[u]}, v[{b+10}:{b+11}] offset:32")
    a("s_mov_b64 exec, -1")


def epoch_issue(a, vdst, vtmp, srdn, off_expr_sgpr):
    srd(a, srdn, P_WS, 0x10000, WS_FL)
    a(f"v_mov_b32 v{vtmp}, s{off_expr_sgpr}")
    a(f"buffer_load_dword v{vdst}, v{vtmp}, s[{srdn}:{srdn+3}], 0 offen sc1")


def poll(a, vaddr, n_lanes, tag_s, srdn):
    l0, l1 = a.newlabel("PF"), a.newlabel("PF")
    a("s_mov_b32 s45, 0")
    if n_lanes < 64:
        a(f"s_mov_b64 exec, 0x{(1 << n_lanes) - 1:x}")
    a.label(l0)
    a(f"buffer_load_dword v4, v{vaddr}, s[{srdn}:{srdn+3}], 0 offen sc1")
    a("s_waitcnt vmcnt(0)")
    a(f"v_cmp_ne_u32 vcc, s{tag_s}, v4")
    a("s_add_u32 s45, s45, 1")
    a("s_nop 3")
    a(f"s_cbranch_vccz {l1}")
    a(f"s_cmp_gt_u32 s45, {OPT['spin']}")
    a(f"s_cbranch_scc1 {l1}")
    a(f"s_sleep {OPT['psleep']}")
    a(f"s_branch {l0}")
    a.label(l1)
    if n_lanes < 64:
        a("s_mov_b64 exec, -1")


def o_store_setup(a):
    a("v_and_b32 v10, 255, v0")
    a("v_lshlrev_b32 v10, 4, v10")
    a(f"v_add_u32 v216, {O_LDS}, v10")
    a("s_mul_i32 s6, s61, 163840")
    a("s_mul_i32 s7, s60, 15360")
    a("s_add_u32 s6, s6, s7")
    a("v_add_u32 v12, s6, v10")
    a("s_movk_i32 s7, 15360")
    a("s_cmp_eq_u32 s60, 10")
    a("s_cselect_b32 s7, 10240, s7")
    a(f"v_mov_b32 v14, 0x{OOB:x}")
    for i in range(4):
        a(f"v_add_u32 v{217+i}, {4096*i}, v12")
        a(f"v_add_u32 v13, {4096*i}, v10")
        a("v_cmp_gt_u32 vcc, s7, v13")
        a("s_nop 1")
        a(f"v_cndmask_b32 v{217+i}, v14, v{217+i}, vcc")


def o_store(a):
    sc = OPT["sc_ostore"]
    for i in range(4):
        a(f"ds_read_b128 v[{16+4*i}:{19+4*i}], v216 offset:{4096*i}")
    a("s_waitcnt lgkmcnt(0)")
    for i in range(4):
        a(f"buffer_store_dwordx4 v[{16+4*i}:{19+4*i}], v{217+i}, s[48:51], 0 offen {sc}")


def b2_o_addr(a, dst):
    a("s_lshl_b32 s6, s47, 10")
    a("v_add_u32 v10, s6, v239")
    a("v_lshrrev_b32 v11, 9, v10")
    a("v_mul_u32_u24 v11, 4370, v11")
    a("v_lshrrev_b32 v11, 16, v11")
    a("v_mul_u32_u24 v11, 156160, v11")
    a(f"v_add_u32 v{dst}, v10, v11")


def b2_loader_setup(a):
    for i in range(8):
        a(f"s_add_u32 s47, s62, {4*i}")
        b2_o_addr(a, 200 + i)
    a("s_cmp_lt_u32 s62, 2")
    a("s_cselect_b64 vcc, -1, 0")
    a(f"v_mov_b32 v10, 0x{OOB:x}")
    a("v_cndmask_b32 v207, v10, v207, vcc")
    a("s_mul_i32 s49, s67, 7680")


OBUF = [B2_O, B2_O + B2_OST, B2_O3, B2_O]


def b2_loader(a, T):
    sc = OPT["sc_oload"]

    def dma(st):
        a(f"s_add_u32 s50, s68, {st}")
        a("s_and_b32 s50, s50, 3")
        a("s_mul_i32 s50, s50, 655360")
        a("s_add_u32 s50, s50, s49")
        a("s_lshl_b32 s6, s62, 10")
        a(f"s_add_u32 s6, s6, {OBUF[st]}")
        for i in range(8):
            lab = None
            if i == 7:
                lab = a.newlabel("O7")
                a("s_cmp_ge_u32 s62, 2")
                a(f"s_cbranch_scc1 {lab}")
            a(f"s_add_u32 m0, s6, {4096*i}")
            a("s_nop 0")
            a(f"buffer_load_dwordx4 v{200+i}, s[52:55], s50 offen {sc} lds")
            if lab:
                a.label(lab)

    dma(0)
    dma(1)
    a("s_waitcnt vmcnt(7)")
    a("s_barrier")
    dma(2)
    a("s_waitcnt vmcnt(7)")
    a("s_barrier")
    dma(3)
    a("s_waitcnt vmcnt(7)")
    a("s_barrier")
    lq = a.newlabel("W19")
    a("s_cmp_lg_u32 s62, 0")
    a(f"s_cbranch_scc1 {lq}")
    a("s_add_u32 s7, s68, 3")
    a("s_and_b32 s7, s7, 3")
    a("s_mul_i32 s7, s7, 5")
    a("s_add_u32 s7, s7, 4")
    a("s_mul_i32 s7, s7, 40960")
    for j in range(5):
        a(f"s_mov_b32 m0, {WSLOT(19) + 1024*j}")
        a("s_nop 0")
        a(f"buffer_load_dwordx4 v{230+j}, s[56:59], s7 offen lds")
    a.label(lq)
    a("s_waitcnt vmcnt(0)")
    a("s_barrier")


def b2_compute_setup(a):
    a("v_and_b32 v10, 15, v1")
    a("v_lshrrev_b32 v11, 4, v1")
    a("s_and_b32 s6, s3, 1")
    a("s_mul_i32 s6, s6, 48")
    a("v_add_u32 v10, s6, v10")
    a("v_mul_u32_u24 v10, 80, v10")
    for ks in range(5):
        a(f"v_add_u32 v12, {4*ks}, v11")
        a("v_mul_u32_u24 v13, 52, v12")
        a("v_lshrrev_b32 v13, 8, v13")
        a("v_mul_u32_u24 v14, 5, v13")
        a("v_sub_u32 v14, v12, v14")
        a("v_mul_u32_u24 v13, 7680, v13")
        a("v_lshlrev_b32 v14, 4, v14")
        a(f"v_add3_u32 v{224+ks}, v10, v13, v14")
    a("v_lshrrev_b32 v12, 2, v1")
    a("v_and_b32 v12, 3, v12")
    a("v_lshlrev_b32 v13, 2, v11")
    a("v_add_u32 v12, v12, v13")
    a("v_mul_u32_u24 v12, 160, v12")
    a("v_and_b32 v13, 3, v1")
    a("v_lshlrev_b32 v13, 3, v13")
    a("s_lshr_b32 s47, s3, 1")
    a("s_mul_i32 s6, s47, 96")
    a("v_add3_u32 v229, v12, v13, s6")
    for i in range(36):
        a(f"v_mov_b32 v{16+i}, 0")
    srd(a, 56, P_OUT, 2048 * 2560)
    a("v_and_b32 v13, 15, v1")
    a("s_and_b32 s6, s3, 1")
    a("s_mul_i32 s6, s6, 48")
    a("s_mul_i32 s7, s67, 96")
    a("s_add_u32 s6, s6, s7")
    a("v_add_u32 v13, s6, v13")
    a("v_mul_u32_u24 v13, 2560, v13")
    a("v_lshrrev_b32 v14, 4, v1")
    a("v_lshlrev_b32 v14, 3, v14")
    a("s_mul_i32 s6, s68, 160")
    a("s_mul_i32 s7, s47, 96")
    a("s_add_u32 s6, s6, s7")
    a("s_add_u32 s6, s6, 1280")
    a("v_add3_u32 v213, v13, v14, s6")
    a("s_mov_b32 s72, 0")
    a("s_mov_b32 s73, 40960")
    a("s_mov_b32 s74, 81920")


def b2_compute(a, T):
    WF, OF = 56, 120

    def addr(slot, st):
        r = []
        ob, wb = 192 + 5 * slot, 202 + 5 * slot
        for ks in range(5):
            r.append(f"v_add_u32 v{ob+ks}, {OBUF[st]}, v{224+ks}")
            r.append(f"v_add_u32 v{wb+ks}, {WSLOT(5*st+ks)}, v229")
        return r

    def rd_w(slot, ks, nct):
        wb = 202 + 5 * slot
        r = []
        for ct in range(nct):
            F = WF + 12 * ks + 4 * ct
            r.append(f"ds_read_b64_tr_b16 v[{F}:{F+1}], v{wb+ks} offset:{32*ct}")
            r.append(f"ds_read_b64_tr_b16 v[{F+2}:{F+3}], v{wb+ks} offset:{32*ct+2560}")
        return r

    def rd_o(slot, ks):
        ob = 192 + 5 * slot
        return [f"ds_read_b128 v[{OF+12*ks+4*t}:{OF+12*ks+4*t+3}], v{ob+ks} offset:{1280*t}" for t in range(3)]

    def mm(ks, nct):
        r = []
        for t in range(3):
            for ct in range(nct):
                ac = 16 + (t * 3 + ct) * 4
                W = WF + 12 * ks + 4 * ct
                O = OF + 12 * ks + 4 * t
                r.append(f"v_mfma_f32_16x16x32_bf16 v[{ac}:{ac+3}], v[{W}:{W+3}], v[{O}:{O+3}], v[{ac}:{ac+3}]")
        return r

    le, ld = a.newlabel("C2E"), a.newlabel("C2D")
    for x in addr(0, 0):
        a(x)
    a("s_cmp_eq_u32 s47, 0")
    a(f"s_cbranch_scc0 {le}")
    for var, nct in enumerate([3, 2]):
        if var == 1:
            a(f"s_branch {ld}")
            a.label(le)
        for ks in range(5):
            for x in rd_w(0, ks, nct):
                a(x)
        nw = 2 * nct

        def emit(m, fill):
            per = (len(fill) + len(m) - 1) // len(m) if fill else 0
            k = 0
            for x in m:
                a(x)
                for _ in range(per):
                    if k < len(fill):
                        a(fill[k])
                        k += 1
        a("s_waitcnt lgkmcnt(0)")
        a("s_barrier")
        if T.on and not OPT.get("attts") and var == 0:
            T.stamp(a, 10)
        for x in rd_o(0, 0):
            a(x)
        for st in range(4):
            slot = st & 1
            nslot = slot ^ 1
            last = st == 3
            f0 = []
            if st > 0:
                f0 += rd_w(slot, 4, nct)
            f0 += [x for ks in range(1, 5) for x in rd_o(slot, ks)]
            if not last:
                f0 += addr(nslot, st + 1)
            a("s_waitcnt lgkmcnt(0)")
            emit(mm(0, nct), f0)
            for ks in (1, 2, 3):
                fill = rd_w(nslot, ks - 1, nct) if not last else []
                y = 3 * (4 - ks) + ((ks - 1) * nw if not last else 0)
                a(f"s_waitcnt lgkmcnt({min(15, y)})")
                emit(mm(ks, nct), fill)
            if not last:
                a(f"s_waitcnt lgkmcnt({min(15, 3 * nw)})")
                a("s_barrier")
                if T.on and not OPT.get("attts") and var == 0:
                    T.stamp(a, 11 + st)
                for x in rd_o(nslot, 0):
                    a(x)
                emit(mm(4, nct), rd_w(nslot, 3, nct))
            else:
                a("s_waitcnt lgkmcnt(0)")
                emit(mm(4, nct), [])
        no = OPT["nt_out"]
        a("s_nop 7")
        for t in range(3):
            for ct in range(nct):
                ac = 16 + (t * 3 + ct) * 4
                p = 56 + 2 * (t * 3 + ct)
                a(f"v_cvt_pk_bf16_f32 v{p}, v{ac}, v{ac+1}")
                a(f"v_cvt_pk_bf16_f32 v{p+1}, v{ac+2}, v{ac+3}")
                a(f"buffer_store_dwordx2 v[{p}:{p+1}], v213, s[56:59], s{72+t} offen offset:{32*ct} {no}")
    a.label(ld)


def b_program(a, T):
    b_decode(a)
    ld, j1 = a.newlabel("BLD"), a.newlabel("BJ1")
    a("s_cmp_ge_u32 s3, 4")
    a(f"s_cbranch_scc1 {ld}")
    if not int(OPT.get("nopf0", 0)):
        b_initial_prefetch(a)
    a("s_lshl_b32 s6, s60, 7")
    a(f"s_add_u32 s6, s6, {FL_EB}")
    epoch_issue(a, 250, 251, 52, 6)
    b1_compute(a, T)
    T.stamp(a, 3)
    a("s_waitcnt lgkmcnt(0)")
    a(f"s_branch {j1}")
    a.label(ld)
    a("s_lshl_b32 s6, s60, 7")
    a(f"s_add_u32 s6, s6, {FL_EB}")
    epoch_issue(a, 250, 251, 52, 6)
    b1_loader(a, T)
    T.stamp(a, 3)
    if OPT.get("lprio"):
        a("s_setprio 0")
    b1_epi_loader(a)
    a("s_waitcnt lgkmcnt(0)")
    a.label(j1)
    a("s_barrier")
    T.stamp(a, 4)
    attention(a, T)
    a("s_waitcnt lgkmcnt(0)")
    a("s_barrier")
    T.stamp(a, 5)
    ld2, j2 = a.newlabel("BLD"), a.newlabel("BJ2")
    a("s_cmp_ge_u32 s3, 4")
    a(f"s_cbranch_scc1 {ld2}")
    a("v_readfirstlane_b32 s44, v250")
    a("s_add_u32 s44, s44, 1")
    a("s_barrier")
    b2_compute_setup(a)
    a("s_barrier")
    lp = a.newlabel("NP")
    a("s_cmp_lg_u32 s3, 0")
    a(f"s_cbranch_scc1 {lp}")
    a("s_lshl_b32 s6, s60, 4")
    a("s_add_u32 s6, s6, s61")
    a("s_lshl_b32 s6, s6, 7")
    a("v_mov_b32 v10, s6")
    a("v_mov_b32 v11, s44")
    a("s_mov_b64 exec, 1")
    a("buffer_store_dword v11, v10, s[52:55], 0 offen sc1")
    a("s_mov_b64 exec, -1")
    T.stamp(a, 6)
    a("s_lshl_b32 s6, s60, 11")
    a("v_lshlrev_b32 v10, 7, v1")
    a("v_add_u32 v10, s6, v10")
    poll(a, 10, 16, 44, 52)
    le = a.newlabel("EU")
    a("s_cmp_lg_u32 s61, 0")
    a(f"s_cbranch_scc1 {le}")
    a("v_mov_b32 v11, s44")
    a("s_mov_b64 exec, 1")
    a("buffer_store_dword v11, v251, s[52:55], 0 offen sc1")
    a("s_mov_b64 exec, -1")
    a.label(le)
    a.label(lp)
    T.stamp(a, 7)
    a("s_barrier")
    b2_compute(a, T)
    T.stamp(a, 8)
    a(f"s_branch {j2}")
    a.label(ld2)
    o_store(a)
    a("s_barrier")
    a("s_waitcnt vmcnt(0)")
    a("s_barrier")
    if OPT.get("opf"):
        lo = a.newlabel("OPF")
        a("s_cmp_lg_u32 s62, 3")
        a(f"s_cbranch_scc1 {lo}")
        a("s_mul_i32 s6, s61, 163840")
        a("s_mul_i32 s7, s67, 7680")
        a("s_add_u32 s6, s6, s7")
        a("v_lshlrev_b32 v10, 7, v1")
        a(f"v_mov_b32 v11, 0x{OOB:x}")
        a("v_cmp_gt_u32 vcc, 60, v1")
        a("s_nop 1")
        a("v_cndmask_b32 v10, v11, v10, vcc")
        a("buffer_load_dword v237, v10, s[48:51], s6 offen sc1")
        a.label(lo)
    wo_dma_slots(a, 11, 8)
    srd(a, 52, P_WS, TSZ, WS_OW)
    a("v_lshlrev_b32 v239, 4, v1")
    b2_loader_setup(a)
    a("s_waitcnt vmcnt(0)")
    T.stamp(a, 7)
    a("s_barrier")
    b2_loader(a, T)
    T.stamp(a, 8)
    a.label(j2)
    T.stamp(a, 9)


A2_H0 = 0
A2_H1 = 4640
A2_X0 = 9216
A2_X2 = 13696
A2_CH = 17920
T_RS = 528
Y_RS = 528


def a_program(a, T):
    na, nh, sc = OPT["nt_a"], OPT["nt_h"], OPT["sc"]
    a("s_sub_u32 s5, s5, s70")
    a("s_lshl_b32 s6, s4, 1")
    a("s_add_u32 s7, s4, 2")
    a("s_cmp_lt_u32 s4, 2")
    a("s_cselect_b32 s6, s6, s7")
    a("s_lshr_b32 s7, s5, 3")
    a("s_add_u32 s73, s6, s7")
    a("s_and_b32 s72, s5, 7")
    a("s_lshl_b32 s62, s73, 6")
    a("s_lshl_b32 s6, s72, 3")
    a("s_add_u32 s62, s62, s6")
    a("s_add_u32 s63, s62, s3")
    srd(a, 32, P_K, TSZ)
    srd(a, 36, P_V, TSZ)
    srd(a, 40, P_SK, 640 * 8)
    a("v_and_b32 v8, 7, v1")
    a("v_lshrrev_b32 v9, 3, v1")
    a("s_lshl_b32 s6, s3, 3")
    a("v_add_u32 v9, s6, v9")
    a("v_lshlrev_b32 v2, 2, v9")
    a("s_lshl_b32 s6, s72, 8")
    a("v_add_u32 v2, s6, v2")
    a("v_mul_u32_u24 v2, 1280, v2")
    a("v_lshlrev_b32 v3, 4, v8")
    a("s_lshl_b32 s6, s73, 7")
    a("v_add3_u32 v2, v2, v3, s6")
    a("v_add_u32 v3, -3840, v2")
    a("v_add_u32 v4, -2560, v2")
    a("v_add_u32 v5, -1280, v2")
    for m in range(4):
        a(f"buffer_load_dwordx4 v[{64+4*m}:{67+4*m}], v2, s[32:35], 0 offen offset:{1280*m} {na}".replace("offset:0 ", ""))
    for m in range(4):
        a(f"buffer_load_dwordx4 v[{80+4*m}:{83+4*m}], v2, s[36:39], 0 offen offset:{1280*m} {na}".replace("offset:0 ", ""))
    a(f"buffer_load_dwordx4 v[52:55], v3, s[32:35], 0 offen {na}")
    a(f"buffer_load_dwordx4 v[56:59], v4, s[32:35], 0 offen {na}")
    a(f"buffer_load_dwordx4 v[60:63], v5, s[32:35], 0 offen {na}")
    a("v_lshlrev_b32 v6, 6, v8")
    a("s_lshl_b32 s6, s73, 9")
    a("v_add_u32 v6, s6, v6")
    for i in range(4):
        a(f"buffer_load_dwordx4 v[{32+4*i}:{35+4*i}], v6, s[40:43], 0 offen offset:{16*i}".replace("offset:0", ""))
    a("s_lshl_b32 s6, s73, 7")
    a(f"s_add_u32 s6, s6, {FL_EA}")
    epoch_issue(a, 250, 251, 48, 6)
    a("s_lshl_b32 s6, s62, 1")
    a(f"s_add_u32 s44, s{P_SD}, s6")
    a(f"s_addc_u32 s45, s{P_SD+1}, 0")
    a("s_load_dwordx4 s[64:67], s[44:45], 0")
    if int(OPT.get("apf", 1)):
        npf = OPT["nt_pf"]
        a("s_cmp_eq_u32 s4, 1")
        a("s_cselect_b32 s74, 1, 0")
        a("s_cmp_ge_u32 s4, 5")
        a("s_cselect_b32 s74, 1, s74")
        a("s_cselect_b32 s7, 3, 0")
        a("s_sub_u32 s6, s4, 2")
        a("s_sub_u32 s6, s6, s7")
        a("s_mul_i32 s6, s6, 3")
        a("s_add_u32 s6, s6, 2")
        a("s_cmp_lt_u32 s4, 2")
        a("s_cselect_b32 s75, 0, s6")
        a("s_cselect_b32 s76, 128, 64")
        a("s_cselect_b32 s77, 2400, s76")
        a("s_cselect_b32 s77, 2400, 3552") if False else None
        a("s_movk_i32 s77, 3552")
        a("s_cmp_lt_u32 s4, 2")
        a("s_cselect_b32 s77, 2400, s77")
        a("s_lshl_b32 s78, s5, 3")
        a("s_add_u32 s78, s78, s3")
        srd(a, 52, P_W, 640 * 3840)
        srd(a, 56, P_X, TSZ)
        a(f"v_mov_b32 v20, 0x{OOB:x}")

        W0, X0 = int(OPT.get("apfw0", 3)), int(OPT.get("apfx0", 4))
        nxl = 10 - X0
        nW = (10 - W0) * 960
        Wr = -(-nW // 4096)
        Xr = -(-(592 * nxl) // 4096)
        Mx = -(-(1 << 19) // nxl)
        assert all((li * Mx) >> 19 == li // nxl for li in range(Xr * 8192)) and Xr * 8192 * Mx < 2**32
        a(f"s_movk_i32 s77, {592 * nxl}")
        a("s_cmp_lt_u32 s4, 2")
        a(f"s_cselect_b32 s77, {400 * nxl}, s77")
        dsts = iter(range(230, 250))

        def wpf(rnd):
            a(f"s_mul_i32 s6, s76, {rnd}")
            a("s_add_u32 s6, s6, s78")
            a("s_lshl_b32 s6, s6, 6")
            a("v_add_u32 v21, s6, v1")
            a("v_mul_u32_u24 v22, 34953, v21")
            a("v_lshrrev_b32 v22, 19, v22")
            a("v_mul_u32_u24 v23, 15, v22")
            a("v_sub_u32 v23, v21, v23")
            a("v_mul_u32_u24 v24, 52, v23")
            a("v_lshrrev_b32 v24, 8, v24")
            a("v_mul_u32_u24 v25, 5, v24")
            a("v_sub_u32 v25, v23, v25")
            a(f"v_add_u32 v22, {64 * W0}, v22")
            a("v_mul_u32_u24 v22, 3840, v22")
            a("v_mul_u32_u24 v24, 1280, v24")
            a("v_lshlrev_b32 v25, 7, v25")
            a("v_add3_u32 v22, v22, v24, v25")
            a("s_mul_i32 s7, s74, 640")
            a("v_add_u32 v22, s7, v22")
            a(f"s_movk_i32 s7, {nW}")
            a("v_cmp_gt_u32 vcc, s7, v21")
            a("s_nop 1")
            a("v_cndmask_b32 v22, v20, v22, vcc")
            a(f"buffer_load_dword v{next(dsts)}, v22, s[52:55], 0 offen {npf}")

        def xpf(rnd):
            a(f"s_mul_i32 s6, s76, {rnd}")
            a("s_add_u32 s6, s6, s78")
            a("s_lshl_b32 s6, s6, 6")
            a("v_add_u32 v21, s6, v1")
            a(f"v_mul_u32_u24 v22, {Mx}, v21")
            a("v_lshrrev_b32 v22, 19, v22")
            a(f"v_mul_u32_u24 v23, {nxl}, v22")
            a("v_sub_u32 v23, v21, v23")
            a("s_mul_i32 s6, s75, 192")
            a("s_sub_u32 s6, s6, 16")
            a("v_add_u32 v22, s6, v22")
            a("s_movk_i32 s7, 1280")
            a("v_mul_lo_u32 v22, v22, s7")
            a("v_lshlrev_b32 v23, 7, v23")
            a("v_add_u32 v22, v22, v23")
            a(f"v_add_u32 v22, {128 * X0}, v22")
            a("v_cmp_gt_u32 vcc, s77, v21")
            a("s_nop 1")
            a("v_cndmask_b32 v22, v20, v22, vcc")
            a(f"buffer_load_dword v{next(dsts)}, v22, s[56:59], 0 offen {npf}")
        for rnd in range(max(Wr, Xr)):
            if rnd < Wr:
                wpf(rnd)
            if rnd < Xr:
                xpf(rnd)
        global APF_N
        APF_N = Wr + Xr
    a(f"s_mul_i32 s60, s3, {A2_CH}")
    a("s_lshl_b32 s59, s63, 12")
    a("v_lshlrev_b32 v10, 4, v1")
    a("v_add_u32 v11, -2, v10")
    T.stamp(a, 1)
    a("v_mov_b32 v28, 0")
    a("v_mov_b32 v29, 0")
    a("v_mov_b32 v30, 0")
    a("v_mov_b32 v31, 0")
    a("v_add_u32 v23, s60, v10")
    a("s_mov_b64 exec, 0xfffffff")
    a(f"ds_write_b128 v23, v[28:31] offset:{A2_H0}")
    a(f"ds_write_b128 v23, v[28:31] offset:{A2_H1}")
    a("s_mov_b64 exec, -1")
    a(f"v_mul_u32_u24 v7, {A2_CH+16}, v8")
    a("v_lshlrev_b32 v12, 3, v9")
    a("v_sub_u32 v7, v7, v12")
    a(f"v_add_u32 v7, {A2_X0 + 504}, v7")
    a("s_mov_b32 s57, 0xffff0000")
    a(f"s_waitcnt vmcnt({1 + (APF_N if int(OPT.get('apf', 1)) else 0)})")
    T.stamp(a, 2)
    for c in range(4):
        for m in range(4):
            for e in range(2):
                src = 32 + 2 * (2 * c + e) + (m >> 1)
                dst = 96 + (c * 4 + m) * 2 + e
                if m & 1:
                    a(f"v_and_b32 v{dst}, s57, v{src}")
                else:
                    a(f"v_lshlrev_b32 v{dst}, 16, v{src}")
    for c in range(4):
        for jj in range(7):
            a(f"v_lshlrev_b32 v{128+2*jj}, 16, v{52+4*jj+c}")
            a(f"v_and_b32 v{129+2*jj}, s57, v{52+4*jj+c}")
        for m in range(4):
            a(f"v_lshlrev_b32 v{142+2*m}, 16, v{80+4*m+c}")
            a(f"v_and_b32 v{143+2*m}, s57, v{80+4*m+c}")
        W = lambda m: f"v[{96+(c*4+m)*2}:{97+(c*4+m)*2}]"
        K = lambda jj: f"v[{128+2*jj}:{129+2*jj}]"
        for rr in range(4):
            o = 150 + 2 * rr
            a(f"v_pk_mul_f32 v[{o}:{o+1}], {W(3)}, {K(rr)}")
        for m in (2, 1, 0):
            for rr in range(4):
                o = 150 + 2 * rr
                a(f"v_pk_fma_f32 v[{o}:{o+1}], {W(m)}, {K(3+rr-m)}, v[{o}:{o+1}]")
        for rr in range(4):
            o = 150 + 2 * rr
            a(f"v_pk_mul_f32 v[{o}:{o+1}], v[{o}:{o+1}], v[{142+2*rr}:{143+2*rr}]")
        for e in range(2):
            ch = 2 * c + e
            d = 160 + 4 * (c & 1) + 2 * e
            a(f"v_cvt_pk_bf16_f32 v{d}, v{156+e}, v{154+e}")
            a(f"v_cvt_pk_bf16_f32 v{d+1}, v{152+e}, v{150+e}")
            a(f"ds_write_b64 v7, v[{d}:{d+1}] offset:{ch*T_RS}")
    a("v_lshrrev_b32 v12, 5, v1")
    a(f"v_mul_u32_u24 v12, {T_RS}, v12")
    a("v_and_b32 v13, 31, v1")
    a("v_lshlrev_b32 v13, 4, v13")
    a("v_add_u32 v12, v12, v13")
    a(f"s_mul_i32 s6, s3, {A2_CH+16}")
    a(f"s_add_u32 s6, s6, {A2_X0}")
    a("v_add_u32 v12, s6, v12")
    srd(a, 36, P_WS, TSZ, WS_XT)
    a("v_lshrrev_b32 v14, 5, v1")
    a("v_lshlrev_b32 v14, 12, v14")
    a("v_add_u32 v14, v14, v13")
    a("s_lshl_b32 s6, s73, 6")
    a("s_lshl_b32 s7, s3, 3")
    a("s_add_u32 s6, s6, s7")
    a("s_lshl_b32 s6, s6, 12")
    a("s_lshl_b32 s7, s72, 9")
    a("s_sub_u32 s7, 3584, s7")
    a("s_add_u32 s6, s6, s7")
    a("v_add_u32 v14, s6, v14")
    a("s_waitcnt lgkmcnt(0)")
    a("s_barrier")
    for m in range(4):
        a(f"ds_read_b128 v[{64+4*m}:{67+4*m}], v12 offset:{2*m*T_RS}")
    a("s_waitcnt lgkmcnt(0)")
    a("s_mov_b32 s6, 0")
    for m in range(4):
        a(f"buffer_store_dwordx4 v[{64+4*m}:{67+4*m}], v14, s[36:39], s6 offen {sc}")
        if m < 3:
            a("s_add_u32 s6, s6, 8192")
    T.stamp(a, 3)
    srd(a, 52, P_H, 640 * 4096)
    for i in range(4):
        a(f"s_add_u32 m0, s60, {A2_H0 + 448 + 1024*i}")
        a(f"s_add_u32 s6, s59, {1024*i}")
        a(f"buffer_load_dwordx4 v10, s[52:55], s6 offen {nh} lds")
    a("v_mov_b32 v13, 0")
    a(f"buffer_load_dwordx4 v[16:19], v13, s[52:55], s59 offen")
    a("s_lshr_b32 s6, s3, 1")
    a("s_cmp_eq_u32 s6, 1")
    a("s_cselect_b32 s58, s65, s64")
    a("s_cmp_eq_u32 s6, 2")
    a("s_cselect_b32 s58, s66, s58")
    a("s_cmp_eq_u32 s6, 3")
    a("s_cselect_b32 s58, s67, s58")
    a("s_and_b32 s6, s3, 1")
    a("s_lshl_b32 s6, s6, 4")
    a("s_lshr_b32 s58, s58, s6")
    a("s_lshl_b32 s58, s58, 16")
    a("s_waitcnt vmcnt(5)")
    a("v_readfirstlane_b32 s44, v250")
    a("s_add_u32 s44, s44, 1")
    a("s_barrier")
    lf = a.newlabel("AF")
    a("s_cmp_lg_u32 s3, 0")
    a(f"s_cbranch_scc1 {lf}")
    a("s_lshl_b32 s6, s73, 3")
    a("s_add_u32 s6, s6, s72")
    a("s_lshl_b32 s6, s6, 7")
    a(f"s_add_u32 s6, s6, {FL_A1}")
    a("v_mov_b32 v12, s6")
    a("v_mov_b32 v13, s44")
    a("s_mov_b64 exec, 1")
    a("buffer_store_dword v13, v12, s[48:51], 0 offen sc1")
    a("s_mov_b64 exec, -1")
    T.stamp(a, 4)
    a.label(lf)
    lp = a.newlabel("AP")
    a("s_cmp_lg_u32 s3, 0")
    a(f"s_cbranch_scc1 {lp}")
    a("s_lshl_b32 s6, s73, 10")
    a(f"s_add_u32 s6, s6, {FL_A1}")
    a("v_lshlrev_b32 v12, 7, v1")
    a("v_add_u32 v12, s6, v12")
    poll(a, 12, 8, 44, 48)
    le = a.newlabel("EU")
    a("s_cmp_lg_u32 s72, 0")
    a(f"s_cbranch_scc1 {le}")
    a("v_mov_b32 v13, s44")
    a("s_mov_b64 exec, 1")
    a("buffer_store_dword v13, v251, s[48:51], 0 offen sc1")
    a("s_mov_b64 exec, -1")
    a.label(le)
    a.label(lp)
    a("s_waitcnt lgkmcnt(0)")
    a("s_barrier")
    T.stamp(a, 5)
    for i in range(4):
        a(f"s_add_u32 m0, s60, {A2_X0 + 1024*i}")
        a(f"s_add_u32 s6, s59, {1024*i}")
        a(f"buffer_load_dwordx4 v10, s[36:39], s6 offen {sc} lds")
    a("s_mov_b64 exec, 0x1f")
    a(f"ds_write_b128 v23, v[28:31] offset:{A2_X0+4096}")
    a("s_mov_b64 exec, 0xf")
    a(f"ds_write_b128 v23, v[28:31] offset:{A2_X2+4096}")
    a("s_mov_b64 exec, -1")
    srd(a, 32, P_Q, TSZ)
    a("s_and_b32 s6, s3, 3")
    a("s_lshl_b32 s6, s6, 6")
    a("s_lshl_b32 s7, s72, 8")
    a("s_add_u32 s6, s6, s7")
    a("v_add_u32 v14, s6, v1")
    a("v_mul_u32_u24 v14, 1280, v14")
    a("s_lshl_b32 s61, s73, 7")
    a("v_add_u32 v14, s61, v14")
    a(f"v_mov_b32 v13, 0x{OOB:x}")
    a("s_cmp_lt_u32 s3, 4")
    a("s_cselect_b64 vcc, -1, 0")
    a("v_cndmask_b32 v14, v13, v14, vcc")
    a("buffer_load_dword v243, v14, s[32:35], 0 offen")
    a("s_lshl_b32 s6, s3, 8")
    a("v_add_u32 v9, s6, v1")
    a("s_lshl_b32 s61, s62, 1")
    a("v_mul_u32_u24 v8, 1280, v9")
    a("v_add_u32 v8, s61, v8")
    a("s_waitcnt vmcnt(5)")
    a("v_lshlrev_b32 v21, 16, v16")
    a("v_add_f32 v21, s58, v21")
    a("v_cvt_pk_bf16_f32 v21, v21, v21")
    a("v_mov_b32 v22, s60")
    a("s_mov_b64 exec, 1")
    a(f"ds_write_b16 v22, v21 offset:{A2_H0+448}")
    a("s_mov_b64 exec, -1")
    a("s_waitcnt lgkmcnt(0)")
    for i in range(4):
        a(f"ds_read_b128 v[{64+8*i}:{67+8*i}], v23 offset:{A2_H0+448+1024*i}")
        a(f"ds_read_b32 v{68+8*i}, v23 offset:{A2_H0+448-4+1024*i}")
    for i in range(4):
        b = 64 + 8 * i
        a(f"s_waitcnt lgkmcnt({2*(3-i)})")
        a(f"v_alignbit_b32 v{b+7}, v{b+3}, v{b+2}, 16")
        a(f"v_alignbit_b32 v{b+6}, v{b+2}, v{b+1}, 16")
        a(f"v_alignbit_b32 v{b+5}, v{b+1}, v{b}, 16")
        a(f"v_alignbit_b32 v{b+4}, v{b}, v{b+4}, 16")
        a(f"ds_write_b128 v23, v[{b+4}:{b+7}] offset:{A2_H1+448+1024*i}")
    a("v_and_b32 v10, 15, v1")
    a("v_lshrrev_b32 v11, 4, v1")
    a("v_lshrrev_b32 v12, 1, v10")
    a("v_lshlrev_b32 v12, 6, v12")
    a("v_lshlrev_b32 v13, 4, v11")
    a("v_add_u32 v12, v12, v13")
    a("v_and_b32 v13, 1, v10")
    a(f"v_mov_b32 v14, {A2_H1}")
    a(f"v_mov_b32 v15, {A2_H0}")
    a("v_cmp_eq_u32 vcc, 1, v13")
    a("v_lshrrev_b32 v13, 1, v10")
    a("v_and_b32 v13, 1, v13")
    a("v_cndmask_b32 v14, v14, v15, vcc")
    a("v_add3_u32 v2, v12, v14, s60")
    a("v_lshlrev_b32 v12, 3, v13")
    a("v_lshrrev_b32 v14, 2, v10")
    a("v_lshlrev_b32 v14, 4, v14")
    a("v_add_u32 v12, v12, v14")
    a("v_lshlrev_b32 v14, 4, v11")
    a("v_sub_u32 v12, v14, v12")
    a(f"v_add_u32 v12, {2*1820 - 512*7}, v12")
    a(f"v_mov_b32 v14, {A2_X2}")
    a(f"v_mov_b32 v15, {A2_X0}")
    a("v_cndmask_b32 v14, v14, v15, vcc")
    a("v_add3_u32 v3, v12, v14, s60")
    for i in range(32):
        a(f"v_mov_b32 v{32+i}, 0")
    a("s_waitcnt vmcnt(1)")
    for i in range(4):
        for d in range(4):
            a(f"ds_read_b32 v{96+4*i+d}, v23 offset:{A2_X0+1024*i+4*(d+1)}")
    for i in range(4):
        a(f"s_waitcnt lgkmcnt({4*(3-i)})")
        a(f"ds_write_b128 v23, v[{96+4*i}:{99+4*i}] offset:{A2_X2+1024*i}")
    a("s_waitcnt lgkmcnt(0)")
    T.stamp(a, 6)

    def reads(A, B):
        r = []
        for aa in range(8):
            r.append(f"ds_read_b128 v[{A+4*aa}:{A+4*aa+3}], v2 offset:{512*aa}")
            r.append(f"ds_read_b64 v[{B+4*aa}:{B+4*aa+1}], v3 offset:{512*(7-aa)}")
            r.append(f"ds_read_b64 v[{B+4*aa+2}:{B+4*aa+3}], v3 offset:{512*(7-aa)+8}")
        r.append("v_add_u32 v2, 64, v2")
        r.append("v_add_u32 v3, 64, v3")
        return r

    def mfmas(A, B):
        r = []
        for t in range(8):
            for aa in range(t + 1):
                u = t - aa
                ac = 32 + 4 * t
                r.append(f"v_mfma_f32_16x16x32_bf16 v[{ac}:{ac+3}], v[{A+4*aa}:{A+4*aa+3}], v[{B+4*u}:{B+4*u+3}], v[{ac}:{ac+3}]")
        return r

    def interleave(m, r):
        for i, x in enumerate(m):
            a(x)
            if i < len(r):
                a(r[i])

    for x in reads(64, 96):
        a(x)
    a("s_mov_b32 s40, 0")
    loop, last = a.newlabel("A2L"), a.newlabel("A2E")
    a.label(loop)
    a("s_waitcnt lgkmcnt(0)")
    interleave(mfmas(64, 96), reads(128, 160))
    a("s_waitcnt lgkmcnt(0)")
    a("s_mul_i32 s6, s40, 81920")
    for m in range(4):
        lq = a.newlabel("QL")
        a(f"s_cmp_lg_u32 s40, {m}")
        a(f"s_cbranch_scc1 {lq}")
        a(f"buffer_load_dwordx4 v[{192+4*m}:{195+4*m}], v8, s[32:35], s6 offen")
        a.label(lq)
    a("s_cmp_eq_u32 s40, 3")
    a(f"s_cbranch_scc1 {last}")
    interleave(mfmas(128, 160), reads(64, 96))
    a("s_add_u32 s40, s40, 1")
    a(f"s_branch {loop}")
    a.label(last)
    for x in mfmas(128, 160):
        a(x)
    T.stamp(a, 7)
    a("v_lshlrev_b32 v12, 5, v11")
    a("v_add_u32 v12, v12, v10")
    a("v_lshlrev_b32 v12, 2, v12")
    a("v_add_u32 v12, s60, v12")
    for tt in range(8):
        ac = 32 + 4 * tt
        d = 64 + 2 * tt
        a(f"v_cvt_pk_bf16_f32 v{d}, v{ac}, v{ac+1}")
        a(f"v_cvt_pk_bf16_f32 v{d+1}, v{ac+2}, v{ac+3}")
        a(f"ds_write_b32 v12, v{d} offset:{512*tt}")
        a(f"ds_write_b32 v12, v{d+1} offset:{512*tt+64}")
    a("v_lshrrev_b32 v13, 2, v1")
    a("v_and_b32 v13, 3, v13")
    a(f"v_mul_u32_u24 v13, {A2_CH}, v13")
    a("v_lshrrev_b32 v14, 4, v1")
    a("v_lshlrev_b32 v14, 5, v14")
    a("v_and_b32 v15, 3, v1")
    a("v_lshlrev_b32 v15, 3, v15")
    a("v_add3_u32 v13, v13, v14, v15")
    a("s_lshl_b32 s6, s3, 9")
    a("v_add_u32 v13, s6, v13")
    a(f"v_add_u32 v14, {4*A2_CH}, v13")
    srd(a, 36, P_OUT, 2048 * 2560)
    a("v_mul_u32_u24 v15, 2560, v9")
    a("v_add_u32 v15, s61, v15")
    a("s_waitcnt lgkmcnt(0)")
    a("s_barrier")
    T.stamp(a, 9)
    for m in range(4):
        a(f"ds_read_b64_tr_b16 v[{64+4*m}:{65+4*m}], v13 offset:{128*m}")
        a(f"ds_read_b64_tr_b16 v[{66+4*m}:{67+4*m}], v14 offset:{128*m}")
    a("s_waitcnt vmcnt(0)")
    a("s_mov_b32 s6, 0")
    no = OPT["nt_out"]
    for m in range(4):
        a(f"s_waitcnt lgkmcnt({2*(3-m)})")
        for i in range(4):
            y = 64 + 4 * m + i
            q = 192 + 4 * m + i
            tt = 80 + 4 * (i & 1)
            a(f"v_lshlrev_b32 v{tt}, 16, v{y}")
            a(f"v_and_b32 v{tt+1}, s57, v{y}")
            a(f"v_lshlrev_b32 v{tt+2}, 16, v{q}")
            a(f"v_and_b32 v{tt+3}, s57, v{q}")
            a(f"v_pk_mul_f32 v[{tt}:{tt+1}], v[{tt}:{tt+1}], v[{tt+2}:{tt+3}]")
            a(f"v_cvt_pk_bf16_f32 v{y}, v{tt}, v{tt+1}")
        a(f"buffer_store_dwordx4 v[{64+4*m}:{67+4*m}], v15, s[36:39], s6 offen {no}")
        if m < 3:
            a("s_add_u32 s6, s6, 163840")
    T.stamp(a, 10)


def kdesc(name, vgpr=256, sgpr=102):
    return f""".amdhsa_kernel {name}
  .amdhsa_next_free_vgpr {vgpr}
  .amdhsa_next_free_sgpr {sgpr}
  .amdhsa_accum_offset {vgpr}
  .amdhsa_group_segment_fixed_size 0
  .amdhsa_kernarg_size 96
  .amdhsa_user_sgpr_count 2
  .amdhsa_user_sgpr_kernarg_segment_ptr 1
  .amdhsa_system_sgpr_workgroup_id_x 1
  .amdhsa_float_denorm_mode_32 3
  .amdhsa_float_denorm_mode_16_64 3
.end_amdhsa_kernel
"""


def gen(ts=False):
    out = "; concat_heads( H3-style ssm conv , sliding local dilated attention ) -- hand-written streams emitted by a python generator\n"
    out += "; @launch grid=(256,1,1) block=(512,1,1) lds=163840\n"
    out += '.amdgcn_target "amdgcn-amd-amdhsa--gfx950"\n.text\n'
    a = Asm()
    T = TS(ts)
    T.init(a)
    T.stamp(a, 0)
    if OPT.get("dbgt"):
        a("s_memrealtime s[96:97]")
        a("s_waitcnt lgkmcnt(0)")
        a("s_mov_b32 s79, s96")
    a("s_cmp_ge_u32 s2, 256")
    a("s_cbranch_scc1 K_END")
    a("s_load_dwordx16 s[8:23], s[0:1], 0")
    a("s_load_dwordx8 s[24:31], s[0:1], 64")
    a("v_lshrrev_b32 v2, 6, v0")
    a("v_and_b32 v1, 63, v0")
    a("s_and_b32 s4, s2, 7")
    a("v_readfirstlane_b32 s3, v2")
    a("s_lshr_b32 s5, s2, 3")
    a("s_waitcnt lgkmcnt(0)")
    if OPT.get("codepf"):
        lab = a.newlabel("CPF")
        a("s_cmp_lg_u32 s3, 7")
        a(f"s_cbranch_scc1 {lab}")
        a("s_cmp_ge_u32 s5, 4")
        a(f"s_cbranch_scc1 {lab}")
        a("s_getpc_b64 s[32:33]")
        a("CPF_BASE:")
        a("s_and_b32 s32, s32, 0xffffff00")
        a("s_mov_b32 s34, 0x5b00")
        a("s_mov_b32 s35, 0x00020000")
        a("s_lshl_b32 s6, s5, 13")
        a("v_lshlrev_b32 v2, 7, v1")
        a("v_add_u32 v2, s6, v2")
        a("buffer_load_dword v254, v2, s[32:35], 0 offen")
        a.label(lab)
    role_decode(a)
    if OPT.get("only") == "A":
        a("s_branch K_END")
    b_program(a, T)
    a("s_branch K_FIN")
    a.label("A_ROLE")
    if OPT.get("only") == "B":
        a("s_branch K_END")
    a_program(a, T)
    a.label("K_FIN")
    if OPT.get("dbgt"):
        a("s_waitcnt vmcnt(0)")
        a("s_memrealtime s[96:97]")
        a("s_waitcnt lgkmcnt(0)")
        lab = a.newlabel("DBG")
        a("s_cmp_lg_u32 s3, 0")
        a(f"s_cbranch_scc1 {lab}")
        a("s_and_b32 s6, s2, 0x3f")
        a("s_cmp_lg_u32 s6, 0")
        a(f"s_cbranch_scc1 {lab}")
        srd(a, 92, P_DBG, 256)
        a("s_lshr_b32 s6, s2, 6")
        a("s_lshl_b32 s6, s6, 3")
        a("v_mov_b32 v2, s6")
        a("v_mov_b32 v4, s79")
        a("v_mov_b32 v5, s96")
        a("s_mov_b64 exec, 1")
        a("buffer_store_dwordx2 v[4:5], v2, s[92:95], 0 offen")
        a("s_waitcnt vmcnt(0)")
        a("s_mov_b64 exec, -1")
        a.label(lab)
    if ts:
        a("s_waitcnt vmcnt(0)")
        T.stamp(a, 15)
        T.flush(a)
    a.label("K_END")
    a("s_endpgm")
    out += f".globl {KNAME}\n.p2align 8\n.type {KNAME},@function\n{KNAME}:\n" + a.text()
    out += '.section .rodata,"a"\n.p2align 6\n' + kdesc(KNAME)
    return out


if __name__ == "__main__":
    mode = sys.argv[1] if len(sys.argv) > 1 else "plain"
    dst = sys.argv[2] if len(sys.argv) > 2 else "k4.s"
    for kv in sys.argv[3:]:
        k, v = kv.split("=")
        OPT[k] = v if k != "spin" else int(v)
    if mode == "tc":
        TS.INSTR = "s_memtime"
    open(dst, "w").write(gen(mode in ("ts", "tc")))
    print("wrote", dst)
```
